```python
import torch

def _softmax(x, axis=-1):
    return torch.softmax(x, dim=axis)

def _gelu(x):
    return torch.nn.functional.gelu(x, approximate='tanh')

def _silu(x):
    return torch.nn.functional.silu(x)

def _sigmoid(x):
    return torch.sigmoid(x)

def _layernorm(x, axis=-1, eps=1e-05):
    m = x.mean(dim=axis, keepdim=True)
    v = x.var(dim=axis, keepdim=True, unbiased=False)
    return (x - m) / torch.sqrt(v + eps)

def _scatter_add(tgt, idx, src, axis=0):
    return tgt.clone().index_add_(axis, idx, src)

def _segment_sum(src, seg, n):
    out = torch.zeros((n,) + src.shape[1:], dtype=src.dtype)
    return out.index_add_(0, seg, src)

def _pad(x, pw):
    flat = tuple((v for pair in reversed(pw) for v in pair))
    return torch.nn.functional.pad(x, flat)
kernel_name = 'adaLN_cond__mha_block_cached__glu_gated_glu__decode'

def setup_inputs():

    _w = lambda a: (lambda t: t.to(torch.bfloat16) if t.is_floating_point() else t)(torch.as_tensor(a))

    def _A_setup():
        B, Sq, D = (2, 1, 448)
        H, Sk, Dh = (16, 8192, 256)
        return {'x': _w((lambda *s: torch.randn(*s, dtype=torch.bfloat16) * 0.05)(B, Sq, D)), 'k_cache': _w((lambda *s: torch.randn(*s, dtype=torch.bfloat16) * 3.2)(B, H, Sk, Dh)), 'v_cache': _w((lambda *s: torch.randn(*s, dtype=torch.bfloat16) * 0.4)(B, H, Sk, Dh)), 'wq': _w((lambda *s: torch.randn(*s, dtype=torch.bfloat16) * 3.2)(D, H * Dh) * D ** (-0.5)), 'wo': _w((lambda *s: torch.randn(*s, dtype=torch.bfloat16) * 0.4)(H * Dh, D) * (H * Dh) ** (-0.5))}
    _A_in = _A_setup()

    def _B_setup():
        B, S, D, F = (2, 1, 448, 1792)
        return {'x': _w((lambda *s: torch.randn(*s, dtype=torch.bfloat16) * 0.05)(B, S, D)), 'w_gate': _w((lambda *s: torch.randn(*s, dtype=torch.bfloat16) * 0.05)(D, F)), 'w_up': _w((lambda *s: torch.randn(*s, dtype=torch.bfloat16) * 0.05)(D, F)), 'w_down': _w((lambda *s: torch.randn(*s, dtype=torch.bfloat16) * 0.05)(F, D))}
    _B_in = _B_setup()
    return {'A_x': _A_in['x'], 'A_k_cache': _A_in['k_cache'], 'A_v_cache': _A_in['v_cache'], 'A_wq': _A_in['wq'], 'A_wo': _A_in['wo'], 'B_x': _B_in['x'], 'B_w_gate': _B_in['w_gate'], 'B_w_up': _B_in['w_up'], 'B_w_down': _B_in['w_down'], 'c': _w((lambda *s: torch.randn(*s, dtype=torch.bfloat16) * 0.1)(2, 448) * 8.0), 'w_mod': _w((lambda *s: torch.randn(*s, dtype=torch.bfloat16) * 0.1)(448, 6 * 448) * 448 ** (-0.5) * 8.0)}

def reference(A_x, A_k_cache, A_v_cache, A_wq, A_wo, B_x, B_w_gate, B_w_up, B_w_down, c, w_mod):

    def _A_ref(x, k_cache, v_cache, wq, wo):
        B, Sq, D = x.shape
        H, Dh = (16, 256)
        q = (lambda x, *d: x.permute(*d))((x @ wq).reshape(B, Sq, H, Dh), 0, 2, 1, 3)
        scores = torch.einsum('bhqd,bhkd->bhqk', q, k_cache) * Dh ** (-0.5)
        p = _softmax(scores, axis=-1)
        o = torch.einsum('bhqk,bhkd->bhqd', p, v_cache)
        return (lambda x, *d: x.permute(*d))(o, 0, 2, 1, 3).reshape(B, Sq, H * Dh) @ wo

    def _B_ref(x, w_gate, w_up, w_down):
        g = torch.einsum('bsd,df->bsf', x, w_gate)
        u = torch.einsum('bsd,df->bsf', x, w_up)
        h = _sigmoid(g) * u
        return torch.einsum('bsf,fd->bsd', h, w_down)
    x = A_x
    mod = (_silu(c) @ w_mod).reshape(c.shape[0], 6, 1, -1)
    sa, ca, ga, sb, cb, gb = (mod[:, 0].clone(), mod[:, 1].clone(), mod[:, 2].clone(), mod[:, 3].clone(), mod[:, 4].clone(), mod[:, 5].clone())
    h = _layernorm(x, axis=-1) * (1 + ca) + sa
    x = x + ga * _A_ref(h, A_k_cache, A_v_cache, A_wq, A_wo)
    h = _layernorm(x, axis=-1) * (1 + cb) + sb
    x = x + gb * _B_ref(h, B_w_gate, B_w_up, B_w_down)
    return x
```

```python
import sys

KNAME = "adaLN_cond__mha_block_cached__glu_gated_glu__decode_kernel"

class Cfg:
    NS = 6
    NSTREAM = 192
    NHELP = 64
    P = 10
    DMIN = 4
    W1 = 16
    NG = 22
    STAMPS = False
    POLLMAX = 200000
    HEADS_STEP = 41
    NT = " nt"
    CODEPF = False
    STAMP_V = 28

WS_EPOCH = 0
WS_HEADS = 0x1000
WS_MOD = 0x4000
WS_QB = 0xA000
WS_X2 = 0x12000
WS_PART = 0x20000
WS_Y = 0x100000
WS_DN = 0x140000
WS_STAMP = 0x180000
WS_SIZE = 0x200000

ROWB = 1152
L_ACTS = 0
L_ACTH = 2 * ROWB
L_ACTO = 4 * ROWB
ROWO = 320
L_RED = 4 * ROWB + 2 * ROWO + 128
L_RED = (L_RED + 255) // 256 * 256
LDS_BYTES = L_RED + 8192
L_OW = 0
L_ML = 4096

LOG2E = 1.4426950408889634

import struct
def f2u(x):
    return struct.unpack("<I", struct.pack("<f", x))[0]

class G:
    def __init__(self):
        self.o = []
        self.nlab = 0
    def A(self, s):
        self.o.append("    " + s)
    def L(self, name):
        self.o.append(name + ":")
    def lab(self, base):
        self.nlab += 1
        return f"L_{base}_{self.nlab}"
    def C(self, s):
        self.o.append("    ; " + s)

def vr(b, n=1):
    return f"v{b}" if n == 1 else f"v[{b}:{b+n-1}]"
def ar(b, n=1):
    return f"a{b}" if n == 1 else f"a[{b}:{b+n-1}]"
def sr(b, n=1):
    return f"s{b}" if n == 1 else f"s[{b}:{b+n-1}]"

S_WG, S_WAVE, S_ROLE = 2, 3, 4
S_T0, S_T1, S_T2 = 5, 6, 7
SRD_A, SRD_B = 8, 12
P_X, P_K, P_V, P_WQ, P_WO, P_BX, P_WG, P_WU, P_WD, P_C, P_WMOD, P_OUT, P_DBG, P_WS = 16, 18, 20, 22, 24, 26, 28, 30, 32, 34, 36, 38, 40, 42
S_TAG, S_CNT = 44, 45
S_SAVE = 46
SRD_C = 48
SRD_WS = 52
S_OFF = 56
S_SEL0, S_SEL1 = 64, 65
S_MSK = 66
S_X0 = 74
S_STAMP = 96
S_STB = 98

def stamp(g, cfg, idx):
    if not cfg.STAMPS:
        return
    g.A(f"s_memrealtime s[{S_STAMP}:{S_STAMP+1}]")
    g.A("s_waitcnt lgkmcnt(0)")
    g.A(f"s_mov_b64 s[100:101], exec")
    g.A("s_mov_b64 exec, 1")
    sv = cfg.STAMP_V
    g.A(f"v_mov_b32 v{sv}, s{S_STAMP}")
    g.A(f"v_mov_b32 v{sv+1}, s{S_STAMP+1}")
    g.A(f"v_mov_b32 v{sv+2}, s{S_STB}")
    g.A(f"buffer_store_dwordx2 v[{sv}:{sv+1}], v{sv+2}, s[{SRD_WS}:{SRD_WS+3}], 0 offen offset:{idx*8}")
    g.A(f"s_mov_b64 exec, s[100:101]")

def set_srd(g, srd, ptr, off_sreg=None, nbytes=None, nbytes_sreg=None):
    if off_sreg is None:
        g.A(f"s_mov_b32 s{srd}, s{ptr}")
        g.A(f"s_mov_b32 s{srd+1}, s{ptr+1}")
    else:
        g.A(f"s_add_u32 s{srd}, s{ptr}, s{off_sreg}")
        g.A(f"s_addc_u32 s{srd+1}, s{ptr+1}, 0")
    if nbytes_sreg is not None:
        g.A(f"s_mov_b32 s{srd+2}, s{nbytes_sreg}")
    else:
        g.A(f"s_mov_b32 s{srd+2}, {nbytes}")
    g.A(f"s_mov_b32 s{srd+3}, 0x20000")

def make_tag(g, vreg):
    g.A(f"v_readfirstlane_b32 s{S_TAG}, v{vreg}")
    g.A("s_nop 3")
    g.A(f"s_mul_i32 s{S_TAG}, s{S_TAG}, 0x19660d")
    g.A(f"s_add_u32 s{S_TAG}, s{S_TAG}, 0x3c6ef35f")

def check_tags(g, tagregs, tmp, ok_label, set_vcc_only=False):
    g.A(f"v_xor_b32 v{tmp}, s{S_TAG}, v{tagregs[0]}")
    for r in tagregs[1:]:
        g.A(f"v_xor_b32 v{tmp+1}, s{S_TAG}, v{r}")
        g.A(f"v_or_b32 v{tmp}, v{tmp}, v{tmp+1}")
    g.A(f"v_cmp_ne_u32 vcc, 0, v{tmp}")
    g.A("s_nop 1")
    g.A(f"s_cbranch_vccz {ok_label}")

def poll_loop(g, cfg, emit_loads, tagregs, tmp, sleep=1):
    top = g.lab("poll"); ok = g.lab("pollok")
    g.A(f"s_mov_b32 s{S_CNT}, 0")
    g.L(top)
    emit_loads()
    g.A("s_waitcnt vmcnt(0)")
    check_tags(g, tagregs, tmp, ok)
    if sleep:
        g.A(f"s_sleep {sleep}")
    g.A(f"s_add_u32 s{S_CNT}, s{S_CNT}, 1")
    g.A(f"s_cmp_lt_u32 s{S_CNT}, {cfg.POLLMAX}")
    g.A(f"s_cbranch_scc1 {top}")
    g.L(ok)

def bf16_round_pairs(g, regs, tmp):
    for i in range(0, len(regs), 2):
        a, b = regs[i], regs[i + 1]
        g.A(f"v_cvt_pk_bf16_f32 v{tmp}, v{a}, v{b}")
        g.A(f"v_lshlrev_b32 v{a}, 16, v{tmp}")
        g.A(f"v_and_b32 v{b}, 0xffff0000, v{tmp}")

def unpack_pairs(g, src, dst):
    for i, s in enumerate(src):
        g.A(f"v_lshlrev_b32 v{dst[2*i]}, 16, v{s}")
        g.A(f"v_and_b32 v{dst[2*i+1]}, 0xffff0000, v{s}")

def wave_sum(g, regs, sdst, op="add"):
    ins = "v_add_f32_dpp" if op == "add" else "v_max_f32_dpp"
    steps = ["row_shr:1", "row_shr:2", "row_shr:4", "row_shr:8"]
    for st in steps:
        for r in regs:
            if op == "add":
                g.A(f"{ins} v{r}, v{r}, v{r} {st} row_mask:0xf bank_mask:0xf bound_ctrl:0")
            else:
                g.A(f"{ins} v{r}, v{r}, v{r} {st} row_mask:0xf bank_mask:0xf")
        if len(regs) < 3:
            g.A(f"s_nop {2 - len(regs)}" if len(regs) < 3 else "s_nop 0")
    for st, rm in (("row_bcast:15", "0xa"), ("row_bcast:31", "0xc")):
        for r in regs:
            g.A(f"{ins} v{r}, v{r}, v{r} {st} row_mask:{rm} bank_mask:0xf")
        g.A("s_nop 1")
    for r, s in zip(regs, sdst):
        g.A(f"v_readlane_b32 s{s}, v{r}, 63")

def emit_streamer(g, cfg):
    NG, P, DMIN, W1 = cfg.NG, cfg.P, cfg.DMIN, cfg.W1
    NT = cfg.NT
    V_LANE = 0
    V_OFFK, V_OFFV = 1, 2
    V_M = 3
    V_EP = 7
    V_BQ = 8
    V_S = 40
    V_MAX, V_L = 62, 63
    V_ACC = 64
    V_O = 72
    V_B = 80
    V_T = 88
    V_QL = 96
    V_QOFF = 112
    V_RING2 = 128
    R = P * 8
    NA = min(R, 64)
    assert V_RING2 + 4 * (R - NA) <= 252
    def slot(n):
        s = n % R
        if s < 64:
            return ar(4 * s, 4)
        return vr(V_RING2 + 4 * (s - 64), 4)

    g.L("L_stream")
    g.C("bh = w/6, s = w%6")
    g.A(f"s_mul_hi_u32 s{S_T0}, s{S_WG}, 0x2aaaaaab")
    g.A(f"s_mul_i32 s{S_T1}, s{S_T0}, 6")
    g.A(f"s_sub_u32 s{S_T1}, s{S_WG}, s{S_T1}")
    g.A(f"s_lshl_b32 s{S_T2}, s{S_T1}, 8")
    g.A(f"s_mul_hi_u32 s{S_X0}, s{S_T2}, 0x55555556")
    g.A(f"s_add_u32 s{S_T2}, s{S_T2}, 256")
    g.A(f"s_mul_hi_u32 s{S_X0+1}, s{S_T2}, 0x55555556")
    g.A(f"s_sub_u32 s{S_X0+1}, s{S_X0+1}, s{S_X0}")
    g.A(f"s_lshl_b32 s{S_X0+2}, s{S_T0}, 22")
    g.A(f"s_lshl_b32 s{S_X0+3}, s{S_X0}, 13")
    g.A(f"s_add_u32 s{S_X0+2}, s{S_X0+2}, s{S_X0+3}")
    g.A(f"s_lshl_b32 s{S_X0+3}, s{S_X0+1}, 13")
    set_srd(g, SRD_A, P_K, off_sreg=S_X0 + 2, nbytes_sreg=S_X0 + 3)
    set_srd(g, SRD_B, P_V, off_sreg=S_X0 + 2, nbytes_sreg=S_X0 + 3)
    S_BH = S_X0 + 4
    g.A(f"s_mov_b32 s{S_BH}, s{S_T0}")
    S_BIAS = S_X0 + 5
    g.A(f"s_add_u32 s{S_T1}, s{S_WAVE}, {4*(NG-1)}")
    g.A(f"s_cmp_lt_u32 s{S_T1}, s{S_X0+1}")
    g.A(f"s_cselect_b32 s{S_BIAS}, 0, 0xff800000")
    T = V_T
    g.A(f"s_lshl_b32 s{S_T1}, s{S_WAVE}, 13")
    g.A(f"v_lshrrev_b32 v{T}, 2, v{V_LANE}")
    g.A(f"v_and_b32 v{T}, 3, v{T}")
    g.A(f"v_lshlrev_b32 v{V_OFFK}, 9, v{T}")
    g.A(f"v_lshrrev_b32 v{T+1}, 4, v{V_LANE}")
    g.A(f"v_lshl_add_u32 v{V_OFFK}, v{T+1}, 6, v{V_OFFK}")
    g.A(f"v_and_b32 v{T+2}, 3, v{V_LANE}")
    g.A(f"v_lshl_add_u32 v{V_OFFK}, v{T+2}, 4, v{V_OFFK}")
    g.A(f"v_add_u32 v{V_OFFK}, s{S_T1}, v{V_OFFK}")
    g.A(f"v_lshlrev_b32 v{V_OFFV}, 9, v{T+1}")
    g.A(f"v_and_b32 v{T+3}, 15, v{V_LANE}")
    g.A(f"v_lshl_add_u32 v{V_OFFV}, v{T+3}, 4, v{V_OFFV}")
    g.A(f"v_add_u32 v{V_OFFV}, s{S_T1}, v{V_OFFV}")

    S_SO = S_OFF
    def issue_group(gi):
        isv = gi >= NG
        i = gi - NG if isv else gi
        srd = SRD_B if isv else SRD_A
        voff = V_OFFV if isv else V_OFFK
        for half in range(2):
            g.A(f"s_mov_b32 s{S_SO+half}, {i*32768 + half*4096}")
        for a in range(4):
            for dh in range(2):
                n = gi * 8 + a * 2 + dh
                imm = (a & 1) * 2048 + dh * 256
                g.A(f"buffer_load_dwordx4 {slot(n)}, v{voff}, s[{srd}:{srd+3}], s{S_SO + (a >> 1)} offen offset:{imm}{NT}")

    issue_group(0)
    issue_group(1)
    stamp(g, cfg, 1)
    g.C("PV masks M_t")
    g.A(f"v_and_b32 v{T}, 7, v{V_LANE}")
    g.A(f"v_lshrrev_b32 v{T+1}, 1, v{T}")
    g.A(f"v_and_b32 v{T+2}, 1, v{V_LANE}")
    g.A(f"v_mov_b32 v{T+3}, 0xffff")
    g.A(f"v_mov_b32 v{T+4}, 0xffff0000")
    g.A(f"v_cmp_eq_u32 vcc, 1, v{T+2}")
    g.A("s_nop 1")
    g.A(f"v_cndmask_b32 v{T+3}, v{T+3}, v{T+4}, vcc")
    for t in range(4):
        g.A(f"v_cmp_eq_u32 vcc, {t}, v{T+1}")
        g.A("s_nop 1")
        g.A(f"v_cndmask_b32 v{V_M+t}, 0, v{T+3}, vcc")
    for a in range(4):
        m = 0x000F000F << (4 * a)
        g.A(f"s_mov_b32 s{S_MSK+2*a}, {m:#x}")
        g.A(f"s_mov_b32 s{S_MSK+2*a+1}, {m:#x}")
    g.A(f"v_lshrrev_b32 v{T}, 4, v{V_LANE}")
    g.A(f"v_and_b32 v{T+1}, 3, v{V_LANE}")
    g.A(f"v_lshl_add_u32 v{T}, v{T}, 2, v{T+1}")
    g.A(f"v_lshlrev_b32 v{V_QOFF}, 5, v{T}")
    S_QB = S_X0 + 6
    g.C("q base: WS_QB + (b*2048 + h*128)*8 ; bh = b*16+h")
    g.A(f"s_lshr_b32 s{S_T0}, s{S_BH}, 4")
    g.A(f"s_and_b32 s{S_T1}, s{S_BH}, 15")
    g.A(f"s_lshl_b32 s{S_T0}, s{S_T0}, 14")
    g.A(f"s_lshl_b32 s{S_T1}, s{S_T1}, 10")
    g.A(f"s_add_u32 s{S_QB}, s{S_T0}, s{S_T1}")
    g.A(f"s_add_u32 s{S_QB}, s{S_QB}, {WS_QB}")
    def q_loads():
        for dh in range(2):
            for k in range(2):
                g.A(f"buffer_load_dwordx4 {vr(V_QL + (dh*2+k)*4, 4)}, v{V_QOFF}, s[{SRD_WS}:{SRD_WS+3}], s{S_QB} offen offset:{dh*512 + k*16} sc1")
    QAT = P - 2
    for gi in range(2, P):
        if gi == QAT:
            q_loads()
        g.A(f"s_waitcnt vmcnt({W1 - 8})")
        if gi == 2:
            make_tag(g, V_EP)
        issue_group(gi)
    stamp(g, cfg, 2)
    tagregs = [V_QL + k * 4 + o for k in range(4) for o in (1, 3)]
    okq = g.lab("qok")
    g.A(f"s_waitcnt vmcnt({(P - QAT) * 8})")
    check_tags(g, tagregs, T, okq)
    poll_loop(g, cfg, q_loads, tagregs, T, sleep=2)
    g.L(okq)
    stamp(g, cfg, 3)
    for a in range(4):
        for dh in range(2):
            src = [V_QL + (dh * 2) * 4, V_QL + (dh * 2) * 4 + 2, V_QL + (dh * 2 + 1) * 4, V_QL + (dh * 2 + 1) * 4 + 2]
            for r in range(4):
                g.A(f"v_cndmask_b32 v{V_BQ + (a*2+dh)*4 + r}, 0, v{src[r]}, s[{S_MSK+2*a}:{S_MSK+2*a+1}]")
    g.A(f"v_mov_b32 v{V_MAX}, 0xff800000")
    g.A("s_nop 1")

    NTOT = 2 * NG
    def I(gi):
        return min(NTOT, max(P, gi + DMIN))
    CSC = f2u(0.0625 * LOG2E)
    for gi in range(NTOT):
        n_after = 8 * (I(gi) - gi - 1)
        g.A(f"s_waitcnt vmcnt({min(63, n_after)})")
        if gi < NG:
            acc = V_ACC + 4 * (gi & 1)
            for a in range(4):
                for dh in range(2):
                    n = gi * 8 + a * 2 + dh
                    c = "0" if (a == 0 and dh == 0) else vr(acc, 4)
                    g.A(f"v_mfma_f32_16x16x32_bf16 {vr(acc,4)}, {slot(n)}, {vr(V_BQ + (a*2+dh)*4, 4)}, {c}")
            nissue = I(gi + 1) - I(gi) if gi + 1 < NTOT else 0
            for x in range(nissue):
                issue_group(I(gi) + x)
            if nissue == 0:
                g.A("s_nop 7")
            S = V_S + gi
            g.A(f"v_mov_b32_dpp v{S}, v{acc} quad_perm:[0,0,0,0] row_mask:0xf bank_mask:0xf")
            for p in range(1, 4):
                g.A(f"v_add_f32_dpp v{S}, v{acc+p}, v{S} quad_perm:[{p},{p},{p},{p}] row_mask:0xf bank_mask:0xf")
            g.A(f"v_cvt_pk_bf16_f32 v{T}, v{S}, v{S}")
            if gi == NG - 1:
                g.A(f"v_lshlrev_b32 v{S}, 16, v{T}")
                g.A(f"v_add_f32 v{S}, s{S_BIAS}, v{S}")
            else:
                g.A(f"v_lshlrev_b32 v{S}, 16, v{T}")
            g.A(f"v_max_f32 v{V_MAX}, v{V_MAX}, v{S}")
            if gi == NG - 1:
                g.C("softmax over this wave's keys")
                g.A("s_nop 1")
                for st in ("row_ror:4", "row_ror:8"):
                    g.A(f"v_max_f32_dpp v{V_MAX}, v{V_MAX}, v{V_MAX} {st} row_mask:0xf bank_mask:0xf")
                    g.A("s_nop 1")
                for st, rm in (("row_bcast:15", "0xa"), ("row_bcast:31", "0xc")):
                    g.A(f"v_max_f32_dpp v{V_MAX}, v{V_MAX}, v{V_MAX} {st} row_mask:{rm} bank_mask:0xf")
                    g.A("s_nop 1")
                g.A(f"v_readlane_b32 s{S_T0}, v{V_MAX}, 63")
                g.A(f"s_mov_b32 s{S_X0+7}, {CSC:#x}")
                g.A("s_nop 1")
                g.A(f"v_mov_b32 v{V_MAX}, s{S_T0}")
                g.A(f"v_mul_f32 v{V_MAX}, s{S_X0+7}, v{V_MAX}")
                g.A(f"v_mov_b32 v{V_L}, 0")
                for i in range(NG):
                    g.A(f"v_fma_f32 v{V_S+i}, v{V_S+i}, s{S_X0+7}, -v{V_MAX}")
                for i in range(NG):
                    g.A(f"v_exp_f32 v{V_S+i}, v{V_S+i}")
                g.A("s_nop 0")
                for i in range(NG):
                    g.A(f"v_add_f32 v{V_L}, v{V_L}, v{V_S+i}")
                    g.A(f"v_cvt_pk_bf16_f32 v{V_S+i}, v{V_S+i}, v{V_S+i}")
                g.A("s_nop 1")
                for st in ("row_ror:4", "row_ror:8"):
                    g.A(f"v_add_f32_dpp v{V_L}, v{V_L}, v{V_L} {st} row_mask:0xf bank_mask:0xf")
                    g.A("s_nop 1")
                for st, rm in (("row_bcast:15", "0xa"), ("row_bcast:31", "0xc")):
                    g.A(f"v_add_f32_dpp v{V_L}, v{V_L}, v{V_L} {st} row_mask:{rm} bank_mask:0xf")
                    g.A("s_nop 1")
                g.A(f"v_readlane_b32 s{S_X0+8}, v{V_L}, 63")
                stamp(g, cfg, 4)
        else:
            i = gi - NG
            Pi = V_S + i
            def build(a):
                bb = V_B + 4 * (a & 1)
                for t in range(4):
                    g.A(f"v_and_b32_dpp v{bb+t}, v{Pi}, v{V_M+t} row_newbcast:{4*a} row_mask:0xf bank_mask:0xf")
            build(0)
            for a in range(4):
                if a < 3:
                    build(a + 1)
                else:
                    g.A("s_nop 1")
                bb = V_B + 4 * (a & 1)
                for dh in range(2):
                    n = gi * 8 + a * 2 + dh
                    acc = V_O + 4 * dh
                    c = "0" if (i == 0 and a == 0) else vr(acc, 4)
                    g.A(f"v_mfma_f32_16x16x32_bf16 {vr(acc,4)}, {slot(n)}, {vr(bb,4)}, {c}")
            nissue = I(gi + 1) - I(gi) if gi + 1 < NTOT else 0
            for x in range(nissue):
                issue_group(I(gi) + x)
        if gi == cfg.HEADS_STEP:
            skip = g.lab("nohead")
            g.A(f"s_cmp_lg_u32 s{S_WAVE}, 0")
            g.A(f"s_cbranch_scc1 {skip}")
            g.A(f"s_lshl_b32 s{S_T0}, s{S_WG}, 6")
            g.A(f"s_add_u32 s{S_T0}, s{S_T0}, {WS_HEADS}")
            g.A(f"v_mov_b32 v{T}, s{S_TAG}")
            g.A(f"v_mov_b32 v{T+1}, s{S_TAG}")
            g.A(f"v_mov_b32 v{T+2}, 0")
            g.A("s_mov_b64 exec, 1")
            g.A(f"buffer_store_dwordx2 v[{T}:{T+1}], v{T+2}, s[{SRD_WS}:{SRD_WS+3}], s{S_T0} offen sc1")
            g.A("s_mov_b64 exec, -1")
            g.L(skip)
    stamp(g, cfg, 5)
    g.C("workgroup combine")
    g.A(f"v_and_b32 v{T}, 8, v{V_LANE}")
    g.A(f"v_cmp_ne_u32 vcc, 0, v{T}")
    g.A(f"v_lshlrev_b32 v{T+1}, 4, v{T}")
    g.A(f"v_lshrrev_b32 v{T+2}, 4, v{V_LANE}")
    g.A(f"v_lshl_add_u32 v{T+1}, v{T+2}, 5, v{T+1}")
    g.A(f"v_and_b32 v{T+2}, 7, v{V_LANE}")
    g.A(f"v_add_u32 v{T+1}, v{T+1}, v{T+2}")
    g.A(f"s_lshl_b32 s{S_T0}, s{S_WAVE}, 8")
    g.A(f"v_add_u32 v{T+1}, s{S_T0}, v{T+1}")
    g.A(f"v_lshlrev_b32 v{T+1}, 2, v{T+1}")
    g.A("s_nop 4")
    for r in range(4):
        g.A(f"v_cndmask_b32 v{T+2}, v{V_O+r}, v{V_O+4+r}, vcc")
        g.A(f"ds_write_b32 v{T+1}, v{T+2} offset:{L_OW + r*32}")
    g.A(f"s_lshl_b32 s{S_T0}, s{S_WAVE}, 2")
    g.A(f"v_mov_b32 v{T+3}, s{S_T0}")
    g.A(f"v_mov_b32 v{T+4}, s{S_X0+8}")
    g.A("s_mov_b64 exec, 1")
    g.A(f"ds_write_b32 v{T+3}, v{V_MAX} offset:{L_ML}")
    g.A(f"ds_write_b32 v{T+3}, v{T+4} offset:{L_ML+16}")
    g.A("s_mov_b64 exec, -1")
    g.A("s_waitcnt lgkmcnt(0)")
    g.A("s_barrier")
    g.A(f"s_lshl_b32 s{S_T0}, s{S_WAVE}, 6")
    g.A(f"v_add_u32 v{T}, s{S_T0}, v{V_LANE}")
    g.A(f"v_lshlrev_b32 v{T+1}, 2, v{T}")
    g.A(f"v_mov_b32 v{T+2}, 0")
    Q = V_QL
    g.A(f"ds_read_b128 {vr(Q,4)}, v{T+2} offset:{L_ML}")
    g.A(f"ds_read_b128 {vr(Q+4,4)}, v{T+2} offset:{L_ML+16}")
    for w in range(4):
        g.A(f"ds_read_b32 v{Q+8+w}, v{T+1} offset:{L_OW + w*1024}")
    g.A("s_waitcnt lgkmcnt(4)")
    g.A(f"v_max_f32 v{T+3}, v{Q}, v{Q+1}")
    g.A(f"v_max3_f32 v{T+3}, v{Q+2}, v{Q+3}, v{T+3}")
    for w in range(4):
        g.A(f"v_sub_f32 v{Q+w}, v{Q+w}, v{T+3}")
    for w in range(4):
        g.A(f"v_exp_f32 v{Q+w}, v{Q+w}")
    g.A("s_nop 0")
    g.A(f"v_mul_f32 v{T+4}, v{Q}, v{Q+4}")
    for w in range(1, 4):
        g.A(f"v_fmac_f32 v{T+4}, v{Q+w}, v{Q+4+w}")
    g.A("s_waitcnt lgkmcnt(0)")
    g.A(f"v_mul_f32 v{Q+12}, v{Q}, v{Q+8}")
    for w in range(1, 4):
        g.A(f"v_fmac_f32 v{Q+12}, v{Q+w}, v{Q+8+w}")
    g.A(f"v_mov_b32 v{Q+13}, s{S_TAG}")
    g.A(f"s_lshl_b32 s{S_T0}, s{S_WG}, 12")
    g.A(f"s_add_u32 s{S_T0}, s{S_T0}, {WS_PART}")
    g.A(f"v_lshlrev_b32 v{T+1}, 3, v{T}")
    g.A(f"buffer_store_dwordx2 {vr(Q+12,2)}, v{T+1}, s[{SRD_WS}:{SRD_WS+3}], s{S_T0} offen sc1")
    skip = g.lab("noml")
    g.A(f"s_cmp_lg_u32 s{S_WAVE}, 0")
    g.A(f"s_cbranch_scc1 {skip}")
    g.A(f"v_mov_b32 v{Q}, v{T+3}")
    g.A(f"v_mov_b32 v{Q+1}, s{S_TAG}")
    g.A(f"v_mov_b32 v{Q+2}, v{T+4}")
    g.A(f"v_mov_b32 v{Q+3}, s{S_TAG}")
    g.A("s_mov_b64 exec, 1")
    g.A(f"buffer_store_dwordx4 {vr(Q,4)}, v{T+2}, s[{SRD_WS}:{SRD_WS+3}], s{S_T0} offen offset:2048 sc1")
    g.L(skip)
    stamp(g, cfg, 6)
    g.A("s_endpgm")

H_LANE = 0
H_T = 2
H_LN = 16
H_SC = 24
H_ACC = 32
H_FR = 64
H_FT = 128
H_ST = 192

def transpose_unit(g, src, dst, dst_acc=False, tmp=None):
    for c in range(4):
        for o in range(2):
            m = 2 * c + o
            for t in range(4):
                sel = S_SEL0 if o == 0 else S_SEL1
                s_lo = src + (2 * t) * 4 + c
                s_hi = src + (2 * t + 1) * 4 + c
                if dst_acc:
                    g.A(f"v_perm_b32 v{tmp + (t & 1)}, v{s_hi}, v{s_lo}, s{sel}")
                    g.A(f"v_accvgpr_write_b32 a{dst + m*4 + t}, v{tmp + (t & 1)}")
                else:
                    g.A(f"v_perm_b32 v{dst + m*4 + t}, v{s_hi}, v{s_lo}, s{sel}")

def unit_loads(g, dst, srd, voff, soffs, flags):
    for e in range(8):
        g.A(f"s_mov_b32 s{S_T0}, {soffs[e]}")
        g.A(f"buffer_load_dwordx4 {vr(dst + 4*e, 4)}, v{voff}, s[{srd}:{srd+3}], s{S_T0} offen{flags}")

def mfma8(g, afrag, frag, first, frag_acc=False):
    for m in range(8):
        acc = H_ACC + 4 * m
        c = "0" if first else vr(acc, 4)
        b = ar(frag + 4 * m, 4) if frag_acc else vr(frag + 4 * m, 4)
        g.A(f"v_mfma_f32_16x16x32_bf16 {vr(acc,4)}, {vr(afrag,4)}, {b}, {c}")

def red_write(g, vaddr):
    for m in range(8):
        g.A(f"ds_write_b32 v{vaddr}, v{H_ACC + 4*m} offset:{m*256}")

def red_read(g, va, vb, dst):
    for w in range(4):
        g.A(f"ds_read2st64_b32 {vr(dst + 2*w, 2)}, v{va} offset0:{w*8} offset1:{w*8+1}")
        g.A(f"ds_read2st64_b32 {vr(dst + 8 + 2*w, 2)}, v{vb} offset0:{w*8} offset1:{w*8+1}")
    g.A("s_waitcnt lgkmcnt(0)")
    for base in (dst, dst + 8):
        for o in range(2):
            g.A(f"v_add_f32 v{base+o}, v{base+o}, v{base+2+o}")
            g.A(f"v_add_f32 v{base+4+o}, v{base+4+o}, v{base+6+o}")
        for o in range(2):
            g.A(f"v_add_f32 v{base+o}, v{base+o}, v{base+4+o}")

def ln_normalize(g, x, out, tmp):
    sA, sB = S_X0 + 10, S_X0 + 11
    t0, t1 = tmp, tmp + 1
    g.A(f"v_add_f32 v{t0}, v{x}, v{x+1}")
    g.A(f"v_add_f32 v{t1}, v{x+2}, v{x+3}")
    g.A(f"v_add_f32 v{t0}, v{t0}, v{x+4}")
    g.A(f"v_add_f32 v{t1}, v{t1}, v{x+5}")
    g.A(f"v_add_f32 v{t0}, v{t0}, v{x+6}")
    g.A(f"v_add_f32 v{t1}, v{t1}, v{x+7}")
    g.A(f"v_add_f32 v{t0}, v{t0}, v{t1}")
    g.A("s_nop 1")
    wave_sum(g, [t0], [sA])
    g.A(f"v_mov_b32 v{t1}, {f2u(1.0/448.0):#x}")
    g.A("s_nop 0")
    g.A(f"v_mul_f32 v{t1}, s{sA}, v{t1}")
    for e in range(8):
        g.A(f"v_sub_f32 v{out+e}, v{x+e}, v{t1}")
    g.A(f"v_mul_f32 v{t0}, v{out}, v{out}")
    for e in range(1, 8):
        g.A(f"v_fmac_f32 v{t0}, v{out+e}, v{out+e}")
    g.A(f"v_cmp_gt_u32 vcc, 56, v{H_LANE}")
    g.A("s_nop 1")
    g.A(f"v_cndmask_b32 v{t0}, 0, v{t0}, vcc")
    g.A("s_nop 1")
    wave_sum(g, [t0], [sB])
    g.A(f"v_mov_b32 v{t0}, {f2u(1.0/448.0):#x}")
    g.A("s_nop 0")
    g.A(f"v_mul_f32 v{t0}, s{sB}, v{t0}")
    g.A(f"v_cvt_pk_bf16_f32 v{tmp+2}, v{t1}, v{t0}")
    g.A(f"v_lshlrev_b32 v{t1}, 16, v{tmp+2}")
    g.A(f"v_and_b32 v{t0}, 0xffff0000, v{tmp+2}")
    g.A(f"v_add_f32 v{t0}, {f2u(1e-5):#x}, v{t0}")
    g.A(f"v_cvt_pk_bf16_f32 v{t0}, v{t0}, v{t0}")
    g.A(f"v_lshlrev_b32 v{t0}, 16, v{t0}")
    g.A(f"v_sqrt_f32 v{t0}, v{t0}")
    g.A("s_nop 0")
    g.A(f"v_cvt_pk_bf16_f32 v{t0}, v{t0}, v{t0}")
    g.A(f"v_lshlrev_b32 v{t0}, 16, v{t0}")
    g.A(f"v_rcp_f32 v{t0}, v{t0}")
    for e in range(8):
        g.A(f"v_sub_f32 v{out+e}, v{x+e}, v{t1}")
    bf16_round_pairs(g, [out + e for e in range(8)], tmp + 2)
    for e in range(8):
        g.A(f"v_mul_f32 v{out+e}, v{out+e}, v{t0}")
    bf16_round_pairs(g, [out + e for e in range(8)], tmp + 2)

def exec56(g):
    g.A("s_mov_b32 exec_lo, -1")
    g.A("s_mov_b32 exec_hi, 0x00ffffff")
def exec_all(g):
    g.A("s_mov_b64 exec, -1")

def gather_shift_scale(g, cfg, sbase, voff, ld, shift, scale1, tmp):
    def loads():
        for k, imm in enumerate((0, 16, 1792, 1808)):
            g.A(f"buffer_load_dwordx4 {vr(ld + 4*k, 4)}, v{voff}, s[{SRD_WS}:{SRD_WS+3}], s{sbase} offen offset:{imm} sc1")
    tags = [ld + 4 * k + o for k in range(4) for o in (1, 3)]
    poll_loop(g, cfg, loads, tags, tmp, sleep=1)
    unpack_pairs(g, [ld, ld + 2, ld + 4, ld + 6], [shift + e for e in range(8)])
    unpack_pairs(g, [ld + 8, ld + 10, ld + 12, ld + 14], [scale1 + e for e in range(8)])
    for e in range(8):
        g.A(f"v_add_f32 v{scale1+e}, 1.0, v{scale1+e}")
    bf16_round_pairs(g, [scale1 + e for e in range(8)], tmp)

def modulate_write(g, ln, shift, scale1, vaddr, ldsoff, tmp):
    for e in range(8):
        g.A(f"v_mul_f32 v{ln+e}, v{ln+e}, v{scale1+e}")
    bf16_round_pairs(g, [ln + e for e in range(8)], tmp)
    for e in range(8):
        g.A(f"v_add_f32 v{ln+e}, v{ln+e}, v{shift+e}")
    for k in range(4):
        g.A(f"v_cvt_pk_bf16_f32 v{tmp+k}, v{ln+2*k}, v{ln+2*k+1}")
    g.A(f"ds_write_b128 v{vaddr}, {vr(tmp,4)} offset:{ldsoff}")

def emit_helper(g, cfg):
    NT = cfg.NT
    T = H_T
    WSR = f"s[{SRD_WS}:{SRD_WS+3}]"
    g.L("L_helper")
    g.A(f"s_sub_u32 s{S_ROLE}, s{S_WG}, {cfg.NSTREAM}")
    g.A(f"s_mov_b32 s{S_SEL0}, 0x05040100")
    g.A(f"s_mov_b32 s{S_SEL1}, 0x07060302")
    V_L16 = 16
    V_WOFF64 = 17
    V_WOFFQ = 18
    V_AF64 = 19
    V_RW = 20
    V_RA, V_RB = 21, 22
    V_ACTW = 23
    V_G32 = 24
    V_X = 112
    HLN, HSH, HSC, HLD = 160, 168, 176, 144
    g.A(f"v_lshlrev_b32 v{V_L16}, 4, v{H_LANE}")
    g.A(f"v_lshlrev_b32 v{V_G32}, 5, v{H_LANE}")
    g.A(f"s_and_b32 s{S_X0}, s{S_WAVE}, 1")
    S_B = S_X0
    g.A(f"s_mul_i32 s{S_T1}, s{S_B}, 896")
    set_srd(g, SRD_C, P_C, nbytes=1792)
    set_srd(g, SRD_A, P_X, nbytes=1792)
    exec56(g)
    g.A(f"buffer_load_dwordx4 {vr(HLD,4)}, v{V_L16}, s[{SRD_C}:{SRD_C+3}], s{S_T1} offen")
    g.A(f"buffer_load_dwordx4 {vr(HLD+4,4)}, v{V_L16}, s[{SRD_A}:{SRD_A+3}], s{S_T1} offen")
    exec_all(g)
    g.A(f"v_lshrrev_b32 v{T}, 3, v{H_LANE}")
    g.A(f"v_and_b32 v{T}, 1, v{T}")
    g.A(f"v_lshrrev_b32 v{T+1}, 4, v{H_LANE}")
    g.A(f"v_lshlrev_b32 v{T+2}, 5, v{T}")
    g.A(f"v_lshl_add_u32 v{T+2}, v{T+1}, 3, v{T+2}")
    g.A(f"s_lshl_b32 s{S_T0}, s{S_WAVE}, 6")
    g.A(f"v_add_u32 v{T+2}, s{S_T0}, v{T+2}")
    g.A(f"v_and_b32 v{T+3}, 7, v{H_LANE}")
    g.A(f"v_lshlrev_b32 v{T+3}, 4, v{T+3}")
    g.A(f"s_mov_b32 s{S_T0}, 5376")
    g.A(f"v_mul_lo_u32 v{V_WOFF64}, v{T+2}, s{S_T0}")
    g.A(f"v_add_u32 v{V_WOFF64}, v{V_WOFF64}, v{T+3}")
    g.A(f"v_lshl_add_u32 v{V_WOFFQ}, v{T+2}, 13, v{T+3}")
    g.A(f"s_lshl_b32 s{S_T2}, s{S_ROLE}, 7")
    g.A(f"s_sub_u32 s{S_X0+1}, {448*5376}, s{S_T2}")
    set_srd(g, SRD_A, P_WMOD, off_sreg=S_T2, nbytes_sreg=S_X0 + 1)
    g.A(f"s_sub_u32 s{S_X0+1}, {448*8192}, s{S_T2}")
    set_srd(g, SRD_B, P_WQ, off_sreg=S_T2, nbytes_sreg=S_X0 + 1)
    nom = g.lab("nomload")
    g.A(f"s_cmp_ge_u32 s{S_ROLE}, 42")
    g.A(f"s_cbranch_scc1 {nom}")
    for it in range(2):
        unit_loads(g, H_FR + 32 * it, SRD_A, V_WOFF64, [e * 5376 + it * 256 * 5376 for e in range(8)], NT)
    g.L(nom)
    for it in range(2):
        unit_loads(g, H_ST + 32 * it, SRD_B, V_WOFFQ, [e * 8192 + it * 256 * 8192 for e in range(8)], NT)
    stamp(g, cfg, 1)
    g.A(f"v_lshrrev_b32 v{T+3}, 2, v{H_LANE}")
    g.A(f"v_and_b32 v{T+3}, 1, v{T+3}")
    g.A(f"v_mul_u32_u24 v{V_AF64}, {ROWB}, v{T+3}")
    g.A(f"v_lshl_add_u32 v{V_AF64}, v{T}, 6, v{V_AF64}")
    g.A(f"v_lshl_add_u32 v{V_AF64}, v{T+1}, 4, v{V_AF64}")
    g.A(f"s_lshl_b32 s{S_T0}, s{S_WAVE}, 7")
    g.A(f"v_add_u32 v{V_AF64}, s{S_T0}, v{V_AF64}")
    g.A(f"s_lshl_b32 s{S_T0}, s{S_WAVE}, 11")
    g.A(f"s_add_u32 s{S_T0}, s{S_T0}, {L_RED}")
    g.A(f"v_lshlrev_b32 v{V_RW}, 2, v{H_LANE}")
    g.A(f"v_add_u32 v{V_RW}, s{S_T0}, v{V_RW}")
    g.A(f"v_and_b32 v{T+4}, 3, v{H_LANE}")
    g.A(f"v_lshlrev_b32 v{V_RA}, 9, v{T+4}")
    g.A(f"v_lshrrev_b32 v{T+4}, 5, v{H_LANE}")
    g.A(f"v_lshl_add_u32 v{V_RA}, v{T+4}, 6, v{V_RA}")
    g.A(f"v_lshrrev_b32 v{T+4}, 2, v{H_LANE}")
    g.A(f"v_and_b32 v{T+4}, 7, v{T+4}")
    g.A(f"v_lshl_add_u32 v{V_RA}, v{T+4}, 2, v{V_RA}")
    g.A(f"v_add_u32 v{V_RA}, {L_RED}, v{V_RA}")
    g.A(f"v_add_u32 v{V_RB}, 160, v{V_RA}")
    g.A(f"s_mul_i32 s{S_T0}, s{S_B}, {ROWB}")
    g.A(f"v_add_u32 v{V_ACTW}, s{S_T0}, v{V_L16}")
    n1 = S_X0 + 2
    skip = g.lab("noln1")
    g.A("s_waitcnt vmcnt(32)")
    g.A(f"s_cmp_ge_u32 s{S_ROLE}, 42")
    g.A(f"s_cbranch_scc0 {skip}_w")
    g.A("s_waitcnt vmcnt(16)")
    g.L(skip + "_w")
    make_tag(g, 1)
    g.A(f"s_cmp_ge_u32 s{S_WAVE}, 2")
    g.A(f"s_cbranch_scc1 {skip}")
    g.A(f"v_cmp_gt_u32 vcc, 56, v{H_LANE}")
    g.A("s_nop 1")
    for k in range(8):
        g.A(f"v_cndmask_b32 v{HLD+k}, 0, v{HLD+k}, vcc")
    unpack_pairs(g, [HLD, HLD + 1, HLD + 2, HLD + 3], [HSH + e for e in range(8)])
    g.A(f"s_mov_b32 s{S_T0}, {f2u(-LOG2E):#x}")
    for e in range(8):
        g.A(f"v_mul_f32 v{HSC+e}, s{S_T0}, v{HSH+e}")
    for e in range(8):
        g.A(f"v_exp_f32 v{HSC+e}, v{HSC+e}")
    g.A("s_nop 0")
    for e in range(8):
        g.A(f"v_add_f32 v{HSC+e}, 1.0, v{HSC+e}")
    for e in range(8):
        g.A(f"v_rcp_f32 v{HSC+e}, v{HSC+e}")
    g.A("s_nop 0")
    for e in range(8):
        g.A(f"v_mul_f32 v{HSC+e}, v{HSC+e}, v{HSH+e}")
    for k in range(4):
        g.A(f"v_cvt_pk_bf16_f32 v{T+k}, v{HSC+2*k}, v{HSC+2*k+1}")
    exec56(g)
    g.A(f"ds_write_b128 v{V_ACTW}, {vr(T,4)} offset:{L_ACTS}")
    exec_all(g)
    unpack_pairs(g, [HLD + 4, HLD + 5, HLD + 6, HLD + 7], [HSH + e for e in range(8)])
    ln_normalize(g, HSH, HLN, T)
    g.L(skip)
    g.A("s_waitcnt lgkmcnt(0)")
    g.A("s_barrier")
    nom2 = g.lab("nom")
    g.A(f"s_cmp_ge_u32 s{S_ROLE}, 42")
    g.A(f"s_cbranch_scc1 {nom2}")
    AF = T + 4
    g.A(f"ds_read_b128 {vr(AF,4)}, v{V_AF64} offset:{L_ACTS}")
    g.A(f"ds_read_b128 {vr(AF+4,4)}, v{V_AF64} offset:{L_ACTS+512}")
    g.A("s_waitcnt vmcnt(24)")
    transpose_unit(g, H_FR, H_FT)
    g.A("s_waitcnt lgkmcnt(0)")
    g.A("s_nop 0")
    mfma8(g, AF, H_FT, True)
    sk = g.lab("m2")
    g.A(f"s_cmp_eq_u32 s{S_WAVE}, 3")
    g.A(f"s_cbranch_scc1 {sk}")
    g.A("s_waitcnt vmcnt(16)")
    transpose_unit(g, H_FR + 32, H_FT)
    g.A("s_nop 1")
    mfma8(g, AF + 4, H_FT, False)
    g.L(sk)
    g.A("s_nop 7")
    red_write(g, V_RW)
    g.A("s_waitcnt lgkmcnt(0)")
    g.A("s_barrier")
    sk = g.lab("m3")
    g.A(f"s_cmp_lg_u32 s{S_WAVE}, 0")
    g.A(f"s_cbranch_scc1 {sk}")
    RD = H_FT
    red_read(g, V_RA, V_RB, RD)
    for o in range(2):
        g.A(f"v_add_f32 v{RD+o}, v{RD+o}, v{RD+8+o}")
    g.A(f"v_cvt_pk_bf16_f32 v{RD+2}, v{RD}, v{RD+1}")
    g.A(f"v_mov_b32 v{RD+3}, s{S_TAG}")
    g.A(f"v_lshrrev_b32 v{T}, 5, v{H_LANE}")
    g.A(f"v_mul_u32_u24 v{T}, {1344*8}, v{T}")
    g.A(f"v_and_b32 v{T+1}, 31, v{H_LANE}")
    g.A(f"v_lshl_add_u32 v{T}, v{T+1}, 3, v{T}")
    g.A(f"s_lshl_b32 s{S_T0}, s{S_ROLE}, 8")
    g.A(f"s_add_u32 s{S_T0}, s{S_T0}, {WS_MOD}")
    g.A(f"buffer_store_dwordx2 {vr(RD+2,2)}, v{T}, {WSR}, s{S_T0} offen sc1")
    g.L(sk)
    g.L(nom2)
    stamp(g, cfg, 2)
    g.A("s_waitcnt vmcnt(8)")
    transpose_unit(g, H_ST, H_FR)
    g.A("s_waitcnt vmcnt(0)")
    transpose_unit(g, H_ST + 32, H_FR + 32)
    skip = g.lab("noh")
    g.A(f"s_cmp_ge_u32 s{S_WAVE}, 2")
    g.A(f"s_cbranch_scc1 {skip}")
    g.A(f"s_mul_i32 s{S_X0+3}, s{S_B}, {1344*8}")
    g.A(f"s_add_u32 s{S_X0+3}, s{S_X0+3}, {WS_MOD}")
    exec56(g)
    gather_shift_scale(g, cfg, S_X0 + 3, V_G32, HLD, HSH, HSC, T)
    modulate_write(g, HLN, HSH, HSC, V_ACTW, L_ACTH, T)
    exec_all(g)
    g.L(skip)
    stamp(g, cfg, 3)
    g.A("s_waitcnt lgkmcnt(0)")
    g.A("s_barrier")
    g.A(f"ds_read_b128 {vr(AF,4)}, v{V_AF64} offset:{L_ACTH}")
    g.A(f"ds_read_b128 {vr(AF+4,4)}, v{V_AF64} offset:{L_ACTH+512}")
    g.A("s_waitcnt lgkmcnt(1)")
    mfma8(g, AF, H_FR, True)
    sk = g.lab("q2")
    g.A(f"s_cmp_eq_u32 s{S_WAVE}, 3")
    g.A(f"s_cbranch_scc1 {sk}")
    g.A("s_waitcnt lgkmcnt(0)")
    mfma8(g, AF + 4, H_FR + 32, False)
    g.L(sk)
    g.A("s_waitcnt lgkmcnt(0)")
    g.A("s_nop 7")
    red_write(g, V_RW)
    g.A("s_waitcnt lgkmcnt(0)")
    g.A("s_barrier")
    sk = g.lab("q3")
    g.A(f"s_cmp_lg_u32 s{S_WAVE}, 0")
    g.A(f"s_cbranch_scc1 {sk}")
    red_read(g, V_RA, V_RB, RD)
    for o in range(2):
        g.A(f"v_add_f32 v{RD+o}, v{RD+o}, v{RD+8+o}")
    g.A(f"v_cvt_pk_bf16_f32 v{RD+2}, v{RD}, v{RD+1}")
    g.A(f"v_mov_b32 v{RD+3}, s{S_TAG}")
    g.A(f"v_lshrrev_b32 v{T}, 5, v{H_LANE}")
    g.A(f"v_lshlrev_b32 v{T}, 14, v{T}")
    g.A(f"v_and_b32 v{T+1}, 31, v{H_LANE}")
    g.A(f"v_lshl_add_u32 v{T}, v{T+1}, 3, v{T}")
    g.A(f"s_lshl_b32 s{S_T0}, s{S_ROLE}, 8")
    g.A(f"s_add_u32 s{S_T0}, s{S_T0}, {WS_QB}")
    g.A(f"buffer_store_dwordx2 {vr(RD+2,2)}, v{T}, {WSR}, s{S_T0} offen sc1")
    g.L(sk)
    stamp(g, cfg, 4)
    g.A(f"s_cmp_ge_u32 s{S_ROLE}, 32")
    g.A("s_cbranch_scc1 L_rf")

    V_WO = 17
    g.A(f"s_mul_i32 s{S_T2}, s{S_ROLE}, {128*896}")
    g.A(f"s_sub_u32 s{S_X0+1}, {4096*896}, s{S_T2}")
    set_srd(g, SRD_A, P_WO, off_sreg=S_T2, nbytes_sreg=S_X0 + 1)
    def woff128(dst):
        g.A(f"v_lshrrev_b32 v{T}, 4, v{H_LANE}")
        g.A(f"v_mul_u32_u24 v{dst}, {8*896}, v{T}")
        g.A(f"v_and_b32 v{T}, 15, v{H_LANE}")
        g.A(f"v_lshl_add_u32 v{dst}, v{T}, 4, v{dst}")
        g.A(f"s_lshl_b32 s{S_T0}, s{S_WAVE}, 8")
        g.A(f"v_add_u32 v{dst}, s{S_T0}, v{dst}")
    woff128(V_WO)
    def wo_unit(kb, st):
        unit_loads(g, H_ST + 32 * st, SRD_A, V_WO, [(kb * 32 + e) * 896 for e in range(8)], NT)
    wo_unit(0, 0); wo_unit(1, 1)
    g.A("s_waitcnt vmcnt(8)"); transpose_unit(g, H_ST, H_FR)
    wo_unit(2, 0)
    g.A("s_waitcnt vmcnt(8)"); transpose_unit(g, H_ST + 32, H_FR + 32)
    wo_unit(3, 1)
    g.A("s_waitcnt vmcnt(8)"); transpose_unit(g, H_ST, H_FR + 64)
    g.A("s_waitcnt vmcnt(0)"); transpose_unit(g, H_ST + 32, H_FR + 96)
    S_REC = S_X0 + 4
    g.A(f"s_lshr_b32 s{S_T0}, s{S_WAVE}, 1")
    g.A(f"s_lshl_b32 s{S_T0}, s{S_T0}, 4")
    g.A(f"s_lshr_b32 s{S_T1}, s{S_ROLE}, 1")
    g.A(f"s_add_u32 s{S_T0}, s{S_T0}, s{S_T1}")
    g.A(f"s_mul_i32 s{S_REC}, s{S_T0}, {6*4096}")
    g.A(f"s_add_u32 s{S_REC}, s{S_REC}, {WS_PART}")
    g.A(f"s_and_b32 s{S_T1}, s{S_ROLE}, 1")
    g.A(f"s_lshl_b32 s{S_T1}, s{S_T1}, 10")
    for s in range(6):
        g.A(f"s_add_u32 s{S_OFF+s}, s{S_REC}, s{S_T1}")
        g.A(f"s_add_u32 s{S_OFF+s}, s{S_OFF+s}, {s*4096}")
    V_PO, V_ML, V_AOW, V_AFO = 18, 19, 20, 21
    g.A(f"s_and_b32 s{S_T1}, s{S_WAVE}, 1")
    g.A(f"s_lshl_b32 s{S_T1}, s{S_T1}, 6")
    g.A(f"v_add_u32 v{T}, s{S_T1}, v{H_LANE}")
    g.A(f"v_lshlrev_b32 v{V_PO}, 3, v{T}")
    g.A(f"s_lshr_b32 s{S_T1}, s{S_WAVE}, 1")
    g.A(f"s_mul_i32 s{S_T1}, s{S_T1}, {ROWO}")
    g.A(f"v_lshlrev_b32 v{V_AOW}, 1, v{T}")
    g.A(f"v_add_u32 v{V_AOW}, s{S_T1}, v{V_AOW}")
    g.A(f"v_and_b32 v{T}, 7, v{H_LANE}")
    g.A(f"v_min_u32 v{T}, 5, v{T}")
    g.A(f"v_lshlrev_b32 v{V_ML}, 12, v{T}")
    g.A(f"v_lshrrev_b32 v{T}, 2, v{H_LANE}")
    g.A(f"v_and_b32 v{T}, 1, v{T}")
    g.A(f"v_mul_u32_u24 v{V_AFO}, {ROWO}, v{T}")
    g.A(f"v_lshrrev_b32 v{T}, 4, v{H_LANE}")
    g.A(f"v_lshl_add_u32 v{V_AFO}, v{T}, 4, v{V_AFO}")
    stamp(g, cfg, 5)
    def heads_wait(sreg_w):
        g.A(f"s_lshl_b32 s{S_X0+5}, s{sreg_w}, 6")
        g.A(f"s_add_u32 s{S_X0+5}, s{S_X0+5}, {WS_HEADS}")
        g.A(f"v_mov_b32 v{T+2}, 0")
        def loads():
            g.A(f"buffer_load_dwordx2 {vr(T+4,2)}, v{T+2}, {WSR}, s{S_X0+5} offen sc1")
        poll_loop(g, cfg, loads, [T + 4, T + 5], T, sleep=16)
    g.A(f"s_lshr_b32 s{S_T1}, s{S_ROLE}, 1")
    g.A(f"s_mul_i32 s{S_T1}, s{S_T1}, 6")
    heads_wait(S_T1)
    stamp(g, cfg, 6)
    PL = H_ST
    def part_loads():
        for s in range(6):
            g.A(f"buffer_load_dwordx2 {vr(PL + 2*s, 2)}, v{V_PO}, {WSR}, s{S_OFF+s} offen sc1")
        g.A(f"buffer_load_dwordx4 {vr(PL+12, 4)}, v{V_ML}, {WSR}, s{S_REC} offen offset:2048 sc1")
    tags = [PL + 2 * s + 1 for s in range(6)] + [PL + 13, PL + 15]
    poll_loop(g, cfg, part_loads, tags, T, sleep=0)
    stamp(g, cfg, 7)
    VM, VL = PL + 12, PL + 14
    g.A(f"v_mov_b32 v{T}, v{VM}")
    g.A("s_nop 1")
    for st in ("quad_perm:[1,0,3,2]", "quad_perm:[2,3,0,1]", "row_half_mirror"):
        g.A(f"v_max_f32_dpp v{T}, v{T}, v{T} {st} row_mask:0xf bank_mask:0xf")
        g.A("s_nop 1")
    g.A(f"v_sub_f32 v{VM}, v{VM}, v{T}")
    g.A(f"v_exp_f32 v{VM}, v{VM}")
    g.A(f"v_and_b32 v{T+1}, 7, v{H_LANE}")
    g.A(f"v_cmp_gt_u32 vcc, 6, v{T+1}")
    g.A(f"v_mul_f32 v{T}, v{VM}, v{VL}")
    g.A("s_nop 0")
    g.A(f"v_cndmask_b32 v{T}, 0, v{T}, vcc")
    g.A("s_nop 1")
    for st in ("quad_perm:[1,0,3,2]", "quad_perm:[2,3,0,1]", "row_half_mirror"):
        g.A(f"v_add_f32_dpp v{T}, v{T}, v{T} {st} row_mask:0xf bank_mask:0xf")
        g.A("s_nop 1")
    g.A(f"v_rcp_f32 v{T}, v{T}")
    g.A("s_nop 0")
    g.A(f"v_mul_f32 v{VM}, v{VM}, v{T}")
    g.A("s_nop 0")
    for s in range(6):
        g.A(f"v_readlane_b32 s{S_X0+6+s}, v{VM}, {s}")
    g.A("s_nop 1")
    g.A(f"v_mul_f32 v{T}, s{S_X0+6}, v{PL}")
    for s in range(1, 6):
        g.A(f"v_fmac_f32 v{T}, s{S_X0+6+s}, v{PL+2*s}")
    g.A(f"v_cvt_pk_bf16_f32 v{T}, v{T}, v{T}")
    g.A(f"ds_write_b16 v{V_AOW}, v{T} offset:{L_ACTO}")
    g.A("s_waitcnt lgkmcnt(0)")
    g.A("s_barrier")
    AFO = H_ST + 16
    for kb in range(4):
        g.A(f"ds_read_b128 {vr(AFO + 4*kb, 4)}, v{V_AFO} offset:{L_ACTO + kb*64}")
    for kb in range(4):
        g.A(f"s_waitcnt lgkmcnt({3-kb})")
        mfma8(g, AFO + 4 * kb, H_FR + 32 * kb, kb == 0)
    def publish_rec(base_const, sidx):
        g.A(f"s_lshl_b32 s{S_T0}, s{sidx}, 13")
        g.A(f"s_lshl_b32 s{S_T1}, s{S_WAVE}, 11")
        g.A(f"s_add_u32 s{S_T0}, s{S_T0}, s{S_T1}")
        g.A(f"s_add_u32 s{S_T0}, s{S_T0}, {base_const}")
        g.A(f"v_lshlrev_b32 v{T}, 4, v{H_LANE}")
        g.A("s_nop 4")
        for p in range(4):
            a0 = H_ACC + 8 * p
            g.A(f"v_mov_b32 v{a0+2}, v{a0+4}")
            g.A(f"v_mov_b32 v{a0+1}, s{S_TAG}")
            g.A(f"v_mov_b32 v{a0+3}, s{S_TAG}")
        g.A("s_mov_b32 exec_lo, -1")
        g.A("s_mov_b32 exec_hi, 0")
        for p in range(4):
            g.A(f"buffer_store_dwordx4 {vr(H_ACC + 8*p, 4)}, v{T}, {WSR}, s{S_T0} offen offset:{p*512} sc1")
        exec_all(g)
    publish_rec(WS_Y, S_ROLE)
    stamp(g, cfg, 8)
    g.A("s_endpgm")

    g.L("L_rf")
    S_K = S_X0 + 4
    g.A(f"s_sub_u32 s{S_K}, s{S_ROLE}, 32")
    V_WGU, V_WD = 17, 18
    nof = g.lab("nofw")
    g.A(f"s_cmp_ge_u32 s{S_K}, 28")
    g.A(f"s_cbranch_scc1 {nof}")
    g.A(f"v_lshrrev_b32 v{T}, 4, v{H_LANE}")
    g.A(f"v_lshlrev_b32 v{T}, 3, v{T}")
    g.A(f"s_lshl_b32 s{S_T0}, s{S_WAVE}, 5")
    g.A(f"v_add_u32 v{T}, s{S_T0}, v{T}")
    g.A(f"v_mul_u32_u24 v{V_WGU}, 3584, v{T}")
    g.A(f"v_and_b32 v{T}, 7, v{H_LANE}")
    g.A(f"v_lshl_add_u32 v{V_WGU}, v{T}, 4, v{V_WGU}")
    g.A(f"s_lshl_b32 s{S_T2}, s{S_K}, 7")
    g.A(f"s_sub_u32 s{S_X0+1}, {448*3584}, s{S_T2}")
    set_srd(g, SRD_A, P_WG, off_sreg=S_T2, nbytes_sreg=S_X0 + 1)
    set_srd(g, SRD_B, P_WU, off_sreg=S_T2, nbytes_sreg=S_X0 + 1)
    g.A(f"s_mul_i32 s{S_T2}, s{S_K}, {64*896}")
    g.A(f"s_sub_u32 s{S_X0+1}, {1792*896}, s{S_T2}")
    set_srd(g, SRD_C, P_WD, off_sreg=S_T2, nbytes_sreg=S_X0 + 1)
    woff128(V_WD)
    def gu_unit(it, st):
        dst = H_ST + 32 * st
        g.A("s_mov_b32 exec_lo, 0x00ff00ff"); g.A("s_mov_b32 exec_hi, 0x00ff00ff")
        unit_loads(g, dst, SRD_A, V_WGU, [e * 3584 + it * 128 * 3584 for e in range(8)], NT)
        g.A("s_mov_b32 exec_lo, 0xff00ff00"); g.A("s_mov_b32 exec_hi, 0xff00ff00")
        unit_loads(g, dst, SRD_B, V_WGU, [e * 3584 + it * 128 * 3584 for e in range(8)], NT)
        exec_all(g)
    def wd_unit(kb, st):
        unit_loads(g, H_ST + 32 * st, SRD_C, V_WD, [(kb * 32 + e) * 896 for e in range(8)], NT)
    gu_unit(0, 0); gu_unit(1, 1)
    g.A("s_waitcnt vmcnt(16)"); transpose_unit(g, H_ST, H_FR)
    gu_unit(2, 0)
    g.A("s_waitcnt vmcnt(16)"); transpose_unit(g, H_ST + 32, H_FR + 32)
    gu_unit(3, 1)
    g.A("s_waitcnt vmcnt(16)"); transpose_unit(g, H_ST, H_FR + 64)
    wd_unit(0, 0)
    g.A("s_waitcnt vmcnt(8)"); transpose_unit(g, H_ST + 32, H_FR + 96)
    wd_unit(1, 1)
    g.A("s_waitcnt vmcnt(8)"); transpose_unit(g, H_ST, 0, dst_acc=True, tmp=T)
    g.A("s_waitcnt vmcnt(0)"); transpose_unit(g, H_ST + 32, 32, dst_acc=True, tmp=T)
    FSH, FSC, FLD, FLN = 192, 200, 208, 224
    skip = g.lab("nosb")
    g.A(f"s_cmp_ge_u32 s{S_WAVE}, 2")
    g.A(f"s_cbranch_scc1 {skip}")
    g.A(f"s_mul_i32 s{S_X0+3}, s{S_B}, {1344*8}")
    g.A(f"s_add_u32 s{S_X0+3}, s{S_X0+3}, {WS_MOD + 672*8}")
    exec56(g)
    gather_shift_scale(g, cfg, S_X0 + 3, V_G32, FLD, FSH, FSC, T)
    exec_all(g)
    g.L(skip)
    g.L(nof)
    V_RO, V_CX, V_XR, V_GA, V_GB, V_X2 = 25, 26, 232, 234, 236, 238
    RL = 32
    S_CB, S_CC = S_X0 + 6, S_X0 + 7
    skipr = g.lab("nor0")
    g.A(f"s_and_b32 s{S_CB}, s{S_K}, 1")
    g.A(f"s_lshr_b32 s{S_T0}, s{S_K}, 3")
    g.A(f"s_lshl_b32 s{S_T0}, s{S_T0}, 7")
    g.A(f"s_lshr_b32 s{S_T1}, s{S_K}, 1")
    g.A(f"s_and_b32 s{S_T1}, s{S_T1}, 3")
    g.A(f"s_lshl_b32 s{S_T1}, s{S_T1}, 1")
    g.A(f"s_add_u32 s{S_CC}, s{S_T0}, s{S_T1}")
    g.A(f"v_and_b32 v{T}, 15, v{H_LANE}")
    g.A(f"v_lshlrev_b32 v{V_CX}, 3, v{T}")
    g.A(f"v_add_u32 v{V_CX}, s{S_CC}, v{V_CX}")
    g.A(f"v_lshrrev_b32 v{T+1}, 4, v{H_LANE}")
    g.A(f"v_lshlrev_b32 v{V_RO}, 13, v{T+1}")
    g.A(f"v_lshl_add_u32 v{V_RO}, v{T}, 4, v{V_RO}")
    g.A(f"v_cmp_gt_u32 vcc, 448, v{V_CX}")
    g.A(f"s_mov_b64 s[{S_MSK}:{S_MSK+1}], vcc")
    g.A(f"s_cmp_lg_u32 s{S_WAVE}, 0")
    g.A(f"s_cbranch_scc1 {skipr}")
    g.A(f"s_mov_b64 exec, s[{S_MSK}:{S_MSK+1}]")
    set_srd(g, SRD_A, P_X, nbytes=1792)
    g.A(f"s_mul_i32 s{S_T0}, s{S_CB}, 896")
    g.A(f"v_lshlrev_b32 v{T+2}, 1, v{V_CX}")
    g.A(f"buffer_load_dword v{T+6}, v{T+2}, s[{SRD_A}:{SRD_A+3}], s{S_T0} offen")
    g.A(f"s_mul_i32 s{S_X0+8}, s{S_CB}, {1344*8}")
    g.A(f"s_add_u32 s{S_X0+8}, s{S_X0+8}, {WS_MOD + 896*4}")
    g.A(f"s_add_u32 s{S_X0+9}, s{S_X0+8}, {(2240-896)*4}")
    g.A(f"v_lshlrev_b32 v{T+3}, 2, v{V_CX}")
    def gl():
        g.A(f"buffer_load_dwordx2 {vr(T+8,2)}, v{T+3}, {WSR}, s{S_X0+8} offen sc1")
        g.A(f"buffer_load_dwordx2 {vr(T+10,2)}, v{T+3}, {WSR}, s{S_X0+9} offen sc1")
    poll_loop(g, cfg, gl, [T + 9, T + 11], T, sleep=1)
    unpack_pairs(g, [T + 6], [V_XR, V_XR + 1])
    unpack_pairs(g, [T + 8], [V_GA, V_GA + 1])
    unpack_pairs(g, [T + 10], [V_GB, V_GB + 1])
    exec_all(g)
    g.L(skipr)
    stamp(g, cfg, 5)
    g.A(f"s_mul_i32 s{S_T1}, s{S_K}, 6")
    heads_wait(S_T1)
    stamp(g, cfg, 6)
    def rec_gather(base_const, nit):
        g.A(f"s_lshl_b32 s{S_X0+5}, s{S_K}, 8")
        g.A(f"s_add_u32 s{S_X0+5}, s{S_X0+5}, {base_const}")
        for it in range(nit):
            g.A(f"s_add_u32 s{S_OFF+it}, s{S_X0+5}, {it*32768}")
        def loads():
            for it in range(nit):
                g.A(f"buffer_load_dwordx4 {vr(RL + 4*it, 4)}, v{V_RO}, {WSR}, s{S_OFF+it} offen sc1")
        tags = [RL + 4 * it + o for it in range(nit) for o in (1, 3)]
        poll_loop(g, cfg, loads, tags, T, sleep=0)
        for o in (0, 2):
            for it in range(1, nit):
                g.A(f"v_add_f32 v{RL+o}, v{RL+o}, v{RL+4*it+o}")
        for swap in ("v_permlane16_swap_b32", "v_permlane32_swap_b32"):
            g.A(f"v_mov_b32 v{RL+1}, v{RL}")
            g.A(f"v_mov_b32 v{RL+3}, v{RL+2}")
            g.A("s_nop 1")
            g.A(f"{swap} v{RL}, v{RL+1}")
            g.A(f"{swap} v{RL+2}, v{RL+3}")
            g.A("s_nop 1")
            g.A(f"v_add_f32 v{RL}, v{RL}, v{RL+1}")
            g.A(f"v_add_f32 v{RL+2}, v{RL+2}, v{RL+3}")
        g.A(f"v_mov_b32 v{RL+1}, v{RL+2}")
    def resid(base_x, gate, out):
        bf16_round_pairs(g, [RL, RL + 1], T)
        g.A(f"v_mul_f32 v{RL}, v{RL}, v{gate}")
        g.A(f"v_mul_f32 v{RL+1}, v{RL+1}, v{gate+1}")
        bf16_round_pairs(g, [RL, RL + 1], T)
        g.A(f"v_add_f32 v{RL}, v{RL}, v{base_x}")
        g.A(f"v_add_f32 v{RL+1}, v{RL+1}, v{base_x+1}")
        g.A(f"v_cvt_pk_bf16_f32 v{T}, v{RL}, v{RL+1}")
        if out is not None:
            unpack_pairs(g, [T], [out, out + 1])
    skipr = g.lab("nor1")
    g.A(f"s_cmp_lg_u32 s{S_WAVE}, 0")
    g.A(f"s_cbranch_scc1 {skipr}")
    rec_gather(WS_Y, 8)
    stamp(g, cfg, 7)
    resid(V_XR, V_GA, V_X2)
    g.A(f"v_mov_b32 v{T+1}, s{S_TAG}")
    g.A(f"s_mul_i32 s{S_T0}, s{S_CB}, 1792")
    g.A(f"s_add_u32 s{S_T0}, s{S_T0}, {WS_X2}")
    g.A(f"v_lshlrev_b32 v{T+2}, 2, v{V_CX}")
    g.A(f"s_and_b32 exec_lo, s{S_MSK}, 0xffff")
    g.A("s_mov_b32 exec_hi, 0")
    g.A(f"buffer_store_dwordx2 {vr(T,2)}, v{T+2}, {WSR}, s{S_T0} offen sc1")
    exec_all(g)
    g.L(skipr)
    stamp(g, cfg, 8)
    nof2 = g.lab("nof2")
    g.A(f"s_cmp_ge_u32 s{S_K}, 28")
    g.A(f"s_cbranch_scc1 {nof2}")
    skip = g.lab("noln2")
    g.A(f"s_cmp_ge_u32 s{S_WAVE}, 2")
    g.A(f"s_cbranch_scc1 {skip}")
    g.A(f"s_mul_i32 s{S_X0+3}, s{S_B}, 1792")
    g.A(f"s_add_u32 s{S_X0+3}, s{S_X0+3}, {WS_X2}")
    exec56(g)
    def xl():
        for k2 in range(2):
            g.A(f"buffer_load_dwordx4 {vr(FLD + 4*k2, 4)}, v{V_G32}, {WSR}, s{S_X0+3} offen offset:{16*k2} sc1")
    poll_loop(g, cfg, xl, [FLD + 1, FLD + 3, FLD + 5, FLD + 7], T, sleep=0)
    exec_all(g)
    stamp(g, cfg, 9)
    XF = FLD + 8
    unpack_pairs(g, [FLD, FLD + 2, FLD + 4, FLD + 6], [XF + e for e in range(8)])
    g.A(f"v_cmp_gt_u32 vcc, 56, v{H_LANE}")
    g.A("s_nop 1")
    for e in range(8):
        g.A(f"v_cndmask_b32 v{XF+e}, 0, v{XF+e}, vcc")
    ln_normalize(g, XF, FLN, T)
    exec56(g)
    modulate_write(g, FLN, FSH, FSC, V_ACTW, L_ACTH, T)
    exec_all(g)
    g.L(skip)
    g.A("s_waitcnt lgkmcnt(0)")
    g.A("s_barrier")
    g.A(f"v_lshrrev_b32 v{T}, 2, v{H_LANE}")
    g.A(f"v_and_b32 v{T}, 1, v{T}")
    g.A(f"v_mul_u32_u24 v{T+1}, {ROWB}, v{T}")
    g.A(f"v_lshrrev_b32 v{T}, 4, v{H_LANE}")
    g.A(f"v_lshl_add_u32 v{T+1}, v{T}, 4, v{T+1}")
    g.A(f"s_lshl_b32 s{S_T0}, s{S_WAVE}, 6")
    g.A(f"v_add_u32 v{T+1}, s{S_T0}, v{T+1}")
    AFF = FLD
    for it in range(4):
        g.A(f"ds_read_b128 {vr(AFF + 4*it, 4)}, v{T+1} offset:{L_ACTH + it*256}")
    for it in range(3):
        g.A(f"s_waitcnt lgkmcnt({3-it})")
        mfma8(g, AFF + 4 * it, H_FR + 32 * it, it == 0)
    sk = g.lab("f4")
    g.A("s_waitcnt lgkmcnt(0)")
    g.A(f"s_cmp_ge_u32 s{S_WAVE}, 2")
    g.A(f"s_cbranch_scc1 {sk}")
    mfma8(g, AFF + 12, H_FR + 96, False)
    g.L(sk)
    g.A("s_nop 7")
    red_write(g, 20)
    g.A("s_waitcnt lgkmcnt(0)")
    g.A("s_barrier")
    sk = g.lab("f5")
    g.A(f"s_cmp_lg_u32 s{S_WAVE}, 0")
    g.A(f"s_cbranch_scc1 {sk}")
    g.A(f"v_add_u32 v{T}, 32, v21")
    RD2 = FLD
    red_read(g, 21, T, RD2)
    bf16_round_pairs(g, [RD2, RD2 + 1], T)
    bf16_round_pairs(g, [RD2 + 8, RD2 + 9], T)
    g.A(f"s_mov_b32 s{S_T0}, {f2u(-LOG2E):#x}")
    for o in range(2):
        g.A(f"v_mul_f32 v{RD2+o}, s{S_T0}, v{RD2+o}")
    for o in range(2):
        g.A(f"v_exp_f32 v{RD2+o}, v{RD2+o}")
    g.A("s_nop 0")
    for o in range(2):
        g.A(f"v_add_f32 v{RD2+o}, 1.0, v{RD2+o}")
    for o in range(2):
        g.A(f"v_rcp_f32 v{RD2+o}, v{RD2+o}")
    g.A("s_nop 0")
    bf16_round_pairs(g, [RD2, RD2 + 1], T)
    for o in range(2):
        g.A(f"v_mul_f32 v{RD2+o}, v{RD2+o}, v{RD2+8+o}")
    g.A(f"v_cvt_pk_bf16_f32 v{T}, v{RD2}, v{RD2+1}")
    g.A(f"v_lshrrev_b32 v{T+1}, 5, v{H_LANE}")
    g.A(f"v_mul_u32_u24 v{T+1}, {ROWO}, v{T+1}")
    g.A(f"v_and_b32 v{T+2}, 31, v{H_LANE}")
    g.A(f"v_lshl_add_u32 v{T+1}, v{T+2}, 2, v{T+1}")
    g.A(f"ds_write_b32 v{T+1}, v{T} offset:{L_ACTO}")
    g.L(sk)
    g.A("s_waitcnt lgkmcnt(0)")
    g.A("s_barrier")
    g.A(f"v_lshrrev_b32 v{T}, 2, v{H_LANE}")
    g.A(f"v_and_b32 v{T}, 1, v{T}")
    g.A(f"v_mul_u32_u24 v{T+1}, {ROWO}, v{T}")
    g.A(f"v_lshrrev_b32 v{T}, 4, v{H_LANE}")
    g.A(f"v_lshl_add_u32 v{T+1}, v{T}, 4, v{T+1}")
    for kb in range(2):
        g.A(f"ds_read_b128 {vr(AFF + 4*kb, 4)}, v{T+1} offset:{L_ACTO + kb*64}")
    for kb in range(2):
        g.A(f"s_waitcnt lgkmcnt({1-kb})")
        mfma8(g, AFF + 4 * kb, 32 * kb, kb == 0, frag_acc=True)
    publish_rec(WS_DN, S_K)
    stamp(g, cfg, 10)
    g.L(nof2)
    g.A(f"s_cmp_lg_u32 s{S_WAVE}, 0")
    g.A("s_cbranch_scc1 L_exit")
    rec_gather(WS_DN, 7)
    stamp(g, cfg, 11)
    resid(V_X2, V_GB, None)
    set_srd(g, SRD_A, P_OUT, nbytes=1792)
    g.A(f"s_mul_i32 s{S_T0}, s{S_CB}, 896")
    g.A(f"v_lshlrev_b32 v{T+2}, 1, v{V_CX}")
    g.A(f"s_and_b32 exec_lo, s{S_MSK}, 0xffff")
    g.A("s_mov_b32 exec_hi, 0")
    g.A(f"buffer_store_dword v{T}, v{T+2}, s[{SRD_A}:{SRD_A+3}], s{S_T0} offen")
    g.A(f"s_cmp_lg_u32 s{S_K}, 0")
    g.A("s_cbranch_scc1 L_exit")
    g.A("s_mov_b64 exec, 1")
    g.A(f"v_mov_b32 v{T+3}, s{S_TAG}")
    g.A(f"v_mov_b32 v{T+4}, 0")
    g.A(f"buffer_store_dword v{T+3}, v{T+4}, {WSR}, 0 offen sc1")
    stamp(g, cfg, 12)

def generate(cfg, header_src=None):
    g = G()
    g.A(f"s_cmp_ge_u32 s{S_WG}, {cfg.NSTREAM + cfg.NHELP}")
    g.A("s_cbranch_scc1 L_exit")
    g.A("s_load_dwordx16 s[16:31], s[0:1], 0")
    g.A("s_load_dwordx8 s[32:39], s[0:1], 64")
    g.A("s_load_dwordx4 s[40:43], s[0:1], 96")
    g.A("v_lshrrev_b32 v1, 6, v0")
    g.A("v_and_b32 v0, 63, v0")
    g.A("s_nop 0")
    g.A(f"v_readfirstlane_b32 s{S_WAVE}, v1")
    g.A("v_mov_b32 v2, 0")
    g.A("s_waitcnt lgkmcnt(0)")
    set_srd(g, SRD_WS, P_WS, nbytes=WS_SIZE)
    if cfg.STAMPS:
        g.A(f"s_lshl_b32 s{S_STB}, s{S_WG}, 2")
        g.A(f"s_add_u32 s{S_STB}, s{S_STB}, s{S_WAVE}")
        g.A(f"s_lshl_b32 s{S_STB}, s{S_STB}, 7")
        g.A(f"s_add_u32 s{S_STB}, s{S_STB}, {WS_STAMP}")
        stamp(g, cfg, 0)
    g.A(f"s_cmp_lt_u32 s{S_WG}, {cfg.NSTREAM}")
    g.A("s_cbranch_scc0 L_helper0")
    g.A(f"buffer_load_dword v7, v2, s[{SRD_WS}:{SRD_WS+3}], 0 offen sc1")
    cfg.STAMP_V = 116
    emit_streamer(g, cfg)
    cfg.STAMP_V = 28
    g.L("L_helper0")
    g.A(f"buffer_load_dword v1, v2, s[{SRD_WS}:{SRD_WS+3}], 0 offen sc1")
    emit_helper(g, cfg)
    g.L("L_exit")
    g.A("s_endpgm")
    hdr = open("adaLN_cond__mha_block_cached__glu_gated_glu__decode.s.ref").read().split("\n")
    head = []
    for line in hdr:
        if line.startswith("; @launch"):
            head.append(f"; @launch grid=({cfg.NSTREAM + cfg.NHELP},1,1) block=(256,1,1) lds={LDS_BYTES}")
            break
        head.append(line)
    txt = "\n".join(head) + "\n"
    txt += '.amdgcn_target "amdgcn-amd-amdhsa--gfx950"\n.text\n'
    txt += f".globl {KNAME}\n.p2align 8\n.type {KNAME},@function\n{KNAME}:\n"
    txt += "\n".join(g.o) + "\n"
    txt += f""".section .rodata,"a"
.p2align 6
.amdhsa_kernel {KNAME}
  .amdhsa_next_free_vgpr 512
  .amdhsa_next_free_sgpr 102
  .amdhsa_accum_offset 256
  .amdhsa_group_segment_fixed_size 0
  .amdhsa_kernarg_size 112
  .amdhsa_user_sgpr_count 2
  .amdhsa_user_sgpr_kernarg_segment_ptr 1
  .amdhsa_system_sgpr_workgroup_id_x 1
  .amdhsa_float_denorm_mode_32 3
.end_amdhsa_kernel
"""
    return txt

if __name__ == "__main__":
    import argparse
    ap = argparse.ArgumentParser()
    ap.add_argument("-o", default="k.s")
    ap.add_argument("--stamps", action="store_true")
    ap.add_argument("--set", nargs="*", default=[])
    a = ap.parse_args()
    cfg = Cfg()
    cfg.STAMPS = a.stamps
    for kv in a.set:
        k, v = kv.split("=")
        setattr(cfg, k, type(getattr(cfg, k))(v) if not isinstance(getattr(cfg, k), bool) else v in ("1", "True"))
    open(a.o, "w").write(generate(cfg))
    print("wrote", a.o)
```

```python
import sys

KNAME = "adaLN_cond__mha_block_cached__glu_gated_glu__decode_kernel"

class Cfg:
    NS = 6
    NSTREAM = 192
    NHELP = 64
    P = 12
    DMIN = 4
    W1 = 16
    NG = 22
    STAMPS = False
    POLLMAX = 200000
    HEADS_STEP = 41
    NT = " nt"
    NTW = " nt"
    CODEPF = True
    STAMP_V = 28
    LAZY = 0
    RPK = 3
    RPGAP = 7
    RW0 = 2
    IDLE = 8
    STG = 10
    RPGAP2 = 10
    X_LOADONLY = False
    HSLEEP = 16
    CAPG = 4
    QBACK = 1
    SHRINK = 2
    X_NOHELP = False
    X_NOEPIW = False
    CODEPF2 = False

WS_EPOCH = 0
WS_HEADS = 0x1000
WS_MOD = 0x4000
WS_QB = 0xA000
WS_X2 = 0x12000
NREP_X = 4
WS_PART = 0x20000
WS_Y = 0x100000
WS_DN = 0x140000
WS_STAMP = 0x180000
WS_SIZE = 0x200000

ROWB = 1152
L_ACTS = 0
L_ACTH = 2 * ROWB
L_ACTO = 4 * ROWB
ROWO = 320
L_RED = 4 * ROWB + 2 * ROWO + 128
L_RED = (L_RED + 255) // 256 * 256
LDS_BYTES = L_RED + 8192
L_OW = 0
L_ML = 4096

LOG2E = 1.4426950408889634

import struct
def f2u(x):
    return struct.unpack("<I", struct.pack("<f", x))[0]

class G:
    def __init__(self):
        self.o = []
        self.nlab = 0
    def A(self, s):
        self.o.append("    " + s)
    def L(self, name):
        self.o.append(name + ":")
    def lab(self, base):
        self.nlab += 1
        return f"L_{base}_{self.nlab}"
    def C(self, s):
        self.o.append("    ; " + s)

def vr(b, n=1):
    return f"v{b}" if n == 1 else f"v[{b}:{b+n-1}]"
def ar(b, n=1):
    return f"a{b}" if n == 1 else f"a[{b}:{b+n-1}]"
def sr(b, n=1):
    return f"s{b}" if n == 1 else f"s[{b}:{b+n-1}]"

S_WG, S_WAVE, S_ROLE = 2, 3, 4
S_T0, S_T1, S_T2 = 5, 6, 7
SRD_A, SRD_B = 8, 12
P_X, P_K, P_V, P_WQ, P_WO, P_BX, P_WG, P_WU, P_WD, P_C, P_WMOD, P_OUT, P_DBG, P_WS = 16, 18, 20, 22, 24, 26, 28, 30, 32, 34, 36, 38, 40, 42
S_TAG, S_CNT = 44, 45
S_SAVE = 46
SRD_C = 48
SRD_WS = 52
S_OFF = 56
S_SEL0, S_SEL1 = 64, 65
S_MSK = 66
S_X0 = 74
S_STAMP = 88
S_STB = 87
S_MISS = 16
S_PF = 46

def stamp(g, cfg, idx):
    if not cfg.STAMPS:
        return
    g.A(f"s_memrealtime s[{S_STAMP}:{S_STAMP+1}]")
    g.A("s_waitcnt lgkmcnt(0)")
    g.A(f"s_mov_b64 s[100:101], exec")
    g.A("s_mov_b64 exec, 1")
    sv = cfg.STAMP_V
    g.A(f"v_mov_b32 v{sv}, s{S_STAMP}")
    g.A(f"v_mov_b32 v{sv+1}, s{S_STAMP+1}")
    g.A(f"v_mov_b32 v{sv+2}, s{S_STB}")
    g.A(f"buffer_store_dwordx2 v[{sv}:{sv+1}], v{sv+2}, s[{SRD_WS}:{SRD_WS+3}], 0 offen offset:{idx*8}")
    g.A(f"s_mov_b64 exec, s[100:101]")

def lazy(g, cfg, i, mode=1):
    if cfg.STAMPS and cfg.LAZY == mode:
        g.A(f"s_memrealtime s[{90+2*i}:{91+2*i}]")
def lazy_flush(g, cfg, n, idx0, mode=1):
    if not (cfg.STAMPS and cfg.LAZY == mode):
        return
    g.A("s_waitcnt lgkmcnt(0)")
    g.A(f"s_mov_b64 s[100:101], exec")
    g.A("s_mov_b64 exec, 1")
    sv = cfg.STAMP_V
    for i in range(n):
        g.A(f"v_mov_b32 v{sv}, s{90+2*i}")
        g.A(f"v_mov_b32 v{sv+1}, s{91+2*i}")
        g.A(f"v_mov_b32 v{sv+2}, s{S_STB}")
        g.A(f"buffer_store_dwordx2 v[{sv}:{sv+1}], v{sv+2}, s[{SRD_WS}:{SRD_WS+3}], 0 offen offset:{(idx0+i)*8}")
        g.A("s_nop 1")
    g.A(f"s_mov_b64 exec, s[100:101]")

def set_srd(g, srd, ptr, off_sreg=None, nbytes=None, nbytes_sreg=None):
    if off_sreg is None:
        g.A(f"s_mov_b32 s{srd}, s{ptr}")
        g.A(f"s_mov_b32 s{srd+1}, s{ptr+1}")
    else:
        g.A(f"s_add_u32 s{srd}, s{ptr}, s{off_sreg}")
        g.A(f"s_addc_u32 s{srd+1}, s{ptr+1}, 0")
    if nbytes_sreg is not None:
        g.A(f"s_mov_b32 s{srd+2}, s{nbytes_sreg}")
    else:
        g.A(f"s_mov_b32 s{srd+2}, {nbytes}")
    g.A(f"s_mov_b32 s{srd+3}, 0x20000")

def code_prefetch(g, cfg, start_label, end_label, backward, voff, vdst, ninstr=1, per_instr=8192):
    if not cfg.CODEPF:
        return
    here = g.lab("pc")
    g.A(f"s_getpc_b64 s[{S_PF}:{S_PF+1}]")
    g.L(here)
    if backward:
        g.A(f"s_sub_u32 s{S_PF}, s{S_PF}, {here}-{start_label}")
        g.A(f"s_subb_u32 s{S_PF+1}, s{S_PF+1}, 0")
    else:
        g.A(f"s_add_u32 s{S_PF}, s{S_PF}, {start_label}-{here}")
        g.A(f"s_addc_u32 s{S_PF+1}, s{S_PF+1}, 0")
    for k in range(ninstr):
        skip = g.lab("nopf")
        g.A(f"s_mov_b32 s{S_T1}, {end_label}-{start_label}")
        g.A(f"v_cmp_gt_u32 vcc, s{S_T1}, v{voff}")
        g.A("s_nop 0")
        g.A("s_and_b64 exec, exec, vcc")
        g.A(f"s_cbranch_execz {skip}")
        g.A(f"global_load_dword v{vdst}, v{voff}, s[{S_PF}:{S_PF+1}]")
        g.L(skip)
        g.A("s_mov_b64 exec, -1")
        if k + 1 < ninstr:
            g.A(f"v_add_u32 v{voff}, {per_instr}, v{voff}")

def entry_stamp(g, cfg):
    if not cfg.STAMPS:
        return
    g.A(f"s_lshl_b32 s{S_STB}, s{S_WG}, 2")
    g.A(f"s_add_u32 s{S_STB}, s{S_STB}, s{S_WAVE}")
    g.A(f"s_lshl_b32 s{S_STB}, s{S_STB}, 8")
    g.A(f"s_add_u32 s{S_STB}, s{S_STB}, {WS_STAMP}")
    g.A(f"s_mov_b64 s[100:101], exec")
    g.A("s_mov_b64 exec, 1")
    sv = cfg.STAMP_V
    g.A(f"v_mov_b32 v{sv}, s84")
    g.A(f"v_mov_b32 v{sv+1}, s85")
    g.A(f"v_mov_b32 v{sv+2}, s{S_STB}")
    g.A(f"buffer_store_dwordx2 v[{sv}:{sv+1}], v{sv+2}, s[{SRD_WS}:{SRD_WS+3}], 0 offen offset:0")
    g.A(f"s_mov_b64 exec, s[100:101]")

def entry_prefetch(g, cfg, vtmp):
    if cfg.CODEPF:
        g.A(f"s_lshl_b32 s{S_T0}, s{S_WAVE}, 13")
        g.A(f"v_lshlrev_b32 v{vtmp}, 7, v0")
        g.A(f"v_add_u32 v{vtmp}, s{S_T0}, v{vtmp}")
        code_prefetch(g, cfg, KNAME, 'L_codeend', True, vtmp, 31, ninstr=2 if cfg.CODEPF2 else 1, per_instr=32768)

def make_tag(g, vreg):
    g.A(f"v_readfirstlane_b32 s{S_TAG}, v{vreg}")
    g.A("s_nop 3")
    g.A(f"s_mul_i32 s{S_TAG}, s{S_TAG}, 0x19660d")
    g.A(f"s_add_u32 s{S_TAG}, s{S_TAG}, 0x3c6ef35f")

def check_tags(g, tagregs, tmp, ok_label, set_vcc_only=False):
    g.A(f"v_xor_b32 v{tmp}, s{S_TAG}, v{tagregs[0]}")
    for r in tagregs[1:]:
        g.A(f"v_xor_b32 v{tmp+1}, s{S_TAG}, v{r}")
        g.A(f"v_or_b32 v{tmp}, v{tmp}, v{tmp+1}")
    g.A(f"v_cmp_ne_u32 vcc, 0, v{tmp}")
    g.A("s_nop 1")
    g.A(f"s_cbranch_vccz {ok_label}")

def poll_loop(g, cfg, emit_loads, tagregs, tmp, sleep=1):
    top = g.lab("poll"); ok = g.lab("pollok")
    g.A(f"s_mov_b32 s{S_CNT}, 0")
    g.L(top)
    emit_loads()
    g.A("s_waitcnt vmcnt(0)")
    check_tags(g, tagregs, tmp, ok)
    if sleep:
        g.A(f"s_sleep {sleep}")
    g.A(f"s_add_u32 s{S_CNT}, s{S_CNT}, 1")
    g.A(f"s_cmp_lt_u32 s{S_CNT}, {cfg.POLLMAX}")
    g.A(f"s_cbranch_scc1 {top}")
    g.L(ok)

def rolling_poll(g, cfg, emit_loads, nloads, nregs, tag_offs, sets, res, tmp, gap, copy_offs=None):
    K = len(sets)
    if copy_offs is None:
        copy_offs = [r for r in range(nregs) if r not in tag_offs]
    top = g.lab("rp"); done = g.lab("rpdone")
    oks = [g.lab(f"rpok{i}") for i in range(K)]
    g.A(f"s_mov_b32 s{S_CNT}, 0")
    for i in range(K):
        emit_loads(sets[i])
        if i + 1 < K and gap:
            g.A(f"s_sleep {gap}")
    g.L(top)
    for i in range(K):
        g.A(f"s_waitcnt vmcnt({nloads*(K-1)})")
        check_tags(g, [sets[i] + o for o in tag_offs], tmp, oks[i])
        emit_loads(sets[i])
    g.A(f"s_add_u32 s{S_CNT}, s{S_CNT}, 1")
    g.A(f"s_cmp_lt_u32 s{S_CNT}, {cfg.POLLMAX}")
    g.A(f"s_cbranch_scc1 {top}")
    for i in range(K - 1, -1, -1):
        g.L(oks[i])
        for r in copy_offs:
            g.A(f"v_mov_b32 v{res+r}, v{sets[i]+r}")
        if i > 0:
            g.A(f"s_branch {done}")
    g.L(done)

def masked_poll(g, cfg, items, base, idle_sleep=0, busy_sleep=0):
    n = len(items)
    assert n <= 8
    bs = f"s[{base}:{base+1}]" if base is not None else "-1"
    top = g.lab("mp"); done = g.lab("mpdone")
    for i in range(n):
        g.A(f"s_mov_b64 s[{S_MISS+2*i}:{S_MISS+2*i+1}], {bs}")
    g.A(f"s_mov_b32 s{S_CNT}, 0")
    g.L(top)
    for i, (ld, tags) in enumerate(items):
        sk = g.lab("mpsk")
        g.A(f"s_mov_b64 exec, s[{S_MISS+2*i}:{S_MISS+2*i+1}]")
        g.A(f"s_cbranch_execz {sk}")
        ld()
        g.L(sk)
    g.A(f"s_mov_b64 exec, {bs}")
    g.A("s_waitcnt vmcnt(0)")
    for i, (ld, tags) in enumerate(items):
        g.A(f"v_cmp_eq_u32 vcc, s{S_TAG}, v{tags[0]}")
        for t in tags[1:]:
            g.A(f"v_cmp_eq_u32 s[{S_SAVE}:{S_SAVE+1}], s{S_TAG}, v{t}")
            g.A(f"s_and_b64 vcc, vcc, s[{S_SAVE}:{S_SAVE+1}]")
        g.A(f"s_andn2_b64 s[{S_MISS+2*i}:{S_MISS+2*i+1}], s[{S_MISS+2*i}:{S_MISS+2*i+1}], vcc")
    if n == 1:
        g.A(f"s_cmp_eq_u64 s[{S_MISS}:{S_MISS+1}], 0")
        g.A(f"s_cbranch_scc1 {done}")
    else:
        g.A(f"s_or_b64 s[{S_SAVE}:{S_SAVE+1}], s[{S_MISS}:{S_MISS+1}], s[{S_MISS+2}:{S_MISS+3}]")
        for i in range(2, n):
            g.A(f"s_or_b64 s[{S_SAVE}:{S_SAVE+1}], s[{S_SAVE}:{S_SAVE+1}], s[{S_MISS+2*i}:{S_MISS+2*i+1}]")
        g.A(f"s_cbranch_scc0 {done}")
    if idle_sleep:
        busy = g.lab("mpbusy")
        g.A(f"s_mov_b64 s[{S_SAVE}:{S_SAVE+1}], s[{S_MISS}:{S_MISS+1}]")
        for i in range(1, n):
            g.A(f"s_and_b64 s[{S_SAVE}:{S_SAVE+1}], s[{S_SAVE}:{S_SAVE+1}], s[{S_MISS+2*i}:{S_MISS+2*i+1}]")
        g.A(f"s_cmp_eq_u64 s[{S_SAVE}:{S_SAVE+1}], {bs}" if base is not None else f"s_cmp_eq_u64 s[{S_SAVE}:{S_SAVE+1}], -1")
        g.A(f"s_cbranch_scc0 {busy}")
        g.A(f"s_sleep {idle_sleep}")
        g.L(busy)
    if busy_sleep:
        g.A(f"s_sleep {busy_sleep}")
    g.A(f"s_add_u32 s{S_CNT}, s{S_CNT}, 1")
    g.A(f"s_cmp_lt_u32 s{S_CNT}, {cfg.POLLMAX}")
    g.A(f"s_cbranch_scc1 {top}")
    g.L(done)
    g.A(f"s_mov_b64 exec, {bs}")

def bf16_round_pairs(g, regs, tmp):
    for i in range(0, len(regs), 2):
        a, b = regs[i], regs[i + 1]
        g.A(f"v_cvt_pk_bf16_f32 v{tmp}, v{a}, v{b}")
        g.A(f"v_lshlrev_b32 v{a}, 16, v{tmp}")
        g.A(f"v_and_b32 v{b}, 0xffff0000, v{tmp}")

def unpack_pairs(g, src, dst):
    for i, s in enumerate(src):
        g.A(f"v_lshlrev_b32 v{dst[2*i]}, 16, v{s}")
        g.A(f"v_and_b32 v{dst[2*i+1]}, 0xffff0000, v{s}")

def wave_sum(g, regs, sdst, op="add"):
    ins = "v_add_f32_dpp" if op == "add" else "v_max_f32_dpp"
    steps = ["row_shr:1", "row_shr:2", "row_shr:4", "row_shr:8"]
    for st in steps:
        for r in regs:
            if op == "add":
                g.A(f"{ins} v{r}, v{r}, v{r} {st} row_mask:0xf bank_mask:0xf bound_ctrl:0")
            else:
                g.A(f"{ins} v{r}, v{r}, v{r} {st} row_mask:0xf bank_mask:0xf")
        if len(regs) < 3:
            g.A(f"s_nop {2 - len(regs)}" if len(regs) < 3 else "s_nop 0")
    for st, rm in (("row_bcast:15", "0xa"), ("row_bcast:31", "0xc")):
        for r in regs:
            g.A(f"{ins} v{r}, v{r}, v{r} {st} row_mask:{rm} bank_mask:0xf")
        g.A("s_nop 1")
    for r, s in zip(regs, sdst):
        g.A(f"v_readlane_b32 s{s}, v{r}, 63")

def emit_streamer(g, cfg):
    NG, P, DMIN, W1 = cfg.NG, cfg.P, cfg.DMIN, cfg.W1
    NT = cfg.NT
    V_LANE = 0
    V_OFFK, V_OFFV = 1, 2
    V_M = 3
    V_EP = 7
    V_BQ = 8
    V_S = 40
    V_MAX, V_L = 62, 63
    V_ACC = 64
    V_O = 72
    V_B = 80
    V_T = 88
    V_QL = 96
    V_QOFF = 112
    V_RING2 = 128
    R = P * 8
    NA = min(R, 64)
    assert V_RING2 + 4 * (R - NA) <= 256
    def slot(n):
        s = n % R
        if s < 64:
            return ar(4 * s, 4)
        return vr(V_RING2 + 4 * (s - 64), 4)

    g.L("L_stream")
    g.C("bh = w/6, s = w%6")
    g.A(f"s_mul_hi_u32 s{S_T0}, s{S_WG}, 0x2aaaaaab")
    g.A(f"s_mul_i32 s{S_T1}, s{S_T0}, 6")
    g.A(f"s_sub_u32 s{S_T1}, s{S_WG}, s{S_T1}")
    g.A(f"s_lshl_b32 s{S_T2}, s{S_T1}, 8")
    g.A(f"s_mul_hi_u32 s{S_X0}, s{S_T2}, 0x55555556")
    g.A(f"s_add_u32 s{S_T2}, s{S_T2}, 256")
    g.A(f"s_mul_hi_u32 s{S_X0+1}, s{S_T2}, 0x55555556")
    g.A(f"s_sub_u32 s{S_X0+1}, s{S_X0+1}, s{S_X0}")
    g.A(f"s_lshl_b32 s{S_X0+2}, s{S_T0}, 22")
    g.A(f"s_lshl_b32 s{S_X0+3}, s{S_X0}, 13")
    g.A(f"s_add_u32 s{S_X0+2}, s{S_X0+2}, s{S_X0+3}")
    g.A(f"s_lshl_b32 s{S_X0+3}, s{S_X0+1}, 13")
    S_BH = S_X0 + 4
    g.A(f"s_mov_b32 s{S_BH}, s{S_T0}")
    S_BIAS = S_X0 + 5
    T = V_T
    g.A(f"s_lshl_b32 s{S_T1}, s{S_WAVE}, 13")
    g.A(f"v_lshrrev_b32 v{T}, 2, v{V_LANE}")
    g.A(f"v_and_b32 v{T}, 3, v{T}")
    g.A(f"v_lshlrev_b32 v{V_OFFK}, 9, v{T}")
    g.A(f"v_lshrrev_b32 v{T+1}, 4, v{V_LANE}")
    g.A(f"v_lshl_add_u32 v{V_OFFK}, v{T+1}, 6, v{V_OFFK}")
    g.A(f"v_and_b32 v{T+2}, 3, v{V_LANE}")
    g.A(f"v_lshl_add_u32 v{V_OFFK}, v{T+2}, 4, v{V_OFFK}")
    g.A(f"v_add_u32 v{V_OFFK}, s{S_T1}, v{V_OFFK}")
    g.A("s_waitcnt lgkmcnt(0)")
    set_srd(g, SRD_A, P_K, off_sreg=S_X0 + 2, nbytes_sreg=S_X0 + 3)

    S_SO = S_OFF
    def issue_group(gi):
        isv = gi >= NG
        i = gi - NG if isv else gi
        srd = SRD_B if isv else SRD_A
        voff = V_OFFV if isv else V_OFFK
        for half in range(2):
            g.A(f"s_mov_b32 s{S_SO+half}, {i*32768 + half*4096}")
        for a in range(4):
            for dh in range(2):
                n = gi * 8 + a * 2 + dh
                imm = (a & 1) * 2048 + dh * 256
                g.A(f"buffer_load_dwordx4 {slot(n)}, v{voff}, s[{srd}:{srd+3}], s{S_SO + (a >> 1)} offen offset:{imm}{NT}")

    issue_group(0)
    issue_group(1)
    set_srd(g, SRD_WS, P_WS, nbytes=WS_SIZE)
    g.A(f"v_mov_b32 v{T+4}, 0")
    g.A(f"buffer_load_dword v{V_EP}, v{T+4}, s[{SRD_WS}:{SRD_WS+3}], 0 offen sc1")
    entry_stamp(g, cfg)
    stamp(g, cfg, 1)
    entry_prefetch(g, cfg, T + 5)
    set_srd(g, SRD_B, P_V, off_sreg=S_X0 + 2, nbytes_sreg=S_X0 + 3)
    g.A(f"s_add_u32 s{S_T1}, s{S_WAVE}, {4*(NG-1)}")
    g.A(f"s_cmp_lt_u32 s{S_T1}, s{S_X0+1}")
    g.A(f"s_cselect_b32 s{S_BIAS}, 0, 0xff800000")
    g.A(f"s_lshl_b32 s{S_T1}, s{S_WAVE}, 13")
    g.A(f"v_lshrrev_b32 v{T+1}, 4, v{V_LANE}")
    g.A(f"v_lshlrev_b32 v{V_OFFV}, 9, v{T+1}")
    g.A(f"v_and_b32 v{T+3}, 15, v{V_LANE}")
    g.A(f"v_lshl_add_u32 v{V_OFFV}, v{T+3}, 4, v{V_OFFV}")
    g.A(f"v_add_u32 v{V_OFFV}, s{S_T1}, v{V_OFFV}")
    g.C("PV masks M_t")
    g.A(f"v_and_b32 v{T}, 7, v{V_LANE}")
    g.A(f"v_lshrrev_b32 v{T+1}, 1, v{T}")
    g.A(f"v_and_b32 v{T+2}, 1, v{V_LANE}")
    g.A(f"v_mov_b32 v{T+3}, 0xffff")
    g.A(f"v_mov_b32 v{T+4}, 0xffff0000")
    g.A(f"v_cmp_eq_u32 vcc, 1, v{T+2}")
    g.A("s_nop 1")
    g.A(f"v_cndmask_b32 v{T+3}, v{T+3}, v{T+4}, vcc")
    for t in range(4):
        g.A(f"v_cmp_eq_u32 vcc, {t}, v{T+1}")
        g.A("s_nop 1")
        g.A(f"v_cndmask_b32 v{V_M+t}, 0, v{T+3}, vcc")
    for a in range(4):
        m = 0x000F000F << (4 * a)
        g.A(f"s_mov_b32 s{S_MSK+2*a}, {m:#x}")
        g.A(f"s_mov_b32 s{S_MSK+2*a+1}, {m:#x}")
    g.A(f"v_lshrrev_b32 v{T}, 4, v{V_LANE}")
    g.A(f"v_and_b32 v{T+1}, 3, v{V_LANE}")
    g.A(f"v_lshl_add_u32 v{T}, v{T}, 2, v{T+1}")
    g.A(f"v_lshlrev_b32 v{V_QOFF}, 5, v{T}")
    S_QB = S_X0 + 6
    g.C("q base: WS_QB + (b*2048 + h*128)*8 ; bh = b*16+h")
    g.A(f"s_lshr_b32 s{S_T0}, s{S_BH}, 4")
    g.A(f"s_and_b32 s{S_T1}, s{S_BH}, 15")
    g.A(f"s_lshl_b32 s{S_T0}, s{S_T0}, 14")
    g.A(f"s_lshl_b32 s{S_T1}, s{S_T1}, 10")
    g.A(f"s_add_u32 s{S_QB}, s{S_T0}, s{S_T1}")
    g.A(f"s_add_u32 s{S_QB}, s{S_QB}, {WS_QB}")
    def q_loads():
        for dh in range(2):
            for k in range(2):
                g.A(f"buffer_load_dwordx4 {vr(V_QL + (dh*2+k)*4, 4)}, v{V_QOFF}, s[{SRD_WS}:{SRD_WS+3}], s{S_QB} offen offset:{dh*512 + k*16} sc1")
    QAT = P - cfg.QBACK
    for gi in range(2, P):
        if gi == QAT:
            q_loads()
        g.A(f"s_waitcnt vmcnt({W1 - 8})")
        if gi == 4:
            make_tag(g, V_EP)
        issue_group(gi)
    stamp(g, cfg, 2)
    tagregs = [V_QL + k * 4 + o for k in range(4) for o in (1, 3)]
    okq = g.lab("qok")
    g.A(f"s_waitcnt vmcnt({(P - QAT) * 8})")
    if not (cfg.X_NOHELP):
        check_tags(g, tagregs, T, okq)
        poll_loop(g, cfg, q_loads, tagregs, T, sleep=2)
    g.L(okq)
    stamp(g, cfg, 3)
    for a in range(4):
        for dh in range(2):
            src = [V_QL + (dh * 2) * 4, V_QL + (dh * 2) * 4 + 2, V_QL + (dh * 2 + 1) * 4, V_QL + (dh * 2 + 1) * 4 + 2]
            for r in range(4):
                g.A(f"v_cndmask_b32 v{V_BQ + (a*2+dh)*4 + r}, 0, v{src[r]}, s[{S_MSK+2*a}:{S_MSK+2*a+1}]")
    g.A(f"v_mov_b32 v{V_MAX}, 0xff800000")
    g.A("s_nop 1")

    NTOT = 2 * NG
    def I(gi):
        if cfg.SHRINK <= 1:
            return min(NTOT, max(P, gi + DMIN))
        d = max(DMIN, P - (gi + cfg.SHRINK - 1) // cfg.SHRINK)
        return min(NTOT, max(P, gi + d))
    CSC = f2u(0.0625 * LOG2E)
    for gi in range(NTOT):
        n_after = 8 * (I(gi) - gi - 1)
        g.A(f"s_waitcnt vmcnt({min(63, n_after)})")
        if gi < NG:
            acc = V_ACC + 4 * (gi & 1)
            for a in range(4):
                for dh in range(2):
                    n = gi * 8 + a * 2 + dh
                    c = "0" if (a == 0 and dh == 0) else vr(acc, 4)
                    g.A(f"v_mfma_f32_16x16x32_bf16 {vr(acc,4)}, {slot(n)}, {vr(V_BQ + (a*2+dh)*4, 4)}, {c}")
            nissue = I(gi + 1) - I(gi) if gi + 1 < NTOT else 0
            for x in range(nissue):
                if I(gi) + x - gi - 1 > cfg.CAPG:
                    g.A(f"s_waitcnt vmcnt({8*cfg.CAPG - 8})")
                issue_group(I(gi) + x)
            if nissue == 0:
                g.A("s_nop 7")
            S = V_S + gi
            g.A(f"v_mov_b32_dpp v{S}, v{acc} quad_perm:[0,0,0,0] row_mask:0xf bank_mask:0xf")
            for p in range(1, 4):
                g.A(f"v_add_f32_dpp v{S}, v{acc+p}, v{S} quad_perm:[{p},{p},{p},{p}] row_mask:0xf bank_mask:0xf")
            g.A(f"v_cvt_pk_bf16_f32 v{T}, v{S}, v{S}")
            if gi == NG - 1:
                g.A(f"v_lshlrev_b32 v{S}, 16, v{T}")
                g.A(f"v_add_f32 v{S}, s{S_BIAS}, v{S}")
            else:
                g.A(f"v_lshlrev_b32 v{S}, 16, v{T}")
            g.A(f"v_max_f32 v{V_MAX}, v{V_MAX}, v{S}")
            if gi == NG - 1:
                g.C("softmax over this wave's keys")
                g.A("s_nop 1")
                for st in ("row_ror:4", "row_ror:8"):
                    g.A(f"v_max_f32_dpp v{V_MAX}, v{V_MAX}, v{V_MAX} {st} row_mask:0xf bank_mask:0xf")
                    g.A("s_nop 1")
                for st, rm in (("row_bcast:15", "0xa"), ("row_bcast:31", "0xc")):
                    g.A(f"v_max_f32_dpp v{V_MAX}, v{V_MAX}, v{V_MAX} {st} row_mask:{rm} bank_mask:0xf")
                    g.A("s_nop 1")
                g.A(f"v_readlane_b32 s{S_T0}, v{V_MAX}, 63")
                g.A(f"s_mov_b32 s{S_X0+7}, {CSC:#x}")
                g.A("s_nop 1")
                g.A(f"v_mov_b32 v{V_MAX}, s{S_T0}")
                g.A(f"v_mul_f32 v{V_MAX}, s{S_X0+7}, v{V_MAX}")
                g.A(f"v_mov_b32 v{V_L}, 0")
                for i in range(NG):
                    g.A(f"v_fma_f32 v{V_S+i}, v{V_S+i}, s{S_X0+7}, -v{V_MAX}")
                for i in range(NG):
                    g.A(f"v_exp_f32 v{V_S+i}, v{V_S+i}")
                g.A("s_nop 0")
                for i in range(NG):
                    g.A(f"v_add_f32 v{V_L}, v{V_L}, v{V_S+i}")
                    g.A(f"v_cvt_pk_bf16_f32 v{V_S+i}, v{V_S+i}, v{V_S+i}")
                g.A("s_nop 1")
                for st in ("row_ror:4", "row_ror:8"):
                    g.A(f"v_add_f32_dpp v{V_L}, v{V_L}, v{V_L} {st} row_mask:0xf bank_mask:0xf")
                    g.A("s_nop 1")
                for st, rm in (("row_bcast:15", "0xa"), ("row_bcast:31", "0xc")):
                    g.A(f"v_add_f32_dpp v{V_L}, v{V_L}, v{V_L} {st} row_mask:{rm} bank_mask:0xf")
                    g.A("s_nop 1")
                g.A(f"v_readlane_b32 s{S_X0+8}, v{V_L}, 63")
                stamp(g, cfg, 4)
        else:
            i = gi - NG
            Pi = V_S + i
            def build(a):
                bb = V_B + 4 * (a & 1)
                for t in range(4):
                    g.A(f"v_and_b32_dpp v{bb+t}, v{Pi}, v{V_M+t} row_newbcast:{4*a} row_mask:0xf bank_mask:0xf")
            build(0)
            for a in range(4):
                if a < 3:
                    build(a + 1)
                else:
                    g.A("s_nop 1")
                bb = V_B + 4 * (a & 1)
                for dh in range(2):
                    n = gi * 8 + a * 2 + dh
                    acc = V_O + 4 * dh
                    c = "0" if (i == 0 and a == 0) else vr(acc, 4)
                    g.A(f"v_mfma_f32_16x16x32_bf16 {vr(acc,4)}, {slot(n)}, {vr(bb,4)}, {c}")
            nissue = I(gi + 1) - I(gi) if gi + 1 < NTOT else 0
            for x in range(nissue):
                if I(gi) + x - gi - 1 > cfg.CAPG:
                    g.A(f"s_waitcnt vmcnt({8*cfg.CAPG - 8})")
                issue_group(I(gi) + x)
        if gi == cfg.HEADS_STEP:
            skip = g.lab("nohead")
            g.A(f"s_cmp_lg_u32 s{S_WAVE}, 0")
            g.A(f"s_cbranch_scc1 {skip}")
            g.A(f"s_lshl_b32 s{S_T0}, s{S_WG}, 6")
            g.A(f"s_add_u32 s{S_T0}, s{S_T0}, {WS_HEADS}")
            g.A(f"v_mov_b32 v{T}, s{S_TAG}")
            g.A(f"v_mov_b32 v{T+1}, s{S_TAG}")
            g.A(f"v_mov_b32 v{T+2}, 0")
            g.A("s_mov_b64 exec, 1")
            g.A(f"buffer_store_dwordx2 v[{T}:{T+1}], v{T+2}, s[{SRD_WS}:{SRD_WS+3}], s{S_T0} offen sc1")
            g.A("s_mov_b64 exec, -1")
            g.L(skip)
    stamp(g, cfg, 5)
    g.C("workgroup combine")
    g.A(f"v_and_b32 v{T}, 8, v{V_LANE}")
    g.A(f"v_cmp_ne_u32 vcc, 0, v{T}")
    g.A(f"v_lshlrev_b32 v{T+1}, 4, v{T}")
    g.A(f"v_lshrrev_b32 v{T+2}, 4, v{V_LANE}")
    g.A(f"v_lshl_add_u32 v{T+1}, v{T+2}, 5, v{T+1}")
    g.A(f"v_and_b32 v{T+2}, 7, v{V_LANE}")
    g.A(f"v_add_u32 v{T+1}, v{T+1}, v{T+2}")
    g.A(f"s_lshl_b32 s{S_T0}, s{S_WAVE}, 8")
    g.A(f"v_add_u32 v{T+1}, s{S_T0}, v{T+1}")
    g.A(f"v_lshlrev_b32 v{T+1}, 2, v{T+1}")
    g.A("s_nop 4")
    for r in range(4):
        g.A(f"v_cndmask_b32 v{T+2}, v{V_O+r}, v{V_O+4+r}, vcc")
        g.A(f"ds_write_b32 v{T+1}, v{T+2} offset:{L_OW + r*32}")
    g.A(f"s_lshl_b32 s{S_T0}, s{S_WAVE}, 2")
    g.A(f"v_mov_b32 v{T+3}, s{S_T0}")
    g.A(f"v_mov_b32 v{T+4}, s{S_X0+8}")
    g.A("s_mov_b64 exec, 1")
    g.A(f"ds_write_b32 v{T+3}, v{V_MAX} offset:{L_ML}")
    g.A(f"ds_write_b32 v{T+3}, v{T+4} offset:{L_ML+16}")
    g.A("s_mov_b64 exec, -1")
    g.A("s_waitcnt lgkmcnt(0)")
    g.A("s_barrier")
    g.A(f"s_lshl_b32 s{S_T0}, s{S_WAVE}, 6")
    g.A(f"v_add_u32 v{T}, s{S_T0}, v{V_LANE}")
    g.A(f"v_lshlrev_b32 v{T+1}, 2, v{T}")
    g.A(f"v_mov_b32 v{T+2}, 0")
    Q = V_QL
    g.A(f"ds_read_b128 {vr(Q,4)}, v{T+2} offset:{L_ML}")
    g.A(f"ds_read_b128 {vr(Q+4,4)}, v{T+2} offset:{L_ML+16}")
    for w in range(4):
        g.A(f"ds_read_b32 v{Q+8+w}, v{T+1} offset:{L_OW + w*1024}")
    g.A("s_waitcnt lgkmcnt(4)")
    g.A(f"v_max_f32 v{T+3}, v{Q}, v{Q+1}")
    g.A(f"v_max3_f32 v{T+3}, v{Q+2}, v{Q+3}, v{T+3}")
    for w in range(4):
        g.A(f"v_sub_f32 v{Q+w}, v{Q+w}, v{T+3}")
    for w in range(4):
        g.A(f"v_exp_f32 v{Q+w}, v{Q+w}")
    g.A("s_nop 0")
    g.A(f"v_mul_f32 v{T+4}, v{Q}, v{Q+4}")
    for w in range(1, 4):
        g.A(f"v_fmac_f32 v{T+4}, v{Q+w}, v{Q+4+w}")
    g.A("s_waitcnt lgkmcnt(0)")
    g.A(f"v_mul_f32 v{Q+12}, v{Q}, v{Q+8}")
    for w in range(1, 4):
        g.A(f"v_fmac_f32 v{Q+12}, v{Q+w}, v{Q+8+w}")
    g.A(f"v_mov_b32 v{Q+13}, s{S_TAG}")
    g.A(f"s_lshl_b32 s{S_T0}, s{S_WG}, 12")
    g.A(f"s_add_u32 s{S_T0}, s{S_T0}, {WS_PART}")
    g.A(f"v_lshlrev_b32 v{T+1}, 3, v{T}")
    g.A(f"buffer_store_dwordx2 {vr(Q+12,2)}, v{T+1}, s[{SRD_WS}:{SRD_WS+3}], s{S_T0} offen sc1")
    skip = g.lab("noml")
    g.A(f"s_cmp_lg_u32 s{S_WAVE}, 0")
    g.A(f"s_cbranch_scc1 {skip}")
    g.A(f"v_mov_b32 v{Q}, v{T+3}")
    g.A(f"v_mov_b32 v{Q+1}, s{S_TAG}")
    g.A(f"v_mov_b32 v{Q+2}, v{T+4}")
    g.A(f"v_mov_b32 v{Q+3}, s{S_TAG}")
    g.A("s_mov_b64 exec, 1")
    g.A(f"buffer_store_dwordx4 {vr(Q,4)}, v{T+2}, s[{SRD_WS}:{SRD_WS+3}], s{S_T0} offen offset:2048 sc1")
    g.L(skip)
    stamp(g, cfg, 6)
    g.A("s_endpgm")

H_LANE = 0
H_T = 2
H_LN = 16
H_SC = 24
H_ACC = 32
H_FR = 64
H_FT = 128
H_ST = 192

def transpose_unit(g, src, dst, dst_acc=False, tmp=None):
    for c in range(4):
        for o in range(2):
            m = 2 * c + o
            for t in range(4):
                sel = S_SEL0 if o == 0 else S_SEL1
                s_lo = src + (2 * t) * 4 + c
                s_hi = src + (2 * t + 1) * 4 + c
                if dst_acc:
                    g.A(f"v_perm_b32 v{tmp + (t & 1)}, v{s_hi}, v{s_lo}, s{sel}")
                    g.A(f"v_accvgpr_write_b32 a{dst + m*4 + t}, v{tmp + (t & 1)}")
                else:
                    g.A(f"v_perm_b32 v{dst + m*4 + t}, v{s_hi}, v{s_lo}, s{sel}")

def unit_loads(g, dst, srd, voff, soffs, flags):
    for e in range(8):
        g.A(f"s_mov_b32 s{S_T0}, {soffs[e]}")
        g.A(f"buffer_load_dwordx4 {vr(dst + 4*e, 4)}, v{voff}, s[{srd}:{srd+3}], s{S_T0} offen{flags}")

def mfma8(g, afrag, frag, first, frag_acc=False):
    for m in range(8):
        acc = H_ACC + 4 * m
        c = "0" if first else vr(acc, 4)
        b = ar(frag + 4 * m, 4) if frag_acc else vr(frag + 4 * m, 4)
        g.A(f"v_mfma_f32_16x16x32_bf16 {vr(acc,4)}, {vr(afrag,4)}, {b}, {c}")

def red_write(g, vaddr):
    for m in range(8):
        g.A(f"ds_write_b32 v{vaddr}, v{H_ACC + 4*m} offset:{m*256}")

def red_read(g, va, vb, dst):
    for w in range(4):
        g.A(f"ds_read2st64_b32 {vr(dst + 2*w, 2)}, v{va} offset0:{w*8} offset1:{w*8+1}")
        g.A(f"ds_read2st64_b32 {vr(dst + 8 + 2*w, 2)}, v{vb} offset0:{w*8} offset1:{w*8+1}")
    g.A("s_waitcnt lgkmcnt(0)")
    for base in (dst, dst + 8):
        for o in range(2):
            g.A(f"v_add_f32 v{base+o}, v{base+o}, v{base+2+o}")
            g.A(f"v_add_f32 v{base+4+o}, v{base+4+o}, v{base+6+o}")
        for o in range(2):
            g.A(f"v_add_f32 v{base+o}, v{base+o}, v{base+4+o}")

def ln_normalize(g, x, out, tmp):
    sA, sB = S_X0 + 10, S_X0 + 11
    t0, t1 = tmp, tmp + 1
    g.A(f"v_add_f32 v{t0}, v{x}, v{x+1}")
    g.A(f"v_add_f32 v{t1}, v{x+2}, v{x+3}")
    g.A(f"v_add_f32 v{t0}, v{t0}, v{x+4}")
    g.A(f"v_add_f32 v{t1}, v{t1}, v{x+5}")
    g.A(f"v_add_f32 v{t0}, v{t0}, v{x+6}")
    g.A(f"v_add_f32 v{t1}, v{t1}, v{x+7}")
    g.A(f"v_add_f32 v{t0}, v{t0}, v{t1}")
    g.A("s_nop 1")
    wave_sum(g, [t0], [sA])
    g.A(f"v_mov_b32 v{t1}, {f2u(1.0/448.0):#x}")
    g.A("s_nop 0")
    g.A(f"v_mul_f32 v{t1}, s{sA}, v{t1}")
    for e in range(8):
        g.A(f"v_sub_f32 v{out+e}, v{x+e}, v{t1}")
    g.A(f"v_mul_f32 v{t0}, v{out}, v{out}")
    for e in range(1, 8):
        g.A(f"v_fmac_f32 v{t0}, v{out+e}, v{out+e}")
    g.A(f"v_cmp_gt_u32 vcc, 56, v{H_LANE}")
    g.A("s_nop 1")
    g.A(f"v_cndmask_b32 v{t0}, 0, v{t0}, vcc")
    g.A("s_nop 1")
    wave_sum(g, [t0], [sB])
    g.A(f"v_mov_b32 v{t0}, {f2u(1.0/448.0):#x}")
    g.A("s_nop 0")
    g.A(f"v_mul_f32 v{t0}, s{sB}, v{t0}")
    g.A(f"v_cvt_pk_bf16_f32 v{tmp+2}, v{t1}, v{t0}")
    g.A(f"v_lshlrev_b32 v{t1}, 16, v{tmp+2}")
    g.A(f"v_and_b32 v{t0}, 0xffff0000, v{tmp+2}")
    g.A(f"v_add_f32 v{t0}, {f2u(1e-5):#x}, v{t0}")
    g.A(f"v_cvt_pk_bf16_f32 v{t0}, v{t0}, v{t0}")
    g.A(f"v_lshlrev_b32 v{t0}, 16, v{t0}")
    g.A(f"v_sqrt_f32 v{t0}, v{t0}")
    g.A("s_nop 0")
    g.A(f"v_cvt_pk_bf16_f32 v{t0}, v{t0}, v{t0}")
    g.A(f"v_lshlrev_b32 v{t0}, 16, v{t0}")
    g.A(f"v_rcp_f32 v{t0}, v{t0}")
    for e in range(8):
        g.A(f"v_sub_f32 v{out+e}, v{x+e}, v{t1}")
    bf16_round_pairs(g, [out + e for e in range(8)], tmp + 2)
    for e in range(8):
        g.A(f"v_mul_f32 v{out+e}, v{out+e}, v{t0}")
    bf16_round_pairs(g, [out + e for e in range(8)], tmp + 2)

def exec56(g):
    g.A("s_mov_b32 exec_lo, -1")
    g.A("s_mov_b32 exec_hi, 0x00ffffff")
def exec_all(g):
    g.A("s_mov_b64 exec, -1")

def gather_shift_scale(g, cfg, sbase, voff, ld, shift, scale1, tmp):
    def loads():
        for k, imm in enumerate((0, 16, 1792, 1808)):
            g.A(f"buffer_load_dwordx4 {vr(ld + 4*k, 4)}, v{voff}, s[{SRD_WS}:{SRD_WS+3}], s{sbase} offen offset:{imm} sc1")
    tags = [ld + 4 * k + o for k in range(4) for o in (1, 3)]
    poll_loop(g, cfg, loads, tags, tmp, sleep=1)
    unpack_pairs(g, [ld, ld + 2, ld + 4, ld + 6], [shift + e for e in range(8)])
    unpack_pairs(g, [ld + 8, ld + 10, ld + 12, ld + 14], [scale1 + e for e in range(8)])
    for e in range(8):
        g.A(f"v_add_f32 v{scale1+e}, 1.0, v{scale1+e}")
    bf16_round_pairs(g, [scale1 + e for e in range(8)], tmp)

def modulate_write(g, ln, shift, scale1, vaddr, ldsoff, tmp):
    for e in range(8):
        g.A(f"v_mul_f32 v{ln+e}, v{ln+e}, v{scale1+e}")
    bf16_round_pairs(g, [ln + e for e in range(8)], tmp)
    for e in range(8):
        g.A(f"v_add_f32 v{ln+e}, v{ln+e}, v{shift+e}")
    for k in range(4):
        g.A(f"v_cvt_pk_bf16_f32 v{tmp+k}, v{ln+2*k}, v{ln+2*k+1}")
    g.A(f"ds_write_b128 v{vaddr}, {vr(tmp,4)} offset:{ldsoff}")

def emit_helper(g, cfg):
    NT = cfg.NTW
    T = H_T
    WSR = f"s[{SRD_WS}:{SRD_WS+3}]"
    g.L("L_helper")
    if cfg.X_NOHELP:
        g.A("s_endpgm")
    lazy(g, cfg, 0)
    g.A(f"s_sub_u32 s{S_ROLE}, s{S_WG}, {cfg.NSTREAM}")
    g.A(f"s_mov_b32 s{S_SEL0}, 0x05040100")
    g.A(f"s_mov_b32 s{S_SEL1}, 0x07060302")
    V_L16 = 16
    V_WOFF64 = 17
    V_WOFFQ = 18
    V_AF64 = 19
    V_RW = 20
    V_RA, V_RB = 21, 22
    V_ACTW = 23
    V_G32 = 24
    V_X = 112
    HLN, HSH, HSC, HLD = 160, 168, 176, 144
    g.A(f"v_lshlrev_b32 v{V_L16}, 4, v{H_LANE}")
    g.A(f"v_lshlrev_b32 v{V_G32}, 5, v{H_LANE}")
    g.A(f"s_and_b32 s{S_X0}, s{S_WAVE}, 1")
    S_B = S_X0
    g.A(f"s_mul_i32 s{S_T1}, s{S_B}, 896")
    set_srd(g, SRD_C, P_C, nbytes=1792)
    set_srd(g, SRD_A, P_X, nbytes=1792)
    exec56(g)
    g.A(f"buffer_load_dwordx4 {vr(HLD,4)}, v{V_L16}, s[{SRD_C}:{SRD_C+3}], s{S_T1} offen")
    g.A(f"buffer_load_dwordx4 {vr(HLD+4,4)}, v{V_L16}, s[{SRD_A}:{SRD_A+3}], s{S_T1} offen")
    exec_all(g)
    lazy(g, cfg, 1)
    g.A(f"v_lshrrev_b32 v{T}, 3, v{H_LANE}")
    g.A(f"v_and_b32 v{T}, 1, v{T}")
    g.A(f"v_lshrrev_b32 v{T+1}, 4, v{H_LANE}")
    g.A(f"v_lshlrev_b32 v{T+2}, 5, v{T}")
    g.A(f"v_lshl_add_u32 v{T+2}, v{T+1}, 3, v{T+2}")
    g.A(f"s_lshl_b32 s{S_T0}, s{S_WAVE}, 6")
    g.A(f"v_add_u32 v{T+2}, s{S_T0}, v{T+2}")
    g.A(f"v_and_b32 v{T+3}, 7, v{H_LANE}")
    g.A(f"v_lshlrev_b32 v{T+3}, 4, v{T+3}")
    g.A(f"s_mov_b32 s{S_T0}, 5376")
    g.A(f"v_mul_lo_u32 v{V_WOFF64}, v{T+2}, s{S_T0}")
    g.A(f"v_add_u32 v{V_WOFF64}, v{V_WOFF64}, v{T+3}")
    g.A(f"v_lshl_add_u32 v{V_WOFFQ}, v{T+2}, 13, v{T+3}")
    S_MB = S_X0 + 12
    def m_loads():
        g.A(f"s_lshl_b32 s{S_T2}, s{S_MB}, 7")
        g.A(f"s_sub_u32 s{S_X0+1}, {448*5376}, s{S_T2}")
        set_srd(g, SRD_A, P_WMOD, off_sreg=S_T2, nbytes_sreg=S_X0 + 1)
        for it in range(2):
            unit_loads(g, H_FR + 32 * it, SRD_A, V_WOFF64, [e * 5376 + it * 256 * 5376 for e in range(8)], NT)
    def q_wloads():
        g.A(f"s_lshl_b32 s{S_T2}, s{S_ROLE}, 7")
        g.A(f"s_sub_u32 s{S_X0+1}, {448*8192}, s{S_T2}")
        set_srd(g, SRD_B, P_WQ, off_sreg=S_T2, nbytes_sreg=S_X0 + 1)
        for it in range(2):
            unit_loads(g, H_ST + 32 * it, SRD_B, V_WOFFQ, [e * 8192 + it * 256 * 8192 for e in range(8)], NT)
    nom = g.lab("nomload"); nom_b = g.lab("nomload_b")
    g.A(f"s_sub_u32 s{S_MB}, s{S_ROLE}, 50")
    g.A(f"s_cmp_lt_u32 s{S_ROLE}, 50")
    g.A(f"s_cbranch_scc1 {nom}")
    m_loads()
    g.A(f"s_branch {nom_b}")
    g.L(nom)
    q_wloads()
    g.L(nom_b)
    lazy(g, cfg, 3)
    if cfg.LAZY != 1: stamp(g, cfg, 1)
    entry_prefetch(g, cfg, T + 6)
    g.A(f"v_lshrrev_b32 v{T+3}, 2, v{H_LANE}")
    g.A(f"v_and_b32 v{T+3}, 1, v{T+3}")
    g.A(f"v_mul_u32_u24 v{V_AF64}, {ROWB}, v{T+3}")
    g.A(f"v_lshl_add_u32 v{V_AF64}, v{T}, 6, v{V_AF64}")
    g.A(f"v_lshl_add_u32 v{V_AF64}, v{T+1}, 4, v{V_AF64}")
    g.A(f"s_lshl_b32 s{S_T0}, s{S_WAVE}, 7")
    g.A(f"v_add_u32 v{V_AF64}, s{S_T0}, v{V_AF64}")
    g.A(f"s_lshl_b32 s{S_T0}, s{S_WAVE}, 11")
    g.A(f"s_add_u32 s{S_T0}, s{S_T0}, {L_RED}")
    g.A(f"v_lshlrev_b32 v{V_RW}, 2, v{H_LANE}")
    g.A(f"v_add_u32 v{V_RW}, s{S_T0}, v{V_RW}")
    g.A(f"v_and_b32 v{T+4}, 3, v{H_LANE}")
    g.A(f"v_lshlrev_b32 v{V_RA}, 9, v{T+4}")
    g.A(f"v_lshrrev_b32 v{T+4}, 5, v{H_LANE}")
    g.A(f"v_lshl_add_u32 v{V_RA}, v{T+4}, 6, v{V_RA}")
    g.A(f"v_lshrrev_b32 v{T+4}, 2, v{H_LANE}")
    g.A(f"v_and_b32 v{T+4}, 7, v{T+4}")
    g.A(f"v_lshl_add_u32 v{V_RA}, v{T+4}, 2, v{V_RA}")
    g.A(f"v_add_u32 v{V_RA}, {L_RED}, v{V_RA}")
    g.A(f"v_add_u32 v{V_RB}, 160, v{V_RA}")
    g.A(f"s_mul_i32 s{S_T0}, s{S_B}, {ROWB}")
    g.A(f"v_add_u32 v{V_ACTW}, s{S_T0}, v{V_L16}")
    n1 = S_X0 + 2
    skip = g.lab("noln1")
    g.A("s_waitcnt vmcnt(16)")
    make_tag(g, 1)
    g.A(f"s_cmp_ge_u32 s{S_WAVE}, 2")
    g.A(f"s_cbranch_scc1 {skip}")
    g.A(f"v_cmp_gt_u32 vcc, 56, v{H_LANE}")
    g.A("s_nop 1")
    for k in range(8):
        g.A(f"v_cndmask_b32 v{HLD+k}, 0, v{HLD+k}, vcc")
    unpack_pairs(g, [HLD, HLD + 1, HLD + 2, HLD + 3], [HSH + e for e in range(8)])
    g.A(f"s_mov_b32 s{S_T0}, {f2u(-LOG2E):#x}")
    for e in range(8):
        g.A(f"v_mul_f32 v{HSC+e}, s{S_T0}, v{HSH+e}")
    for e in range(8):
        g.A(f"v_exp_f32 v{HSC+e}, v{HSC+e}")
    g.A("s_nop 0")
    for e in range(8):
        g.A(f"v_add_f32 v{HSC+e}, 1.0, v{HSC+e}")
    for e in range(8):
        g.A(f"v_rcp_f32 v{HSC+e}, v{HSC+e}")
    g.A("s_nop 0")
    for e in range(8):
        g.A(f"v_mul_f32 v{HSC+e}, v{HSC+e}, v{HSH+e}")
    for k in range(4):
        g.A(f"v_cvt_pk_bf16_f32 v{T+k}, v{HSC+2*k}, v{HSC+2*k+1}")
    exec56(g)
    g.A(f"ds_write_b128 v{V_ACTW}, {vr(T,4)} offset:{L_ACTS}")
    exec_all(g)
    unpack_pairs(g, [HLD + 4, HLD + 5, HLD + 6, HLD + 7], [HSH + e for e in range(8)])
    ln_normalize(g, HSH, HLN, T)
    g.L(skip)
    g.A("s_waitcnt lgkmcnt(0)")
    g.A("s_barrier")
    lazy(g, cfg, 2)
    AF = T + 4
    RD = H_FT
    def m_stage():
        g.A(f"ds_read_b128 {vr(AF,4)}, v{V_AF64} offset:{L_ACTS}")
        g.A(f"ds_read_b128 {vr(AF+4,4)}, v{V_AF64} offset:{L_ACTS+512}")
        g.A("s_waitcnt vmcnt(8)")
        transpose_unit(g, H_FR, H_FT)
        g.A("s_waitcnt lgkmcnt(0)")
        g.A("s_nop 0")
        mfma8(g, AF, H_FT, True)
        sk = g.lab("m2")
        g.A(f"s_cmp_eq_u32 s{S_WAVE}, 3")
        g.A(f"s_cbranch_scc1 {sk}")
        g.A("s_waitcnt vmcnt(0)")
        transpose_unit(g, H_FR + 32, H_FT)
        g.A("s_nop 1")
        mfma8(g, AF + 4, H_FT, False)
        g.L(sk)
        g.A("s_nop 7")
        red_write(g, V_RW)
        g.A("s_waitcnt lgkmcnt(0)")
        g.A("s_barrier")
        sk = g.lab("m3")
        g.A(f"s_cmp_lg_u32 s{S_WAVE}, 0")
        g.A(f"s_cbranch_scc1 {sk}")
        red_read(g, V_RA, V_RB, RD)
        for o in range(2):
            g.A(f"v_add_f32 v{RD+o}, v{RD+o}, v{RD+8+o}")
        g.A(f"v_cvt_pk_bf16_f32 v{RD+2}, v{RD}, v{RD+1}")
        g.A(f"v_mov_b32 v{RD+3}, s{S_TAG}")
        g.A(f"v_lshrrev_b32 v{T}, 5, v{H_LANE}")
        g.A(f"v_mul_u32_u24 v{T}, {1344*8}, v{T}")
        g.A(f"v_and_b32 v{T+1}, 31, v{H_LANE}")
        g.A(f"v_lshl_add_u32 v{T}, v{T+1}, 3, v{T}")
        g.A(f"s_lshl_b32 s{S_T0}, s{S_MB}, 8")
        g.A(f"s_add_u32 s{S_T0}, s{S_T0}, {WS_MOD}")
        g.A(f"buffer_store_dwordx2 {vr(RD+2,2)}, v{T}, {WSR}, s{S_T0} offen sc1")
        g.L(sk)
    nom2 = g.lab("nom")
    g.A(f"s_cmp_lt_u32 s{S_ROLE}, 50")
    g.A(f"s_cbranch_scc1 {nom2}")
    m_stage()
    lazy(g, cfg, 4)
    q_wloads()
    g.L(nom2)
    stamp(g, cfg, 2)
    lazy_flush(g, cfg, 5, 16)
    g.A("s_waitcnt vmcnt(8)")
    transpose_unit(g, H_ST, H_FR)
    g.A("s_waitcnt vmcnt(0)")
    transpose_unit(g, H_ST + 32, H_FR + 32)
    skip = g.lab("noh")
    g.A(f"s_cmp_ge_u32 s{S_WAVE}, 2")
    g.A(f"s_cbranch_scc1 {skip}")
    g.A(f"s_mul_i32 s{S_X0+3}, s{S_B}, {1344*8}")
    g.A(f"s_add_u32 s{S_X0+3}, s{S_X0+3}, {WS_MOD}")
    exec56(g)
    gather_shift_scale(g, cfg, S_X0 + 3, V_G32, HLD, HSH, HSC, T)
    modulate_write(g, HLN, HSH, HSC, V_ACTW, L_ACTH, T)
    exec_all(g)
    g.L(skip)
    stamp(g, cfg, 3)
    g.A("s_waitcnt lgkmcnt(0)")
    g.A("s_barrier")
    g.A(f"ds_read_b128 {vr(AF,4)}, v{V_AF64} offset:{L_ACTH}")
    g.A(f"ds_read_b128 {vr(AF+4,4)}, v{V_AF64} offset:{L_ACTH+512}")
    g.A("s_waitcnt lgkmcnt(1)")
    mfma8(g, AF, H_FR, True)
    sk = g.lab("q2")
    g.A(f"s_cmp_eq_u32 s{S_WAVE}, 3")
    g.A(f"s_cbranch_scc1 {sk}")
    g.A("s_waitcnt lgkmcnt(0)")
    mfma8(g, AF + 4, H_FR + 32, False)
    g.L(sk)
    g.A("s_waitcnt lgkmcnt(0)")
    g.A("s_nop 7")
    red_write(g, V_RW)
    g.A("s_waitcnt lgkmcnt(0)")
    g.A("s_barrier")
    sk = g.lab("q3")
    g.A(f"s_cmp_lg_u32 s{S_WAVE}, 0")
    g.A(f"s_cbranch_scc1 {sk}")
    red_read(g, V_RA, V_RB, RD)
    for o in range(2):
        g.A(f"v_add_f32 v{RD+o}, v{RD+o}, v{RD+8+o}")
    g.A(f"v_cvt_pk_bf16_f32 v{RD+2}, v{RD}, v{RD+1}")
    g.A(f"v_mov_b32 v{RD+3}, s{S_TAG}")
    g.A(f"v_lshrrev_b32 v{T}, 5, v{H_LANE}")
    g.A(f"v_lshlrev_b32 v{T}, 14, v{T}")
    g.A(f"v_and_b32 v{T+1}, 31, v{H_LANE}")
    g.A(f"v_lshl_add_u32 v{T}, v{T+1}, 3, v{T}")
    g.A(f"s_lshl_b32 s{S_T0}, s{S_ROLE}, 8")
    g.A(f"s_add_u32 s{S_T0}, s{S_T0}, {WS_QB}")
    g.A(f"buffer_store_dwordx2 {vr(RD+2,2)}, v{T}, {WSR}, s{S_T0} offen sc1")
    g.L(sk)
    stamp(g, cfg, 4)
    if cfg.X_NOEPIW:
        g.A("s_endpgm")
    g.A(f"s_cmp_ge_u32 s{S_ROLE}, 32")
    g.A("s_cbranch_scc1 L_rf")

    nomr = g.lab("nomrest")
    g.A(f"s_cmp_lt_u32 s{S_ROLE}, 4")
    g.A(f"s_cbranch_scc1 {nomr}")
    g.A(f"s_add_u32 s{S_MB}, s{S_ROLE}, 10")
    m_loads()
    g.A("s_barrier")
    m_stage()
    g.L(nomr)
    V_WO = 17
    g.A(f"s_mul_i32 s{S_T2}, s{S_ROLE}, {128*896}")
    g.A(f"s_sub_u32 s{S_X0+1}, {4096*896}, s{S_T2}")
    set_srd(g, SRD_A, P_WO, off_sreg=S_T2, nbytes_sreg=S_X0 + 1)
    def woff128(dst):
        g.A(f"v_lshrrev_b32 v{T}, 4, v{H_LANE}")
        g.A(f"v_mul_u32_u24 v{dst}, {8*896}, v{T}")
        g.A(f"v_and_b32 v{T}, 15, v{H_LANE}")
        g.A(f"v_lshl_add_u32 v{dst}, v{T}, 4, v{dst}")
        g.A(f"s_lshl_b32 s{S_T0}, s{S_WAVE}, 8")
        g.A(f"v_add_u32 v{dst}, s{S_T0}, v{dst}")
    woff128(V_WO)
    def wo_unit(kb, st):
        unit_loads(g, H_ST + 32 * st, SRD_A, V_WO, [(kb * 32 + e) * 896 for e in range(8)], NT)
    wo_unit(0, 0); wo_unit(1, 1)
    g.A("s_waitcnt vmcnt(8)"); transpose_unit(g, H_ST, H_FR)
    wo_unit(2, 0)
    g.A("s_waitcnt vmcnt(8)"); transpose_unit(g, H_ST + 32, H_FR + 32)
    wo_unit(3, 1)
    g.A("s_waitcnt vmcnt(8)"); transpose_unit(g, H_ST, H_FR + 64)
    g.A("s_waitcnt vmcnt(0)"); transpose_unit(g, H_ST + 32, H_FR + 96)
    S_REC = S_X0 + 4
    g.A(f"s_lshr_b32 s{S_T0}, s{S_WAVE}, 1")
    g.A(f"s_lshl_b32 s{S_T0}, s{S_T0}, 4")
    g.A(f"s_lshr_b32 s{S_T1}, s{S_ROLE}, 1")
    g.A(f"s_add_u32 s{S_T0}, s{S_T0}, s{S_T1}")
    g.A(f"s_mul_i32 s{S_REC}, s{S_T0}, {6*4096}")
    g.A(f"s_add_u32 s{S_REC}, s{S_REC}, {WS_PART}")
    g.A(f"s_and_b32 s{S_T1}, s{S_ROLE}, 1")
    g.A(f"s_lshl_b32 s{S_T1}, s{S_T1}, 10")
    for s in range(6):
        g.A(f"s_add_u32 s{S_OFF+s}, s{S_REC}, s{S_T1}")
        g.A(f"s_add_u32 s{S_OFF+s}, s{S_OFF+s}, {s*4096}")
    V_PO, V_ML, V_AOW, V_AFO = 18, 19, 20, 21
    g.A(f"s_and_b32 s{S_T1}, s{S_WAVE}, 1")
    g.A(f"s_lshl_b32 s{S_T1}, s{S_T1}, 6")
    g.A(f"v_add_u32 v{T}, s{S_T1}, v{H_LANE}")
    g.A(f"v_lshlrev_b32 v{V_PO}, 3, v{T}")
    g.A(f"s_lshr_b32 s{S_T1}, s{S_WAVE}, 1")
    g.A(f"s_mul_i32 s{S_T1}, s{S_T1}, {ROWO}")
    g.A(f"v_lshlrev_b32 v{V_AOW}, 1, v{T}")
    g.A(f"v_add_u32 v{V_AOW}, s{S_T1}, v{V_AOW}")
    g.A(f"v_and_b32 v{T}, 7, v{H_LANE}")
    g.A(f"v_min_u32 v{T}, 5, v{T}")
    g.A(f"v_lshlrev_b32 v{V_ML}, 12, v{T}")
    g.A(f"v_lshrrev_b32 v{T}, 2, v{H_LANE}")
    g.A(f"v_and_b32 v{T}, 1, v{T}")
    g.A(f"v_mul_u32_u24 v{V_AFO}, {ROWO}, v{T}")
    g.A(f"v_lshrrev_b32 v{T}, 4, v{H_LANE}")
    g.A(f"v_lshl_add_u32 v{V_AFO}, v{T}, 4, v{V_AFO}")
    stamp(g, cfg, 5)
    def heads_wait(sreg_w):
        g.A(f"s_lshl_b32 s{S_X0+5}, s{sreg_w}, 6")
        g.A(f"s_add_u32 s{S_X0+5}, s{S_X0+5}, {WS_HEADS}")
        g.A(f"v_mov_b32 v{T+2}, 0")
        def loads():
            g.A(f"buffer_load_dwordx2 {vr(T+4,2)}, v{T+2}, {WSR}, s{S_X0+5} offen sc1")
        poll_loop(g, cfg, loads, [T + 4, T + 5], T, sleep=cfg.HSLEEP)
    if cfg.X_LOADONLY:
        g.A("s_endpgm")
    g.A(f"s_lshr_b32 s{S_T1}, s{S_ROLE}, 1")
    g.A(f"s_mul_i32 s{S_T1}, s{S_T1}, 6")
    heads_wait(S_T1)
    stamp(g, cfg, 6)
    PL = H_ST
    items = []
    for sidx in range(6):
        items.append(((lambda sidx=sidx: g.A(f"buffer_load_dwordx2 {vr(PL + 2*sidx, 2)}, v{V_PO}, {WSR}, s{S_OFF+sidx} offen sc1")), [PL + 2*sidx + 1]))
    items.append(((lambda: g.A(f"buffer_load_dwordx4 {vr(PL+12, 4)}, v{V_ML}, {WSR}, s{S_REC} offen offset:2048 sc1")), [PL + 13, PL + 15]))
    masked_poll(g, cfg, items, None, idle_sleep=cfg.IDLE)
    lazy(g, cfg, 0, 2)
    if cfg.LAZY != 2: stamp(g, cfg, 7)
    VM, VL = PL + 12, PL + 14
    g.A(f"v_mov_b32 v{T}, v{VM}")
    g.A("s_nop 1")
    for st in ("quad_perm:[1,0,3,2]", "quad_perm:[2,3,0,1]", "row_half_mirror"):
        g.A(f"v_max_f32_dpp v{T}, v{T}, v{T} {st} row_mask:0xf bank_mask:0xf")
        g.A("s_nop 1")
    g.A(f"v_sub_f32 v{VM}, v{VM}, v{T}")
    g.A(f"v_exp_f32 v{VM}, v{VM}")
    g.A(f"v_and_b32 v{T+1}, 7, v{H_LANE}")
    g.A(f"v_cmp_gt_u32 vcc, 6, v{T+1}")
    g.A(f"v_mul_f32 v{T}, v{VM}, v{VL}")
    g.A("s_nop 0")
    g.A(f"v_cndmask_b32 v{T}, 0, v{T}, vcc")
    g.A("s_nop 1")
    for st in ("quad_perm:[1,0,3,2]", "quad_perm:[2,3,0,1]", "row_half_mirror"):
        g.A(f"v_add_f32_dpp v{T}, v{T}, v{T} {st} row_mask:0xf bank_mask:0xf")
        g.A("s_nop 1")
    g.A(f"v_rcp_f32 v{T}, v{T}")
    g.A("s_nop 0")
    g.A(f"v_mul_f32 v{VM}, v{VM}, v{T}")
    g.A("s_nop 0")
    for s in range(6):
        g.A(f"v_readlane_b32 s{S_X0+6+s}, v{VM}, {s}")
    g.A("s_nop 1")
    g.A(f"v_mul_f32 v{T}, s{S_X0+6}, v{PL}")
    for s in range(1, 6):
        g.A(f"v_fmac_f32 v{T}, s{S_X0+6+s}, v{PL+2*s}")
    g.A(f"v_cvt_pk_bf16_f32 v{T}, v{T}, v{T}")
    g.A(f"ds_write_b16 v{V_AOW}, v{T} offset:{L_ACTO}")
    g.A("s_waitcnt lgkmcnt(0)")
    g.A("s_barrier")
    lazy(g, cfg, 1, 2)
    AFO = [4, 8, 12, 24]
    for kb in range(4):
        g.A(f"ds_read_b128 {vr(AFO[kb], 4)}, v{V_AFO} offset:{L_ACTO + kb*64}")
    for kb in range(4):
        g.A(f"s_waitcnt lgkmcnt({3-kb})")
        mfma8(g, AFO[kb], H_FR + 32 * kb, kb == 0)
    lazy(g, cfg, 2, 2)
    def publish_rec(base_const, sidx):
        g.A(f"s_lshl_b32 s{S_T0}, s{sidx}, 13")
        g.A(f"s_lshl_b32 s{S_T1}, s{S_WAVE}, 11")
        g.A(f"s_add_u32 s{S_T0}, s{S_T0}, s{S_T1}")
        g.A(f"s_add_u32 s{S_T0}, s{S_T0}, {base_const}")
        g.A(f"v_lshlrev_b32 v{T}, 4, v{H_LANE}")
        g.A("s_nop 4")
        for p in range(4):
            a0 = H_ACC + 8 * p
            g.A(f"v_mov_b32 v{a0+2}, v{a0+4}")
            g.A(f"v_mov_b32 v{a0+1}, s{S_TAG}")
            g.A(f"v_mov_b32 v{a0+3}, s{S_TAG}")
        g.A("s_mov_b32 exec_lo, -1")
        g.A("s_mov_b32 exec_hi, 0")
        for p in range(4):
            g.A(f"buffer_store_dwordx4 {vr(H_ACC + 8*p, 4)}, v{T}, {WSR}, s{S_T0} offen offset:{p*512} sc1")
        exec_all(g)
    publish_rec(WS_Y, S_ROLE)
    lazy(g, cfg, 3, 2)
    stamp(g, cfg, 8)
    lazy_flush(g, cfg, 4, 21, 2)
    g.A("s_endpgm")

    g.L("L_rf")
    S_K = S_X0 + 4
    g.A(f"s_sub_u32 s{S_K}, s{S_ROLE}, 32")
    V_WGU, V_WD = 17, 18
    nof = g.lab("nofw")
    g.A(f"s_cmp_ge_u32 s{S_K}, 28")
    g.A(f"s_cbranch_scc1 {nof}")
    g.A(f"v_lshrrev_b32 v{T}, 4, v{H_LANE}")
    g.A(f"v_lshlrev_b32 v{T}, 3, v{T}")
    g.A(f"s_lshl_b32 s{S_T0}, s{S_WAVE}, 5")
    g.A(f"v_add_u32 v{T}, s{S_T0}, v{T}")
    g.A(f"v_mul_u32_u24 v{V_WGU}, 3584, v{T}")
    g.A(f"v_and_b32 v{T}, 7, v{H_LANE}")
    g.A(f"v_lshl_add_u32 v{V_WGU}, v{T}, 4, v{V_WGU}")
    g.A(f"s_lshl_b32 s{S_T2}, s{S_K}, 7")
    g.A(f"s_sub_u32 s{S_X0+1}, {448*3584}, s{S_T2}")
    set_srd(g, SRD_A, P_WG, off_sreg=S_T2, nbytes_sreg=S_X0 + 1)
    set_srd(g, SRD_B, P_WU, off_sreg=S_T2, nbytes_sreg=S_X0 + 1)
    g.A(f"s_mul_i32 s{S_T2}, s{S_K}, {64*896}")
    g.A(f"s_sub_u32 s{S_X0+1}, {1792*896}, s{S_T2}")
    set_srd(g, SRD_C, P_WD, off_sreg=S_T2, nbytes_sreg=S_X0 + 1)
    woff128(V_WD)
    def gu_unit(it, st):
        dst = H_ST + 32 * st
        g.A("s_mov_b32 exec_lo, 0x00ff00ff"); g.A("s_mov_b32 exec_hi, 0x00ff00ff")
        unit_loads(g, dst, SRD_A, V_WGU, [e * 3584 + it * 128 * 3584 for e in range(8)], NT)
        g.A("s_mov_b32 exec_lo, 0xff00ff00"); g.A("s_mov_b32 exec_hi, 0xff00ff00")
        unit_loads(g, dst, SRD_B, V_WGU, [e * 3584 + it * 128 * 3584 for e in range(8)], NT)
        exec_all(g)
    def wd_unit(kb, st):
        unit_loads(g, H_ST + 32 * st, SRD_C, V_WD, [(kb * 32 + e) * 896 for e in range(8)], NT)
    gu_unit(0, 0); gu_unit(1, 1)
    g.A("s_waitcnt vmcnt(16)"); transpose_unit(g, H_ST, H_FR)
    gu_unit(2, 0)
    g.A("s_waitcnt vmcnt(16)"); transpose_unit(g, H_ST + 32, H_FR + 32)
    gu_unit(3, 1)
    g.A("s_waitcnt vmcnt(16)"); transpose_unit(g, H_ST, H_FR + 64)
    wd_unit(0, 0)
    g.A("s_waitcnt vmcnt(8)"); transpose_unit(g, H_ST + 32, H_FR + 96)
    wd_unit(1, 1)
    g.A("s_waitcnt vmcnt(8)"); transpose_unit(g, H_ST, 0, dst_acc=True, tmp=T)
    g.A("s_waitcnt vmcnt(0)"); transpose_unit(g, H_ST + 32, 32, dst_acc=True, tmp=T)
    FSH, FSC, FLD, FLN = 192, 200, 208, 224
    skip = g.lab("nosb")
    g.A(f"s_cmp_ge_u32 s{S_WAVE}, 2")
    g.A(f"s_cbranch_scc1 {skip}")
    g.A(f"s_mul_i32 s{S_X0+3}, s{S_B}, {1344*8}")
    g.A(f"s_add_u32 s{S_X0+3}, s{S_X0+3}, {WS_MOD + 672*8}")
    exec56(g)
    gather_shift_scale(g, cfg, S_X0 + 3, V_G32, FLD, FSH, FSC, T)
    exec_all(g)
    g.L(skip)
    g.L(nof)
    V_RO, V_CX, V_XR, V_GA, V_GB, V_X2 = 25, 26, 232, 234, 236, 238
    RL = 32
    S_CB, S_CC = S_X0 + 6, S_X0 + 7
    skipr = g.lab("nor0")
    g.A(f"s_and_b32 s{S_CB}, s{S_K}, 1")
    g.A(f"s_lshr_b32 s{S_T0}, s{S_K}, 3")
    g.A(f"s_lshl_b32 s{S_T0}, s{S_T0}, 7")
    g.A(f"s_lshr_b32 s{S_T1}, s{S_K}, 1")
    g.A(f"s_and_b32 s{S_T1}, s{S_T1}, 3")
    g.A(f"s_lshl_b32 s{S_T1}, s{S_T1}, 1")
    g.A(f"s_add_u32 s{S_CC}, s{S_T0}, s{S_T1}")
    g.A(f"v_and_b32 v{T}, 15, v{H_LANE}")
    g.A(f"v_lshlrev_b32 v{V_CX}, 3, v{T}")
    g.A(f"v_add_u32 v{V_CX}, s{S_CC}, v{V_CX}")
    g.A(f"v_lshrrev_b32 v{T+1}, 4, v{H_LANE}")
    g.A(f"v_lshlrev_b32 v{V_RO}, 13, v{T+1}")
    g.A(f"v_lshl_add_u32 v{V_RO}, v{T}, 4, v{V_RO}")
    g.A(f"v_cmp_gt_u32 vcc, 448, v{V_CX}")
    g.A(f"s_mov_b64 s[{S_MSK}:{S_MSK+1}], vcc")
    g.A(f"s_cmp_lt_u32 s{S_WAVE}, {cfg.RW0}")
    g.A(f"s_cbranch_scc1 {skipr}")
    g.A(f"s_mov_b64 exec, s[{S_MSK}:{S_MSK+1}]")
    set_srd(g, SRD_A, P_X, nbytes=1792)
    g.A(f"s_mul_i32 s{S_T0}, s{S_CB}, 896")
    g.A(f"v_lshlrev_b32 v{T+2}, 1, v{V_CX}")
    g.A(f"buffer_load_dword v{T+6}, v{T+2}, s[{SRD_A}:{SRD_A+3}], s{S_T0} offen")
    g.A(f"s_mul_i32 s{S_X0+8}, s{S_CB}, {1344*8}")
    g.A(f"s_add_u32 s{S_X0+8}, s{S_X0+8}, {WS_MOD + 896*4}")
    g.A(f"s_add_u32 s{S_X0+9}, s{S_X0+8}, {(2240-896)*4}")
    g.A(f"v_lshlrev_b32 v{T+3}, 2, v{V_CX}")
    def gl():
        g.A(f"buffer_load_dwordx2 {vr(T+8,2)}, v{T+3}, {WSR}, s{S_X0+8} offen sc1")
        g.A(f"buffer_load_dwordx2 {vr(T+10,2)}, v{T+3}, {WSR}, s{S_X0+9} offen sc1")
    poll_loop(g, cfg, gl, [T + 9, T + 11], T, sleep=1)
    unpack_pairs(g, [T + 6], [V_XR, V_XR + 1])
    unpack_pairs(g, [T + 8], [V_GA, V_GA + 1])
    unpack_pairs(g, [T + 10], [V_GB, V_GB + 1])
    exec_all(g)
    g.L(skipr)
    stamp(g, cfg, 5)
    if cfg.X_LOADONLY:
        g.A("s_endpgm")
    g.A(f"s_mul_i32 s{S_T1}, s{S_K}, 6")
    heads_wait(S_T1)
    stamp(g, cfg, 6)
    def rec_gather(base_const, nit, idle):
        g.A(f"s_lshl_b32 s{S_X0+5}, s{S_K}, 8")
        g.A(f"s_add_u32 s{S_X0+5}, s{S_X0+5}, {base_const}")
        for it in range(nit):
            g.A(f"s_add_u32 s{S_OFF+it}, s{S_X0+5}, {it*32768}")
        items = [((lambda it=it: g.A(f"buffer_load_dwordx4 {vr(RL + 4*it, 4)}, v{V_RO}, {WSR}, s{S_OFF+it} offen sc1")), [RL + 4*it + 1, RL + 4*it + 3]) for it in range(nit)]
        masked_poll(g, cfg, items, None, idle_sleep=idle)
        for o in (0, 2):
            for it in range(1, nit):
                g.A(f"v_add_f32 v{RL+o}, v{RL+o}, v{RL+4*it+o}")
        for swap in ("v_permlane16_swap_b32", "v_permlane32_swap_b32"):
            g.A(f"v_mov_b32 v{RL+1}, v{RL}")
            g.A(f"v_mov_b32 v{RL+3}, v{RL+2}")
            g.A("s_nop 1")
            g.A(f"{swap} v{RL}, v{RL+1}")
            g.A(f"{swap} v{RL+2}, v{RL+3}")
            g.A("s_nop 1")
            g.A(f"v_add_f32 v{RL}, v{RL}, v{RL+1}")
            g.A(f"v_add_f32 v{RL+2}, v{RL+2}, v{RL+3}")
        g.A(f"v_mov_b32 v{RL+1}, v{RL+2}")
    def resid(base_x, gate, out):
        bf16_round_pairs(g, [RL, RL + 1], T)
        g.A(f"v_mul_f32 v{RL}, v{RL}, v{gate}")
        g.A(f"v_mul_f32 v{RL+1}, v{RL+1}, v{gate+1}")
        bf16_round_pairs(g, [RL, RL + 1], T)
        g.A(f"v_add_f32 v{RL}, v{RL}, v{base_x}")
        g.A(f"v_add_f32 v{RL+1}, v{RL+1}, v{base_x+1}")
        g.A(f"v_cvt_pk_bf16_f32 v{T}, v{RL}, v{RL+1}")
        if out is not None:
            unpack_pairs(g, [T], [out, out + 1])
    skipr = g.lab("nor1")
    def stagger():
        dn = g.lab("stgd")
        g.A(f"s_cmp_eq_u32 s{S_WAVE}, {cfg.RW0}")
        g.A(f"s_cbranch_scc1 {dn}")
        g.A(f"s_sleep {cfg.STG}")
        g.L(dn)
    g.A(f"s_cmp_lt_u32 s{S_WAVE}, {cfg.RW0}")
    g.A(f"s_cbranch_scc1 {skipr}")
    stagger()
    rec_gather(WS_Y, 8, cfg.IDLE)
    stamp(g, cfg, 7)
    resid(V_XR, V_GA, V_X2)
    g.A(f"v_mov_b32 v{T+1}, s{S_TAG}")
    g.A(f"s_lshl_b32 s{S_T0}, s{S_K}, 7")
    g.A(f"s_add_u32 s{S_T0}, s{S_T0}, {WS_X2}")
    g.A(f"v_lshlrev_b32 v{T+2}, 3, v{H_LANE}")
    g.A(f"s_and_b32 exec_lo, s{S_MSK}, 0xffff")
    g.A("s_mov_b32 exec_hi, 0")
    for rep in range(NREP_X):
        g.A(f"buffer_store_dwordx2 {vr(T,2)}, v{T+2}, {WSR}, s{S_T0} offen sc1")
        if rep + 1 < NREP_X:
            g.A(f"s_add_u32 s{S_T0}, s{S_T0}, 4096")
    exec_all(g)
    g.L(skipr)
    stamp(g, cfg, 8)
    nof2 = g.lab("nof2")
    g.A(f"s_cmp_ge_u32 s{S_K}, 28")
    g.A(f"s_cbranch_scc1 {nof2}")
    skip = g.lab("noln2")
    g.A(f"s_cmp_ge_u32 s{S_WAVE}, 2")
    g.A(f"s_cbranch_scc1 {skip}")
    g.A(f"s_and_b32 s{S_X0+3}, s{S_K}, {NREP_X-1}")
    g.A(f"s_lshl_b32 s{S_X0+3}, s{S_X0+3}, 12")
    g.A(f"s_lshl_b32 s{S_T0}, s{S_B}, 7")
    g.A(f"s_add_u32 s{S_X0+3}, s{S_X0+3}, s{S_T0}")
    g.A(f"s_add_u32 s{S_X0+3}, s{S_X0+3}, {WS_X2}")
    g.A(f"v_lshrrev_b32 v{T+2}, 4, v{H_LANE}")
    g.A(f"v_lshlrev_b32 v{T+2}, 10, v{T+2}")
    g.A(f"v_and_b32 v{T+3}, 15, v{H_LANE}")
    g.A(f"v_lshl_add_u32 v27, v{T+3}, 3, v{T+2}")
    g.A(f"s_mov_b32 s{S_X0+8}, -1")
    g.A(f"s_mov_b32 s{S_X0+9}, 0x00ffffff")
    items = [((lambda p=p: g.A(f"buffer_load_dwordx2 {vr(FLD + 2*p, 2)}, v27, {WSR}, s{S_X0+3} offen offset:{256*p} sc1")), [FLD + 2*p + 1]) for p in range(4)]
    masked_poll(g, cfg, items, S_X0 + 8, idle_sleep=cfg.IDLE)
    exec_all(g)
    lazy(g, cfg, 0, 2)
    if cfg.LAZY != 2: stamp(g, cfg, 9)
    XF = FLD + 8
    unpack_pairs(g, [FLD, FLD + 2, FLD + 4, FLD + 6], [XF + e for e in range(8)])
    g.A(f"v_cmp_gt_u32 vcc, 56, v{H_LANE}")
    g.A("s_nop 1")
    for e in range(8):
        g.A(f"v_cndmask_b32 v{XF+e}, 0, v{XF+e}, vcc")
    ln_normalize(g, XF, FLN, T)
    exec56(g)
    modulate_write(g, FLN, FSH, FSC, V_ACTW, L_ACTH, T)
    exec_all(g)
    g.L(skip)
    g.A("s_waitcnt lgkmcnt(0)")
    g.A("s_barrier")
    lazy(g, cfg, 1, 2)
    g.A(f"v_lshrrev_b32 v{T}, 2, v{H_LANE}")
    g.A(f"v_and_b32 v{T}, 1, v{T}")
    g.A(f"v_mul_u32_u24 v{T+1}, {ROWB}, v{T}")
    g.A(f"v_lshrrev_b32 v{T}, 4, v{H_LANE}")
    g.A(f"v_lshl_add_u32 v{T+1}, v{T}, 4, v{T+1}")
    g.A(f"s_lshl_b32 s{S_T0}, s{S_WAVE}, 6")
    g.A(f"v_add_u32 v{T+1}, s{S_T0}, v{T+1}")
    AFF = FLD
    for it in range(4):
        g.A(f"ds_read_b128 {vr(AFF + 4*it, 4)}, v{T+1} offset:{L_ACTH + it*256}")
    for it in range(3):
        g.A(f"s_waitcnt lgkmcnt({3-it})")
        mfma8(g, AFF + 4 * it, H_FR + 32 * it, it == 0)
    sk = g.lab("f4")
    g.A("s_waitcnt lgkmcnt(0)")
    g.A(f"s_cmp_ge_u32 s{S_WAVE}, 2")
    g.A(f"s_cbranch_scc1 {sk}")
    mfma8(g, AFF + 12, H_FR + 96, False)
    g.L(sk)
    g.A("s_nop 7")
    red_write(g, 20)
    g.A("s_waitcnt lgkmcnt(0)")
    g.A("s_barrier")
    lazy(g, cfg, 2, 2)
    sk = g.lab("f5")
    g.A(f"s_cmp_lg_u32 s{S_WAVE}, 0")
    g.A(f"s_cbranch_scc1 {sk}")
    g.A(f"v_add_u32 v{T}, 32, v21")
    RD2 = FLD
    red_read(g, 21, T, RD2)
    bf16_round_pairs(g, [RD2, RD2 + 1], T)
    bf16_round_pairs(g, [RD2 + 8, RD2 + 9], T)
    g.A(f"s_mov_b32 s{S_T0}, {f2u(-LOG2E):#x}")
    for o in range(2):
        g.A(f"v_mul_f32 v{RD2+o}, s{S_T0}, v{RD2+o}")
    for o in range(2):
        g.A(f"v_exp_f32 v{RD2+o}, v{RD2+o}")
    g.A("s_nop 0")
    for o in range(2):
        g.A(f"v_add_f32 v{RD2+o}, 1.0, v{RD2+o}")
    for o in range(2):
        g.A(f"v_rcp_f32 v{RD2+o}, v{RD2+o}")
    g.A("s_nop 0")
    bf16_round_pairs(g, [RD2, RD2 + 1], T)
    for o in range(2):
        g.A(f"v_mul_f32 v{RD2+o}, v{RD2+o}, v{RD2+8+o}")
    g.A(f"v_cvt_pk_bf16_f32 v{T}, v{RD2}, v{RD2+1}")
    g.A(f"v_lshrrev_b32 v{T+1}, 5, v{H_LANE}")
    g.A(f"v_mul_u32_u24 v{T+1}, {ROWO}, v{T+1}")
    g.A(f"v_and_b32 v{T+2}, 31, v{H_LANE}")
    g.A(f"v_lshl_add_u32 v{T+1}, v{T+2}, 2, v{T+1}")
    g.A(f"ds_write_b32 v{T+1}, v{T} offset:{L_ACTO}")
    g.L(sk)
    g.A("s_waitcnt lgkmcnt(0)")
    g.A("s_barrier")
    lazy(g, cfg, 3, 2)
    g.A(f"v_lshrrev_b32 v{T}, 2, v{H_LANE}")
    g.A(f"v_and_b32 v{T}, 1, v{T}")
    g.A(f"v_mul_u32_u24 v{T+1}, {ROWO}, v{T}")
    g.A(f"v_lshrrev_b32 v{T}, 4, v{H_LANE}")
    g.A(f"v_lshl_add_u32 v{T+1}, v{T}, 4, v{T+1}")
    for kb in range(2):
        g.A(f"ds_read_b128 {vr(AFF + 4*kb, 4)}, v{T+1} offset:{L_ACTO + kb*64}")
    for kb in range(2):
        g.A(f"s_waitcnt lgkmcnt({1-kb})")
        mfma8(g, AFF + 4 * kb, 32 * kb, kb == 0, frag_acc=True)
    publish_rec(WS_DN, S_K)
    lazy(g, cfg, 4, 2)
    stamp(g, cfg, 10)
    lazy_flush(g, cfg, 5, 21, 2)
    g.L(nof2)
    g.A(f"s_cmp_lt_u32 s{S_WAVE}, {cfg.RW0}")
    g.A("s_cbranch_scc1 L_exit")
    stagger()
    rec_gather(WS_DN, 7, 0)
    stamp(g, cfg, 11)
    resid(V_X2, V_GB, None)
    set_srd(g, SRD_A, P_OUT, nbytes=1792)
    g.A(f"s_mul_i32 s{S_T0}, s{S_CB}, 896")
    g.A(f"v_lshlrev_b32 v{T+2}, 1, v{V_CX}")
    g.A(f"s_and_b32 exec_lo, s{S_MSK}, 0xffff")
    g.A("s_mov_b32 exec_hi, 0")
    g.A(f"buffer_store_dword v{T}, v{T+2}, s[{SRD_A}:{SRD_A+3}], s{S_T0} offen")
    g.A(f"s_cmp_lg_u32 s{S_K}, 0")
    g.A("s_cbranch_scc1 L_exit")
    g.A(f"s_cmp_lg_u32 s{S_WAVE}, {cfg.RW0}")
    g.A("s_cbranch_scc1 L_exit")
    g.A("s_mov_b64 exec, 1")
    g.A(f"v_mov_b32 v{T+3}, s{S_TAG}")
    g.A(f"v_mov_b32 v{T+4}, 0")
    g.A(f"buffer_store_dword v{T+3}, v{T+4}, {WSR}, 0 offen sc1")
    stamp(g, cfg, 12)

def generate(cfg, header_src=None):
    g = G()
    g.A(f"s_cmp_ge_u32 s{S_WG}, {cfg.NSTREAM + cfg.NHELP}")
    g.A("s_cbranch_scc1 L_exit")
    if cfg.STAMPS:
        g.A("s_memrealtime s[84:85]")
    g.A("s_load_dwordx16 s[16:31], s[0:1], 0")
    g.A("s_load_dwordx8 s[32:39], s[0:1], 64")
    g.A("s_load_dwordx4 s[40:43], s[0:1], 96")
    g.A("v_lshrrev_b32 v1, 6, v0")
    g.A("v_and_b32 v0, 63, v0")
    g.A(f"s_cmp_lt_u32 s{S_WG}, {cfg.NSTREAM}")
    g.A(f"v_readfirstlane_b32 s{S_WAVE}, v1")
    g.A("s_cbranch_scc0 L_helper0")
    g.A("s_nop 2")
    cfg.STAMP_V = 116
    emit_streamer(g, cfg)
    cfg.STAMP_V = 28
    g.L("L_helper0")
    g.A("v_mov_b32 v2, 0")
    g.A("s_waitcnt lgkmcnt(0)")
    set_srd(g, SRD_WS, P_WS, nbytes=WS_SIZE)
    g.A(f"buffer_load_dword v1, v2, s[{SRD_WS}:{SRD_WS+3}], 0 offen sc1")
    entry_stamp(g, cfg)
    emit_helper(g, cfg)
    g.L("L_exit")
    g.A("s_endpgm")
    g.L("L_codeend")
    hdr = open("adaLN_cond__mha_block_cached__glu_gated_glu__decode.s.ref").read().split("\n")
    head = []
    for line in hdr:
        if line.startswith("; @launch"):
            head.append(f"; @launch grid=({cfg.NSTREAM + cfg.NHELP},1,1) block=(256,1,1) lds={LDS_BYTES}")
            break
        head.append(line)
    txt = "\n".join(head) + "\n"
    txt += '.amdgcn_target "amdgcn-amd-amdhsa--gfx950"\n.text\n'
    txt += f".globl {KNAME}\n.p2align 8\n.type {KNAME},@function\n{KNAME}:\n"
    txt += "\n".join(g.o) + "\n"
    txt += f""".section .rodata,"a"
.p2align 6
.amdhsa_kernel {KNAME}
  .amdhsa_next_free_vgpr 512
  .amdhsa_next_free_sgpr 102
  .amdhsa_accum_offset 256
  .amdhsa_group_segment_fixed_size 0
  .amdhsa_kernarg_size 112
  .amdhsa_user_sgpr_count 2
  .amdhsa_user_sgpr_kernarg_segment_ptr 1
  .amdhsa_system_sgpr_workgroup_id_x 1
  .amdhsa_float_denorm_mode_32 3
.end_amdhsa_kernel
"""
    return txt

if __name__ == "__main__":
    import argparse
    ap = argparse.ArgumentParser()
    ap.add_argument("-o", default="k.s")
    ap.add_argument("--stamps", action="store_true")
    ap.add_argument("--set", nargs="*", default=[])
    a = ap.parse_args()
    cfg = Cfg()
    cfg.STAMPS = a.stamps
    for kv in a.set:
        k, v = kv.split("=")
        if isinstance(getattr(cfg, k), str): v = (" " + v.replace("_", " ")) if v else ""
        setattr(cfg, k, type(getattr(cfg, k))(v) if not isinstance(getattr(cfg, k), bool) else v in ("1", "True"))
    open(a.o, "w").write(generate(cfg))
    print("wrote", a.o)
```

```python
import sys

KNAME = "adaLN_cond__mha_block_cached__glu_gated_glu__decode_kernel"

class Cfg:
    NS = 6
    NSTREAM = 192
    NHELP = 64
    P = 12
    DMIN = 4
    W1 = 16
    NG = 22
    STAMPS = False
    POLLMAX = 200000
    HEADS_STEP = 41
    NT = " nt"
    NTW = " nt"
    CODEPF = True
    STAMP_V = 28
    LAZY = 0
    DBGT = False
    RPK = 3
    RPGAP = 7
    RW0 = 2
    IDLE = 8
    STG = 10
    RPGAP2 = 10
    X_LOADONLY = False
    HSLEEP = 16
    CAPG = 4
    QBACK = 1
    SHRINK = 2
    X_NOHELP = False
    X_NOEPIW = False
    CODEPF2 = False

WS_EPOCH = 0
WS_HEADS = 0x1000
WS_MOD = 0x4000
WS_QB = 0xA000
WS_X2 = 0x12000
NREP_X = 4
WS_PART = 0x20000
WS_Y = 0x100000
WS_DN = 0x140000
WS_STAMP = 0x180000
WS_SIZE = 0x200000

ROWB = 1152
L_ACTS = 0
L_ACTH = 2 * ROWB
L_ACTO = 4 * ROWB
ROWO = 320
L_RED = 4 * ROWB + 2 * ROWO + 128
L_RED = (L_RED + 255) // 256 * 256
LDS_BYTES = L_RED + 8192
L_OW = 0
L_ML = 4096

LOG2E = 1.4426950408889634

import struct
def f2u(x):
    return struct.unpack("<I", struct.pack("<f", x))[0]

class G:
    def __init__(self):
        self.o = []
        self.nlab = 0
    def A(self, s):
        self.o.append("    " + s)
    def L(self, name):
        self.o.append(name + ":")
    def lab(self, base):
        self.nlab += 1
        return f"L_{base}_{self.nlab}"
    def C(self, s):
        self.o.append("    ; " + s)

def vr(b, n=1):
    return f"v{b}" if n == 1 else f"v[{b}:{b+n-1}]"
def ar(b, n=1):
    return f"a{b}" if n == 1 else f"a[{b}:{b+n-1}]"
def sr(b, n=1):
    return f"s{b}" if n == 1 else f"s[{b}:{b+n-1}]"

S_WG, S_WAVE, S_ROLE = 2, 3, 4
S_T0, S_T1, S_T2 = 5, 6, 7
SRD_A, SRD_B = 8, 12
P_X, P_K, P_V, P_WQ, P_WO, P_BX, P_WG, P_WU, P_WD, P_C, P_WMOD, P_OUT, P_DBG, P_WS = 16, 18, 20, 22, 24, 26, 28, 30, 32, 34, 36, 38, 40, 42
S_TAG, S_CNT = 44, 45
S_SAVE = 46
SRD_C = 48
SRD_WS = 52
S_OFF = 56
S_SEL0, S_SEL1 = 64, 65
S_MSK = 66
S_X0 = 74
S_STAMP = 88
S_STB = 87
S_MISS = 16
S_PF = 46

def stamp(g, cfg, idx):
    if not cfg.STAMPS:
        return
    g.A(f"s_memrealtime s[{S_STAMP}:{S_STAMP+1}]")
    g.A("s_waitcnt lgkmcnt(0)")
    g.A(f"s_mov_b64 s[100:101], exec")
    g.A("s_mov_b64 exec, 1")
    sv = cfg.STAMP_V
    g.A(f"v_mov_b32 v{sv}, s{S_STAMP}")
    g.A(f"v_mov_b32 v{sv+1}, s{S_STAMP+1}")
    g.A(f"v_mov_b32 v{sv+2}, s{S_STB}")
    g.A(f"buffer_store_dwordx2 v[{sv}:{sv+1}], v{sv+2}, s[{SRD_WS}:{SRD_WS+3}], 0 offen offset:{idx*8}")
    g.A(f"s_mov_b64 exec, s[100:101]")

def lazy(g, cfg, i, mode=1):
    if cfg.STAMPS and cfg.LAZY == mode:
        g.A(f"s_memrealtime s[{90+2*i}:{91+2*i}]")
def lazy_flush(g, cfg, n, idx0, mode=1):
    if not (cfg.STAMPS and cfg.LAZY == mode):
        return
    g.A("s_waitcnt lgkmcnt(0)")
    g.A(f"s_mov_b64 s[100:101], exec")
    g.A("s_mov_b64 exec, 1")
    sv = cfg.STAMP_V
    for i in range(n):
        g.A(f"v_mov_b32 v{sv}, s{90+2*i}")
        g.A(f"v_mov_b32 v{sv+1}, s{91+2*i}")
        g.A(f"v_mov_b32 v{sv+2}, s{S_STB}")
        g.A(f"buffer_store_dwordx2 v[{sv}:{sv+1}], v{sv+2}, s[{SRD_WS}:{SRD_WS+3}], 0 offen offset:{(idx0+i)*8}")
        g.A("s_nop 1")
    g.A(f"s_mov_b64 exec, s[100:101]")

def set_srd(g, srd, ptr, off_sreg=None, nbytes=None, nbytes_sreg=None):
    if off_sreg is None:
        g.A(f"s_mov_b32 s{srd}, s{ptr}")
        g.A(f"s_mov_b32 s{srd+1}, s{ptr+1}")
    else:
        g.A(f"s_add_u32 s{srd}, s{ptr}, s{off_sreg}")
        g.A(f"s_addc_u32 s{srd+1}, s{ptr+1}, 0")
    if nbytes_sreg is not None:
        g.A(f"s_mov_b32 s{srd+2}, s{nbytes_sreg}")
    else:
        g.A(f"s_mov_b32 s{srd+2}, {nbytes}")
    g.A(f"s_mov_b32 s{srd+3}, 0x20000")

def code_prefetch(g, cfg, start_label, end_label, backward, voff, vdst, ninstr=1, per_instr=8192):
    if not cfg.CODEPF:
        return
    here = g.lab("pc")
    g.A(f"s_getpc_b64 s[{S_PF}:{S_PF+1}]")
    g.L(here)
    if backward:
        g.A(f"s_sub_u32 s{S_PF}, s{S_PF}, {here}-{start_label}")
        g.A(f"s_subb_u32 s{S_PF+1}, s{S_PF+1}, 0")
    else:
        g.A(f"s_add_u32 s{S_PF}, s{S_PF}, {start_label}-{here}")
        g.A(f"s_addc_u32 s{S_PF+1}, s{S_PF+1}, 0")
    for k in range(ninstr):
        skip = g.lab("nopf")
        g.A(f"s_mov_b32 s{S_T1}, {end_label}-{start_label}")
        g.A(f"v_cmp_gt_u32 vcc, s{S_T1}, v{voff}")
        g.A("s_nop 0")
        g.A("s_and_b64 exec, exec, vcc")
        g.A(f"s_cbranch_execz {skip}")
        g.A(f"global_load_dword v{vdst}, v{voff}, s[{S_PF}:{S_PF+1}]")
        g.L(skip)
        g.A("s_mov_b64 exec, -1")
        if k + 1 < ninstr:
            g.A(f"v_add_u32 v{voff}, {per_instr}, v{voff}")

def entry_stamp(g, cfg):
    if not cfg.STAMPS:
        return
    g.A(f"s_lshl_b32 s{S_STB}, s{S_WG}, 2")
    g.A(f"s_add_u32 s{S_STB}, s{S_STB}, s{S_WAVE}")
    g.A(f"s_lshl_b32 s{S_STB}, s{S_STB}, 8")
    g.A(f"s_add_u32 s{S_STB}, s{S_STB}, {WS_STAMP}")
    g.A(f"s_mov_b64 s[100:101], exec")
    g.A("s_mov_b64 exec, 1")
    sv = cfg.STAMP_V
    g.A(f"v_mov_b32 v{sv}, s84")
    g.A(f"v_mov_b32 v{sv+1}, s85")
    g.A(f"v_mov_b32 v{sv+2}, s{S_STB}")
    g.A(f"buffer_store_dwordx2 v[{sv}:{sv+1}], v{sv+2}, s[{SRD_WS}:{SRD_WS+3}], 0 offen offset:0")
    g.A(f"s_mov_b64 exec, s[100:101]")

def dbgt(g, cfg, idx, vtmp, cond_wg=None, cond_wave=None):
    if not cfg.DBGT:
        return
    sk = g.lab("dbgsk")
    if cond_wg is not None:
        g.A(f"s_cmp_lg_u32 s{S_WG}, {cond_wg}"); g.A(f"s_cbranch_scc1 {sk}")
    if cond_wave is not None:
        g.A(f"s_cmp_lg_u32 s{S_WAVE}, {cond_wave}"); g.A(f"s_cbranch_scc1 {sk}")
    g.A("s_memrealtime s[98:99]")
    g.A("s_waitcnt lgkmcnt(0)")
    g.A("s_sub_u32 s98, s98, s92")
    g.A("s_mov_b64 s[100:101], exec")
    g.A("s_mov_b64 exec, 1")
    g.A(f"v_mov_b32 v{vtmp}, s98")
    g.A(f"v_mov_b32 v{vtmp+1}, {idx*4}")
    g.A(f"global_store_dword v{vtmp+1}, v{vtmp}, s[{P_DBG}:{P_DBG+1}]")
    g.A("s_mov_b64 exec, s[100:101]")
    g.L(sk)

def entry_prefetch(g, cfg, vtmp):
    if cfg.CODEPF:
        g.A(f"s_lshl_b32 s{S_T0}, s{S_WAVE}, 13")
        g.A(f"v_lshlrev_b32 v{vtmp}, 7, v0")
        g.A(f"v_add_u32 v{vtmp}, s{S_T0}, v{vtmp}")
        code_prefetch(g, cfg, KNAME, 'L_codeend', True, vtmp, 31, ninstr=2 if cfg.CODEPF2 else 1, per_instr=32768)

def make_tag(g, vreg):
    g.A(f"v_readfirstlane_b32 s{S_TAG}, v{vreg}")
    g.A("s_nop 3")
    g.A(f"s_mul_i32 s{S_TAG}, s{S_TAG}, 0x19660d")
    g.A(f"s_add_u32 s{S_TAG}, s{S_TAG}, 0x3c6ef35f")

def check_tags(g, tagregs, tmp, ok_label, set_vcc_only=False):
    g.A(f"v_xor_b32 v{tmp}, s{S_TAG}, v{tagregs[0]}")
    for r in tagregs[1:]:
        g.A(f"v_xor_b32 v{tmp+1}, s{S_TAG}, v{r}")
        g.A(f"v_or_b32 v{tmp}, v{tmp}, v{tmp+1}")
    g.A(f"v_cmp_ne_u32 vcc, 0, v{tmp}")
    g.A("s_nop 1")
    g.A(f"s_cbranch_vccz {ok_label}")

def poll_loop(g, cfg, emit_loads, tagregs, tmp, sleep=1):
    top = g.lab("poll"); ok = g.lab("pollok")
    g.A(f"s_mov_b32 s{S_CNT}, 0")
    g.L(top)
    emit_loads()
    g.A("s_waitcnt vmcnt(0)")
    check_tags(g, tagregs, tmp, ok)
    if sleep:
        g.A(f"s_sleep {sleep}")
    g.A(f"s_add_u32 s{S_CNT}, s{S_CNT}, 1")
    g.A(f"s_cmp_lt_u32 s{S_CNT}, {cfg.POLLMAX}")
    g.A(f"s_cbranch_scc1 {top}")
    g.L(ok)

def rolling_poll(g, cfg, emit_loads, nloads, nregs, tag_offs, sets, res, tmp, gap, copy_offs=None):
    K = len(sets)
    if copy_offs is None:
        copy_offs = [r for r in range(nregs) if r not in tag_offs]
    top = g.lab("rp"); done = g.lab("rpdone")
    oks = [g.lab(f"rpok{i}") for i in range(K)]
    g.A(f"s_mov_b32 s{S_CNT}, 0")
    for i in range(K):
        emit_loads(sets[i])
        if i + 1 < K and gap:
            g.A(f"s_sleep {gap}")
    g.L(top)
    for i in range(K):
        g.A(f"s_waitcnt vmcnt({nloads*(K-1)})")
        check_tags(g, [sets[i] + o for o in tag_offs], tmp, oks[i])
        emit_loads(sets[i])
    g.A(f"s_add_u32 s{S_CNT}, s{S_CNT}, 1")
    g.A(f"s_cmp_lt_u32 s{S_CNT}, {cfg.POLLMAX}")
    g.A(f"s_cbranch_scc1 {top}")
    for i in range(K - 1, -1, -1):
        g.L(oks[i])
        for r in copy_offs:
            g.A(f"v_mov_b32 v{res+r}, v{sets[i]+r}")
        if i > 0:
            g.A(f"s_branch {done}")
    g.L(done)

def masked_poll(g, cfg, items, base, idle_sleep=0, busy_sleep=0):
    n = len(items)
    assert n <= 8
    bs = f"s[{base}:{base+1}]" if base is not None else "-1"
    top = g.lab("mp"); done = g.lab("mpdone")
    for i in range(n):
        g.A(f"s_mov_b64 s[{S_MISS+2*i}:{S_MISS+2*i+1}], {bs}")
    g.A(f"s_mov_b32 s{S_CNT}, 0")
    g.L(top)
    for i, (ld, tags) in enumerate(items):
        sk = g.lab("mpsk")
        g.A(f"s_mov_b64 exec, s[{S_MISS+2*i}:{S_MISS+2*i+1}]")
        g.A(f"s_cbranch_execz {sk}")
        ld()
        g.L(sk)
    g.A(f"s_mov_b64 exec, {bs}")
    g.A("s_waitcnt vmcnt(0)")
    for i, (ld, tags) in enumerate(items):
        g.A(f"v_cmp_eq_u32 vcc, s{S_TAG}, v{tags[0]}")
        for t in tags[1:]:
            g.A(f"v_cmp_eq_u32 s[{S_SAVE}:{S_SAVE+1}], s{S_TAG}, v{t}")
            g.A(f"s_and_b64 vcc, vcc, s[{S_SAVE}:{S_SAVE+1}]")
        g.A(f"s_andn2_b64 s[{S_MISS+2*i}:{S_MISS+2*i+1}], s[{S_MISS+2*i}:{S_MISS+2*i+1}], vcc")
    if n == 1:
        g.A(f"s_cmp_eq_u64 s[{S_MISS}:{S_MISS+1}], 0")
        g.A(f"s_cbranch_scc1 {done}")
    else:
        g.A(f"s_or_b64 s[{S_SAVE}:{S_SAVE+1}], s[{S_MISS}:{S_MISS+1}], s[{S_MISS+2}:{S_MISS+3}]")
        for i in range(2, n):
            g.A(f"s_or_b64 s[{S_SAVE}:{S_SAVE+1}], s[{S_SAVE}:{S_SAVE+1}], s[{S_MISS+2*i}:{S_MISS+2*i+1}]")
        g.A(f"s_cbranch_scc0 {done}")
    if idle_sleep:
        busy = g.lab("mpbusy")
        g.A(f"s_mov_b64 s[{S_SAVE}:{S_SAVE+1}], s[{S_MISS}:{S_MISS+1}]")
        for i in range(1, n):
            g.A(f"s_and_b64 s[{S_SAVE}:{S_SAVE+1}], s[{S_SAVE}:{S_SAVE+1}], s[{S_MISS+2*i}:{S_MISS+2*i+1}]")
        g.A(f"s_cmp_eq_u64 s[{S_SAVE}:{S_SAVE+1}], {bs}" if base is not None else f"s_cmp_eq_u64 s[{S_SAVE}:{S_SAVE+1}], -1")
        g.A(f"s_cbranch_scc0 {busy}")
        g.A(f"s_sleep {idle_sleep}")
        g.L(busy)
    if busy_sleep:
        g.A(f"s_sleep {busy_sleep}")
    g.A(f"s_add_u32 s{S_CNT}, s{S_CNT}, 1")
    g.A(f"s_cmp_lt_u32 s{S_CNT}, {cfg.POLLMAX}")
    g.A(f"s_cbranch_scc1 {top}")
    g.L(done)
    g.A(f"s_mov_b64 exec, {bs}")

def bf16_round_pairs(g, regs, tmp):
    for i in range(0, len(regs), 2):
        a, b = regs[i], regs[i + 1]
        g.A(f"v_cvt_pk_bf16_f32 v{tmp}, v{a}, v{b}")
        g.A(f"v_lshlrev_b32 v{a}, 16, v{tmp}")
        g.A(f"v_and_b32 v{b}, 0xffff0000, v{tmp}")

def unpack_pairs(g, src, dst):
    for i, s in enumerate(src):
        g.A(f"v_lshlrev_b32 v{dst[2*i]}, 16, v{s}")
        g.A(f"v_and_b32 v{dst[2*i+1]}, 0xffff0000, v{s}")

def wave_sum(g, regs, sdst, op="add"):
    ins = "v_add_f32_dpp" if op == "add" else "v_max_f32_dpp"
    steps = ["row_shr:1", "row_shr:2", "row_shr:4", "row_shr:8"]
    for st in steps:
        for r in regs:
            if op == "add":
                g.A(f"{ins} v{r}, v{r}, v{r} {st} row_mask:0xf bank_mask:0xf bound_ctrl:0")
            else:
                g.A(f"{ins} v{r}, v{r}, v{r} {st} row_mask:0xf bank_mask:0xf")
        if len(regs) < 3:
            g.A(f"s_nop {2 - len(regs)}" if len(regs) < 3 else "s_nop 0")
    for st, rm in (("row_bcast:15", "0xa"), ("row_bcast:31", "0xc")):
        for r in regs:
            g.A(f"{ins} v{r}, v{r}, v{r} {st} row_mask:{rm} bank_mask:0xf")
        g.A("s_nop 1")
    for r, s in zip(regs, sdst):
        g.A(f"v_readlane_b32 s{s}, v{r}, 63")

def emit_streamer(g, cfg):
    NG, P, DMIN, W1 = cfg.NG, cfg.P, cfg.DMIN, cfg.W1
    NT = cfg.NT
    V_LANE = 0
    V_OFFK, V_OFFV = 1, 2
    V_M = 3
    V_EP = 7
    V_BQ = 8
    V_S = 40
    V_MAX, V_L = 62, 63
    V_ACC = 64
    V_O = 72
    V_B = 80
    V_T = 88
    V_QL = 96
    V_QOFF = 112
    V_RING2 = 128
    R = P * 8
    NA = min(R, 64)
    assert V_RING2 + 4 * (R - NA) <= 256
    def slot(n):
        s = n % R
        if s < 64:
            return ar(4 * s, 4)
        return vr(V_RING2 + 4 * (s - 64), 4)

    g.L("L_stream")
    g.C("bh = w/6, s = w%6")
    g.A(f"s_mul_hi_u32 s{S_T0}, s{S_WG}, 0x2aaaaaab")
    g.A(f"s_mul_i32 s{S_T1}, s{S_T0}, 6")
    g.A(f"s_sub_u32 s{S_T1}, s{S_WG}, s{S_T1}")
    g.A(f"s_lshl_b32 s{S_T2}, s{S_T1}, 8")
    g.A(f"s_mul_hi_u32 s{S_X0}, s{S_T2}, 0x55555556")
    g.A(f"s_add_u32 s{S_T2}, s{S_T2}, 256")
    g.A(f"s_mul_hi_u32 s{S_X0+1}, s{S_T2}, 0x55555556")
    g.A(f"s_sub_u32 s{S_X0+1}, s{S_X0+1}, s{S_X0}")
    g.A(f"s_lshl_b32 s{S_X0+2}, s{S_T0}, 22")
    g.A(f"s_lshl_b32 s{S_X0+3}, s{S_X0}, 13")
    g.A(f"s_add_u32 s{S_X0+2}, s{S_X0+2}, s{S_X0+3}")
    g.A(f"s_lshl_b32 s{S_X0+3}, s{S_X0+1}, 13")
    S_BH = S_X0 + 4
    g.A(f"s_mov_b32 s{S_BH}, s{S_T0}")
    S_BIAS = S_X0 + 5
    T = V_T
    g.A(f"s_lshl_b32 s{S_T1}, s{S_WAVE}, 13")
    g.A(f"v_lshrrev_b32 v{T}, 2, v{V_LANE}")
    g.A(f"v_and_b32 v{T}, 3, v{T}")
    g.A(f"v_lshlrev_b32 v{V_OFFK}, 9, v{T}")
    g.A(f"v_lshrrev_b32 v{T+1}, 4, v{V_LANE}")
    g.A(f"v_lshl_add_u32 v{V_OFFK}, v{T+1}, 6, v{V_OFFK}")
    g.A(f"v_and_b32 v{T+2}, 3, v{V_LANE}")
    g.A(f"v_lshl_add_u32 v{V_OFFK}, v{T+2}, 4, v{V_OFFK}")
    g.A(f"v_add_u32 v{V_OFFK}, s{S_T1}, v{V_OFFK}")
    g.A("s_waitcnt lgkmcnt(0)")
    set_srd(g, SRD_A, P_K, off_sreg=S_X0 + 2, nbytes_sreg=S_X0 + 3)

    S_SO = S_OFF
    def issue_group(gi):
        isv = gi >= NG
        i = gi - NG if isv else gi
        srd = SRD_B if isv else SRD_A
        voff = V_OFFV if isv else V_OFFK
        for half in range(2):
            g.A(f"s_mov_b32 s{S_SO+half}, {i*32768 + half*4096}")
        for a in range(4):
            for dh in range(2):
                n = gi * 8 + a * 2 + dh
                imm = (a & 1) * 2048 + dh * 256
                g.A(f"buffer_load_dwordx4 {slot(n)}, v{voff}, s[{srd}:{srd+3}], s{S_SO + (a >> 1)} offen offset:{imm}{NT}")

    issue_group(0)
    issue_group(1)
    set_srd(g, SRD_WS, P_WS, nbytes=WS_SIZE)
    g.A(f"v_mov_b32 v{T+4}, 0")
    g.A(f"buffer_load_dword v{V_EP}, v{T+4}, s[{SRD_WS}:{SRD_WS+3}], 0 offen sc1")
    entry_stamp(g, cfg)
    stamp(g, cfg, 1)
    dbgt(g, cfg, 1, 116, 0, 0)
    entry_prefetch(g, cfg, T + 5)
    set_srd(g, SRD_B, P_V, off_sreg=S_X0 + 2, nbytes_sreg=S_X0 + 3)
    g.A(f"s_add_u32 s{S_T1}, s{S_WAVE}, {4*(NG-1)}")
    g.A(f"s_cmp_lt_u32 s{S_T1}, s{S_X0+1}")
    g.A(f"s_cselect_b32 s{S_BIAS}, 0, 0xff800000")
    g.A(f"s_lshl_b32 s{S_T1}, s{S_WAVE}, 13")
    g.A(f"v_lshrrev_b32 v{T+1}, 4, v{V_LANE}")
    g.A(f"v_lshlrev_b32 v{V_OFFV}, 9, v{T+1}")
    g.A(f"v_and_b32 v{T+3}, 15, v{V_LANE}")
    g.A(f"v_lshl_add_u32 v{V_OFFV}, v{T+3}, 4, v{V_OFFV}")
    g.A(f"v_add_u32 v{V_OFFV}, s{S_T1}, v{V_OFFV}")
    g.C("PV masks M_t")
    g.A(f"v_and_b32 v{T}, 7, v{V_LANE}")
    g.A(f"v_lshrrev_b32 v{T+1}, 1, v{T}")
    g.A(f"v_and_b32 v{T+2}, 1, v{V_LANE}")
    g.A(f"v_mov_b32 v{T+3}, 0xffff")
    g.A(f"v_mov_b32 v{T+4}, 0xffff0000")
    g.A(f"v_cmp_eq_u32 vcc, 1, v{T+2}")
    g.A("s_nop 1")
    g.A(f"v_cndmask_b32 v{T+3}, v{T+3}, v{T+4}, vcc")
    for t in range(4):
        g.A(f"v_cmp_eq_u32 vcc, {t}, v{T+1}")
        g.A("s_nop 1")
        g.A(f"v_cndmask_b32 v{V_M+t}, 0, v{T+3}, vcc")
    for a in range(4):
        m = 0x000F000F << (4 * a)
        g.A(f"s_mov_b32 s{S_MSK+2*a}, {m:#x}")
        g.A(f"s_mov_b32 s{S_MSK+2*a+1}, {m:#x}")
    g.A(f"v_lshrrev_b32 v{T}, 4, v{V_LANE}")
    g.A(f"v_and_b32 v{T+1}, 3, v{V_LANE}")
    g.A(f"v_lshl_add_u32 v{T}, v{T}, 2, v{T+1}")
    g.A(f"v_lshlrev_b32 v{V_QOFF}, 5, v{T}")
    S_QB = S_X0 + 6
    g.C("q base: WS_QB + (b*2048 + h*128)*8 ; bh = b*16+h")
    g.A(f"s_lshr_b32 s{S_T0}, s{S_BH}, 4")
    g.A(f"s_and_b32 s{S_T1}, s{S_BH}, 15")
    g.A(f"s_lshl_b32 s{S_T0}, s{S_T0}, 14")
    g.A(f"s_lshl_b32 s{S_T1}, s{S_T1}, 10")
    g.A(f"s_add_u32 s{S_QB}, s{S_T0}, s{S_T1}")
    g.A(f"s_add_u32 s{S_QB}, s{S_QB}, {WS_QB}")
    def q_loads():
        for dh in range(2):
            for k in range(2):
                g.A(f"buffer_load_dwordx4 {vr(V_QL + (dh*2+k)*4, 4)}, v{V_QOFF}, s[{SRD_WS}:{SRD_WS+3}], s{S_QB} offen offset:{dh*512 + k*16} sc1")
    QAT = P - cfg.QBACK
    for gi in range(2, P):
        if gi == QAT:
            q_loads()
        g.A(f"s_waitcnt vmcnt({W1 - 8})")
        if gi == 4:
            make_tag(g, V_EP)
        issue_group(gi)
    stamp(g, cfg, 2)
    tagregs = [V_QL + k * 4 + o for k in range(4) for o in (1, 3)]
    okq = g.lab("qok")
    g.A(f"s_waitcnt vmcnt({(P - QAT) * 8})")
    if not (cfg.X_NOHELP):
        check_tags(g, tagregs, T, okq)
        poll_loop(g, cfg, q_loads, tagregs, T, sleep=2)
    g.L(okq)
    stamp(g, cfg, 3)
    dbgt(g, cfg, 2, 116, 0, 0)
    dbgt(g, cfg, 3, 116, 100, 0)
    for a in range(4):
        for dh in range(2):
            src = [V_QL + (dh * 2) * 4, V_QL + (dh * 2) * 4 + 2, V_QL + (dh * 2 + 1) * 4, V_QL + (dh * 2 + 1) * 4 + 2]
            for r in range(4):
                g.A(f"v_cndmask_b32 v{V_BQ + (a*2+dh)*4 + r}, 0, v{src[r]}, s[{S_MSK+2*a}:{S_MSK+2*a+1}]")
    g.A(f"v_mov_b32 v{V_MAX}, 0xff800000")
    g.A("s_nop 1")

    NTOT = 2 * NG
    def I(gi):
        if cfg.SHRINK <= 1:
            return min(NTOT, max(P, gi + DMIN))
        d = max(DMIN, P - (gi + cfg.SHRINK - 1) // cfg.SHRINK)
        return min(NTOT, max(P, gi + d))
    CSC = f2u(0.0625 * LOG2E)
    for gi in range(NTOT):
        n_after = 8 * (I(gi) - gi - 1)
        g.A(f"s_waitcnt vmcnt({min(63, n_after)})")
        if gi < NG:
            acc = V_ACC + 4 * (gi & 1)
            for a in range(4):
                for dh in range(2):
                    n = gi * 8 + a * 2 + dh
                    c = "0" if (a == 0 and dh == 0) else vr(acc, 4)
                    g.A(f"v_mfma_f32_16x16x32_bf16 {vr(acc,4)}, {slot(n)}, {vr(V_BQ + (a*2+dh)*4, 4)}, {c}")
            nissue = I(gi + 1) - I(gi) if gi + 1 < NTOT else 0
            for x in range(nissue):
                if I(gi) + x - gi - 1 > cfg.CAPG:
                    g.A(f"s_waitcnt vmcnt({8*cfg.CAPG - 8})")
                issue_group(I(gi) + x)
            if nissue == 0:
                g.A("s_nop 7")
            S = V_S + gi
            g.A(f"v_mov_b32_dpp v{S}, v{acc} quad_perm:[0,0,0,0] row_mask:0xf bank_mask:0xf")
            for p in range(1, 4):
                g.A(f"v_add_f32_dpp v{S}, v{acc+p}, v{S} quad_perm:[{p},{p},{p},{p}] row_mask:0xf bank_mask:0xf")
            g.A(f"v_cvt_pk_bf16_f32 v{T}, v{S}, v{S}")
            if gi == NG - 1:
                g.A(f"v_lshlrev_b32 v{S}, 16, v{T}")
                g.A(f"v_add_f32 v{S}, s{S_BIAS}, v{S}")
            else:
                g.A(f"v_lshlrev_b32 v{S}, 16, v{T}")
            g.A(f"v_max_f32 v{V_MAX}, v{V_MAX}, v{S}")
            if gi == NG - 1:
                g.C("softmax over this wave's keys")
                g.A("s_nop 1")
                for st in ("row_ror:4", "row_ror:8"):
                    g.A(f"v_max_f32_dpp v{V_MAX}, v{V_MAX}, v{V_MAX} {st} row_mask:0xf bank_mask:0xf")
                    g.A("s_nop 1")
                for st, rm in (("row_bcast:15", "0xa"), ("row_bcast:31", "0xc")):
                    g.A(f"v_max_f32_dpp v{V_MAX}, v{V_MAX}, v{V_MAX} {st} row_mask:{rm} bank_mask:0xf")
                    g.A("s_nop 1")
                g.A(f"v_readlane_b32 s{S_T0}, v{V_MAX}, 63")
                g.A(f"s_mov_b32 s{S_X0+7}, {CSC:#x}")
                g.A("s_nop 1")
                g.A(f"v_mov_b32 v{V_MAX}, s{S_T0}")
                g.A(f"v_mul_f32 v{V_MAX}, s{S_X0+7}, v{V_MAX}")
                g.A(f"v_mov_b32 v{V_L}, 0")
                for i in range(NG):
                    g.A(f"v_fma_f32 v{V_S+i}, v{V_S+i}, s{S_X0+7}, -v{V_MAX}")
                for i in range(NG):
                    g.A(f"v_exp_f32 v{V_S+i}, v{V_S+i}")
                g.A("s_nop 0")
                for i in range(NG):
                    g.A(f"v_add_f32 v{V_L}, v{V_L}, v{V_S+i}")
                    g.A(f"v_cvt_pk_bf16_f32 v{V_S+i}, v{V_S+i}, v{V_S+i}")
                g.A("s_nop 1")
                for st in ("row_ror:4", "row_ror:8"):
                    g.A(f"v_add_f32_dpp v{V_L}, v{V_L}, v{V_L} {st} row_mask:0xf bank_mask:0xf")
                    g.A("s_nop 1")
                for st, rm in (("row_bcast:15", "0xa"), ("row_bcast:31", "0xc")):
                    g.A(f"v_add_f32_dpp v{V_L}, v{V_L}, v{V_L} {st} row_mask:{rm} bank_mask:0xf")
                    g.A("s_nop 1")
                g.A(f"v_readlane_b32 s{S_X0+8}, v{V_L}, 63")
                stamp(g, cfg, 4)
        else:
            i = gi - NG
            Pi = V_S + i
            def build(a):
                bb = V_B + 4 * (a & 1)
                for t in range(4):
                    g.A(f"v_and_b32_dpp v{bb+t}, v{Pi}, v{V_M+t} row_newbcast:{4*a} row_mask:0xf bank_mask:0xf")
            build(0)
            for a in range(4):
                if a < 3:
                    build(a + 1)
                else:
                    g.A("s_nop 1")
                bb = V_B + 4 * (a & 1)
                for dh in range(2):
                    n = gi * 8 + a * 2 + dh
                    acc = V_O + 4 * dh
                    c = "0" if (i == 0 and a == 0) else vr(acc, 4)
                    g.A(f"v_mfma_f32_16x16x32_bf16 {vr(acc,4)}, {slot(n)}, {vr(bb,4)}, {c}")
            nissue = I(gi + 1) - I(gi) if gi + 1 < NTOT else 0
            for x in range(nissue):
                if I(gi) + x - gi - 1 > cfg.CAPG:
                    g.A(f"s_waitcnt vmcnt({8*cfg.CAPG - 8})")
                issue_group(I(gi) + x)
        if gi == cfg.HEADS_STEP:
            skip = g.lab("nohead")
            g.A(f"s_cmp_lg_u32 s{S_WAVE}, 0")
            g.A(f"s_cbranch_scc1 {skip}")
            g.A(f"s_lshl_b32 s{S_T0}, s{S_WG}, 6")
            g.A(f"s_add_u32 s{S_T0}, s{S_T0}, {WS_HEADS}")
            g.A(f"v_mov_b32 v{T}, s{S_TAG}")
            g.A(f"v_mov_b32 v{T+1}, s{S_TAG}")
            g.A(f"v_mov_b32 v{T+2}, 0")
            g.A("s_mov_b64 exec, 1")
            g.A(f"buffer_store_dwordx2 v[{T}:{T+1}], v{T+2}, s[{SRD_WS}:{SRD_WS+3}], s{S_T0} offen sc1")
            g.A("s_mov_b64 exec, -1")
            g.L(skip)
    stamp(g, cfg, 5)
    dbgt(g, cfg, 4, 116, 0, 0)
    dbgt(g, cfg, 5, 116, 100, 0)
    dbgt(g, cfg, 6, 116, 191, 0)
    g.C("workgroup combine")
    g.A(f"v_and_b32 v{T}, 8, v{V_LANE}")
    g.A(f"v_cmp_ne_u32 vcc, 0, v{T}")
    g.A(f"v_lshlrev_b32 v{T+1}, 4, v{T}")
    g.A(f"v_lshrrev_b32 v{T+2}, 4, v{V_LANE}")
    g.A(f"v_lshl_add_u32 v{T+1}, v{T+2}, 5, v{T+1}")
    g.A(f"v_and_b32 v{T+2}, 7, v{V_LANE}")
    g.A(f"v_add_u32 v{T+1}, v{T+1}, v{T+2}")
    g.A(f"s_lshl_b32 s{S_T0}, s{S_WAVE}, 8")
    g.A(f"v_add_u32 v{T+1}, s{S_T0}, v{T+1}")
    g.A(f"v_lshlrev_b32 v{T+1}, 2, v{T+1}")
    g.A("s_nop 4")
    for r in range(4):
        g.A(f"v_cndmask_b32 v{T+2}, v{V_O+r}, v{V_O+4+r}, vcc")
        g.A(f"ds_write_b32 v{T+1}, v{T+2} offset:{L_OW + r*32}")
    g.A(f"s_lshl_b32 s{S_T0}, s{S_WAVE}, 2")
    g.A(f"v_mov_b32 v{T+3}, s{S_T0}")
    g.A(f"v_mov_b32 v{T+4}, s{S_X0+8}")
    g.A("s_mov_b64 exec, 1")
    g.A(f"ds_write_b32 v{T+3}, v{V_MAX} offset:{L_ML}")
    g.A(f"ds_write_b32 v{T+3}, v{T+4} offset:{L_ML+16}")
    g.A("s_mov_b64 exec, -1")
    g.A("s_waitcnt lgkmcnt(0)")
    g.A("s_barrier")
    g.A(f"s_lshl_b32 s{S_T0}, s{S_WAVE}, 6")
    g.A(f"v_add_u32 v{T}, s{S_T0}, v{V_LANE}")
    g.A(f"v_lshlrev_b32 v{T+1}, 2, v{T}")
    g.A(f"v_mov_b32 v{T+2}, 0")
    Q = V_QL
    g.A(f"ds_read_b128 {vr(Q,4)}, v{T+2} offset:{L_ML}")
    g.A(f"ds_read_b128 {vr(Q+4,4)}, v{T+2} offset:{L_ML+16}")
    for w in range(4):
        g.A(f"ds_read_b32 v{Q+8+w}, v{T+1} offset:{L_OW + w*1024}")
    g.A("s_waitcnt lgkmcnt(4)")
    g.A(f"v_max_f32 v{T+3}, v{Q}, v{Q+1}")
    g.A(f"v_max3_f32 v{T+3}, v{Q+2}, v{Q+3}, v{T+3}")
    for w in range(4):
        g.A(f"v_sub_f32 v{Q+w}, v{Q+w}, v{T+3}")
    for w in range(4):
        g.A(f"v_exp_f32 v{Q+w}, v{Q+w}")
    g.A("s_nop 0")
    g.A(f"v_mul_f32 v{T+4}, v{Q}, v{Q+4}")
    for w in range(1, 4):
        g.A(f"v_fmac_f32 v{T+4}, v{Q+w}, v{Q+4+w}")
    g.A("s_waitcnt lgkmcnt(0)")
    g.A(f"v_mul_f32 v{Q+12}, v{Q}, v{Q+8}")
    for w in range(1, 4):
        g.A(f"v_fmac_f32 v{Q+12}, v{Q+w}, v{Q+8+w}")
    g.A(f"v_mov_b32 v{Q+13}, s{S_TAG}")
    g.A(f"s_lshl_b32 s{S_T0}, s{S_WG}, 12")
    g.A(f"s_add_u32 s{S_T0}, s{S_T0}, {WS_PART}")
    g.A(f"v_lshlrev_b32 v{T+1}, 3, v{T}")
    g.A(f"buffer_store_dwordx2 {vr(Q+12,2)}, v{T+1}, s[{SRD_WS}:{SRD_WS+3}], s{S_T0} offen sc1")
    skip = g.lab("noml")
    g.A(f"s_cmp_lg_u32 s{S_WAVE}, 0")
    g.A(f"s_cbranch_scc1 {skip}")
    g.A(f"v_mov_b32 v{Q}, v{T+3}")
    g.A(f"v_mov_b32 v{Q+1}, s{S_TAG}")
    g.A(f"v_mov_b32 v{Q+2}, v{T+4}")
    g.A(f"v_mov_b32 v{Q+3}, s{S_TAG}")
    g.A("s_mov_b64 exec, 1")
    g.A(f"buffer_store_dwordx4 {vr(Q,4)}, v{T+2}, s[{SRD_WS}:{SRD_WS+3}], s{S_T0} offen offset:2048 sc1")
    g.L(skip)
    stamp(g, cfg, 6)
    g.A("s_endpgm")

H_LANE = 0
H_T = 2
H_LN = 16
H_SC = 24
H_ACC = 32
H_FR = 64
H_FT = 128
H_ST = 192

def transpose_unit(g, src, dst, dst_acc=False, tmp=None):
    for c in range(4):
        for o in range(2):
            m = 2 * c + o
            for t in range(4):
                sel = S_SEL0 if o == 0 else S_SEL1
                s_lo = src + (2 * t) * 4 + c
                s_hi = src + (2 * t + 1) * 4 + c
                if dst_acc:
                    g.A(f"v_perm_b32 v{tmp + (t & 1)}, v{s_hi}, v{s_lo}, s{sel}")
                    g.A(f"v_accvgpr_write_b32 a{dst + m*4 + t}, v{tmp + (t & 1)}")
                else:
                    g.A(f"v_perm_b32 v{dst + m*4 + t}, v{s_hi}, v{s_lo}, s{sel}")

def unit_loads(g, dst, srd, voff, soffs, flags):
    for e in range(8):
        g.A(f"s_mov_b32 s{S_T0}, {soffs[e]}")
        g.A(f"buffer_load_dwordx4 {vr(dst + 4*e, 4)}, v{voff}, s[{srd}:{srd+3}], s{S_T0} offen{flags}")

def mfma8(g, afrag, frag, first, frag_acc=False):
    for m in range(8):
        acc = H_ACC + 4 * m
        c = "0" if first else vr(acc, 4)
        b = ar(frag + 4 * m, 4) if frag_acc else vr(frag + 4 * m, 4)
        g.A(f"v_mfma_f32_16x16x32_bf16 {vr(acc,4)}, {vr(afrag,4)}, {b}, {c}")

def red_write(g, vaddr):
    for m in range(8):
        g.A(f"ds_write_b32 v{vaddr}, v{H_ACC + 4*m} offset:{m*256}")

def red_read(g, va, vb, dst):
    for w in range(4):
        g.A(f"ds_read2st64_b32 {vr(dst + 2*w, 2)}, v{va} offset0:{w*8} offset1:{w*8+1}")
        g.A(f"ds_read2st64_b32 {vr(dst + 8 + 2*w, 2)}, v{vb} offset0:{w*8} offset1:{w*8+1}")
    g.A("s_waitcnt lgkmcnt(0)")
    for base in (dst, dst + 8):
        for o in range(2):
            g.A(f"v_add_f32 v{base+o}, v{base+o}, v{base+2+o}")
            g.A(f"v_add_f32 v{base+4+o}, v{base+4+o}, v{base+6+o}")
        for o in range(2):
            g.A(f"v_add_f32 v{base+o}, v{base+o}, v{base+4+o}")

def ln_normalize(g, x, out, tmp):
    sA, sB = S_X0 + 10, S_X0 + 11
    t0, t1 = tmp, tmp + 1
    g.A(f"v_add_f32 v{t0}, v{x}, v{x+1}")
    g.A(f"v_add_f32 v{t1}, v{x+2}, v{x+3}")
    g.A(f"v_add_f32 v{t0}, v{t0}, v{x+4}")
    g.A(f"v_add_f32 v{t1}, v{t1}, v{x+5}")
    g.A(f"v_add_f32 v{t0}, v{t0}, v{x+6}")
    g.A(f"v_add_f32 v{t1}, v{t1}, v{x+7}")
    g.A(f"v_add_f32 v{t0}, v{t0}, v{t1}")
    g.A("s_nop 1")
    wave_sum(g, [t0], [sA])
    g.A(f"v_mov_b32 v{t1}, {f2u(1.0/448.0):#x}")
    g.A("s_nop 0")
    g.A(f"v_mul_f32 v{t1}, s{sA}, v{t1}")
    for e in range(8):
        g.A(f"v_sub_f32 v{out+e}, v{x+e}, v{t1}")
    g.A(f"v_mul_f32 v{t0}, v{out}, v{out}")
    for e in range(1, 8):
        g.A(f"v_fmac_f32 v{t0}, v{out+e}, v{out+e}")
    g.A(f"v_cmp_gt_u32 vcc, 56, v{H_LANE}")
    g.A("s_nop 1")
    g.A(f"v_cndmask_b32 v{t0}, 0, v{t0}, vcc")
    g.A("s_nop 1")
    wave_sum(g, [t0], [sB])
    g.A(f"v_mov_b32 v{t0}, {f2u(1.0/448.0):#x}")
    g.A("s_nop 0")
    g.A(f"v_mul_f32 v{t0}, s{sB}, v{t0}")
    g.A(f"v_cvt_pk_bf16_f32 v{tmp+2}, v{t1}, v{t0}")
    g.A(f"v_lshlrev_b32 v{t1}, 16, v{tmp+2}")
    g.A(f"v_and_b32 v{t0}, 0xffff0000, v{tmp+2}")
    g.A(f"v_add_f32 v{t0}, {f2u(1e-5):#x}, v{t0}")
    g.A(f"v_cvt_pk_bf16_f32 v{t0}, v{t0}, v{t0}")
    g.A(f"v_lshlrev_b32 v{t0}, 16, v{t0}")
    g.A(f"v_sqrt_f32 v{t0}, v{t0}")
    g.A("s_nop 0")
    g.A(f"v_cvt_pk_bf16_f32 v{t0}, v{t0}, v{t0}")
    g.A(f"v_lshlrev_b32 v{t0}, 16, v{t0}")
    g.A(f"v_rcp_f32 v{t0}, v{t0}")
    for e in range(8):
        g.A(f"v_sub_f32 v{out+e}, v{x+e}, v{t1}")
    bf16_round_pairs(g, [out + e for e in range(8)], tmp + 2)
    for e in range(8):
        g.A(f"v_mul_f32 v{out+e}, v{out+e}, v{t0}")
    bf16_round_pairs(g, [out + e for e in range(8)], tmp + 2)

def exec56(g):
    g.A("s_mov_b32 exec_lo, -1")
    g.A("s_mov_b32 exec_hi, 0x00ffffff")
def exec_all(g):
    g.A("s_mov_b64 exec, -1")

def gather_shift_scale(g, cfg, sbase, voff, ld, shift, scale1, tmp):
    def loads():
        for k, imm in enumerate((0, 16, 1792, 1808)):
            g.A(f"buffer_load_dwordx4 {vr(ld + 4*k, 4)}, v{voff}, s[{SRD_WS}:{SRD_WS+3}], s{sbase} offen offset:{imm} sc1")
    tags = [ld + 4 * k + o for k in range(4) for o in (1, 3)]
    poll_loop(g, cfg, loads, tags, tmp, sleep=1)
    unpack_pairs(g, [ld, ld + 2, ld + 4, ld + 6], [shift + e for e in range(8)])
    unpack_pairs(g, [ld + 8, ld + 10, ld + 12, ld + 14], [scale1 + e for e in range(8)])
    for e in range(8):
        g.A(f"v_add_f32 v{scale1+e}, 1.0, v{scale1+e}")
    bf16_round_pairs(g, [scale1 + e for e in range(8)], tmp)

def modulate_write(g, ln, shift, scale1, vaddr, ldsoff, tmp):
    for e in range(8):
        g.A(f"v_mul_f32 v{ln+e}, v{ln+e}, v{scale1+e}")
    bf16_round_pairs(g, [ln + e for e in range(8)], tmp)
    for e in range(8):
        g.A(f"v_add_f32 v{ln+e}, v{ln+e}, v{shift+e}")
    for k in range(4):
        g.A(f"v_cvt_pk_bf16_f32 v{tmp+k}, v{ln+2*k}, v{ln+2*k+1}")
    g.A(f"ds_write_b128 v{vaddr}, {vr(tmp,4)} offset:{ldsoff}")

def emit_helper(g, cfg):
    NT = cfg.NTW
    T = H_T
    WSR = f"s[{SRD_WS}:{SRD_WS+3}]"
    g.L("L_helper")
    if cfg.X_NOHELP:
        g.A("s_endpgm")
    lazy(g, cfg, 0)
    g.A(f"s_sub_u32 s{S_ROLE}, s{S_WG}, {cfg.NSTREAM}")
    g.A(f"s_mov_b32 s{S_SEL0}, 0x05040100")
    g.A(f"s_mov_b32 s{S_SEL1}, 0x07060302")
    V_L16 = 16
    V_WOFF64 = 17
    V_WOFFQ = 18
    V_AF64 = 19
    V_RW = 20
    V_RA, V_RB = 21, 22
    V_ACTW = 23
    V_G32 = 24
    V_X = 112
    HLN, HSH, HSC, HLD = 160, 168, 176, 144
    g.A(f"v_lshlrev_b32 v{V_L16}, 4, v{H_LANE}")
    g.A(f"v_lshlrev_b32 v{V_G32}, 5, v{H_LANE}")
    g.A(f"s_and_b32 s{S_X0}, s{S_WAVE}, 1")
    S_B = S_X0
    g.A(f"s_mul_i32 s{S_T1}, s{S_B}, 896")
    set_srd(g, SRD_C, P_C, nbytes=1792)
    set_srd(g, SRD_A, P_X, nbytes=1792)
    exec56(g)
    g.A(f"buffer_load_dwordx4 {vr(HLD,4)}, v{V_L16}, s[{SRD_C}:{SRD_C+3}], s{S_T1} offen")
    g.A(f"buffer_load_dwordx4 {vr(HLD+4,4)}, v{V_L16}, s[{SRD_A}:{SRD_A+3}], s{S_T1} offen")
    exec_all(g)
    lazy(g, cfg, 1)
    g.A(f"v_lshrrev_b32 v{T}, 3, v{H_LANE}")
    g.A(f"v_and_b32 v{T}, 1, v{T}")
    g.A(f"v_lshrrev_b32 v{T+1}, 4, v{H_LANE}")
    g.A(f"v_lshlrev_b32 v{T+2}, 5, v{T}")
    g.A(f"v_lshl_add_u32 v{T+2}, v{T+1}, 3, v{T+2}")
    g.A(f"s_lshl_b32 s{S_T0}, s{S_WAVE}, 6")
    g.A(f"v_add_u32 v{T+2}, s{S_T0}, v{T+2}")
    g.A(f"v_and_b32 v{T+3}, 7, v{H_LANE}")
    g.A(f"v_lshlrev_b32 v{T+3}, 4, v{T+3}")
    g.A(f"s_mov_b32 s{S_T0}, 5376")
    g.A(f"v_mul_lo_u32 v{V_WOFF64}, v{T+2}, s{S_T0}")
    g.A(f"v_add_u32 v{V_WOFF64}, v{V_WOFF64}, v{T+3}")
    g.A(f"v_lshl_add_u32 v{V_WOFFQ}, v{T+2}, 13, v{T+3}")
    S_MB = S_X0 + 12
    def m_loads():
        g.A(f"s_lshl_b32 s{S_T2}, s{S_MB}, 7")
        g.A(f"s_sub_u32 s{S_X0+1}, {448*5376}, s{S_T2}")
        set_srd(g, SRD_A, P_WMOD, off_sreg=S_T2, nbytes_sreg=S_X0 + 1)
        for it in range(2):
            unit_loads(g, H_FR + 32 * it, SRD_A, V_WOFF64, [e * 5376 + it * 256 * 5376 for e in range(8)], NT)
    def q_wloads():
        g.A(f"s_lshl_b32 s{S_T2}, s{S_ROLE}, 7")
        g.A(f"s_sub_u32 s{S_X0+1}, {448*8192}, s{S_T2}")
        set_srd(g, SRD_B, P_WQ, off_sreg=S_T2, nbytes_sreg=S_X0 + 1)
        for it in range(2):
            unit_loads(g, H_ST + 32 * it, SRD_B, V_WOFFQ, [e * 8192 + it * 256 * 8192 for e in range(8)], NT)
    nom = g.lab("nomload"); nom_b = g.lab("nomload_b")
    g.A(f"s_sub_u32 s{S_MB}, s{S_ROLE}, 50")
    g.A(f"s_cmp_lt_u32 s{S_ROLE}, 50")
    g.A(f"s_cbranch_scc1 {nom}")
    m_loads()
    g.A(f"s_branch {nom_b}")
    g.L(nom)
    q_wloads()
    g.L(nom_b)
    lazy(g, cfg, 3)
    if cfg.LAZY != 1: stamp(g, cfg, 1)
    entry_prefetch(g, cfg, T + 6)
    g.A(f"v_lshrrev_b32 v{T+3}, 2, v{H_LANE}")
    g.A(f"v_and_b32 v{T+3}, 1, v{T+3}")
    g.A(f"v_mul_u32_u24 v{V_AF64}, {ROWB}, v{T+3}")
    g.A(f"v_lshl_add_u32 v{V_AF64}, v{T}, 6, v{V_AF64}")
    g.A(f"v_lshl_add_u32 v{V_AF64}, v{T+1}, 4, v{V_AF64}")
    g.A(f"s_lshl_b32 s{S_T0}, s{S_WAVE}, 7")
    g.A(f"v_add_u32 v{V_AF64}, s{S_T0}, v{V_AF64}")
    g.A(f"s_lshl_b32 s{S_T0}, s{S_WAVE}, 11")
    g.A(f"s_add_u32 s{S_T0}, s{S_T0}, {L_RED}")
    g.A(f"v_lshlrev_b32 v{V_RW}, 2, v{H_LANE}")
    g.A(f"v_add_u32 v{V_RW}, s{S_T0}, v{V_RW}")
    g.A(f"v_and_b32 v{T+4}, 3, v{H_LANE}")
    g.A(f"v_lshlrev_b32 v{V_RA}, 9, v{T+4}")
    g.A(f"v_lshrrev_b32 v{T+4}, 5, v{H_LANE}")
    g.A(f"v_lshl_add_u32 v{V_RA}, v{T+4}, 6, v{V_RA}")
    g.A(f"v_lshrrev_b32 v{T+4}, 2, v{H_LANE}")
    g.A(f"v_and_b32 v{T+4}, 7, v{T+4}")
    g.A(f"v_lshl_add_u32 v{V_RA}, v{T+4}, 2, v{V_RA}")
    g.A(f"v_add_u32 v{V_RA}, {L_RED}, v{V_RA}")
    g.A(f"v_add_u32 v{V_RB}, 160, v{V_RA}")
    g.A(f"s_mul_i32 s{S_T0}, s{S_B}, {ROWB}")
    g.A(f"v_add_u32 v{V_ACTW}, s{S_T0}, v{V_L16}")
    n1 = S_X0 + 2
    skip = g.lab("noln1")
    g.A("s_waitcnt vmcnt(16)")
    make_tag(g, 1)
    g.A(f"s_cmp_ge_u32 s{S_WAVE}, 2")
    g.A(f"s_cbranch_scc1 {skip}")
    g.A(f"v_cmp_gt_u32 vcc, 56, v{H_LANE}")
    g.A("s_nop 1")
    for k in range(8):
        g.A(f"v_cndmask_b32 v{HLD+k}, 0, v{HLD+k}, vcc")
    unpack_pairs(g, [HLD, HLD + 1, HLD + 2, HLD + 3], [HSH + e for e in range(8)])
    g.A(f"s_mov_b32 s{S_T0}, {f2u(-LOG2E):#x}")
    for e in range(8):
        g.A(f"v_mul_f32 v{HSC+e}, s{S_T0}, v{HSH+e}")
    for e in range(8):
        g.A(f"v_exp_f32 v{HSC+e}, v{HSC+e}")
    g.A("s_nop 0")
    for e in range(8):
        g.A(f"v_add_f32 v{HSC+e}, 1.0, v{HSC+e}")
    for e in range(8):
        g.A(f"v_rcp_f32 v{HSC+e}, v{HSC+e}")
    g.A("s_nop 0")
    for e in range(8):
        g.A(f"v_mul_f32 v{HSC+e}, v{HSC+e}, v{HSH+e}")
    for k in range(4):
        g.A(f"v_cvt_pk_bf16_f32 v{T+k}, v{HSC+2*k}, v{HSC+2*k+1}")
    exec56(g)
    g.A(f"ds_write_b128 v{V_ACTW}, {vr(T,4)} offset:{L_ACTS}")
    exec_all(g)
    unpack_pairs(g, [HLD + 4, HLD + 5, HLD + 6, HLD + 7], [HSH + e for e in range(8)])
    ln_normalize(g, HSH, HLN, T)
    g.L(skip)
    g.A("s_waitcnt lgkmcnt(0)")
    g.A("s_barrier")
    lazy(g, cfg, 2)
    AF = T + 4
    RD = H_FT
    def m_stage():
        g.A(f"ds_read_b128 {vr(AF,4)}, v{V_AF64} offset:{L_ACTS}")
        g.A(f"ds_read_b128 {vr(AF+4,4)}, v{V_AF64} offset:{L_ACTS+512}")
        g.A("s_waitcnt vmcnt(8)")
        transpose_unit(g, H_FR, H_FT)
        g.A("s_waitcnt lgkmcnt(0)")
        g.A("s_nop 0")
        mfma8(g, AF, H_FT, True)
        sk = g.lab("m2")
        g.A(f"s_cmp_eq_u32 s{S_WAVE}, 3")
        g.A(f"s_cbranch_scc1 {sk}")
        g.A("s_waitcnt vmcnt(0)")
        transpose_unit(g, H_FR + 32, H_FT)
        g.A("s_nop 1")
        mfma8(g, AF + 4, H_FT, False)
        g.L(sk)
        g.A("s_nop 7")
        red_write(g, V_RW)
        g.A("s_waitcnt lgkmcnt(0)")
        g.A("s_barrier")
        sk = g.lab("m3")
        g.A(f"s_cmp_lg_u32 s{S_WAVE}, 0")
        g.A(f"s_cbranch_scc1 {sk}")
        red_read(g, V_RA, V_RB, RD)
        for o in range(2):
            g.A(f"v_add_f32 v{RD+o}, v{RD+o}, v{RD+8+o}")
        g.A(f"v_cvt_pk_bf16_f32 v{RD+2}, v{RD}, v{RD+1}")
        g.A(f"v_mov_b32 v{RD+3}, s{S_TAG}")
        g.A(f"v_lshrrev_b32 v{T}, 5, v{H_LANE}")
        g.A(f"v_mul_u32_u24 v{T}, {1344*8}, v{T}")
        g.A(f"v_and_b32 v{T+1}, 31, v{H_LANE}")
        g.A(f"v_lshl_add_u32 v{T}, v{T+1}, 3, v{T}")
        g.A(f"s_lshl_b32 s{S_T0}, s{S_MB}, 8")
        g.A(f"s_add_u32 s{S_T0}, s{S_T0}, {WS_MOD}")
        g.A(f"buffer_store_dwordx2 {vr(RD+2,2)}, v{T}, {WSR}, s{S_T0} offen sc1")
        g.L(sk)
    nom2 = g.lab("nom")
    g.A(f"s_cmp_lt_u32 s{S_ROLE}, 50")
    g.A(f"s_cbranch_scc1 {nom2}")
    m_stage()
    lazy(g, cfg, 4)
    q_wloads()
    g.L(nom2)
    stamp(g, cfg, 2)
    lazy_flush(g, cfg, 5, 16)
    g.A("s_waitcnt vmcnt(8)")
    transpose_unit(g, H_ST, H_FR)
    g.A("s_waitcnt vmcnt(0)")
    transpose_unit(g, H_ST + 32, H_FR + 32)
    skip = g.lab("noh")
    g.A(f"s_cmp_ge_u32 s{S_WAVE}, 2")
    g.A(f"s_cbranch_scc1 {skip}")
    g.A(f"s_mul_i32 s{S_X0+3}, s{S_B}, {1344*8}")
    g.A(f"s_add_u32 s{S_X0+3}, s{S_X0+3}, {WS_MOD}")
    exec56(g)
    gather_shift_scale(g, cfg, S_X0 + 3, V_G32, HLD, HSH, HSC, T)
    modulate_write(g, HLN, HSH, HSC, V_ACTW, L_ACTH, T)
    exec_all(g)
    g.L(skip)
    stamp(g, cfg, 3)
    g.A("s_waitcnt lgkmcnt(0)")
    g.A("s_barrier")
    g.A(f"ds_read_b128 {vr(AF,4)}, v{V_AF64} offset:{L_ACTH}")
    g.A(f"ds_read_b128 {vr(AF+4,4)}, v{V_AF64} offset:{L_ACTH+512}")
    g.A("s_waitcnt lgkmcnt(1)")
    mfma8(g, AF, H_FR, True)
    sk = g.lab("q2")
    g.A(f"s_cmp_eq_u32 s{S_WAVE}, 3")
    g.A(f"s_cbranch_scc1 {sk}")
    g.A("s_waitcnt lgkmcnt(0)")
    mfma8(g, AF + 4, H_FR + 32, False)
    g.L(sk)
    g.A("s_waitcnt lgkmcnt(0)")
    g.A("s_nop 7")
    red_write(g, V_RW)
    g.A("s_waitcnt lgkmcnt(0)")
    g.A("s_barrier")
    sk = g.lab("q3")
    g.A(f"s_cmp_lg_u32 s{S_WAVE}, 0")
    g.A(f"s_cbranch_scc1 {sk}")
    red_read(g, V_RA, V_RB, RD)
    for o in range(2):
        g.A(f"v_add_f32 v{RD+o}, v{RD+o}, v{RD+8+o}")
    g.A(f"v_cvt_pk_bf16_f32 v{RD+2}, v{RD}, v{RD+1}")
    g.A(f"v_mov_b32 v{RD+3}, s{S_TAG}")
    g.A(f"v_lshrrev_b32 v{T}, 5, v{H_LANE}")
    g.A(f"v_lshlrev_b32 v{T}, 14, v{T}")
    g.A(f"v_and_b32 v{T+1}, 31, v{H_LANE}")
    g.A(f"v_lshl_add_u32 v{T}, v{T+1}, 3, v{T}")
    g.A(f"s_lshl_b32 s{S_T0}, s{S_ROLE}, 8")
    g.A(f"s_add_u32 s{S_T0}, s{S_T0}, {WS_QB}")
    g.A(f"buffer_store_dwordx2 {vr(RD+2,2)}, v{T}, {WSR}, s{S_T0} offen sc1")
    g.L(sk)
    stamp(g, cfg, 4)
    dbgt(g, cfg, 9, 28, 192, 0)
    dbgt(g, cfg, 10, 28, 250, 0)
    if cfg.X_NOEPIW:
        g.A("s_endpgm")
    g.A(f"s_cmp_ge_u32 s{S_ROLE}, 32")
    g.A("s_cbranch_scc1 L_rf")

    nomr = g.lab("nomrest")
    g.A(f"s_cmp_lt_u32 s{S_ROLE}, 4")
    g.A(f"s_cbranch_scc1 {nomr}")
    g.A(f"s_add_u32 s{S_MB}, s{S_ROLE}, 10")
    m_loads()
    g.A("s_barrier")
    m_stage()
    g.L(nomr)
    V_WO = 17
    g.A(f"s_mul_i32 s{S_T2}, s{S_ROLE}, {128*896}")
    g.A(f"s_sub_u32 s{S_X0+1}, {4096*896}, s{S_T2}")
    set_srd(g, SRD_A, P_WO, off_sreg=S_T2, nbytes_sreg=S_X0 + 1)
    def woff128(dst):
        g.A(f"v_lshrrev_b32 v{T}, 4, v{H_LANE}")
        g.A(f"v_mul_u32_u24 v{dst}, {8*896}, v{T}")
        g.A(f"v_and_b32 v{T}, 15, v{H_LANE}")
        g.A(f"v_lshl_add_u32 v{dst}, v{T}, 4, v{dst}")
        g.A(f"s_lshl_b32 s{S_T0}, s{S_WAVE}, 8")
        g.A(f"v_add_u32 v{dst}, s{S_T0}, v{dst}")
    woff128(V_WO)
    def wo_unit(kb, st):
        unit_loads(g, H_ST + 32 * st, SRD_A, V_WO, [(kb * 32 + e) * 896 for e in range(8)], NT)
    wo_unit(0, 0); wo_unit(1, 1)
    g.A("s_waitcnt vmcnt(8)"); transpose_unit(g, H_ST, H_FR)
    wo_unit(2, 0)
    g.A("s_waitcnt vmcnt(8)"); transpose_unit(g, H_ST + 32, H_FR + 32)
    wo_unit(3, 1)
    g.A("s_waitcnt vmcnt(8)"); transpose_unit(g, H_ST, H_FR + 64)
    g.A("s_waitcnt vmcnt(0)"); transpose_unit(g, H_ST + 32, H_FR + 96)
    S_REC = S_X0 + 4
    g.A(f"s_lshr_b32 s{S_T0}, s{S_WAVE}, 1")
    g.A(f"s_lshl_b32 s{S_T0}, s{S_T0}, 4")
    g.A(f"s_lshr_b32 s{S_T1}, s{S_ROLE}, 1")
    g.A(f"s_add_u32 s{S_T0}, s{S_T0}, s{S_T1}")
    g.A(f"s_mul_i32 s{S_REC}, s{S_T0}, {6*4096}")
    g.A(f"s_add_u32 s{S_REC}, s{S_REC}, {WS_PART}")
    g.A(f"s_and_b32 s{S_T1}, s{S_ROLE}, 1")
    g.A(f"s_lshl_b32 s{S_T1}, s{S_T1}, 10")
    for s in range(6):
        g.A(f"s_add_u32 s{S_OFF+s}, s{S_REC}, s{S_T1}")
        g.A(f"s_add_u32 s{S_OFF+s}, s{S_OFF+s}, {s*4096}")
    V_PO, V_ML, V_AOW, V_AFO = 18, 19, 20, 21
    g.A(f"s_and_b32 s{S_T1}, s{S_WAVE}, 1")
    g.A(f"s_lshl_b32 s{S_T1}, s{S_T1}, 6")
    g.A(f"v_add_u32 v{T}, s{S_T1}, v{H_LANE}")
    g.A(f"v_lshlrev_b32 v{V_PO}, 3, v{T}")
    g.A(f"s_lshr_b32 s{S_T1}, s{S_WAVE}, 1")
    g.A(f"s_mul_i32 s{S_T1}, s{S_T1}, {ROWO}")
    g.A(f"v_lshlrev_b32 v{V_AOW}, 1, v{T}")
    g.A(f"v_add_u32 v{V_AOW}, s{S_T1}, v{V_AOW}")
    g.A(f"v_and_b32 v{T}, 7, v{H_LANE}")
    g.A(f"v_min_u32 v{T}, 5, v{T}")
    g.A(f"v_lshlrev_b32 v{V_ML}, 12, v{T}")
    g.A(f"v_lshrrev_b32 v{T}, 2, v{H_LANE}")
    g.A(f"v_and_b32 v{T}, 1, v{T}")
    g.A(f"v_mul_u32_u24 v{V_AFO}, {ROWO}, v{T}")
    g.A(f"v_lshrrev_b32 v{T}, 4, v{H_LANE}")
    g.A(f"v_lshl_add_u32 v{V_AFO}, v{T}, 4, v{V_AFO}")
    stamp(g, cfg, 5)
    def heads_wait(sreg_w):
        g.A(f"s_lshl_b32 s{S_X0+5}, s{sreg_w}, 6")
        g.A(f"s_add_u32 s{S_X0+5}, s{S_X0+5}, {WS_HEADS}")
        g.A(f"v_mov_b32 v{T+2}, 0")
        def loads():
            g.A(f"buffer_load_dwordx2 {vr(T+4,2)}, v{T+2}, {WSR}, s{S_X0+5} offen sc1")
        poll_loop(g, cfg, loads, [T + 4, T + 5], T, sleep=cfg.HSLEEP)
    if cfg.X_LOADONLY:
        g.A("s_endpgm")
    g.A(f"s_lshr_b32 s{S_T1}, s{S_ROLE}, 1")
    g.A(f"s_mul_i32 s{S_T1}, s{S_T1}, 6")
    heads_wait(S_T1)
    stamp(g, cfg, 6)
    PL = H_ST
    items = []
    for sidx in range(6):
        items.append(((lambda sidx=sidx: g.A(f"buffer_load_dwordx2 {vr(PL + 2*sidx, 2)}, v{V_PO}, {WSR}, s{S_OFF+sidx} offen sc1")), [PL + 2*sidx + 1]))
    items.append(((lambda: g.A(f"buffer_load_dwordx4 {vr(PL+12, 4)}, v{V_ML}, {WSR}, s{S_REC} offen offset:2048 sc1")), [PL + 13, PL + 15]))
    masked_poll(g, cfg, items, None, idle_sleep=cfg.IDLE)
    lazy(g, cfg, 0, 2)
    if cfg.LAZY != 2: stamp(g, cfg, 7)
    VM, VL = PL + 12, PL + 14
    g.A(f"v_mov_b32 v{T}, v{VM}")
    g.A("s_nop 1")
    for st in ("quad_perm:[1,0,3,2]", "quad_perm:[2,3,0,1]", "row_half_mirror"):
        g.A(f"v_max_f32_dpp v{T}, v{T}, v{T} {st} row_mask:0xf bank_mask:0xf")
        g.A("s_nop 1")
    g.A(f"v_sub_f32 v{VM}, v{VM}, v{T}")
    g.A(f"v_exp_f32 v{VM}, v{VM}")
    g.A(f"v_and_b32 v{T+1}, 7, v{H_LANE}")
    g.A(f"v_cmp_gt_u32 vcc, 6, v{T+1}")
    g.A(f"v_mul_f32 v{T}, v{VM}, v{VL}")
    g.A("s_nop 0")
    g.A(f"v_cndmask_b32 v{T}, 0, v{T}, vcc")
    g.A("s_nop 1")
    for st in ("quad_perm:[1,0,3,2]", "quad_perm:[2,3,0,1]", "row_half_mirror"):
        g.A(f"v_add_f32_dpp v{T}, v{T}, v{T} {st} row_mask:0xf bank_mask:0xf")
        g.A("s_nop 1")
    g.A(f"v_rcp_f32 v{T}, v{T}")
    g.A("s_nop 0")
    g.A(f"v_mul_f32 v{VM}, v{VM}, v{T}")
    g.A("s_nop 0")
    for s in range(6):
        g.A(f"v_readlane_b32 s{S_X0+6+s}, v{VM}, {s}")
    g.A("s_nop 1")
    g.A(f"v_mul_f32 v{T}, s{S_X0+6}, v{PL}")
    for s in range(1, 6):
        g.A(f"v_fmac_f32 v{T}, s{S_X0+6+s}, v{PL+2*s}")
    g.A(f"v_cvt_pk_bf16_f32 v{T}, v{T}, v{T}")
    g.A(f"ds_write_b16 v{V_AOW}, v{T} offset:{L_ACTO}")
    g.A("s_waitcnt lgkmcnt(0)")
    g.A("s_barrier")
    lazy(g, cfg, 1, 2)
    AFO = [4, 8, 12, 24]
    for kb in range(4):
        g.A(f"ds_read_b128 {vr(AFO[kb], 4)}, v{V_AFO} offset:{L_ACTO + kb*64}")
    for kb in range(4):
        g.A(f"s_waitcnt lgkmcnt({3-kb})")
        mfma8(g, AFO[kb], H_FR + 32 * kb, kb == 0)
    lazy(g, cfg, 2, 2)
    def publish_rec(base_const, sidx):
        g.A(f"s_lshl_b32 s{S_T0}, s{sidx}, 13")
        g.A(f"s_lshl_b32 s{S_T1}, s{S_WAVE}, 11")
        g.A(f"s_add_u32 s{S_T0}, s{S_T0}, s{S_T1}")
        g.A(f"s_add_u32 s{S_T0}, s{S_T0}, {base_const}")
        g.A(f"v_lshlrev_b32 v{T}, 4, v{H_LANE}")
        g.A("s_nop 4")
        for p in range(4):
            a0 = H_ACC + 8 * p
            g.A(f"v_mov_b32 v{a0+2}, v{a0+4}")
            g.A(f"v_mov_b32 v{a0+1}, s{S_TAG}")
            g.A(f"v_mov_b32 v{a0+3}, s{S_TAG}")
        g.A("s_mov_b32 exec_lo, -1")
        g.A("s_mov_b32 exec_hi, 0")
        for p in range(4):
            g.A(f"buffer_store_dwordx4 {vr(H_ACC + 8*p, 4)}, v{T}, {WSR}, s{S_T0} offen offset:{p*512} sc1")
        exec_all(g)
    publish_rec(WS_Y, S_ROLE)
    lazy(g, cfg, 3, 2)
    dbgt(g, cfg, 7, 28, 192, 0)
    dbgt(g, cfg, 8, 28, 210, 0)
    stamp(g, cfg, 8)
    lazy_flush(g, cfg, 4, 21, 2)
    g.A("s_endpgm")

    g.L("L_rf")
    S_K = S_X0 + 4
    g.A(f"s_sub_u32 s{S_K}, s{S_ROLE}, 32")
    V_WGU, V_WD = 17, 18
    nof = g.lab("nofw")
    g.A(f"s_cmp_ge_u32 s{S_K}, 28")
    g.A(f"s_cbranch_scc1 {nof}")
    g.A(f"v_lshrrev_b32 v{T}, 4, v{H_LANE}")
    g.A(f"v_lshlrev_b32 v{T}, 3, v{T}")
    g.A(f"s_lshl_b32 s{S_T0}, s{S_WAVE}, 5")
    g.A(f"v_add_u32 v{T}, s{S_T0}, v{T}")
    g.A(f"v_mul_u32_u24 v{V_WGU}, 3584, v{T}")
    g.A(f"v_and_b32 v{T}, 7, v{H_LANE}")
    g.A(f"v_lshl_add_u32 v{V_WGU}, v{T}, 4, v{V_WGU}")
    g.A(f"s_lshl_b32 s{S_T2}, s{S_K}, 7")
    g.A(f"s_sub_u32 s{S_X0+1}, {448*3584}, s{S_T2}")
    set_srd(g, SRD_A, P_WG, off_sreg=S_T2, nbytes_sreg=S_X0 + 1)
    set_srd(g, SRD_B, P_WU, off_sreg=S_T2, nbytes_sreg=S_X0 + 1)
    g.A(f"s_mul_i32 s{S_T2}, s{S_K}, {64*896}")
    g.A(f"s_sub_u32 s{S_X0+1}, {1792*896}, s{S_T2}")
    set_srd(g, SRD_C, P_WD, off_sreg=S_T2, nbytes_sreg=S_X0 + 1)
    woff128(V_WD)
    def gu_unit(it, st):
        dst = H_ST + 32 * st
        g.A("s_mov_b32 exec_lo, 0x00ff00ff"); g.A("s_mov_b32 exec_hi, 0x00ff00ff")
        unit_loads(g, dst, SRD_A, V_WGU, [e * 3584 + it * 128 * 3584 for e in range(8)], NT)
        g.A("s_mov_b32 exec_lo, 0xff00ff00"); g.A("s_mov_b32 exec_hi, 0xff00ff00")
        unit_loads(g, dst, SRD_B, V_WGU, [e * 3584 + it * 128 * 3584 for e in range(8)], NT)
        exec_all(g)
    def wd_unit(kb, st):
        unit_loads(g, H_ST + 32 * st, SRD_C, V_WD, [(kb * 32 + e) * 896 for e in range(8)], NT)
    gu_unit(0, 0); gu_unit(1, 1)
    g.A("s_waitcnt vmcnt(16)"); transpose_unit(g, H_ST, H_FR)
    gu_unit(2, 0)
    g.A("s_waitcnt vmcnt(16)"); transpose_unit(g, H_ST + 32, H_FR + 32)
    gu_unit(3, 1)
    g.A("s_waitcnt vmcnt(16)"); transpose_unit(g, H_ST, H_FR + 64)
    wd_unit(0, 0)
    g.A("s_waitcnt vmcnt(8)"); transpose_unit(g, H_ST + 32, H_FR + 96)
    wd_unit(1, 1)
    g.A("s_waitcnt vmcnt(8)"); transpose_unit(g, H_ST, 0, dst_acc=True, tmp=T)
    g.A("s_waitcnt vmcnt(0)"); transpose_unit(g, H_ST + 32, 32, dst_acc=True, tmp=T)
    FSH, FSC, FLD, FLN = 192, 200, 208, 224
    skip = g.lab("nosb")
    g.A(f"s_cmp_ge_u32 s{S_WAVE}, 2")
    g.A(f"s_cbranch_scc1 {skip}")
    g.A(f"s_mul_i32 s{S_X0+3}, s{S_B}, {1344*8}")
    g.A(f"s_add_u32 s{S_X0+3}, s{S_X0+3}, {WS_MOD + 672*8}")
    exec56(g)
    gather_shift_scale(g, cfg, S_X0 + 3, V_G32, FLD, FSH, FSC, T)
    exec_all(g)
    g.L(skip)
    g.L(nof)
    V_RO, V_CX, V_XR, V_GA, V_GB, V_X2 = 25, 26, 232, 234, 236, 238
    RL = 32
    S_CB, S_CC = S_X0 + 6, S_X0 + 7
    skipr = g.lab("nor0")
    g.A(f"s_and_b32 s{S_CB}, s{S_K}, 1")
    g.A(f"s_lshr_b32 s{S_T0}, s{S_K}, 3")
    g.A(f"s_lshl_b32 s{S_T0}, s{S_T0}, 7")
    g.A(f"s_lshr_b32 s{S_T1}, s{S_K}, 1")
    g.A(f"s_and_b32 s{S_T1}, s{S_T1}, 3")
    g.A(f"s_lshl_b32 s{S_T1}, s{S_T1}, 1")
    g.A(f"s_add_u32 s{S_CC}, s{S_T0}, s{S_T1}")
    g.A(f"v_and_b32 v{T}, 15, v{H_LANE}")
    g.A(f"v_lshlrev_b32 v{V_CX}, 3, v{T}")
    g.A(f"v_add_u32 v{V_CX}, s{S_CC}, v{V_CX}")
    g.A(f"v_lshrrev_b32 v{T+1}, 4, v{H_LANE}")
    g.A(f"v_lshlrev_b32 v{V_RO}, 13, v{T+1}")
    g.A(f"v_lshl_add_u32 v{V_RO}, v{T}, 4, v{V_RO}")
    g.A(f"v_cmp_gt_u32 vcc, 448, v{V_CX}")
    g.A(f"s_mov_b64 s[{S_MSK}:{S_MSK+1}], vcc")
    g.A(f"s_cmp_lt_u32 s{S_WAVE}, {cfg.RW0}")
    g.A(f"s_cbranch_scc1 {skipr}")
    g.A(f"s_mov_b64 exec, s[{S_MSK}:{S_MSK+1}]")
    set_srd(g, SRD_A, P_X, nbytes=1792)
    g.A(f"s_mul_i32 s{S_T0}, s{S_CB}, 896")
    g.A(f"v_lshlrev_b32 v{T+2}, 1, v{V_CX}")
    g.A(f"buffer_load_dword v{T+6}, v{T+2}, s[{SRD_A}:{SRD_A+3}], s{S_T0} offen")
    g.A(f"s_mul_i32 s{S_X0+8}, s{S_CB}, {1344*8}")
    g.A(f"s_add_u32 s{S_X0+8}, s{S_X0+8}, {WS_MOD + 896*4}")
    g.A(f"s_add_u32 s{S_X0+9}, s{S_X0+8}, {(2240-896)*4}")
    g.A(f"v_lshlrev_b32 v{T+3}, 2, v{V_CX}")
    def gl():
        g.A(f"buffer_load_dwordx2 {vr(T+8,2)}, v{T+3}, {WSR}, s{S_X0+8} offen sc1")
        g.A(f"buffer_load_dwordx2 {vr(T+10,2)}, v{T+3}, {WSR}, s{S_X0+9} offen sc1")
    poll_loop(g, cfg, gl, [T + 9, T + 11], T, sleep=1)
    unpack_pairs(g, [T + 6], [V_XR, V_XR + 1])
    unpack_pairs(g, [T + 8], [V_GA, V_GA + 1])
    unpack_pairs(g, [T + 10], [V_GB, V_GB + 1])
    exec_all(g)
    g.L(skipr)
    stamp(g, cfg, 5)
    if cfg.X_LOADONLY:
        g.A("s_endpgm")
    g.A(f"s_mul_i32 s{S_T1}, s{S_K}, 6")
    heads_wait(S_T1)
    stamp(g, cfg, 6)
    def rec_gather(base_const, nit, idle):
        g.A(f"s_lshl_b32 s{S_X0+5}, s{S_K}, 8")
        g.A(f"s_add_u32 s{S_X0+5}, s{S_X0+5}, {base_const}")
        for it in range(nit):
            g.A(f"s_add_u32 s{S_OFF+it}, s{S_X0+5}, {it*32768}")
        items = [((lambda it=it: g.A(f"buffer_load_dwordx4 {vr(RL + 4*it, 4)}, v{V_RO}, {WSR}, s{S_OFF+it} offen sc1")), [RL + 4*it + 1, RL + 4*it + 3]) for it in range(nit)]
        masked_poll(g, cfg, items, None, idle_sleep=idle)
        for o in (0, 2):
            for it in range(1, nit):
                g.A(f"v_add_f32 v{RL+o}, v{RL+o}, v{RL+4*it+o}")
        for swap in ("v_permlane16_swap_b32", "v_permlane32_swap_b32"):
            g.A(f"v_mov_b32 v{RL+1}, v{RL}")
            g.A(f"v_mov_b32 v{RL+3}, v{RL+2}")
            g.A("s_nop 1")
            g.A(f"{swap} v{RL}, v{RL+1}")
            g.A(f"{swap} v{RL+2}, v{RL+3}")
            g.A("s_nop 1")
            g.A(f"v_add_f32 v{RL}, v{RL}, v{RL+1}")
            g.A(f"v_add_f32 v{RL+2}, v{RL+2}, v{RL+3}")
        g.A(f"v_mov_b32 v{RL+1}, v{RL+2}")
    def resid(base_x, gate, out):
        bf16_round_pairs(g, [RL, RL + 1], T)
        g.A(f"v_mul_f32 v{RL}, v{RL}, v{gate}")
        g.A(f"v_mul_f32 v{RL+1}, v{RL+1}, v{gate+1}")
        bf16_round_pairs(g, [RL, RL + 1], T)
        g.A(f"v_add_f32 v{RL}, v{RL}, v{base_x}")
        g.A(f"v_add_f32 v{RL+1}, v{RL+1}, v{base_x+1}")
        g.A(f"v_cvt_pk_bf16_f32 v{T}, v{RL}, v{RL+1}")
        if out is not None:
            unpack_pairs(g, [T], [out, out + 1])
    skipr = g.lab("nor1")
    def stagger():
        dn = g.lab("stgd")
        g.A(f"s_cmp_eq_u32 s{S_WAVE}, {cfg.RW0}")
        g.A(f"s_cbranch_scc1 {dn}")
        g.A(f"s_sleep {cfg.STG}")
        g.L(dn)
    g.A(f"s_cmp_lt_u32 s{S_WAVE}, {cfg.RW0}")
    g.A(f"s_cbranch_scc1 {skipr}")
    stagger()
    rec_gather(WS_Y, 8, cfg.IDLE)
    stamp(g, cfg, 7)
    resid(V_XR, V_GA, V_X2)
    g.A(f"v_mov_b32 v{T+1}, s{S_TAG}")
    g.A(f"s_lshl_b32 s{S_T0}, s{S_K}, 7")
    g.A(f"s_add_u32 s{S_T0}, s{S_T0}, {WS_X2}")
    g.A(f"v_lshlrev_b32 v{T+2}, 3, v{H_LANE}")
    g.A(f"s_and_b32 exec_lo, s{S_MSK}, 0xffff")
    g.A("s_mov_b32 exec_hi, 0")
    for rep in range(NREP_X):
        g.A(f"buffer_store_dwordx2 {vr(T,2)}, v{T+2}, {WSR}, s{S_T0} offen sc1")
        if rep + 1 < NREP_X:
            g.A(f"s_add_u32 s{S_T0}, s{S_T0}, 4096")
    exec_all(g)
    g.L(skipr)
    stamp(g, cfg, 8)
    nof2 = g.lab("nof2")
    g.A(f"s_cmp_ge_u32 s{S_K}, 28")
    g.A(f"s_cbranch_scc1 {nof2}")
    skip = g.lab("noln2")
    g.A(f"s_cmp_ge_u32 s{S_WAVE}, 2")
    g.A(f"s_cbranch_scc1 {skip}")
    g.A(f"s_and_b32 s{S_X0+3}, s{S_K}, {NREP_X-1}")
    g.A(f"s_lshl_b32 s{S_X0+3}, s{S_X0+3}, 12")
    g.A(f"s_lshl_b32 s{S_T0}, s{S_B}, 7")
    g.A(f"s_add_u32 s{S_X0+3}, s{S_X0+3}, s{S_T0}")
    g.A(f"s_add_u32 s{S_X0+3}, s{S_X0+3}, {WS_X2}")
    g.A(f"v_lshrrev_b32 v{T+2}, 4, v{H_LANE}")
    g.A(f"v_lshlrev_b32 v{T+2}, 10, v{T+2}")
    g.A(f"v_and_b32 v{T+3}, 15, v{H_LANE}")
    g.A(f"v_lshl_add_u32 v27, v{T+3}, 3, v{T+2}")
    g.A(f"s_mov_b32 s{S_X0+8}, -1")
    g.A(f"s_mov_b32 s{S_X0+9}, 0x00ffffff")
    items = [((lambda p=p: g.A(f"buffer_load_dwordx2 {vr(FLD + 2*p, 2)}, v27, {WSR}, s{S_X0+3} offen offset:{256*p} sc1")), [FLD + 2*p + 1]) for p in range(4)]
    masked_poll(g, cfg, items, S_X0 + 8, idle_sleep=cfg.IDLE)
    exec_all(g)
    lazy(g, cfg, 0, 2)
    if cfg.LAZY != 2: stamp(g, cfg, 9)
    XF = FLD + 8
    unpack_pairs(g, [FLD, FLD + 2, FLD + 4, FLD + 6], [XF + e for e in range(8)])
    g.A(f"v_cmp_gt_u32 vcc, 56, v{H_LANE}")
    g.A("s_nop 1")
    for e in range(8):
        g.A(f"v_cndmask_b32 v{XF+e}, 0, v{XF+e}, vcc")
    ln_normalize(g, XF, FLN, T)
    exec56(g)
    modulate_write(g, FLN, FSH, FSC, V_ACTW, L_ACTH, T)
    exec_all(g)
    g.L(skip)
    g.A("s_waitcnt lgkmcnt(0)")
    g.A("s_barrier")
    lazy(g, cfg, 1, 2)
    g.A(f"v_lshrrev_b32 v{T}, 2, v{H_LANE}")
    g.A(f"v_and_b32 v{T}, 1, v{T}")
    g.A(f"v_mul_u32_u24 v{T+1}, {ROWB}, v{T}")
    g.A(f"v_lshrrev_b32 v{T}, 4, v{H_LANE}")
    g.A(f"v_lshl_add_u32 v{T+1}, v{T}, 4, v{T+1}")
    g.A(f"s_lshl_b32 s{S_T0}, s{S_WAVE}, 6")
    g.A(f"v_add_u32 v{T+1}, s{S_T0}, v{T+1}")
    AFF = FLD
    for it in range(4):
        g.A(f"ds_read_b128 {vr(AFF + 4*it, 4)}, v{T+1} offset:{L_ACTH + it*256}")
    for it in range(3):
        g.A(f"s_waitcnt lgkmcnt({3-it})")
        mfma8(g, AFF + 4 * it, H_FR + 32 * it, it == 0)
    sk = g.lab("f4")
    g.A("s_waitcnt lgkmcnt(0)")
    g.A(f"s_cmp_ge_u32 s{S_WAVE}, 2")
    g.A(f"s_cbranch_scc1 {sk}")
    mfma8(g, AFF + 12, H_FR + 96, False)
    g.L(sk)
    g.A("s_nop 7")
    red_write(g, 20)
    g.A("s_waitcnt lgkmcnt(0)")
    g.A("s_barrier")
    lazy(g, cfg, 2, 2)
    sk = g.lab("f5")
    g.A(f"s_cmp_lg_u32 s{S_WAVE}, 0")
    g.A(f"s_cbranch_scc1 {sk}")
    g.A(f"v_add_u32 v{T}, 32, v21")
    RD2 = FLD
    red_read(g, 21, T, RD2)
    bf16_round_pairs(g, [RD2, RD2 + 1], T)
    bf16_round_pairs(g, [RD2 + 8, RD2 + 9], T)
    g.A(f"s_mov_b32 s{S_T0}, {f2u(-LOG2E):#x}")
    for o in range(2):
        g.A(f"v_mul_f32 v{RD2+o}, s{S_T0}, v{RD2+o}")
    for o in range(2):
        g.A(f"v_exp_f32 v{RD2+o}, v{RD2+o}")
    g.A("s_nop 0")
    for o in range(2):
        g.A(f"v_add_f32 v{RD2+o}, 1.0, v{RD2+o}")
    for o in range(2):
        g.A(f"v_rcp_f32 v{RD2+o}, v{RD2+o}")
    g.A("s_nop 0")
    bf16_round_pairs(g, [RD2, RD2 + 1], T)
    for o in range(2):
        g.A(f"v_mul_f32 v{RD2+o}, v{RD2+o}, v{RD2+8+o}")
    g.A(f"v_cvt_pk_bf16_f32 v{T}, v{RD2}, v{RD2+1}")
    g.A(f"v_lshrrev_b32 v{T+1}, 5, v{H_LANE}")
    g.A(f"v_mul_u32_u24 v{T+1}, {ROWO}, v{T+1}")
    g.A(f"v_and_b32 v{T+2}, 31, v{H_LANE}")
    g.A(f"v_lshl_add_u32 v{T+1}, v{T+2}, 2, v{T+1}")
    g.A(f"ds_write_b32 v{T+1}, v{T} offset:{L_ACTO}")
    g.L(sk)
    g.A("s_waitcnt lgkmcnt(0)")
    g.A("s_barrier")
    lazy(g, cfg, 3, 2)
    g.A(f"v_lshrrev_b32 v{T}, 2, v{H_LANE}")
    g.A(f"v_and_b32 v{T}, 1, v{T}")
    g.A(f"v_mul_u32_u24 v{T+1}, {ROWO}, v{T}")
    g.A(f"v_lshrrev_b32 v{T}, 4, v{H_LANE}")
    g.A(f"v_lshl_add_u32 v{T+1}, v{T}, 4, v{T+1}")
    for kb in range(2):
        g.A(f"ds_read_b128 {vr(AFF + 4*kb, 4)}, v{T+1} offset:{L_ACTO + kb*64}")
    for kb in range(2):
        g.A(f"s_waitcnt lgkmcnt({1-kb})")
        mfma8(g, AFF + 4 * kb, 32 * kb, kb == 0, frag_acc=True)
    publish_rec(WS_DN, S_K)
    lazy(g, cfg, 4, 2)
    stamp(g, cfg, 10)
    lazy_flush(g, cfg, 5, 21, 2)
    g.L(nof2)
    g.A(f"s_cmp_lt_u32 s{S_WAVE}, {cfg.RW0}")
    g.A("s_cbranch_scc1 L_exit")
    stagger()
    rec_gather(WS_DN, 7, 0)
    stamp(g, cfg, 11)
    resid(V_X2, V_GB, None)
    set_srd(g, SRD_A, P_OUT, nbytes=1792)
    g.A(f"s_mul_i32 s{S_T0}, s{S_CB}, 896")
    g.A(f"v_lshlrev_b32 v{T+2}, 1, v{V_CX}")
    g.A(f"s_and_b32 exec_lo, s{S_MSK}, 0xffff")
    g.A("s_mov_b32 exec_hi, 0")
    g.A(f"buffer_store_dword v{T}, v{T+2}, s[{SRD_A}:{SRD_A+3}], s{S_T0} offen")
    dbgt(g, cfg, 0, 28, 224, cfg.RW0)
    dbgt(g, cfg, 11, 28, 240, cfg.RW0)
    g.A(f"s_cmp_lg_u32 s{S_K}, 0")
    g.A("s_cbranch_scc1 L_exit")
    g.A(f"s_cmp_lg_u32 s{S_WAVE}, {cfg.RW0}")
    g.A("s_cbranch_scc1 L_exit")
    g.A("s_mov_b64 exec, 1")
    g.A(f"v_mov_b32 v{T+3}, s{S_TAG}")
    g.A(f"v_mov_b32 v{T+4}, 0")
    g.A(f"buffer_store_dword v{T+3}, v{T+4}, {WSR}, 0 offen sc1")
    stamp(g, cfg, 12)

def generate(cfg, header_src=None):
    g = G()
    g.A(f"s_cmp_ge_u32 s{S_WG}, {cfg.NSTREAM + cfg.NHELP}")
    g.A("s_cbranch_scc1 L_exit")
    if cfg.STAMPS:
        g.A("s_memrealtime s[84:85]")
    if cfg.DBGT:
        g.A("s_memrealtime s[92:93]")
    g.A("s_load_dwordx16 s[16:31], s[0:1], 0")
    g.A("s_load_dwordx8 s[32:39], s[0:1], 64")
    g.A("s_load_dwordx4 s[40:43], s[0:1], 96")
    g.A("v_lshrrev_b32 v1, 6, v0")
    g.A("v_and_b32 v0, 63, v0")
    g.A(f"s_cmp_lt_u32 s{S_WG}, {cfg.NSTREAM}")
    g.A(f"v_readfirstlane_b32 s{S_WAVE}, v1")
    g.A("s_cbranch_scc0 L_helper0")
    g.A("s_nop 2")
    cfg.STAMP_V = 116
    emit_streamer(g, cfg)
    cfg.STAMP_V = 28
    g.L("L_helper0")
    g.A("v_mov_b32 v2, 0")
    g.A("s_waitcnt lgkmcnt(0)")
    set_srd(g, SRD_WS, P_WS, nbytes=WS_SIZE)
    g.A(f"buffer_load_dword v1, v2, s[{SRD_WS}:{SRD_WS+3}], 0 offen sc1")
    entry_stamp(g, cfg)
    emit_helper(g, cfg)
    g.L("L_exit")
    g.A("s_endpgm")
    g.L("L_codeend")
    hdr = open("adaLN_cond__mha_block_cached__glu_gated_glu__decode.s.ref").read().split("\n")
    head = []
    for line in hdr:
        if line.startswith("; @launch"):
            head.append(f"; @launch grid=({cfg.NSTREAM + cfg.NHELP},1,1) block=(256,1,1) lds={LDS_BYTES}")
            break
        head.append(line)
    txt = "\n".join(head) + "\n"
    txt += '.amdgcn_target "amdgcn-amd-amdhsa--gfx950"\n.text\n'
    txt += f".globl {KNAME}\n.p2align 8\n.type {KNAME},@function\n{KNAME}:\n"
    txt += "\n".join(g.o) + "\n"
    txt += f""".section .rodata,"a"
.p2align 6
.amdhsa_kernel {KNAME}
  .amdhsa_next_free_vgpr 512
  .amdhsa_next_free_sgpr 102
  .amdhsa_accum_offset 256
  .amdhsa_group_segment_fixed_size 0
  .amdhsa_kernarg_size 112
  .amdhsa_user_sgpr_count 2
  .amdhsa_user_sgpr_kernarg_segment_ptr 1
  .amdhsa_system_sgpr_workgroup_id_x 1
  .amdhsa_float_denorm_mode_32 3
.end_amdhsa_kernel
"""
    return txt

if __name__ == "__main__":
    import argparse
    ap = argparse.ArgumentParser()
    ap.add_argument("-o", default="k.s")
    ap.add_argument("--stamps", action="store_true")
    ap.add_argument("--set", nargs="*", default=[])
    a = ap.parse_args()
    cfg = Cfg()
    cfg.STAMPS = a.stamps
    for kv in a.set:
        k, v = kv.split("=")
        if isinstance(getattr(cfg, k), str): v = (" " + v.replace("_", " ")) if v else ""
        setattr(cfg, k, type(getattr(cfg, k))(v) if not isinstance(getattr(cfg, k), bool) else v in ("1", "True"))
    open(a.o, "w").write(generate(cfg))
    print("wrote", a.o)
```

```python
import sys

KNAME = "adaLN_cond__mha_block_cached__glu_gated_glu__decode_kernel"

class Cfg:
    NS = 6
    NSTREAM = 192
    NHELP = 64
    P = 12
    DMIN = 4
    W1 = 16
    NG = 22
    STAMPS = False
    POLLMAX = 200000
    HEADS_STEP = 41
    NT = " nt"
    NTW = " nt"
    CODEPF = True
    STAMP_V = 28
    LAZY = 0
    OUTF = ""
    X_SKIPFW = False
    X_SKIPWO = False
    POLL_VT = 4
    WCONT = False
    BAL = True
    DBGT = False
    RPK = 3
    RPGAP = 7
    RW0 = 2
    IDLE = 8
    STG = 10
    RPGAP2 = 10
    X_LOADONLY = False
    HSLEEP = 16
    CAPG = 4
    QBACK = 1
    SHRINK = 2
    X_NOHELP = False
    X_NOEPIW = False
    CODEPF2 = False

WS_EPOCH = 0
WS_HEADS = 0x1000
WS_MOD = 0x4000
WS_QB = 0xA000
WS_X2 = 0x12000
NREP_X = 4
WS_PART = 0x20000
WS_Y = 0x100000
WS_DN = 0x140000
WS_STAMP = 0x180000
WS_SIZE = 0x200000

ROWB = 1152
L_ACTS = 0
L_ACTH = 2 * ROWB
L_ACTO = 4 * ROWB
ROWO = 320
L_RED = 4 * ROWB + 2 * ROWO + 128
L_RED = (L_RED + 255) // 256 * 256
LDS_BYTES = L_RED + 8192
L_OW = 0
L_ML = 4096

LOG2E = 1.4426950408889634

import struct
def f2u(x):
    return struct.unpack("<I", struct.pack("<f", x))[0]

class G:
    def __init__(self):
        self.o = []
        self.nlab = 0
    def A(self, s):
        self.o.append("    " + s)
    def L(self, name):
        self.o.append(name + ":")
    def lab(self, base):
        self.nlab += 1
        return f"L_{base}_{self.nlab}"
    def C(self, s):
        self.o.append("    ; " + s)

def vr(b, n=1):
    return f"v{b}" if n == 1 else f"v[{b}:{b+n-1}]"
def ar(b, n=1):
    return f"a{b}" if n == 1 else f"a[{b}:{b+n-1}]"
def sr(b, n=1):
    return f"s{b}" if n == 1 else f"s[{b}:{b+n-1}]"

S_WG, S_WAVE, S_ROLE = 2, 3, 4
S_T0, S_T1, S_T2 = 5, 6, 7
SRD_A, SRD_B = 8, 12
P_X, P_K, P_V, P_WQ, P_WO, P_BX, P_WG, P_WU, P_WD, P_C, P_WMOD, P_OUT, P_DBG, P_WS = 16, 18, 20, 22, 24, 26, 28, 30, 32, 34, 36, 38, 40, 42
S_TAG, S_CNT = 44, 45
S_SAVE = 46
SRD_C = 48
SRD_WS = 52
S_OFF = 56
S_SEL0, S_SEL1 = 64, 65
S_MSK = 66
S_X0 = 74
S_STAMP = 88
S_STB = 87
S_MISS = 16
S_PF = 46

def stamp(g, cfg, idx):
    if not cfg.STAMPS:
        return
    g.A(f"s_memrealtime s[{S_STAMP}:{S_STAMP+1}]")
    g.A("s_waitcnt lgkmcnt(0)")
    g.A(f"s_mov_b64 s[100:101], exec")
    g.A("s_mov_b64 exec, 1")
    sv = cfg.STAMP_V
    g.A(f"v_mov_b32 v{sv}, s{S_STAMP}")
    g.A(f"v_mov_b32 v{sv+1}, s{S_STAMP+1}")
    g.A(f"v_mov_b32 v{sv+2}, s{S_STB}")
    g.A(f"buffer_store_dwordx2 v[{sv}:{sv+1}], v{sv+2}, s[{SRD_WS}:{SRD_WS+3}], 0 offen offset:{idx*8}")
    g.A(f"s_mov_b64 exec, s[100:101]")

def lazy(g, cfg, i, mode=1):
    if cfg.STAMPS and cfg.LAZY == mode:
        g.A(f"s_memrealtime s[{90+2*i}:{91+2*i}]")
def lazy_flush(g, cfg, n, idx0, mode=1):
    if not (cfg.STAMPS and cfg.LAZY == mode):
        return
    g.A("s_waitcnt lgkmcnt(0)")
    g.A(f"s_mov_b64 s[100:101], exec")
    g.A("s_mov_b64 exec, 1")
    sv = cfg.STAMP_V
    for i in range(n):
        g.A(f"v_mov_b32 v{sv}, s{90+2*i}")
        g.A(f"v_mov_b32 v{sv+1}, s{91+2*i}")
        g.A(f"v_mov_b32 v{sv+2}, s{S_STB}")
        g.A(f"buffer_store_dwordx2 v[{sv}:{sv+1}], v{sv+2}, s[{SRD_WS}:{SRD_WS+3}], 0 offen offset:{(idx0+i)*8}")
        g.A("s_nop 1")
    g.A(f"s_mov_b64 exec, s[100:101]")

def set_srd(g, srd, ptr, off_sreg=None, nbytes=None, nbytes_sreg=None):
    if off_sreg is None:
        g.A(f"s_mov_b32 s{srd}, s{ptr}")
        g.A(f"s_mov_b32 s{srd+1}, s{ptr+1}")
    else:
        g.A(f"s_add_u32 s{srd}, s{ptr}, s{off_sreg}")
        g.A(f"s_addc_u32 s{srd+1}, s{ptr+1}, 0")
    if nbytes_sreg is not None:
        g.A(f"s_mov_b32 s{srd+2}, s{nbytes_sreg}")
    else:
        g.A(f"s_mov_b32 s{srd+2}, {nbytes}")
    g.A(f"s_mov_b32 s{srd+3}, 0x20000")

def code_prefetch(g, cfg, start_label, end_label, backward, voff, vdst, ninstr=1, per_instr=8192):
    if not cfg.CODEPF:
        return
    here = g.lab("pc")
    g.A(f"s_getpc_b64 s[{S_PF}:{S_PF+1}]")
    g.L(here)
    if backward:
        g.A(f"s_sub_u32 s{S_PF}, s{S_PF}, {here}-{start_label}")
        g.A(f"s_subb_u32 s{S_PF+1}, s{S_PF+1}, 0")
    else:
        g.A(f"s_add_u32 s{S_PF}, s{S_PF}, {start_label}-{here}")
        g.A(f"s_addc_u32 s{S_PF+1}, s{S_PF+1}, 0")
    for k in range(ninstr):
        skip = g.lab("nopf")
        g.A(f"s_mov_b32 s{S_T1}, {end_label}-{start_label}")
        g.A(f"v_cmp_gt_u32 vcc, s{S_T1}, v{voff}")
        g.A("s_nop 0")
        g.A("s_and_b64 exec, exec, vcc")
        g.A(f"s_cbranch_execz {skip}")
        g.A(f"global_load_dword v{vdst}, v{voff}, s[{S_PF}:{S_PF+1}]")
        g.L(skip)
        g.A("s_mov_b64 exec, -1")
        if k + 1 < ninstr:
            g.A(f"v_add_u32 v{voff}, {per_instr}, v{voff}")

def entry_stamp(g, cfg):
    if not cfg.STAMPS:
        return
    g.A(f"s_lshl_b32 s{S_STB}, s{S_WG}, 2")
    g.A(f"s_add_u32 s{S_STB}, s{S_STB}, s{S_WAVE}")
    g.A(f"s_lshl_b32 s{S_STB}, s{S_STB}, 8")
    g.A(f"s_add_u32 s{S_STB}, s{S_STB}, {WS_STAMP}")
    g.A(f"s_mov_b64 s[100:101], exec")
    g.A("s_mov_b64 exec, 1")
    sv = cfg.STAMP_V
    g.A(f"v_mov_b32 v{sv}, s84")
    g.A(f"v_mov_b32 v{sv+1}, s85")
    g.A(f"v_mov_b32 v{sv+2}, s{S_STB}")
    g.A(f"buffer_store_dwordx2 v[{sv}:{sv+1}], v{sv+2}, s[{SRD_WS}:{SRD_WS+3}], 0 offen offset:0")
    g.A(f"s_mov_b64 exec, s[100:101]")

def dbgt(g, cfg, idx, vtmp, cond_wg=None, cond_wave=None):
    if not cfg.DBGT:
        return
    sk = g.lab("dbgsk")
    if cond_wg is not None:
        g.A(f"s_cmp_lg_u32 s{S_WG}, {cond_wg}"); g.A(f"s_cbranch_scc1 {sk}")
    if cond_wave is not None:
        g.A(f"s_cmp_lg_u32 s{S_WAVE}, {cond_wave}"); g.A(f"s_cbranch_scc1 {sk}")
    g.A("s_memrealtime s[98:99]")
    g.A("s_waitcnt lgkmcnt(0)")
    g.A("s_sub_u32 s98, s98, s92")
    g.A("s_mov_b64 s[100:101], exec")
    g.A("s_mov_b64 exec, 1")
    g.A(f"v_mov_b32 v{vtmp}, s98")
    g.A(f"v_mov_b32 v{vtmp+1}, {idx*4}")
    g.A(f"global_store_dword v{vtmp+1}, v{vtmp}, s[{P_DBG}:{P_DBG+1}]")
    g.A("s_mov_b64 exec, s[100:101]")
    g.L(sk)

def entry_prefetch(g, cfg, vtmp):
    if cfg.CODEPF:
        g.A(f"s_lshl_b32 s{S_T0}, s{S_WAVE}, 13")
        g.A(f"v_lshlrev_b32 v{vtmp}, 7, v0")
        g.A(f"v_add_u32 v{vtmp}, s{S_T0}, v{vtmp}")
        code_prefetch(g, cfg, KNAME, 'L_codeend', True, vtmp, 31, ninstr=2 if cfg.CODEPF2 else 1, per_instr=32768)

def make_tag(g, vreg):
    g.A(f"v_readfirstlane_b32 s{S_TAG}, v{vreg}")
    g.A("s_nop 3")
    g.A(f"s_mul_i32 s{S_TAG}, s{S_TAG}, 0x19660d")
    g.A(f"s_add_u32 s{S_TAG}, s{S_TAG}, 0x3c6ef35f")

def check_tags(g, tagregs, tmp, ok_label, set_vcc_only=False):
    g.A(f"v_xor_b32 v{tmp}, s{S_TAG}, v{tagregs[0]}")
    for r in tagregs[1:]:
        g.A(f"v_xor_b32 v{tmp+1}, s{S_TAG}, v{r}")
        g.A(f"v_or_b32 v{tmp}, v{tmp}, v{tmp+1}")
    g.A(f"v_cmp_ne_u32 vcc, 0, v{tmp}")
    g.A("s_nop 1")
    g.A(f"s_cbranch_vccz {ok_label}")

def poll_loop(g, cfg, emit_loads, tagregs, tmp, sleep=1):
    top = g.lab("poll"); ok = g.lab("pollok")
    g.A(f"s_mov_b32 s{S_CNT}, 0")
    g.L(top)
    emit_loads()
    g.A("s_waitcnt vmcnt(0)")
    check_tags(g, tagregs, tmp, ok)
    if sleep:
        g.A(f"s_sleep {sleep}")
    g.A(f"s_add_u32 s{S_CNT}, s{S_CNT}, 1")
    g.A(f"s_cmp_lt_u32 s{S_CNT}, {cfg.POLLMAX}")
    g.A(f"s_cbranch_scc1 {top}")
    g.L(ok)

def rolling_poll(g, cfg, emit_loads, nloads, nregs, tag_offs, sets, res, tmp, gap, copy_offs=None):
    K = len(sets)
    if copy_offs is None:
        copy_offs = [r for r in range(nregs) if r not in tag_offs]
    top = g.lab("rp"); done = g.lab("rpdone")
    oks = [g.lab(f"rpok{i}") for i in range(K)]
    g.A(f"s_mov_b32 s{S_CNT}, 0")
    for i in range(K):
        emit_loads(sets[i])
        if i + 1 < K and gap:
            g.A(f"s_sleep {gap}")
    g.L(top)
    for i in range(K):
        g.A(f"s_waitcnt vmcnt({nloads*(K-1)})")
        check_tags(g, [sets[i] + o for o in tag_offs], tmp, oks[i])
        emit_loads(sets[i])
    g.A(f"s_add_u32 s{S_CNT}, s{S_CNT}, 1")
    g.A(f"s_cmp_lt_u32 s{S_CNT}, {cfg.POLLMAX}")
    g.A(f"s_cbranch_scc1 {top}")
    for i in range(K - 1, -1, -1):
        g.L(oks[i])
        for r in copy_offs:
            g.A(f"v_mov_b32 v{res+r}, v{sets[i]+r}")
        if i > 0:
            g.A(f"s_branch {done}")
    g.L(done)

def masked_poll(g, cfg, items, base, idle_sleep=0, busy_sleep=0, trace=None):
    n = len(items)
    assert n <= 8
    bs = f"s[{base}:{base+1}]" if base is not None else "-1"
    top = g.lab("mp"); done = g.lab("mpdone")
    for i in range(n):
        g.A(f"s_mov_b64 s[{S_MISS+2*i}:{S_MISS+2*i+1}], {bs}")
    g.A(f"s_mov_b32 s{S_CNT}, 0")
    g.L(top)
    if trace is not None and cfg.STAMPS and cfg.LAZY == 3:
        g.A("s_waitcnt lgkmcnt(0)")
        g.A("s_mov_b64 s[90:91], s[92:93]")
        g.A("s_mov_b64 s[92:93], s[94:95]")
        g.A("s_memrealtime s[94:95]")
    for i, (ld, tags) in enumerate(items):
        sk = g.lab("mpsk")
        g.A(f"s_mov_b64 exec, s[{S_MISS+2*i}:{S_MISS+2*i+1}]")
        g.A(f"s_cbranch_execz {sk}")
        ld()
        g.L(sk)
    g.A(f"s_mov_b64 exec, {bs}")
    g.A("s_waitcnt vmcnt(0)")
    VT = cfg.POLL_VT
    for i, (ld, tags) in enumerate(items):
        if len(tags) == 2:
            g.A(f"v_bitop3_b32 v{VT+i}, v{tags[0]}, v{tags[1]}, s{S_TAG} bitop3:0x7e")
        elif len(tags) == 3:
            g.A(f"v_bitop3_b32 v{VT+i}, v{tags[0]}, v{tags[1]}, s{S_TAG} bitop3:0x7e")
            g.A(f"v_xor_b32 v{VT+8}, s{S_TAG}, v{tags[2]}")
            g.A(f"v_or_b32 v{VT+i}, v{VT+i}, v{VT+8}")
    for i, (ld, tags) in enumerate(items):
        if len(tags) == 1:
            g.A(f"v_cmp_ne_u32 s[{S_MISS+2*i}:{S_MISS+2*i+1}], s{S_TAG}, v{tags[0]}")
        else:
            g.A(f"v_cmp_ne_u32 s[{S_MISS+2*i}:{S_MISS+2*i+1}], 0, v{VT+i}")
    if n == 1:
        g.A(f"s_cmp_eq_u64 s[{S_MISS}:{S_MISS+1}], 0")
        g.A(f"s_cbranch_scc1 {done}")
    else:
        g.A(f"s_or_b64 s[{S_SAVE}:{S_SAVE+1}], s[{S_MISS}:{S_MISS+1}], s[{S_MISS+2}:{S_MISS+3}]")
        for i in range(2, n):
            g.A(f"s_or_b64 s[{S_SAVE}:{S_SAVE+1}], s[{S_SAVE}:{S_SAVE+1}], s[{S_MISS+2*i}:{S_MISS+2*i+1}]")
        g.A(f"s_cbranch_scc0 {done}")
    if idle_sleep:
        busy = g.lab("mpbusy")
        g.A(f"s_mov_b64 s[{S_SAVE}:{S_SAVE+1}], s[{S_MISS}:{S_MISS+1}]")
        for i in range(1, n):
            g.A(f"s_and_b64 s[{S_SAVE}:{S_SAVE+1}], s[{S_SAVE}:{S_SAVE+1}], s[{S_MISS+2*i}:{S_MISS+2*i+1}]")
        g.A(f"s_cmp_eq_u64 s[{S_SAVE}:{S_SAVE+1}], {bs}" if base is not None else f"s_cmp_eq_u64 s[{S_SAVE}:{S_SAVE+1}], -1")
        g.A(f"s_cbranch_scc0 {busy}")
        g.A(f"s_sleep {idle_sleep}")
        g.L(busy)
    if busy_sleep:
        g.A(f"s_sleep {busy_sleep}")
    g.A(f"s_add_u32 s{S_CNT}, s{S_CNT}, 1")
    g.A(f"s_cmp_lt_u32 s{S_CNT}, {cfg.POLLMAX}")
    g.A(f"s_cbranch_scc1 {top}")
    g.L(done)
    g.A(f"s_mov_b64 exec, {bs}")
    if trace is not None and cfg.STAMPS and cfg.LAZY == 3:
        g.A("s_memrealtime s[96:97]")
        g.A("s_waitcnt lgkmcnt(0)")
        g.A(f"s_mov_b32 s98, s{S_CNT}")
        g.A("s_mov_b32 s99, 0")
        lazy_flush(g, cfg, 5, trace, 3)
        g.A(f"s_mov_b64 exec, {bs}")

def bf16_round_pairs(g, regs, tmp):
    for i in range(0, len(regs), 2):
        a, b = regs[i], regs[i + 1]
        g.A(f"v_cvt_pk_bf16_f32 v{tmp}, v{a}, v{b}")
        g.A(f"v_lshlrev_b32 v{a}, 16, v{tmp}")
        g.A(f"v_and_b32 v{b}, 0xffff0000, v{tmp}")

def unpack_pairs(g, src, dst):
    for i, s in enumerate(src):
        g.A(f"v_lshlrev_b32 v{dst[2*i]}, 16, v{s}")
        g.A(f"v_and_b32 v{dst[2*i+1]}, 0xffff0000, v{s}")

def wave_sum(g, regs, sdst, op="add"):
    ins = "v_add_f32_dpp" if op == "add" else "v_max_f32_dpp"
    steps = ["row_shr:1", "row_shr:2", "row_shr:4", "row_shr:8"]
    for st in steps:
        for r in regs:
            if op == "add":
                g.A(f"{ins} v{r}, v{r}, v{r} {st} row_mask:0xf bank_mask:0xf bound_ctrl:0")
            else:
                g.A(f"{ins} v{r}, v{r}, v{r} {st} row_mask:0xf bank_mask:0xf")
        if len(regs) < 3:
            g.A(f"s_nop {2 - len(regs)}")
    for st, rm in (("row_bcast:15", "0xa"), ("row_bcast:31", "0xc")):
        for r in regs:
            g.A(f"{ins} v{r}, v{r}, v{r} {st} row_mask:{rm} bank_mask:0xf")
        g.A(f"s_nop {max(0, 2 - len(regs))}")
    for r, s in zip(regs, sdst):
        g.A(f"v_readlane_b32 s{s}, v{r}, 63")

def emit_streamer(g, cfg):
    NG, P, DMIN, W1 = cfg.NG, cfg.P, cfg.DMIN, cfg.W1
    NT = cfg.NT
    V_LANE = 0
    V_OFFK, V_OFFV = 1, 2
    V_M = 3
    V_EP = 7
    V_BQ = 8
    V_S = 40
    V_MAX, V_L = 62, 63
    V_ACC = 64
    V_O = 72
    V_B = 80
    V_T = 88
    V_QL = 96
    V_QOFF = 112
    V_RING2 = 128
    R = P * 8
    NA = min(R, 64)
    assert V_RING2 + 4 * (R - NA) <= 256
    def slot(n):
        s = n % R
        if s < 64:
            return ar(4 * s, 4)
        return vr(V_RING2 + 4 * (s - 64), 4)

    g.L("L_stream")
    g.C("bh = w/6, s = w%6; wave W = 4s+wave owns 4-key sub-groups [W*256/3, (W+1)*256/3) of its (b,h)")
    g.A(f"s_mul_hi_u32 s{S_T0}, s{S_WG}, 0x2aaaaaab")
    g.A(f"s_mul_i32 s{S_T1}, s{S_T0}, 6")
    g.A(f"s_sub_u32 s{S_T1}, s{S_WG}, s{S_T1}")
    BAL = cfg.BAL and not cfg.WCONT
    if cfg.WCONT:
        g.A(f"s_lshl_b32 s{S_T1}, s{S_T1}, 2")
        g.A(f"s_add_u32 s{S_T1}, s{S_T1}, s{S_WAVE}")
    g.A(f"s_lshl_b32 s{S_T2}, s{S_T1}, {10 if BAL else 8}")
    g.A(f"s_mul_hi_u32 s{S_X0}, s{S_T2}, 0x55555556")
    g.A(f"s_add_u32 s{S_T2}, s{S_T2}, {1024 if BAL else 256}")
    g.A(f"s_mul_hi_u32 s{S_X0+1}, s{S_T2}, 0x55555556")
    g.A(f"s_sub_u32 s{S_X0+1}, s{S_X0+1}, s{S_X0}")
    g.A(f"s_lshl_b32 s{S_X0+2}, s{S_T0}, 22")
    SH = 11 if (cfg.WCONT or BAL) else 13
    g.A(f"s_lshl_b32 s{S_X0+3}, s{S_X0}, {SH}")
    g.A(f"s_add_u32 s{S_X0+2}, s{S_X0+2}, s{S_X0+3}")
    g.A(f"s_lshl_b32 s{S_X0+3}, s{S_X0+1}, {SH}")
    S_BH = S_X0 + 4
    g.A(f"s_mov_b32 s{S_BH}, s{S_T0}")
    V_BIAS = 113
    V_LW, V_MLW, V_ZERO, V_LR, V_GO = 114, 115, 119, 120, 121
    S_DH, S_PREC = 66, 86
    T = V_T
    g.A(f"v_lshrrev_b32 v{T}, 2, v{V_LANE}")
    g.A(f"v_and_b32 v{T}, 3, v{T}")
    g.A(f"v_lshlrev_b32 v{V_OFFK}, 9, v{T}")
    g.A(f"v_lshrrev_b32 v{T+1}, 4, v{V_LANE}")
    g.A(f"v_lshl_add_u32 v{V_OFFK}, v{T+1}, 6, v{V_OFFK}")
    g.A(f"v_and_b32 v{T+2}, 3, v{V_LANE}")
    g.A(f"v_lshl_add_u32 v{V_OFFK}, v{T+2}, 4, v{V_OFFK}")
    if not cfg.WCONT:
        g.A(f"s_lshl_b32 s{S_T1}, s{S_WAVE}, 13")
        g.A(f"v_add_u32 v{V_OFFK}, s{S_T1}, v{V_OFFK}")
    g.A("s_waitcnt lgkmcnt(0)")
    set_srd(g, SRD_A, P_K, off_sreg=S_X0 + 2, nbytes_sreg=S_X0 + 3)

    S_SO = S_OFF
    S_LAST, S_N2 = S_X0 + 9, S_X0 + 10
    def nl(gi):
        return 4 if (BAL and gi % NG == NG - 1) else 8
    def issue_group(gi):
        isv = gi >= NG
        i = gi - NG if isv else gi
        srd = SRD_B if isv else SRD_A
        voff = V_OFFV if isv else V_OFFK
        if BAL and i == NG - 1:
            for a in range(2):
                if a == 1:
                    g.A(f"s_mov_b64 exec, s[{S_N2}:{S_N2+1}]")
                for dh in range(2):
                    n = gi * 8 + a * 2 + dh
                    g.A(f"buffer_load_dwordx4 {slot(n)}, v{voff}, s[{srd}:{srd+3}], s{S_LAST} offen offset:{a*2048 + dh*256}{NT}")
            g.A("s_mov_b64 exec, -1")
            return
        for half in range(2):
            g.A(f"s_mov_b32 s{S_SO+half}, {i*(8192 if cfg.WCONT else 32768) + half*4096}")
        for a in range(4):
            for dh in range(2):
                n = gi * 8 + a * 2 + dh
                imm = (a & 1) * 2048 + dh * 256
                g.A(f"buffer_load_dwordx4 {slot(n)}, v{voff}, s[{srd}:{srd+3}], s{S_SO + (a >> 1)} offen offset:{imm}{NT}")

    issue_group(0)
    issue_group(1)
    set_srd(g, SRD_WS, P_WS, nbytes=WS_SIZE)
    g.A(f"v_mov_b32 v{T+4}, 0")
    g.A(f"buffer_load_dword v{V_EP}, v{T+4}, s[{SRD_WS}:{SRD_WS+3}], 0 offen sc1")
    entry_stamp(g, cfg)
    stamp(g, cfg, 1)
    dbgt(g, cfg, 1, 116, 0, 0)
    entry_prefetch(g, cfg, T + 5)
    set_srd(g, SRD_B, P_V, off_sreg=S_X0 + 2, nbytes_sreg=S_X0 + 3)
    if BAL:
        g.A(f"s_sub_u32 s{S_T0}, s{S_X0+1}, {16*(NG-1)}")
        g.A(f"s_add_u32 s{S_T1}, s{S_T0}, 3")
        g.A(f"s_sub_u32 s{S_T1}, s{S_T1}, s{S_WAVE}")
        g.A(f"s_lshr_b32 s{S_T1}, s{S_T1}, 2")
        g.A(f"s_sub_u32 s{S_T0}, s{S_T0}, 4")
        g.A(f"s_min_u32 s{S_T0}, s{S_T0}, s{S_WAVE}")
        g.A(f"s_add_u32 s{S_T0}, s{S_T0}, s{S_WAVE}")
        g.A(f"s_lshl_b32 s{S_T0}, s{S_T0}, 11")
        g.A(f"s_lshl_b32 s{S_T2}, s{S_WAVE}, 13")
        g.A(f"s_sub_u32 s{S_T0}, s{S_T0}, s{S_T2}")
        g.A(f"s_add_u32 s{S_LAST}, s{S_T0}, {16*(NG-1)*2048}")
        g.A(f"s_cmp_eq_u32 s{S_T1}, 2")
        g.A(f"s_cselect_b64 s[{S_N2}:{S_N2+1}], -1, 0")
        g.A(f"v_lshrrev_b32 v{T}, 2, v{V_LANE}")
        g.A(f"v_and_b32 v{T}, 3, v{T}")
    elif cfg.WCONT:
        g.A(f"s_sub_u32 s{S_T1}, s{S_X0+1}, {4*(NG-1)}")
        g.A(f"v_lshrrev_b32 v{T}, 2, v{V_LANE}")
        g.A(f"v_and_b32 v{T}, 3, v{T}")
    else:
        g.A(f"s_sub_u32 s{S_T1}, s{S_X0+1}, {4*(NG-1)}")
        g.A(f"v_mov_b32 v{T}, s{S_WAVE}")
    g.A(f"v_cmp_gt_u32 vcc, s{S_T1}, v{T}")
    g.A(f"v_mov_b32 v{T+1}, 0xff800000")
    g.A(f"v_lshrrev_b32 v{T+2}, 4, v{V_LANE}")
    g.A(f"v_cndmask_b32 v{V_BIAS}, v{T+1}, 0, vcc")
    g.A(f"v_lshlrev_b32 v{V_OFFV}, 9, v{T+2}")
    g.A(f"v_and_b32 v{T+3}, 15, v{V_LANE}")
    g.A(f"v_lshl_add_u32 v{V_OFFV}, v{T+3}, 4, v{V_OFFV}")
    if not cfg.WCONT:
        g.A(f"s_lshl_b32 s{S_T1}, s{S_WAVE}, 13")
        g.A(f"v_add_u32 v{V_OFFV}, s{S_T1}, v{V_OFFV}")
    g.C("PV masks M_t")
    g.A(f"v_and_b32 v{T}, 7, v{V_LANE}")
    g.A(f"v_lshrrev_b32 v{T+1}, 1, v{T}")
    g.A(f"v_and_b32 v{T+2}, 1, v{V_LANE}")
    g.A(f"v_mov_b32 v{T+3}, 0xffff")
    g.A(f"v_mov_b32 v{T+4}, 0xffff0000")
    g.A(f"v_cmp_eq_u32 vcc, 1, v{T+2}")
    g.A("s_nop 1")
    g.A(f"v_cndmask_b32 v{T+3}, v{T+3}, v{T+4}, vcc")
    for t in range(4):
        g.A(f"v_cmp_eq_u32 vcc, {t}, v{T+1}")
        g.A("s_nop 1")
        g.A(f"v_cndmask_b32 v{V_M+t}, 0, v{T+3}, vcc")
    for a in range(4):
        m = 0x000F000F << (4 * a)
        g.A(f"s_mov_b32 s{S_MSK+2*a}, {m:#x}")
        g.A(f"s_mov_b32 s{S_MSK+2*a+1}, {m:#x}")
    g.A(f"v_lshrrev_b32 v{T}, 4, v{V_LANE}")
    g.A(f"v_and_b32 v{T+1}, 3, v{V_LANE}")
    g.A(f"v_lshl_add_u32 v{T}, v{T}, 2, v{T+1}")
    g.A(f"v_lshlrev_b32 v{V_QOFF}, 5, v{T}")
    S_QB = S_X0 + 6
    g.C("q base: WS_QB + (b*2048 + h*128)*8 ; bh = b*16+h")
    g.A(f"s_lshr_b32 s{S_T0}, s{S_BH}, 4")
    g.A(f"s_and_b32 s{S_T1}, s{S_BH}, 15")
    g.A(f"s_lshl_b32 s{S_T0}, s{S_T0}, 14")
    g.A(f"s_lshl_b32 s{S_T1}, s{S_T1}, 10")
    g.A(f"s_add_u32 s{S_QB}, s{S_T0}, s{S_T1}")
    g.A(f"s_add_u32 s{S_QB}, s{S_QB}, {WS_QB}")
    def q_loads():
        for dh in range(2):
            for k in range(2):
                g.A(f"buffer_load_dwordx4 {vr(V_QL + (dh*2+k)*4, 4)}, v{V_QOFF}, s[{SRD_WS}:{SRD_WS+3}], s{S_QB} offen offset:{dh*512 + k*16} sc1")
    QAT = P - cfg.QBACK
    for gi in range(2, P):
        if gi == QAT:
            q_loads()
        g.A(f"s_waitcnt vmcnt({W1 - 8})")
        if gi == 4:
            make_tag(g, V_EP)
        issue_group(gi)
    stamp(g, cfg, 2)
    tagregs = [V_QL + k * 4 + o for k in range(4) for o in (1, 3)]
    okq = g.lab("qok")
    g.A(f"s_waitcnt vmcnt({(P - QAT) * 8})")
    if not (cfg.X_NOHELP):
        check_tags(g, tagregs, T, okq)
        poll_loop(g, cfg, q_loads, tagregs, T, sleep=2)
    g.L(okq)
    stamp(g, cfg, 3)
    dbgt(g, cfg, 2, 116, 0, 0)
    dbgt(g, cfg, 3, 116, 100, 0)
    for a in range(4):
        for dh in range(2):
            src = [V_QL + (dh * 2) * 4, V_QL + (dh * 2) * 4 + 2, V_QL + (dh * 2 + 1) * 4, V_QL + (dh * 2 + 1) * 4 + 2]
            for r in range(4):
                g.A(f"v_cndmask_b32 v{V_BQ + (a*2+dh)*4 + r}, 0, v{src[r]}, s[{S_MSK+2*a}:{S_MSK+2*a+1}]")
    g.A(f"v_mov_b32 v{V_MAX}, 0xff800000")
    g.A("s_nop 1")

    NTOT = 2 * NG
    def I(gi):
        if cfg.SHRINK <= 1:
            return min(NTOT, max(P, gi + DMIN))
        d = max(DMIN, P - (gi + cfg.SHRINK - 1) // cfg.SHRINK)
        return min(NTOT, max(P, gi + d))
    CSC = f2u(0.0625 * LOG2E)
    for gi in range(NTOT):
        n_after = sum(nl(x) for x in range(gi + 1, I(gi)))
        g.A(f"s_waitcnt vmcnt({min(63, n_after)})")
        if gi < NG:
            acc = V_ACC + 4 * (gi & 1)
            for a in range(nl(gi) // 2):
                for dh in range(2):
                    n = gi * 8 + a * 2 + dh
                    c = "0" if (a == 0 and dh == 0) else vr(acc, 4)
                    g.A(f"v_mfma_f32_16x16x32_bf16 {vr(acc,4)}, {slot(n)}, {vr(V_BQ + (a*2+dh)*4, 4)}, {c}")
            nissue = I(gi + 1) - I(gi) if gi + 1 < NTOT else 0
            for x in range(nissue):
                if I(gi) + x - gi - 1 > cfg.CAPG:
                    g.A(f"s_waitcnt vmcnt({8*cfg.CAPG - 8})")
                issue_group(I(gi) + x)
            if nissue == 0:
                g.A("s_nop 7")
            S = V_S + gi
            g.A(f"v_mov_b32_dpp v{S}, v{acc} quad_perm:[0,0,0,0] row_mask:0xf bank_mask:0xf")
            for p in range(1, 4):
                g.A(f"v_add_f32_dpp v{S}, v{acc+p}, v{S} quad_perm:[{p},{p},{p},{p}] row_mask:0xf bank_mask:0xf")
            g.A(f"v_cvt_pk_bf16_f32 v{T}, v{S}, v{S}")
            if gi == NG - 1:
                g.A(f"v_lshlrev_b32 v{S}, 16, v{T}")
                g.A(f"v_add_f32 v{S}, v{V_BIAS}, v{S}")
            else:
                g.A(f"v_lshlrev_b32 v{S}, 16, v{T}")
            g.A(f"v_max_f32 v{V_MAX}, v{V_MAX}, v{S}")
            if gi == NG - 1:
                g.C("softmax over this wave's keys")
                g.A("s_nop 1")
                for st in ("row_ror:4", "row_ror:8"):
                    g.A(f"v_max_f32_dpp v{V_MAX}, v{V_MAX}, v{V_MAX} {st} row_mask:0xf bank_mask:0xf")
                    g.A("s_nop 1")
                for st, rm in (("row_bcast:15", "0xa"), ("row_bcast:31", "0xc")):
                    g.A(f"v_max_f32_dpp v{V_MAX}, v{V_MAX}, v{V_MAX} {st} row_mask:{rm} bank_mask:0xf")
                    g.A("s_nop 1")
                g.A(f"v_readlane_b32 s{S_T0}, v{V_MAX}, 63")
                g.A(f"s_mov_b32 s{S_X0+7}, {CSC:#x}")
                g.A("s_nop 1")
                g.A(f"v_mov_b32 v{V_MAX}, s{S_T0}")
                g.A(f"v_mul_f32 v{V_MAX}, s{S_X0+7}, v{V_MAX}")
                g.A(f"v_mov_b32 v{V_L}, 0")
                for i in range(NG):
                    g.A(f"v_fma_f32 v{V_S+i}, v{V_S+i}, s{S_X0+7}, -v{V_MAX}")
                for i in range(NG):
                    g.A(f"v_exp_f32 v{V_S+i}, v{V_S+i}")
                g.A("s_nop 0")
                for i in range(NG):
                    g.A(f"v_add_f32 v{V_L}, v{V_L}, v{V_S+i}")
                    g.A(f"v_cvt_pk_bf16_f32 v{V_S+i}, v{V_S+i}, v{V_S+i}")
                g.A("s_nop 1")
                for st in ("row_ror:4", "row_ror:8"):
                    g.A(f"v_add_f32_dpp v{V_L}, v{V_L}, v{V_L} {st} row_mask:0xf bank_mask:0xf")
                    g.A("s_nop 1")
                for st, rm in (("row_bcast:15", "0xa"), ("row_bcast:31", "0xc")):
                    g.A(f"v_add_f32_dpp v{V_L}, v{V_L}, v{V_L} {st} row_mask:{rm} bank_mask:0xf")
                    g.A("s_nop 1")
                g.A(f"v_readlane_b32 s{S_X0+8}, v{V_L}, 63")
                g.C("addresses for the final combine")
                g.A(f"v_and_b32 v{T}, 8, v{V_LANE}")
                g.A(f"v_cmp_ne_u32 s[{S_DH}:{S_DH+1}], 0, v{T}")
                g.A(f"v_mov_b32 v{V_L}, s{S_X0+8}")
                g.A(f"v_lshlrev_b32 v{T+1}, 4, v{T}")
                g.A(f"v_lshrrev_b32 v{T+2}, 4, v{V_LANE}")
                g.A(f"v_lshl_add_u32 v{T+1}, v{T+2}, 5, v{T+1}")
                g.A(f"v_and_b32 v{T+2}, 7, v{V_LANE}")
                g.A(f"v_add_u32 v{T+1}, v{T+1}, v{T+2}")
                g.A(f"s_lshl_b32 s{S_T0}, s{S_WAVE}, 8")
                g.A(f"v_add_u32 v{T+1}, s{S_T0}, v{T+1}")
                g.A(f"v_lshlrev_b32 v{V_LW}, 2, v{T+1}")
                g.A(f"s_lshl_b32 s{S_T0}, s{S_WAVE}, 3")
                g.A(f"v_mov_b32 v{V_MLW}, s{S_T0}")
                g.A(f"v_mov_b32 v{V_ZERO}, 0")
                g.A(f"s_lshl_b32 s{S_T0}, s{S_WAVE}, 6")
                g.A(f"v_add_u32 v{T}, s{S_T0}, v{V_LANE}")
                g.A(f"v_lshlrev_b32 v{V_LR}, 2, v{T}")
                g.A(f"v_lshlrev_b32 v{V_GO}, 4, v{T}")
                g.A(f"s_lshl_b32 s{S_PREC}, s{S_WG}, 12")
                g.A(f"s_add_u32 s{S_PREC}, s{S_PREC}, {WS_PART}")
                g.A(f"v_mov_b32 v{V_QL+13}, s{S_TAG}")
                g.A(f"v_mov_b32 v{V_QL+15}, s{S_TAG}")
                stamp(g, cfg, 4)
        else:
            i = gi - NG
            Pi = V_S + i
            def build(a):
                bb = V_B + 4 * (a & 1)
                for t in range(4):
                    g.A(f"v_and_b32_dpp v{bb+t}, v{Pi}, v{V_M+t} row_newbcast:{4*a} row_mask:0xf bank_mask:0xf")
            build(0)
            na = nl(gi) // 2
            for a in range(na):
                if a < na - 1:
                    build(a + 1)
                else:
                    g.A("s_nop 1")
                bb = V_B + 4 * (a & 1)
                for dh in range(2):
                    n = gi * 8 + a * 2 + dh
                    acc = V_O + 4 * dh
                    c = "0" if (i == 0 and a == 0) else vr(acc, 4)
                    g.A(f"v_mfma_f32_16x16x32_bf16 {vr(acc,4)}, {slot(n)}, {vr(bb,4)}, {c}")
            nissue = I(gi + 1) - I(gi) if gi + 1 < NTOT else 0
            for x in range(nissue):
                if I(gi) + x - gi - 1 > cfg.CAPG:
                    g.A(f"s_waitcnt vmcnt({8*cfg.CAPG - 8})")
                issue_group(I(gi) + x)
        if gi == cfg.HEADS_STEP:
            skip = g.lab("nohead")
            g.A(f"s_cmp_lg_u32 s{S_WAVE}, 0")
            g.A(f"s_cbranch_scc1 {skip}")
            g.A(f"s_lshl_b32 s{S_T0}, s{S_WG}, 6")
            g.A(f"s_add_u32 s{S_T0}, s{S_T0}, {WS_HEADS}")
            g.A(f"v_mov_b32 v{T}, s{S_TAG}")
            g.A(f"v_mov_b32 v{T+1}, s{S_TAG}")
            g.A(f"v_mov_b32 v{T+2}, 0")
            g.A("s_mov_b64 exec, 1")
            g.A(f"buffer_store_dwordx2 v[{T}:{T+1}], v{T+2}, s[{SRD_WS}:{SRD_WS+3}], s{S_T0} offen sc1")
            g.A("s_mov_b64 exec, -1")
            g.L(skip)
    stamp(g, cfg, 5)
    dbgt(g, cfg, 4, 116, 0, 0)
    dbgt(g, cfg, 5, 116, 100, 0)
    dbgt(g, cfg, 6, 116, 191, 0)
    g.C("workgroup combine")
    g.A("s_nop 7")
    for r in range(4):
        g.A(f"v_cndmask_b32 v{T+2+r}, v{V_O+r}, v{V_O+4+r}, s[{S_DH}:{S_DH+1}]")
    for r in range(4):
        g.A(f"ds_write_b32 v{V_LW}, v{T+2+r} offset:{L_OW + r*32}")
    g.A("s_mov_b64 exec, 1")
    g.A(f"ds_write_b64 v{V_MLW}, {vr(V_MAX,2)} offset:{L_ML}")
    g.A("s_mov_b64 exec, -1")
    g.A("s_waitcnt lgkmcnt(0)")
    g.A("s_barrier")
    Q = V_QL
    g.A(f"ds_read_b128 {vr(Q,4)}, v{V_ZERO} offset:{L_ML}")
    g.A(f"ds_read_b128 {vr(Q+4,4)}, v{V_ZERO} offset:{L_ML+16}")
    for w in range(4):
        g.A(f"ds_read_b32 v{Q+8+w}, v{V_LR} offset:{L_OW + w*1024}")
    g.A("s_waitcnt lgkmcnt(4)")
    g.A(f"v_max_f32 v{T+3}, v{Q}, v{Q+2}")
    g.A(f"v_max3_f32 v{T+3}, v{Q+4}, v{Q+6}, v{T+3}")
    for w in range(4):
        g.A(f"v_sub_f32 v{Q+2*w}, v{Q+2*w}, v{T+3}")
    for w in range(4):
        g.A(f"v_exp_f32 v{Q+2*w}, v{Q+2*w}")
    g.A("s_nop 0")
    g.A(f"v_mul_f32 v{T+4}, v{Q}, v{Q+1}")
    for w in range(1, 4):
        g.A(f"v_fmac_f32 v{T+4}, v{Q+2*w}, v{Q+2*w+1}")
    g.A(f"v_rcp_f32 v{T+5}, v{T+4}")
    g.A(f"v_log_f32 v{T+4}, v{T+4}")
    g.A("s_waitcnt lgkmcnt(0)")
    g.A(f"v_mul_f32 v{Q+12}, v{Q}, v{Q+8}")
    for w in range(1, 4):
        g.A(f"v_fmac_f32 v{Q+12}, v{Q+2*w}, v{Q+8+w}")
    g.A(f"v_add_f32 v{Q+14}, v{T+3}, v{T+4}")
    g.A(f"v_mul_f32 v{Q+12}, v{Q+12}, v{T+5}")
    g.A(f"buffer_store_dwordx4 {vr(Q+12,4)}, v{V_GO}, s[{SRD_WS}:{SRD_WS+3}], s{S_PREC} offen sc1")
    stamp(g, cfg, 6)
    g.A("s_endpgm")

H_LANE = 0
H_T = 2
H_LN = 16
H_SC = 24
H_ACC = 32
H_FR = 64
H_FT = 128
H_ST = 192

def transpose_unit(g, src, dst, dst_acc=False, tmp=None):
    for c in range(4):
        for o in range(2):
            m = 2 * c + o
            for t in range(4):
                sel = S_SEL0 if o == 0 else S_SEL1
                s_lo = src + (2 * t) * 4 + c
                s_hi = src + (2 * t + 1) * 4 + c
                if dst_acc:
                    g.A(f"v_perm_b32 v{tmp + (t & 1)}, v{s_hi}, v{s_lo}, s{sel}")
                    g.A(f"v_accvgpr_write_b32 a{dst + m*4 + t}, v{tmp + (t & 1)}")
                else:
                    g.A(f"v_perm_b32 v{dst + m*4 + t}, v{s_hi}, v{s_lo}, s{sel}")

def unit_loads(g, dst, srd, voff, soffs, flags):
    for e in range(8):
        g.A(f"s_mov_b32 s{S_T0}, {soffs[e]}")
        g.A(f"buffer_load_dwordx4 {vr(dst + 4*e, 4)}, v{voff}, s[{srd}:{srd+3}], s{S_T0} offen{flags}")

def mfma8(g, afrag, frag, first, frag_acc=False):
    for m in range(8):
        acc = H_ACC + 4 * m
        c = "0" if first else vr(acc, 4)
        b = ar(frag + 4 * m, 4) if frag_acc else vr(frag + 4 * m, 4)
        g.A(f"v_mfma_f32_16x16x32_bf16 {vr(acc,4)}, {vr(afrag,4)}, {b}, {c}")

def red_write(g, vaddr):
    for m in range(8):
        g.A(f"ds_write_b32 v{vaddr}, v{H_ACC + 4*m} offset:{m*256}")

def red_read(g, va, vb, dst):
    for w in range(4):
        g.A(f"ds_read2st64_b32 {vr(dst + 2*w, 2)}, v{va} offset0:{w*8} offset1:{w*8+1}")
        g.A(f"ds_read2st64_b32 {vr(dst + 8 + 2*w, 2)}, v{vb} offset0:{w*8} offset1:{w*8+1}")
    g.A("s_waitcnt lgkmcnt(0)")
    for base in (dst, dst + 8):
        for o in range(2):
            g.A(f"v_add_f32 v{base+o}, v{base+o}, v{base+2+o}")
            g.A(f"v_add_f32 v{base+4+o}, v{base+4+o}, v{base+6+o}")
        for o in range(2):
            g.A(f"v_add_f32 v{base+o}, v{base+o}, v{base+4+o}")

def pk(g, op, dst, a, b, bcast=False, neg=False, c=None):
    mods = ""
    if c is not None:
        if bcast: mods += " op_sel_hi:[1,0,1]"
        g.A(f"v_pk_{op}_f32 {vr(dst,2)}, {vr(a,2)}, {vr(b,2)}, {vr(c,2)}{mods}")
        return
    if bcast: mods += " op_sel_hi:[1,0]"
    if neg: mods += " neg_lo:[0,1] neg_hi:[0,1]"
    g.A(f"v_pk_{op}_f32 {vr(dst,2)}, {vr(a,2)}, {vr(b,2)}{mods}")

def ln_normalize(g, x, out, tmp):
    sA, sB, sC = S_X0 + 10, S_X0 + 11, S_T2
    t0, t2, t4, t6 = tmp, tmp + 2, tmp + 4, tmp + 6
    g.A(f"v_readfirstlane_b32 s{sC}, v{x}")
    g.A(f"v_cmp_gt_u32 vcc, 56, v{H_LANE}")
    g.A("s_nop 0")
    g.A(f"v_mov_b32 v{t6}, s{sC}")
    for k in range(4):
        pk(g, "add", out + 2 * k, x + 2 * k, t6, bcast=True, neg=True)
    pk(g, "add", t0, out, out + 2)
    pk(g, "mul", t2, out, out)
    pk(g, "add", t4, out + 4, out + 6)
    pk(g, "fma", t2, out + 2, out + 2, c=t2)
    pk(g, "add", t0, t0, t4)
    pk(g, "fma", t2, out + 4, out + 4, c=t2)
    g.A(f"v_add_f32 v{t0}, v{t0}, v{t0+1}")
    pk(g, "fma", t2, out + 6, out + 6, c=t2)
    g.A(f"v_cndmask_b32 v{t0}, 0, v{t0}, vcc")
    g.A(f"v_add_f32 v{t2}, v{t2}, v{t2+1}")
    g.A(f"v_cndmask_b32 v{t2}, 0, v{t2}, vcc")
    g.A("s_nop 0")
    wave_sum(g, [t0, t2], [sA, sB])
    g.A(f"v_mov_b32 v{t4}, {f2u(1.0/448.0):#x}")
    g.A("s_nop 0")
    g.A(f"v_mul_f32 v{t0}, s{sA}, v{t4}")
    g.A(f"v_mul_f32 v{t2}, s{sB}, v{t4}")
    g.A(f"v_fma_f32 v{t2}, -v{t0}, v{t0}, v{t2}")
    g.A(f"v_add_f32 v{t0}, v{t0}, v{t6}")
    g.A(f"v_max_f32 v{t2}, 0, v{t2}")
    g.A(f"v_cvt_pk_bf16_f32 v{t4}, v{t0}, v{t2}")
    g.A(f"v_and_b32 v{t2}, 0xffff0000, v{t4}")
    g.A(f"v_lshlrev_b32 v{t0}, 16, v{t4}")
    g.A(f"v_add_f32 v{t2}, {f2u(1e-5):#x}, v{t2}")
    for k in range(2):
        pk(g, "add", out + 2 * k, x + 2 * k, t0, bcast=True, neg=True)
    g.A(f"v_cvt_pk_bf16_f32 v{t2}, v{t2}, v{t2}")
    for k in range(2, 4):
        pk(g, "add", out + 2 * k, x + 2 * k, t0, bcast=True, neg=True)
    g.A(f"v_lshlrev_b32 v{t2}, 16, v{t2}")
    g.A(f"v_sqrt_f32 v{t2}, v{t2}")
    bf16_round_pairs(g, [out + e for e in range(4)], t4)
    g.A(f"v_cvt_pk_bf16_f32 v{t2}, v{t2}, v{t2}")
    g.A(f"v_lshlrev_b32 v{t2}, 16, v{t2}")
    g.A(f"v_rcp_f32 v{t2}, v{t2}")
    bf16_round_pairs(g, [out + e for e in range(4, 8)], t4)
    for k in range(4):
        pk(g, "mul", out + 2 * k, out + 2 * k, t2, bcast=True)
    bf16_round_pairs(g, [out + e for e in range(8)], t4)

def exec56(g):
    g.A("s_mov_b32 exec_lo, -1")
    g.A("s_mov_b32 exec_hi, 0x00ffffff")
def exec_all(g):
    g.A("s_mov_b64 exec, -1")

def gather_shift_scale(g, cfg, sbase, voff, ld, shift, scale1, tmp):
    def loads():
        for k, imm in enumerate((0, 16, 1792, 1808)):
            g.A(f"buffer_load_dwordx4 {vr(ld + 4*k, 4)}, v{voff}, s[{SRD_WS}:{SRD_WS+3}], s{sbase} offen offset:{imm} sc1")
    tags = [ld + 4 * k + o for k in range(4) for o in (1, 3)]
    poll_loop(g, cfg, loads, tags, tmp, sleep=1)
    unpack_pairs(g, [ld, ld + 2, ld + 4, ld + 6], [shift + e for e in range(8)])
    unpack_pairs(g, [ld + 8, ld + 10, ld + 12, ld + 14], [scale1 + e for e in range(8)])
    for e in range(8):
        g.A(f"v_add_f32 v{scale1+e}, 1.0, v{scale1+e}")
    bf16_round_pairs(g, [scale1 + e for e in range(8)], tmp)

def modulate_write(g, ln, shift, scale1, vaddr, ldsoff, tmp):
    for k in range(4):
        pk(g, "mul", ln + 2 * k, ln + 2 * k, scale1 + 2 * k)
    bf16_round_pairs(g, [ln + e for e in range(8)], tmp)
    for k in range(4):
        pk(g, "add", ln + 2 * k, ln + 2 * k, shift + 2 * k)
    for k in range(4):
        g.A(f"v_cvt_pk_bf16_f32 v{tmp+k}, v{ln+2*k}, v{ln+2*k+1}")
    g.A(f"ds_write_b128 v{vaddr}, {vr(tmp,4)} offset:{ldsoff}")

def emit_helper(g, cfg):
    NT = cfg.NTW
    T = H_T
    WSR = f"s[{SRD_WS}:{SRD_WS+3}]"
    g.L("L_helper")
    if cfg.X_NOHELP:
        g.A("s_endpgm")
    lazy(g, cfg, 0)
    g.A(f"s_sub_u32 s{S_ROLE}, s{S_WG}, {cfg.NSTREAM}")
    g.A(f"s_mov_b32 s{S_SEL0}, 0x05040100")
    g.A(f"s_mov_b32 s{S_SEL1}, 0x07060302")
    V_L16 = 16
    V_WOFF64 = 17
    V_WOFFQ = 18
    V_AF64 = 19
    V_RW = 20
    V_RA, V_RB = 21, 22
    V_ACTW = 23
    V_G32 = 24
    V_X = 112
    HLN, HSH, HSC, HLD = 160, 168, 176, 144
    g.A(f"v_lshlrev_b32 v{V_L16}, 4, v{H_LANE}")
    g.A(f"v_lshlrev_b32 v{V_G32}, 5, v{H_LANE}")
    g.A(f"s_and_b32 s{S_X0}, s{S_WAVE}, 1")
    S_B = S_X0
    g.A(f"s_mul_i32 s{S_T1}, s{S_B}, 896")
    set_srd(g, SRD_C, P_C, nbytes=1792)
    set_srd(g, SRD_A, P_X, nbytes=1792)
    exec56(g)
    g.A(f"buffer_load_dwordx4 {vr(HLD,4)}, v{V_L16}, s[{SRD_C}:{SRD_C+3}], s{S_T1} offen")
    g.A(f"buffer_load_dwordx4 {vr(HLD+4,4)}, v{V_L16}, s[{SRD_A}:{SRD_A+3}], s{S_T1} offen")
    exec_all(g)
    lazy(g, cfg, 1)
    g.A(f"v_lshrrev_b32 v{T}, 3, v{H_LANE}")
    g.A(f"v_and_b32 v{T}, 1, v{T}")
    g.A(f"v_lshrrev_b32 v{T+1}, 4, v{H_LANE}")
    g.A(f"v_lshlrev_b32 v{T+2}, 5, v{T}")
    g.A(f"v_lshl_add_u32 v{T+2}, v{T+1}, 3, v{T+2}")
    g.A(f"s_lshl_b32 s{S_T0}, s{S_WAVE}, 6")
    g.A(f"v_add_u32 v{T+2}, s{S_T0}, v{T+2}")
    g.A(f"v_and_b32 v{T+3}, 7, v{H_LANE}")
    g.A(f"v_lshlrev_b32 v{T+3}, 4, v{T+3}")
    g.A(f"s_mov_b32 s{S_T0}, 5376")
    g.A(f"v_mul_lo_u32 v{V_WOFF64}, v{T+2}, s{S_T0}")
    g.A(f"v_add_u32 v{V_WOFF64}, v{V_WOFF64}, v{T+3}")
    g.A(f"v_lshl_add_u32 v{V_WOFFQ}, v{T+2}, 13, v{T+3}")
    S_MB = S_X0 + 12
    def m_loads():
        g.A(f"s_lshl_b32 s{S_T2}, s{S_MB}, 7")
        g.A(f"s_sub_u32 s{S_X0+1}, {448*5376}, s{S_T2}")
        set_srd(g, SRD_A, P_WMOD, off_sreg=S_T2, nbytes_sreg=S_X0 + 1)
        for it in range(2):
            unit_loads(g, H_FR + 32 * it, SRD_A, V_WOFF64, [e * 5376 + it * 256 * 5376 for e in range(8)], NT)
    def q_wloads():
        g.A(f"s_lshl_b32 s{S_T2}, s{S_ROLE}, 7")
        g.A(f"s_sub_u32 s{S_X0+1}, {448*8192}, s{S_T2}")
        set_srd(g, SRD_B, P_WQ, off_sreg=S_T2, nbytes_sreg=S_X0 + 1)
        for it in range(2):
            unit_loads(g, H_ST + 32 * it, SRD_B, V_WOFFQ, [e * 8192 + it * 256 * 8192 for e in range(8)], NT)
    nom = g.lab("nomload"); nom_b = g.lab("nomload_b")
    g.A(f"s_sub_u32 s{S_MB}, s{S_ROLE}, 50")
    g.A(f"s_cmp_lt_u32 s{S_ROLE}, 50")
    g.A(f"s_cbranch_scc1 {nom}")
    m_loads()
    g.A(f"s_branch {nom_b}")
    g.L(nom)
    q_wloads()
    g.L(nom_b)
    lazy(g, cfg, 3)
    if cfg.LAZY != 1: stamp(g, cfg, 1)
    entry_prefetch(g, cfg, T + 6)
    g.A(f"v_lshrrev_b32 v{T+3}, 2, v{H_LANE}")
    g.A(f"v_and_b32 v{T+3}, 1, v{T+3}")
    g.A(f"v_mul_u32_u24 v{V_AF64}, {ROWB}, v{T+3}")
    g.A(f"v_lshl_add_u32 v{V_AF64}, v{T}, 6, v{V_AF64}")
    g.A(f"v_lshl_add_u32 v{V_AF64}, v{T+1}, 4, v{V_AF64}")
    g.A(f"s_lshl_b32 s{S_T0}, s{S_WAVE}, 7")
    g.A(f"v_add_u32 v{V_AF64}, s{S_T0}, v{V_AF64}")
    g.A(f"s_lshl_b32 s{S_T0}, s{S_WAVE}, 11")
    g.A(f"s_add_u32 s{S_T0}, s{S_T0}, {L_RED}")
    g.A(f"v_lshlrev_b32 v{V_RW}, 2, v{H_LANE}")
    g.A(f"v_add_u32 v{V_RW}, s{S_T0}, v{V_RW}")
    g.A(f"v_and_b32 v{T+4}, 3, v{H_LANE}")
    g.A(f"v_lshlrev_b32 v{V_RA}, 9, v{T+4}")
    g.A(f"v_lshrrev_b32 v{T+4}, 5, v{H_LANE}")
    g.A(f"v_lshl_add_u32 v{V_RA}, v{T+4}, 6, v{V_RA}")
    g.A(f"v_lshrrev_b32 v{T+4}, 2, v{H_LANE}")
    g.A(f"v_and_b32 v{T+4}, 7, v{T+4}")
    g.A(f"v_lshl_add_u32 v{V_RA}, v{T+4}, 2, v{V_RA}")
    g.A(f"v_add_u32 v{V_RA}, {L_RED}, v{V_RA}")
    g.A(f"v_add_u32 v{V_RB}, 160, v{V_RA}")
    g.A(f"s_mul_i32 s{S_T0}, s{S_B}, {ROWB}")
    g.A(f"v_add_u32 v{V_ACTW}, s{S_T0}, v{V_L16}")
    n1 = S_X0 + 2
    skip = g.lab("noln1")
    g.A("s_waitcnt vmcnt(16)")
    make_tag(g, 1)
    g.A(f"s_cmp_ge_u32 s{S_WAVE}, 2")
    g.A(f"s_cbranch_scc1 {skip}")
    g.A(f"v_cmp_gt_u32 vcc, 56, v{H_LANE}")
    g.A("s_nop 1")
    for k in range(8):
        g.A(f"v_cndmask_b32 v{HLD+k}, 0, v{HLD+k}, vcc")
    unpack_pairs(g, [HLD, HLD + 1, HLD + 2, HLD + 3], [HSH + e for e in range(8)])
    g.A(f"s_mov_b32 s{S_T0}, {f2u(-LOG2E):#x}")
    for e in range(8):
        g.A(f"v_mul_f32 v{HSC+e}, s{S_T0}, v{HSH+e}")
    for e in range(8):
        g.A(f"v_exp_f32 v{HSC+e}, v{HSC+e}")
    g.A("s_nop 0")
    for e in range(8):
        g.A(f"v_add_f32 v{HSC+e}, 1.0, v{HSC+e}")
    for e in range(8):
        g.A(f"v_rcp_f32 v{HSC+e}, v{HSC+e}")
    g.A("s_nop 0")
    for e in range(8):
        g.A(f"v_mul_f32 v{HSC+e}, v{HSC+e}, v{HSH+e}")
    for k in range(4):
        g.A(f"v_cvt_pk_bf16_f32 v{T+k}, v{HSC+2*k}, v{HSC+2*k+1}")
    exec56(g)
    g.A(f"ds_write_b128 v{V_ACTW}, {vr(T,4)} offset:{L_ACTS}")
    exec_all(g)
    unpack_pairs(g, [HLD + 4, HLD + 5, HLD + 6, HLD + 7], [HSH + e for e in range(8)])
    ln_normalize(g, HSH, HLN, T)
    g.L(skip)
    g.A("s_waitcnt lgkmcnt(0)")
    g.A("s_barrier")
    lazy(g, cfg, 2)
    AF = T + 4
    RD = H_FT
    def m_stage():
        g.A(f"ds_read_b128 {vr(AF,4)}, v{V_AF64} offset:{L_ACTS}")
        g.A(f"ds_read_b128 {vr(AF+4,4)}, v{V_AF64} offset:{L_ACTS+512}")
        g.A("s_waitcnt vmcnt(8)")
        transpose_unit(g, H_FR, H_FT)
        g.A("s_waitcnt lgkmcnt(0)")
        g.A("s_nop 0")
        mfma8(g, AF, H_FT, True)
        sk = g.lab("m2")
        g.A(f"s_cmp_eq_u32 s{S_WAVE}, 3")
        g.A(f"s_cbranch_scc1 {sk}")
        g.A("s_waitcnt vmcnt(0)")
        transpose_unit(g, H_FR + 32, H_FT)
        g.A("s_nop 1")
        mfma8(g, AF + 4, H_FT, False)
        g.L(sk)
        g.A("s_nop 7")
        red_write(g, V_RW)
        g.A("s_waitcnt lgkmcnt(0)")
        g.A("s_barrier")
        sk = g.lab("m3")
        g.A(f"s_cmp_lg_u32 s{S_WAVE}, 0")
        g.A(f"s_cbranch_scc1 {sk}")
        red_read(g, V_RA, V_RB, RD)
        for o in range(2):
            g.A(f"v_add_f32 v{RD+o}, v{RD+o}, v{RD+8+o}")
        g.A(f"v_cvt_pk_bf16_f32 v{RD+2}, v{RD}, v{RD+1}")
        g.A(f"v_mov_b32 v{RD+3}, s{S_TAG}")
        g.A(f"v_lshrrev_b32 v{T}, 5, v{H_LANE}")
        g.A(f"v_mul_u32_u24 v{T}, {1344*8}, v{T}")
        g.A(f"v_and_b32 v{T+1}, 31, v{H_LANE}")
        g.A(f"v_lshl_add_u32 v{T}, v{T+1}, 3, v{T}")
        g.A(f"s_lshl_b32 s{S_T0}, s{S_MB}, 8")
        g.A(f"s_add_u32 s{S_T0}, s{S_T0}, {WS_MOD}")
        g.A(f"buffer_store_dwordx2 {vr(RD+2,2)}, v{T}, {WSR}, s{S_T0} offen sc1")
        g.L(sk)
    nom2 = g.lab("nom")
    g.A(f"s_cmp_lt_u32 s{S_ROLE}, 50")
    g.A(f"s_cbranch_scc1 {nom2}")
    m_stage()
    lazy(g, cfg, 4)
    q_wloads()
    g.L(nom2)
    stamp(g, cfg, 2)
    lazy_flush(g, cfg, 5, 16)
    g.A("s_waitcnt vmcnt(8)")
    transpose_unit(g, H_ST, H_FR)
    g.A("s_waitcnt vmcnt(0)")
    transpose_unit(g, H_ST + 32, H_FR + 32)
    skip = g.lab("noh")
    g.A(f"s_cmp_ge_u32 s{S_WAVE}, 2")
    g.A(f"s_cbranch_scc1 {skip}")
    g.A(f"s_mul_i32 s{S_X0+3}, s{S_B}, {1344*8}")
    g.A(f"s_add_u32 s{S_X0+3}, s{S_X0+3}, {WS_MOD}")
    exec56(g)
    gather_shift_scale(g, cfg, S_X0 + 3, V_G32, HLD, HSH, HSC, T)
    modulate_write(g, HLN, HSH, HSC, V_ACTW, L_ACTH, T)
    exec_all(g)
    g.L(skip)
    stamp(g, cfg, 3)
    g.A("s_waitcnt lgkmcnt(0)")
    g.A("s_barrier")
    g.A(f"ds_read_b128 {vr(AF,4)}, v{V_AF64} offset:{L_ACTH}")
    g.A(f"ds_read_b128 {vr(AF+4,4)}, v{V_AF64} offset:{L_ACTH+512}")
    g.A("s_waitcnt lgkmcnt(1)")
    mfma8(g, AF, H_FR, True)
    sk = g.lab("q2")
    g.A(f"s_cmp_eq_u32 s{S_WAVE}, 3")
    g.A(f"s_cbranch_scc1 {sk}")
    g.A("s_waitcnt lgkmcnt(0)")
    mfma8(g, AF + 4, H_FR + 32, False)
    g.L(sk)
    g.A("s_waitcnt lgkmcnt(0)")
    g.A("s_nop 7")
    red_write(g, V_RW)
    g.A("s_waitcnt lgkmcnt(0)")
    g.A("s_barrier")
    sk = g.lab("q3")
    g.A(f"s_cmp_lg_u32 s{S_WAVE}, 0")
    g.A(f"s_cbranch_scc1 {sk}")
    red_read(g, V_RA, V_RB, RD)
    for o in range(2):
        g.A(f"v_add_f32 v{RD+o}, v{RD+o}, v{RD+8+o}")
    g.A(f"v_cvt_pk_bf16_f32 v{RD+2}, v{RD}, v{RD+1}")
    g.A(f"v_mov_b32 v{RD+3}, s{S_TAG}")
    g.A(f"v_lshrrev_b32 v{T}, 5, v{H_LANE}")
    g.A(f"v_lshlrev_b32 v{T}, 14, v{T}")
    g.A(f"v_and_b32 v{T+1}, 31, v{H_LANE}")
    g.A(f"v_lshl_add_u32 v{T}, v{T+1}, 3, v{T}")
    g.A(f"s_lshl_b32 s{S_T0}, s{S_ROLE}, 8")
    g.A(f"s_add_u32 s{S_T0}, s{S_T0}, {WS_QB}")
    g.A(f"buffer_store_dwordx2 {vr(RD+2,2)}, v{T}, {WSR}, s{S_T0} offen sc1")
    g.L(sk)
    stamp(g, cfg, 4)
    dbgt(g, cfg, 9, 28, 192, 0)
    dbgt(g, cfg, 10, 28, 250, 0)
    if cfg.X_NOEPIW:
        g.A("s_endpgm")
    g.A(f"s_cmp_ge_u32 s{S_ROLE}, 32")
    g.A("s_cbranch_scc1 L_rf")

    nomr = g.lab("nomrest")
    g.A(f"s_cmp_lt_u32 s{S_ROLE}, 4")
    g.A(f"s_cbranch_scc1 {nomr}")
    g.A(f"s_add_u32 s{S_MB}, s{S_ROLE}, 10")
    m_loads()
    g.A("s_barrier")
    m_stage()
    g.L(nomr)
    V_WO = 17
    g.A(f"s_mul_i32 s{S_T2}, s{S_ROLE}, {128*896}")
    g.A(f"s_sub_u32 s{S_X0+1}, {4096*896}, s{S_T2}")
    set_srd(g, SRD_A, P_WO, off_sreg=S_T2, nbytes_sreg=S_X0 + 1)
    def woff128(dst):
        g.A(f"v_lshrrev_b32 v{T}, 4, v{H_LANE}")
        g.A(f"v_mul_u32_u24 v{dst}, {8*896}, v{T}")
        g.A(f"v_and_b32 v{T}, 15, v{H_LANE}")
        g.A(f"v_lshl_add_u32 v{dst}, v{T}, 4, v{dst}")
        g.A(f"s_lshl_b32 s{S_T0}, s{S_WAVE}, 8")
        g.A(f"v_add_u32 v{dst}, s{S_T0}, v{dst}")
    woff128(V_WO)
    def wo_unit(kb, st):
        unit_loads(g, H_ST + 32 * st, SRD_A, V_WO, [(kb * 32 + e) * 896 for e in range(8)], NT)
    if not cfg.X_SKIPWO:
        wo_unit(0, 0); wo_unit(1, 1)
        g.A("s_waitcnt vmcnt(8)"); transpose_unit(g, H_ST, H_FR)
        wo_unit(2, 0)
        g.A("s_waitcnt vmcnt(8)"); transpose_unit(g, H_ST + 32, H_FR + 32)
        wo_unit(3, 1)
        g.A("s_waitcnt vmcnt(8)"); transpose_unit(g, H_ST, H_FR + 64)
        g.A("s_waitcnt vmcnt(0)"); transpose_unit(g, H_ST + 32, H_FR + 96)
    S_REC = S_X0 + 4
    g.A(f"s_lshr_b32 s{S_T0}, s{S_WAVE}, 1")
    g.A(f"s_lshl_b32 s{S_T0}, s{S_T0}, 4")
    g.A(f"s_lshr_b32 s{S_T1}, s{S_ROLE}, 1")
    g.A(f"s_add_u32 s{S_T0}, s{S_T0}, s{S_T1}")
    g.A(f"s_mul_i32 s{S_REC}, s{S_T0}, {6*4096}")
    g.A(f"s_add_u32 s{S_REC}, s{S_REC}, {WS_PART}")
    g.A(f"s_and_b32 s{S_T1}, s{S_ROLE}, 1")
    g.A(f"s_lshl_b32 s{S_T1}, s{S_T1}, 11")
    for s in range(6):
        g.A(f"s_add_u32 s{S_OFF+s}, s{S_REC}, s{S_T1}")
        g.A(f"s_add_u32 s{S_OFF+s}, s{S_OFF+s}, {s*4096}")
    V_PO, V_ML, V_AOW, V_AFO = 18, 19, 20, 21
    g.A(f"s_and_b32 s{S_T1}, s{S_WAVE}, 1")
    g.A(f"s_lshl_b32 s{S_T1}, s{S_T1}, 6")
    g.A(f"v_add_u32 v{T}, s{S_T1}, v{H_LANE}")
    g.A(f"v_lshlrev_b32 v{V_PO}, 4, v{T}")
    g.A(f"s_lshr_b32 s{S_T1}, s{S_WAVE}, 1")
    g.A(f"s_mul_i32 s{S_T1}, s{S_T1}, {ROWO}")
    g.A(f"v_lshlrev_b32 v{V_AOW}, 1, v{T}")
    g.A(f"v_add_u32 v{V_AOW}, s{S_T1}, v{V_AOW}")
    g.A(f"v_and_b32 v{T}, 7, v{H_LANE}")
    g.A(f"v_min_u32 v{T}, 5, v{T}")
    g.A(f"v_lshlrev_b32 v{V_ML}, 12, v{T}")
    g.A(f"v_lshrrev_b32 v{T}, 2, v{H_LANE}")
    g.A(f"v_and_b32 v{T}, 1, v{T}")
    g.A(f"v_mul_u32_u24 v{V_AFO}, {ROWO}, v{T}")
    g.A(f"v_lshrrev_b32 v{T}, 4, v{H_LANE}")
    g.A(f"v_lshl_add_u32 v{V_AFO}, v{T}, 4, v{V_AFO}")
    stamp(g, cfg, 5)
    def heads_wait(sreg_w):
        g.A(f"s_lshl_b32 s{S_X0+5}, s{sreg_w}, 6")
        g.A(f"s_add_u32 s{S_X0+5}, s{S_X0+5}, {WS_HEADS}")
        g.A(f"v_mov_b32 v{T+2}, 0")
        def loads():
            g.A(f"buffer_load_dwordx2 {vr(T+4,2)}, v{T+2}, {WSR}, s{S_X0+5} offen sc1")
        poll_loop(g, cfg, loads, [T + 4, T + 5], T, sleep=cfg.HSLEEP)
    if cfg.X_LOADONLY:
        g.A("s_endpgm")
    g.A(f"s_lshr_b32 s{S_T1}, s{S_ROLE}, 1")
    g.A(f"s_mul_i32 s{S_T1}, s{S_T1}, 6")
    heads_wait(S_T1)
    stamp(g, cfg, 6)
    PL = H_ST
    items = []
    for sidx in range(6):
        items.append(((lambda sidx=sidx: g.A(f"buffer_load_dwordx4 {vr(PL + 4*sidx, 4)}, v{V_PO}, {WSR}, s{S_OFF+sidx} offen sc1")), [PL + 4*sidx + 1, PL + 4*sidx + 3]))
    masked_poll(g, cfg, items, None, idle_sleep=cfg.IDLE, trace=16)
    lazy(g, cfg, 0, 2)
    if cfg.LAZY != 2: stamp(g, cfg, 7)
    LM = lambda sidx: PL + 4 * sidx + 2
    g.A(f"v_max3_f32 v{T}, v{LM(0)}, v{LM(1)}, v{LM(2)}")
    g.A(f"v_max3_f32 v{T}, v{LM(3)}, v{LM(4)}, v{T}")
    g.A(f"v_max_f32 v{T}, v{LM(5)}, v{T}")
    for sidx in range(6):
        g.A(f"v_sub_f32 v{LM(sidx)}, v{LM(sidx)}, v{T}")
    for sidx in range(6):
        g.A(f"v_exp_f32 v{LM(sidx)}, v{LM(sidx)}")
    g.A(f"v_add_f32 v{T+1}, v{LM(0)}, v{LM(1)}")
    g.A(f"v_mul_f32 v{T}, v{LM(0)}, v{PL}")
    g.A(f"v_add_f32 v{T+2}, v{LM(2)}, v{LM(3)}")
    g.A(f"v_fmac_f32 v{T}, v{LM(1)}, v{PL+4}")
    g.A(f"v_add_f32 v{T+3}, v{LM(4)}, v{LM(5)}")
    g.A(f"v_fmac_f32 v{T}, v{LM(2)}, v{PL+8}")
    g.A(f"v_add_f32 v{T+1}, v{T+1}, v{T+2}")
    g.A(f"v_fmac_f32 v{T}, v{LM(3)}, v{PL+12}")
    g.A(f"v_add_f32 v{T+1}, v{T+1}, v{T+3}")
    g.A(f"v_fmac_f32 v{T}, v{LM(4)}, v{PL+16}")
    g.A(f"v_rcp_f32 v{T+1}, v{T+1}")
    g.A(f"v_fmac_f32 v{T}, v{LM(5)}, v{PL+20}")
    g.A(f"v_mul_f32 v{T}, v{T}, v{T+1}")
    g.A(f"v_cvt_pk_bf16_f32 v{T}, v{T}, v{T}")
    g.A(f"ds_write_b16 v{V_AOW}, v{T} offset:{L_ACTO}")
    g.A("s_waitcnt lgkmcnt(0)")
    g.A("s_barrier")
    lazy(g, cfg, 1, 2)
    AFO = [4, 8, 12, 24]
    for kb in range(4):
        g.A(f"ds_read_b128 {vr(AFO[kb], 4)}, v{V_AFO} offset:{L_ACTO + kb*64}")
    for kb in range(4):
        g.A(f"s_waitcnt lgkmcnt({3-kb})")
        mfma8(g, AFO[kb], H_FR + 32 * kb, kb == 0)
    lazy(g, cfg, 2, 2)
    def publish_rec(base_const, sidx):
        g.A(f"s_lshl_b32 s{S_T0}, s{sidx}, 13")
        g.A(f"s_lshl_b32 s{S_T1}, s{S_WAVE}, 11")
        g.A(f"s_add_u32 s{S_T0}, s{S_T0}, s{S_T1}")
        g.A(f"s_add_u32 s{S_T0}, s{S_T0}, {base_const}")
        g.A(f"v_lshlrev_b32 v{T}, 4, v{H_LANE}")
        g.A("s_nop 4")
        for p in range(4):
            a0 = H_ACC + 8 * p
            g.A(f"v_mov_b32 v{a0+2}, v{a0+4}")
            g.A(f"v_mov_b32 v{a0+1}, s{S_TAG}")
            g.A(f"v_mov_b32 v{a0+3}, s{S_TAG}")
        g.A("s_mov_b32 exec_lo, -1")
        g.A("s_mov_b32 exec_hi, 0")
        for p in range(4):
            g.A(f"buffer_store_dwordx4 {vr(H_ACC + 8*p, 4)}, v{T}, {WSR}, s{S_T0} offen offset:{p*512} sc1")
        exec_all(g)
    publish_rec(WS_Y, S_ROLE)
    lazy(g, cfg, 3, 2)
    dbgt(g, cfg, 7, 28, 192, 0)
    dbgt(g, cfg, 8, 28, 210, 0)
    stamp(g, cfg, 8)
    lazy_flush(g, cfg, 4, 21, 2)
    g.A("s_endpgm")

    g.L("L_rf")
    S_K = S_X0 + 4
    g.A(f"s_sub_u32 s{S_K}, s{S_ROLE}, 32")
    V_WGU, V_WD = 17, 18
    nof = g.lab("nofw")
    g.A(f"s_cmp_ge_u32 s{S_K}, 28")
    g.A(f"s_cbranch_scc1 {nof}")
    g.A(f"v_lshrrev_b32 v{T}, 4, v{H_LANE}")
    g.A(f"v_lshlrev_b32 v{T}, 3, v{T}")
    g.A(f"s_lshl_b32 s{S_T0}, s{S_WAVE}, 5")
    g.A(f"v_add_u32 v{T}, s{S_T0}, v{T}")
    g.A(f"v_mul_u32_u24 v{V_WGU}, 3584, v{T}")
    g.A(f"v_and_b32 v{T}, 7, v{H_LANE}")
    g.A(f"v_lshl_add_u32 v{V_WGU}, v{T}, 4, v{V_WGU}")
    g.A(f"s_lshl_b32 s{S_T2}, s{S_K}, 7")
    g.A(f"s_sub_u32 s{S_X0+1}, {448*3584}, s{S_T2}")
    set_srd(g, SRD_A, P_WG, off_sreg=S_T2, nbytes_sreg=S_X0 + 1)
    set_srd(g, SRD_B, P_WU, off_sreg=S_T2, nbytes_sreg=S_X0 + 1)
    g.A(f"s_mul_i32 s{S_T2}, s{S_K}, {64*896}")
    g.A(f"s_sub_u32 s{S_X0+1}, {1792*896}, s{S_T2}")
    set_srd(g, SRD_C, P_WD, off_sreg=S_T2, nbytes_sreg=S_X0 + 1)
    woff128(V_WD)
    def gu_unit(it, st):
        dst = H_ST + 32 * st
        g.A("s_mov_b32 exec_lo, 0x00ff00ff"); g.A("s_mov_b32 exec_hi, 0x00ff00ff")
        unit_loads(g, dst, SRD_A, V_WGU, [e * 3584 + it * 128 * 3584 for e in range(8)], NT)
        g.A("s_mov_b32 exec_lo, 0xff00ff00"); g.A("s_mov_b32 exec_hi, 0xff00ff00")
        unit_loads(g, dst, SRD_B, V_WGU, [e * 3584 + it * 128 * 3584 for e in range(8)], NT)
        exec_all(g)
    def wd_unit(kb, st):
        unit_loads(g, H_ST + 32 * st, SRD_C, V_WD, [(kb * 32 + e) * 896 for e in range(8)], NT)
    if not cfg.X_SKIPFW:
        gu_unit(0, 0); gu_unit(1, 1)
        g.A("s_waitcnt vmcnt(16)"); transpose_unit(g, H_ST, H_FR)
        gu_unit(2, 0)
        g.A("s_waitcnt vmcnt(16)"); transpose_unit(g, H_ST + 32, H_FR + 32)
        gu_unit(3, 1)
        g.A("s_waitcnt vmcnt(16)"); transpose_unit(g, H_ST, H_FR + 64)
        wd_unit(0, 0)
        g.A("s_waitcnt vmcnt(8)"); transpose_unit(g, H_ST + 32, H_FR + 96)
        wd_unit(1, 1)
        g.A("s_waitcnt vmcnt(8)"); transpose_unit(g, H_ST, 0, dst_acc=True, tmp=T)
        g.A("s_waitcnt vmcnt(0)"); transpose_unit(g, H_ST + 32, 32, dst_acc=True, tmp=T)
    FSH, FSC, FLD, FLN = 192, 200, 208, 224
    skip = g.lab("nosb")
    g.A(f"s_cmp_ge_u32 s{S_WAVE}, 2")
    g.A(f"s_cbranch_scc1 {skip}")
    g.A(f"s_mul_i32 s{S_X0+3}, s{S_B}, {1344*8}")
    g.A(f"s_add_u32 s{S_X0+3}, s{S_X0+3}, {WS_MOD + 672*8}")
    exec56(g)
    gather_shift_scale(g, cfg, S_X0 + 3, V_G32, FLD, FSH, FSC, T)
    exec_all(g)
    g.L(skip)
    g.L(nof)
    V_RO, V_CX, V_XR, V_GA, V_GB, V_X2 = 25, 26, 232, 234, 236, 238
    RL = 32
    S_CB, S_CC = S_X0 + 6, S_X0 + 7
    skipr = g.lab("nor0")
    g.A(f"s_and_b32 s{S_CB}, s{S_K}, 1")
    g.A(f"s_lshr_b32 s{S_T0}, s{S_K}, 3")
    g.A(f"s_lshl_b32 s{S_T0}, s{S_T0}, 7")
    g.A(f"s_lshr_b32 s{S_T1}, s{S_K}, 1")
    g.A(f"s_and_b32 s{S_T1}, s{S_T1}, 3")
    g.A(f"s_lshl_b32 s{S_T1}, s{S_T1}, 1")
    g.A(f"s_add_u32 s{S_CC}, s{S_T0}, s{S_T1}")
    g.A(f"v_and_b32 v{T}, 15, v{H_LANE}")
    g.A(f"v_lshlrev_b32 v{V_CX}, 3, v{T}")
    g.A(f"v_add_u32 v{V_CX}, s{S_CC}, v{V_CX}")
    g.A(f"v_lshrrev_b32 v{T+1}, 4, v{H_LANE}")
    g.A(f"v_lshlrev_b32 v{V_RO}, 13, v{T+1}")
    g.A(f"v_lshl_add_u32 v{V_RO}, v{T}, 4, v{V_RO}")
    g.A(f"v_cmp_gt_u32 vcc, 448, v{V_CX}")
    g.A(f"s_mov_b64 s[{S_MSK}:{S_MSK+1}], vcc")
    g.A(f"s_cmp_lt_u32 s{S_WAVE}, {cfg.RW0}")
    g.A(f"s_cbranch_scc1 {skipr}")
    g.A(f"s_mov_b64 exec, s[{S_MSK}:{S_MSK+1}]")
    set_srd(g, SRD_A, P_X, nbytes=1792)
    g.A(f"s_mul_i32 s{S_T0}, s{S_CB}, 896")
    g.A(f"v_lshlrev_b32 v{T+2}, 1, v{V_CX}")
    g.A(f"buffer_load_dword v{T+6}, v{T+2}, s[{SRD_A}:{SRD_A+3}], s{S_T0} offen")
    g.A(f"s_mul_i32 s{S_X0+8}, s{S_CB}, {1344*8}")
    g.A(f"s_add_u32 s{S_X0+8}, s{S_X0+8}, {WS_MOD + 896*4}")
    g.A(f"s_add_u32 s{S_X0+9}, s{S_X0+8}, {(2240-896)*4}")
    g.A(f"v_lshlrev_b32 v{T+3}, 2, v{V_CX}")
    def gl():
        g.A(f"buffer_load_dwordx2 {vr(T+8,2)}, v{T+3}, {WSR}, s{S_X0+8} offen sc1")
        g.A(f"buffer_load_dwordx2 {vr(T+10,2)}, v{T+3}, {WSR}, s{S_X0+9} offen sc1")
    poll_loop(g, cfg, gl, [T + 9, T + 11], T, sleep=1)
    unpack_pairs(g, [T + 6], [V_XR, V_XR + 1])
    unpack_pairs(g, [T + 8], [V_GA, V_GA + 1])
    unpack_pairs(g, [T + 10], [V_GB, V_GB + 1])
    exec_all(g)
    g.L(skipr)
    stamp(g, cfg, 5)
    if cfg.X_LOADONLY:
        g.A("s_endpgm")
    g.A(f"s_mul_i32 s{S_T1}, s{S_K}, 6")
    heads_wait(S_T1)
    stamp(g, cfg, 6)
    def rec_gather(base_const, nit, idle):
        g.A(f"s_lshl_b32 s{S_X0+5}, s{S_K}, 8")
        g.A(f"s_add_u32 s{S_X0+5}, s{S_X0+5}, {base_const}")
        for it in range(nit):
            g.A(f"s_add_u32 s{S_OFF+it}, s{S_X0+5}, {it*32768}")
        items = [((lambda it=it: g.A(f"buffer_load_dwordx4 {vr(RL + 4*it, 4)}, v{V_RO}, {WSR}, s{S_OFF+it} offen sc1")), [RL + 4*it + 1, RL + 4*it + 3]) for it in range(nit)]
        masked_poll(g, cfg, items, None, idle_sleep=idle, trace=(16 if nit == 8 else 21))
        for o in (0, 2):
            for it in range(1, nit):
                g.A(f"v_add_f32 v{RL+o}, v{RL+o}, v{RL+4*it+o}")
        for swap in ("v_permlane16_swap_b32", "v_permlane32_swap_b32"):
            g.A(f"v_mov_b32 v{RL+1}, v{RL}")
            g.A(f"v_mov_b32 v{RL+3}, v{RL+2}")
            g.A("s_nop 1")
            g.A(f"{swap} v{RL}, v{RL+1}")
            g.A(f"{swap} v{RL+2}, v{RL+3}")
            g.A("s_nop 1")
            g.A(f"v_add_f32 v{RL}, v{RL}, v{RL+1}")
            g.A(f"v_add_f32 v{RL+2}, v{RL+2}, v{RL+3}")
        g.A(f"v_mov_b32 v{RL+1}, v{RL+2}")
    def resid(base_x, gate, out):
        bf16_round_pairs(g, [RL, RL + 1], T)
        g.A(f"v_mul_f32 v{RL}, v{RL}, v{gate}")
        g.A(f"v_mul_f32 v{RL+1}, v{RL+1}, v{gate+1}")
        bf16_round_pairs(g, [RL, RL + 1], T)
        g.A(f"v_add_f32 v{RL}, v{RL}, v{base_x}")
        g.A(f"v_add_f32 v{RL+1}, v{RL+1}, v{base_x+1}")
        g.A(f"v_cvt_pk_bf16_f32 v{T}, v{RL}, v{RL+1}")
        if out is not None:
            unpack_pairs(g, [T], [out, out + 1])
    skipr = g.lab("nor1")
    def stagger():
        dn = g.lab("stgd")
        g.A(f"s_cmp_eq_u32 s{S_WAVE}, {cfg.RW0}")
        g.A(f"s_cbranch_scc1 {dn}")
        g.A(f"s_sleep {cfg.STG}")
        g.L(dn)
    g.A(f"s_cmp_lt_u32 s{S_WAVE}, {cfg.RW0}")
    g.A(f"s_cbranch_scc1 {skipr}")
    stagger()
    rec_gather(WS_Y, 8, cfg.IDLE)
    stamp(g, cfg, 7)
    resid(V_XR, V_GA, V_X2)
    g.A(f"v_mov_b32 v{T+1}, s{S_TAG}")
    g.A(f"s_lshl_b32 s{S_T0}, s{S_K}, 7")
    g.A(f"s_add_u32 s{S_T0}, s{S_T0}, {WS_X2}")
    g.A(f"v_lshlrev_b32 v{T+2}, 3, v{H_LANE}")
    g.A(f"s_and_b32 exec_lo, s{S_MSK}, 0xffff")
    g.A("s_mov_b32 exec_hi, 0")
    for rep in range(NREP_X):
        g.A(f"buffer_store_dwordx2 {vr(T,2)}, v{T+2}, {WSR}, s{S_T0} offen sc1")
        if rep + 1 < NREP_X:
            g.A(f"s_add_u32 s{S_T0}, s{S_T0}, 4096")
    exec_all(g)
    g.L(skipr)
    stamp(g, cfg, 8)
    nof2 = g.lab("nof2")
    g.A(f"s_cmp_ge_u32 s{S_K}, 28")
    g.A(f"s_cbranch_scc1 {nof2}")
    skip = g.lab("noln2")
    g.A(f"s_cmp_ge_u32 s{S_WAVE}, 2")
    g.A(f"s_cbranch_scc1 {skip}")
    g.A(f"s_and_b32 s{S_X0+3}, s{S_K}, {NREP_X-1}")
    g.A(f"s_lshl_b32 s{S_X0+3}, s{S_X0+3}, 12")
    g.A(f"s_lshl_b32 s{S_T0}, s{S_B}, 7")
    g.A(f"s_add_u32 s{S_X0+3}, s{S_X0+3}, s{S_T0}")
    g.A(f"s_add_u32 s{S_X0+3}, s{S_X0+3}, {WS_X2}")
    g.A(f"v_lshrrev_b32 v{T+2}, 4, v{H_LANE}")
    g.A(f"v_lshlrev_b32 v{T+2}, 10, v{T+2}")
    g.A(f"v_and_b32 v{T+3}, 15, v{H_LANE}")
    g.A(f"v_lshl_add_u32 v27, v{T+3}, 3, v{T+2}")
    g.A(f"s_mov_b32 s{S_X0+8}, -1")
    g.A(f"s_mov_b32 s{S_X0+9}, 0x00ffffff")
    items = [((lambda p=p: g.A(f"buffer_load_dwordx2 {vr(FLD + 2*p, 2)}, v27, {WSR}, s{S_X0+3} offen offset:{256*p} sc1")), [FLD + 2*p + 1]) for p in range(4)]
    masked_poll(g, cfg, items, S_X0 + 8, idle_sleep=cfg.IDLE, trace=16)
    exec_all(g)
    lazy(g, cfg, 0, 2)
    if cfg.LAZY != 2: stamp(g, cfg, 9)
    XF = FLD + 8
    unpack_pairs(g, [FLD, FLD + 2, FLD + 4, FLD + 6], [XF + e for e in range(8)])
    ln_normalize(g, XF, FLN, T)
    exec56(g)
    modulate_write(g, FLN, FSH, FSC, V_ACTW, L_ACTH, T)
    exec_all(g)
    g.L(skip)
    g.A("s_waitcnt lgkmcnt(0)")
    g.A("s_barrier")
    lazy(g, cfg, 1, 2)
    g.A(f"v_lshrrev_b32 v{T}, 2, v{H_LANE}")
    g.A(f"v_and_b32 v{T}, 1, v{T}")
    g.A(f"v_mul_u32_u24 v{T+1}, {ROWB}, v{T}")
    g.A(f"v_lshrrev_b32 v{T}, 4, v{H_LANE}")
    g.A(f"v_lshl_add_u32 v{T+1}, v{T}, 4, v{T+1}")
    g.A(f"s_lshl_b32 s{S_T0}, s{S_WAVE}, 6")
    g.A(f"v_add_u32 v{T+1}, s{S_T0}, v{T+1}")
    AFF = FLD
    for it in range(4):
        g.A(f"ds_read_b128 {vr(AFF + 4*it, 4)}, v{T+1} offset:{L_ACTH + it*256}")
    for it in range(3):
        g.A(f"s_waitcnt lgkmcnt({3-it})")
        mfma8(g, AFF + 4 * it, H_FR + 32 * it, it == 0)
    sk = g.lab("f4")
    g.A("s_waitcnt lgkmcnt(0)")
    g.A(f"s_cmp_ge_u32 s{S_WAVE}, 2")
    g.A(f"s_cbranch_scc1 {sk}")
    mfma8(g, AFF + 12, H_FR + 96, False)
    g.L(sk)
    g.A("s_nop 7")
    red_write(g, 20)
    g.A("s_waitcnt lgkmcnt(0)")
    g.A("s_barrier")
    lazy(g, cfg, 2, 2)
    sk = g.lab("f5")
    g.A(f"s_cmp_lg_u32 s{S_WAVE}, 0")
    g.A(f"s_cbranch_scc1 {sk}")
    g.A(f"v_add_u32 v{T}, 32, v21")
    RD2 = FLD
    red_read(g, 21, T, RD2)
    bf16_round_pairs(g, [RD2, RD2 + 1], T)
    bf16_round_pairs(g, [RD2 + 8, RD2 + 9], T)
    g.A(f"s_mov_b32 s{S_T0}, {f2u(-LOG2E):#x}")
    for o in range(2):
        g.A(f"v_mul_f32 v{RD2+o}, s{S_T0}, v{RD2+o}")
    for o in range(2):
        g.A(f"v_exp_f32 v{RD2+o}, v{RD2+o}")
    g.A("s_nop 0")
    for o in range(2):
        g.A(f"v_add_f32 v{RD2+o}, 1.0, v{RD2+o}")
    for o in range(2):
        g.A(f"v_rcp_f32 v{RD2+o}, v{RD2+o}")
    g.A("s_nop 0")
    bf16_round_pairs(g, [RD2, RD2 + 1], T)
    for o in range(2):
        g.A(f"v_mul_f32 v{RD2+o}, v{RD2+o}, v{RD2+8+o}")
    g.A(f"v_cvt_pk_bf16_f32 v{T}, v{RD2}, v{RD2+1}")
    g.A(f"v_lshrrev_b32 v{T+1}, 5, v{H_LANE}")
    g.A(f"v_mul_u32_u24 v{T+1}, {ROWO}, v{T+1}")
    g.A(f"v_and_b32 v{T+2}, 31, v{H_LANE}")
    g.A(f"v_lshl_add_u32 v{T+1}, v{T+2}, 2, v{T+1}")
    g.A(f"ds_write_b32 v{T+1}, v{T} offset:{L_ACTO}")
    g.L(sk)
    g.A("s_waitcnt lgkmcnt(0)")
    g.A("s_barrier")
    lazy(g, cfg, 3, 2)
    g.A(f"v_lshrrev_b32 v{T}, 2, v{H_LANE}")
    g.A(f"v_and_b32 v{T}, 1, v{T}")
    g.A(f"v_mul_u32_u24 v{T+1}, {ROWO}, v{T}")
    g.A(f"v_lshrrev_b32 v{T}, 4, v{H_LANE}")
    g.A(f"v_lshl_add_u32 v{T+1}, v{T}, 4, v{T+1}")
    for kb in range(2):
        g.A(f"ds_read_b128 {vr(AFF + 4*kb, 4)}, v{T+1} offset:{L_ACTO + kb*64}")
    for kb in range(2):
        g.A(f"s_waitcnt lgkmcnt({1-kb})")
        mfma8(g, AFF + 4 * kb, 32 * kb, kb == 0, frag_acc=True)
    publish_rec(WS_DN, S_K)
    lazy(g, cfg, 4, 2)
    stamp(g, cfg, 10)
    lazy_flush(g, cfg, 5, 21, 2)
    g.L(nof2)
    g.A(f"s_cmp_lt_u32 s{S_WAVE}, {cfg.RW0}")
    g.A("s_cbranch_scc1 L_exit")
    stagger()
    rec_gather(WS_DN, 7, 0)
    stamp(g, cfg, 11)
    resid(V_X2, V_GB, None)
    set_srd(g, SRD_A, P_OUT, nbytes=1792)
    g.A(f"s_mul_i32 s{S_T0}, s{S_CB}, 896")
    g.A(f"v_lshlrev_b32 v{T+2}, 1, v{V_CX}")
    g.A(f"s_and_b32 exec_lo, s{S_MSK}, 0xffff")
    g.A("s_mov_b32 exec_hi, 0")
    g.A(f"buffer_store_dword v{T}, v{T+2}, s[{SRD_A}:{SRD_A+3}], s{S_T0} offen{cfg.OUTF}")
    dbgt(g, cfg, 0, 28, 224, cfg.RW0)
    dbgt(g, cfg, 11, 28, 240, cfg.RW0)
    g.A(f"s_cmp_lg_u32 s{S_K}, 0")
    g.A("s_cbranch_scc1 L_exit")
    g.A(f"s_cmp_lg_u32 s{S_WAVE}, {cfg.RW0}")
    g.A("s_cbranch_scc1 L_exit")
    g.A("s_mov_b64 exec, 1")
    g.A(f"v_mov_b32 v{T+3}, s{S_TAG}")
    g.A(f"v_mov_b32 v{T+4}, 0")
    g.A(f"buffer_store_dword v{T+3}, v{T+4}, {WSR}, 0 offen sc1")
    stamp(g, cfg, 12)

def generate(cfg, header_src=None):
    g = G()
    g.A(f"s_cmp_ge_u32 s{S_WG}, {cfg.NSTREAM + cfg.NHELP}")
    g.A("s_cbranch_scc1 L_exit")
    if cfg.STAMPS:
        g.A("s_memrealtime s[84:85]")
    if cfg.DBGT:
        g.A("s_memrealtime s[92:93]")
    g.A("s_load_dwordx16 s[16:31], s[0:1], 0")
    g.A("s_load_dwordx8 s[32:39], s[0:1], 64")
    g.A("s_load_dwordx4 s[40:43], s[0:1], 96")
    g.A("v_lshrrev_b32 v1, 6, v0")
    g.A("v_and_b32 v0, 63, v0")
    g.A(f"s_cmp_lt_u32 s{S_WG}, {cfg.NSTREAM}")
    g.A(f"v_readfirstlane_b32 s{S_WAVE}, v1")
    g.A("s_cbranch_scc0 L_helper0")
    g.A("s_nop 2")
    cfg.STAMP_V = 116
    emit_streamer(g, cfg)
    cfg.STAMP_V = 28
    g.L("L_helper0")
    g.A("v_mov_b32 v2, 0")
    g.A("s_waitcnt lgkmcnt(0)")
    set_srd(g, SRD_WS, P_WS, nbytes=WS_SIZE)
    g.A(f"buffer_load_dword v1, v2, s[{SRD_WS}:{SRD_WS+3}], 0 offen sc1")
    entry_stamp(g, cfg)
    emit_helper(g, cfg)
    g.L("L_exit")
    g.A("s_endpgm")
    g.L("L_codeend")
    hdr = open("adaLN_cond__mha_block_cached__glu_gated_glu__decode.s.ref").read().split("\n")
    head = []
    for line in hdr:
        if line.startswith("; @launch"):
            head.append(f"; @launch grid=({cfg.NSTREAM + cfg.NHELP},1,1) block=(256,1,1) lds={LDS_BYTES}")
            break
        head.append(line)
    txt = "\n".join(head) + "\n"
    txt += '.amdgcn_target "amdgcn-amd-amdhsa--gfx950"\n.text\n'
    txt += f".globl {KNAME}\n.p2align 8\n.type {KNAME},@function\n{KNAME}:\n"
    txt += "\n".join(g.o) + "\n"
    txt += f""".section .rodata,"a"
.p2align 6
.amdhsa_kernel {KNAME}
  .amdhsa_next_free_vgpr 512
  .amdhsa_next_free_sgpr 102
  .amdhsa_accum_offset 256
  .amdhsa_group_segment_fixed_size 0
  .amdhsa_kernarg_size 112
  .amdhsa_user_sgpr_count 2
  .amdhsa_user_sgpr_kernarg_segment_ptr 1
  .amdhsa_system_sgpr_workgroup_id_x 1
  .amdhsa_float_denorm_mode_32 3
.end_amdhsa_kernel
"""
    return txt

if __name__ == "__main__":
    import argparse
    ap = argparse.ArgumentParser()
    ap.add_argument("-o", default="k.s")
    ap.add_argument("--stamps", action="store_true")
    ap.add_argument("--set", nargs="*", default=[])
    a = ap.parse_args()
    cfg = Cfg()
    cfg.STAMPS = a.stamps
    for kv in a.set:
        k, v = kv.split("=")
        if isinstance(getattr(cfg, k), str): v = (" " + v.replace("_", " ")) if v else ""
        setattr(cfg, k, type(getattr(cfg, k))(v) if not isinstance(getattr(cfg, k), bool) else v in ("1", "True"))
    open(a.o, "w").write(generate(cfg))
    print("wrote", a.o)
```

```python
import sys

KNAME = "adaLN_cond__mha_block_cached__glu_gated_glu__decode_kernel"

class Cfg:
    NS = 6
    NSTREAM = 192
    NHELP = 64
    P = 12
    DMIN = 4
    W1 = 16
    NG = 22
    STAMPS = False
    POLLMAX = 200000
    HEADS_STEP = 41
    NT = " nt"
    NTW = " nt"
    CODEPF = True
    STAMP_V = 28
    LAZY = 0
    LATEF = True
    WDEARLY = False
    LATEWO = False
    HEADS3 = 38
    HEADS2 = 38
    LATEOFF = 8
    OUTF = " sc0 sc1"
    X_SKIPFW = False
    X_SKIPWO = False
    POLL_VT = 4
    WCONT = False
    BAL = True
    DBGT = False
    RPK = 3
    RPGAP = 7
    RW0 = 2
    IDLE = 8
    STG = 10
    RPGAP2 = 10
    X_LOADONLY = False
    HSLEEP = 16
    CAPG = 4
    QBACK = 1
    SHRINK = 2
    X_NOHELP = False
    X_NOEPIW = False
    CODEPF2 = False

WS_EPOCH = 0
WS_HEADS = 0x1000
WS_MOD = 0x4000
WS_QB = 0xA000
WS_X2 = 0x12000
NREP_X = 4
WS_PART = 0x20000
WS_Y = 0x100000
WS_DN = 0x140000
WS_STAMP = 0x180000
WS_SIZE = 0x200000

ROWB = 1152
L_ACTS = 0
L_ACTH = 2 * ROWB
L_ACTO = 4 * ROWB
ROWO = 320
L_RED = 4 * ROWB + 2 * ROWO + 128
L_RED = (L_RED + 255) // 256 * 256
L_FX = 16384
LDS_BYTES = L_FX + 14 * 8192
L_OW = 0
L_ML = 4096

LOG2E = 1.4426950408889634

import struct
def f2u(x):
    return struct.unpack("<I", struct.pack("<f", x))[0]

class G:
    def __init__(self):
        self.o = []
        self.nlab = 0
    def A(self, s):
        self.o.append("    " + s)
    def L(self, name):
        self.o.append(name + ":")
    def lab(self, base):
        self.nlab += 1
        return f"L_{base}_{self.nlab}"
    def C(self, s):
        self.o.append("    ; " + s)

def vr(b, n=1):
    return f"v{b}" if n == 1 else f"v[{b}:{b+n-1}]"
def ar(b, n=1):
    return f"a{b}" if n == 1 else f"a[{b}:{b+n-1}]"
def sr(b, n=1):
    return f"s{b}" if n == 1 else f"s[{b}:{b+n-1}]"

S_WG, S_WAVE, S_ROLE = 2, 3, 4
S_T0, S_T1, S_T2 = 5, 6, 7
SRD_A, SRD_B = 8, 12
P_X, P_K, P_V, P_WQ, P_WO, P_BX, P_WG, P_WU, P_WD, P_C, P_WMOD, P_OUT, P_DBG, P_WS = 16, 18, 20, 22, 24, 26, 28, 30, 32, 34, 36, 38, 40, 42
S_TAG, S_CNT = 44, 45
S_SAVE = 46
SRD_C = 48
SRD_WS = 52
S_OFF = 56
S_SEL0, S_SEL1 = 64, 65
S_MSK = 66
S_X0 = 74
S_STAMP = 88
S_STB = 87
S_MISS = 16
S_PF = 46

def stamp(g, cfg, idx):
    if not cfg.STAMPS:
        return
    g.A(f"s_memrealtime s[{S_STAMP}:{S_STAMP+1}]")
    g.A("s_waitcnt lgkmcnt(0)")
    g.A(f"s_mov_b64 s[100:101], exec")
    g.A("s_mov_b64 exec, 1")
    sv = cfg.STAMP_V
    g.A(f"v_mov_b32 v{sv}, s{S_STAMP}")
    g.A(f"v_mov_b32 v{sv+1}, s{S_STAMP+1}")
    g.A(f"v_mov_b32 v{sv+2}, s{S_STB}")
    g.A(f"buffer_store_dwordx2 v[{sv}:{sv+1}], v{sv+2}, s[{SRD_WS}:{SRD_WS+3}], 0 offen offset:{idx*8}")
    g.A(f"s_mov_b64 exec, s[100:101]")

def lazy(g, cfg, i, mode=1):
    if cfg.STAMPS and cfg.LAZY == mode:
        g.A(f"s_memrealtime s[{90+2*i}:{91+2*i}]")
def lazy_flush(g, cfg, n, idx0, mode=1):
    if not (cfg.STAMPS and cfg.LAZY == mode):
        return
    g.A("s_waitcnt lgkmcnt(0)")
    g.A(f"s_mov_b64 s[100:101], exec")
    g.A("s_mov_b64 exec, 1")
    sv = cfg.STAMP_V
    for i in range(n):
        g.A(f"v_mov_b32 v{sv}, s{90+2*i}")
        g.A(f"v_mov_b32 v{sv+1}, s{91+2*i}")
        g.A(f"v_mov_b32 v{sv+2}, s{S_STB}")
        g.A(f"buffer_store_dwordx2 v[{sv}:{sv+1}], v{sv+2}, s[{SRD_WS}:{SRD_WS+3}], 0 offen offset:{(idx0+i)*8}")
        g.A("s_nop 1")
    g.A(f"s_mov_b64 exec, s[100:101]")

def set_srd(g, srd, ptr, off_sreg=None, nbytes=None, nbytes_sreg=None):
    if off_sreg is None:
        g.A(f"s_mov_b32 s{srd}, s{ptr}")
        g.A(f"s_mov_b32 s{srd+1}, s{ptr+1}")
    else:
        g.A(f"s_add_u32 s{srd}, s{ptr}, s{off_sreg}")
        g.A(f"s_addc_u32 s{srd+1}, s{ptr+1}, 0")
    if nbytes_sreg is not None:
        g.A(f"s_mov_b32 s{srd+2}, s{nbytes_sreg}")
    else:
        g.A(f"s_mov_b32 s{srd+2}, {nbytes}")
    g.A(f"s_mov_b32 s{srd+3}, 0x20000")

def code_prefetch(g, cfg, start_label, end_label, backward, voff, vdst, ninstr=1, per_instr=8192):
    if not cfg.CODEPF:
        return
    here = g.lab("pc")
    g.A(f"s_getpc_b64 s[{S_PF}:{S_PF+1}]")
    g.L(here)
    if backward:
        g.A(f"s_sub_u32 s{S_PF}, s{S_PF}, {here}-{start_label}")
        g.A(f"s_subb_u32 s{S_PF+1}, s{S_PF+1}, 0")
    else:
        g.A(f"s_add_u32 s{S_PF}, s{S_PF}, {start_label}-{here}")
        g.A(f"s_addc_u32 s{S_PF+1}, s{S_PF+1}, 0")
    for k in range(ninstr):
        skip = g.lab("nopf")
        g.A(f"s_mov_b32 s{S_T1}, {end_label}-{start_label}")
        g.A(f"v_cmp_gt_u32 vcc, s{S_T1}, v{voff}")
        g.A("s_nop 0")
        g.A("s_and_b64 exec, exec, vcc")
        g.A(f"s_cbranch_execz {skip}")
        g.A(f"global_load_dword v{vdst}, v{voff}, s[{S_PF}:{S_PF+1}]")
        g.L(skip)
        g.A("s_mov_b64 exec, -1")
        if k + 1 < ninstr:
            g.A(f"v_add_u32 v{voff}, {per_instr}, v{voff}")

def entry_stamp(g, cfg):
    if not cfg.STAMPS:
        return
    g.A(f"s_lshl_b32 s{S_STB}, s{S_WG}, 2")
    g.A(f"s_add_u32 s{S_STB}, s{S_STB}, s{S_WAVE}")
    g.A(f"s_lshl_b32 s{S_STB}, s{S_STB}, 8")
    g.A(f"s_add_u32 s{S_STB}, s{S_STB}, {WS_STAMP}")
    g.A(f"s_mov_b64 s[100:101], exec")
    g.A("s_mov_b64 exec, 1")
    sv = cfg.STAMP_V
    g.A(f"v_mov_b32 v{sv}, s84")
    g.A(f"v_mov_b32 v{sv+1}, s85")
    g.A(f"v_mov_b32 v{sv+2}, s{S_STB}")
    g.A(f"buffer_store_dwordx2 v[{sv}:{sv+1}], v{sv+2}, s[{SRD_WS}:{SRD_WS+3}], 0 offen offset:0")
    g.A(f"s_mov_b64 exec, s[100:101]")

def dbgt(g, cfg, idx, vtmp, cond_wg=None, cond_wave=None):
    if not cfg.DBGT:
        return
    sk = g.lab("dbgsk")
    if cond_wg is not None:
        g.A(f"s_cmp_lg_u32 s{S_WG}, {cond_wg}"); g.A(f"s_cbranch_scc1 {sk}")
    if cond_wave is not None:
        g.A(f"s_cmp_lg_u32 s{S_WAVE}, {cond_wave}"); g.A(f"s_cbranch_scc1 {sk}")
    g.A("s_memrealtime s[98:99]")
    g.A("s_waitcnt lgkmcnt(0)")
    g.A("s_sub_u32 s98, s98, s92")
    g.A("s_mov_b64 s[100:101], exec")
    g.A("s_mov_b64 exec, 1")
    g.A(f"v_mov_b32 v{vtmp}, s98")
    g.A(f"v_mov_b32 v{vtmp+1}, {idx*4}")
    g.A(f"global_store_dword v{vtmp+1}, v{vtmp}, s[{P_DBG}:{P_DBG+1}]")
    g.A("s_mov_b64 exec, s[100:101]")
    g.L(sk)

def entry_prefetch(g, cfg, vtmp):
    if cfg.CODEPF:
        g.A(f"s_lshl_b32 s{S_T0}, s{S_WAVE}, 13")
        g.A(f"v_lshlrev_b32 v{vtmp}, 7, v0")
        g.A(f"v_add_u32 v{vtmp}, s{S_T0}, v{vtmp}")
        code_prefetch(g, cfg, KNAME, 'L_codeend', True, vtmp, 31, ninstr=2 if cfg.CODEPF2 else 1, per_instr=32768)

def make_tag(g, vreg):
    g.A(f"v_readfirstlane_b32 s{S_TAG}, v{vreg}")
    g.A("s_nop 3")
    g.A(f"s_mul_i32 s{S_TAG}, s{S_TAG}, 0x19660d")
    g.A(f"s_add_u32 s{S_TAG}, s{S_TAG}, 0x3c6ef35f")

def check_tags(g, tagregs, tmp, ok_label, set_vcc_only=False):
    g.A(f"v_xor_b32 v{tmp}, s{S_TAG}, v{tagregs[0]}")
    for r in tagregs[1:]:
        g.A(f"v_xor_b32 v{tmp+1}, s{S_TAG}, v{r}")
        g.A(f"v_or_b32 v{tmp}, v{tmp}, v{tmp+1}")
    g.A(f"v_cmp_ne_u32 vcc, 0, v{tmp}")
    g.A("s_nop 1")
    g.A(f"s_cbranch_vccz {ok_label}")

def poll_loop(g, cfg, emit_loads, tagregs, tmp, sleep=1):
    top = g.lab("poll"); ok = g.lab("pollok")
    g.A(f"s_mov_b32 s{S_CNT}, 0")
    g.L(top)
    emit_loads()
    g.A("s_waitcnt vmcnt(0)")
    check_tags(g, tagregs, tmp, ok)
    if sleep:
        g.A(f"s_sleep {sleep}")
    g.A(f"s_add_u32 s{S_CNT}, s{S_CNT}, 1")
    g.A(f"s_cmp_lt_u32 s{S_CNT}, {cfg.POLLMAX}")
    g.A(f"s_cbranch_scc1 {top}")
    g.L(ok)

def rolling_poll(g, cfg, emit_loads, nloads, nregs, tag_offs, sets, res, tmp, gap, copy_offs=None):
    K = len(sets)
    if copy_offs is None:
        copy_offs = [r for r in range(nregs) if r not in tag_offs]
    top = g.lab("rp"); done = g.lab("rpdone")
    oks = [g.lab(f"rpok{i}") for i in range(K)]
    g.A(f"s_mov_b32 s{S_CNT}, 0")
    for i in range(K):
        emit_loads(sets[i])
        if i + 1 < K and gap:
            g.A(f"s_sleep {gap}")
    g.L(top)
    for i in range(K):
        g.A(f"s_waitcnt vmcnt({nloads*(K-1)})")
        check_tags(g, [sets[i] + o for o in tag_offs], tmp, oks[i])
        emit_loads(sets[i])
    g.A(f"s_add_u32 s{S_CNT}, s{S_CNT}, 1")
    g.A(f"s_cmp_lt_u32 s{S_CNT}, {cfg.POLLMAX}")
    g.A(f"s_cbranch_scc1 {top}")
    for i in range(K - 1, -1, -1):
        g.L(oks[i])
        for r in copy_offs:
            g.A(f"v_mov_b32 v{res+r}, v{sets[i]+r}")
        if i > 0:
            g.A(f"s_branch {done}")
    g.L(done)

def masked_poll(g, cfg, items, base, idle_sleep=0, busy_sleep=0, trace=None, init=None):
    n = len(items)
    assert n <= 8
    bs = f"s[{base}:{base+1}]" if base is not None else "-1"
    top = g.lab("mp"); done = g.lab("mpdone")
    for i in range(n):
        if init is not None and init[i] is not None:
            g.A(f"s_mov_b32 s{S_MISS+2*i}, {init[i][0]:#x}")
            g.A(f"s_mov_b32 s{S_MISS+2*i+1}, {init[i][1]:#x}")
        else:
            g.A(f"s_mov_b64 s[{S_MISS+2*i}:{S_MISS+2*i+1}], {bs}")
    g.A(f"s_mov_b32 s{S_CNT}, 0")
    g.L(top)
    if trace is not None and cfg.STAMPS and cfg.LAZY == 3:
        g.A("s_waitcnt lgkmcnt(0)")
        g.A("s_mov_b64 s[90:91], s[92:93]")
        g.A("s_mov_b64 s[92:93], s[94:95]")
        g.A("s_memrealtime s[94:95]")
    for i, (ld, tags) in enumerate(items):
        sk = g.lab("mpsk")
        g.A(f"s_mov_b64 exec, s[{S_MISS+2*i}:{S_MISS+2*i+1}]")
        g.A(f"s_cbranch_execz {sk}")
        ld()
        g.L(sk)
    g.A(f"s_mov_b64 exec, {bs}")
    g.A("s_waitcnt vmcnt(0)")
    VT = cfg.POLL_VT
    for i, (ld, tags) in enumerate(items):
        if len(tags) == 2:
            g.A(f"v_bitop3_b32 v{VT+i}, v{tags[0]}, v{tags[1]}, s{S_TAG} bitop3:0x7e")
        elif len(tags) == 3:
            g.A(f"v_bitop3_b32 v{VT+i}, v{tags[0]}, v{tags[1]}, s{S_TAG} bitop3:0x7e")
            g.A(f"v_xor_b32 v{VT+8}, s{S_TAG}, v{tags[2]}")
            g.A(f"v_or_b32 v{VT+i}, v{VT+i}, v{VT+8}")
    for i, (ld, tags) in enumerate(items):
        if len(tags) == 1:
            g.A(f"v_cmp_ne_u32 s[{S_MISS+2*i}:{S_MISS+2*i+1}], s{S_TAG}, v{tags[0]}")
        else:
            g.A(f"v_cmp_ne_u32 s[{S_MISS+2*i}:{S_MISS+2*i+1}], 0, v{VT+i}")
    if n == 1:
        g.A(f"s_cmp_eq_u64 s[{S_MISS}:{S_MISS+1}], 0")
        g.A(f"s_cbranch_scc1 {done}")
    else:
        g.A(f"s_or_b64 s[{S_SAVE}:{S_SAVE+1}], s[{S_MISS}:{S_MISS+1}], s[{S_MISS+2}:{S_MISS+3}]")
        for i in range(2, n):
            g.A(f"s_or_b64 s[{S_SAVE}:{S_SAVE+1}], s[{S_SAVE}:{S_SAVE+1}], s[{S_MISS+2*i}:{S_MISS+2*i+1}]")
        g.A(f"s_cbranch_scc0 {done}")
    if idle_sleep:
        busy = g.lab("mpbusy")
        g.A(f"s_mov_b64 s[{S_SAVE}:{S_SAVE+1}], s[{S_MISS}:{S_MISS+1}]")
        for i in range(1, n):
            g.A(f"s_and_b64 s[{S_SAVE}:{S_SAVE+1}], s[{S_SAVE}:{S_SAVE+1}], s[{S_MISS+2*i}:{S_MISS+2*i+1}]")
        g.A(f"s_cmp_eq_u32 s{S_SAVE}, -1")
        g.A(f"s_cbranch_scc0 {busy}")
        g.A(f"s_sleep {idle_sleep}")
        g.L(busy)
    if busy_sleep:
        g.A(f"s_sleep {busy_sleep}")
    g.A(f"s_add_u32 s{S_CNT}, s{S_CNT}, 1")
    g.A(f"s_cmp_lt_u32 s{S_CNT}, {cfg.POLLMAX}")
    g.A(f"s_cbranch_scc1 {top}")
    g.L(done)
    g.A(f"s_mov_b64 exec, {bs}")
    if trace is not None and cfg.STAMPS and cfg.LAZY == 3:
        g.A("s_memrealtime s[96:97]")
        g.A("s_waitcnt lgkmcnt(0)")
        g.A(f"s_mov_b32 s98, s{S_CNT}")
        g.A("s_mov_b32 s99, 0")
        lazy_flush(g, cfg, 5, trace, 3)
        g.A(f"s_mov_b64 exec, {bs}")

def bf16_round_pairs(g, regs, tmp):
    for i in range(0, len(regs), 2):
        a, b = regs[i], regs[i + 1]
        g.A(f"v_cvt_pk_bf16_f32 v{tmp}, v{a}, v{b}")
        g.A(f"v_lshlrev_b32 v{a}, 16, v{tmp}")
        g.A(f"v_and_b32 v{b}, 0xffff0000, v{tmp}")

def unpack_pairs(g, src, dst):
    for i, s in enumerate(src):
        g.A(f"v_lshlrev_b32 v{dst[2*i]}, 16, v{s}")
        g.A(f"v_and_b32 v{dst[2*i+1]}, 0xffff0000, v{s}")

def wave_sum(g, regs, sdst, op="add"):
    ins = "v_add_f32_dpp" if op == "add" else "v_max_f32_dpp"
    steps = ["row_shr:1", "row_shr:2", "row_shr:4", "row_shr:8"]
    for st in steps:
        for r in regs:
            if op == "add":
                g.A(f"{ins} v{r}, v{r}, v{r} {st} row_mask:0xf bank_mask:0xf bound_ctrl:0")
            else:
                g.A(f"{ins} v{r}, v{r}, v{r} {st} row_mask:0xf bank_mask:0xf")
        if len(regs) < 3:
            g.A(f"s_nop {2 - len(regs)}")
    for st, rm in (("row_bcast:15", "0xa"), ("row_bcast:31", "0xc")):
        for r in regs:
            g.A(f"{ins} v{r}, v{r}, v{r} {st} row_mask:{rm} bank_mask:0xf")
        g.A(f"s_nop {max(0, 2 - len(regs))}")
    for r, s in zip(regs, sdst):
        g.A(f"v_readlane_b32 s{s}, v{r}, 63")

def emit_streamer(g, cfg):
    NG, P, DMIN, W1 = cfg.NG, cfg.P, cfg.DMIN, cfg.W1
    NT = cfg.NT
    V_LANE = 0
    V_OFFK, V_OFFV = 1, 2
    V_M = 3
    V_EP = 7
    V_BQ = 8
    V_S = 40
    V_MAX, V_L = 62, 63
    V_ACC = 64
    V_O = 72
    V_B = 80
    V_T = 88
    V_QL = 96
    V_QOFF = 112
    V_RING2 = 128
    R = P * 8
    NA = min(R, 64)
    assert V_RING2 + 4 * (R - NA) <= 256
    def slot(n):
        s = n % R
        if s < 64:
            return ar(4 * s, 4)
        return vr(V_RING2 + 4 * (s - 64), 4)

    g.L("L_stream")
    g.C("bh = w/6, s = w%6; wave W = 4s+wave owns 4-key sub-groups [W*256/3, (W+1)*256/3) of its (b,h)")
    g.A(f"s_mul_hi_u32 s{S_T0}, s{S_WG}, 0x2aaaaaab")
    g.A(f"s_mul_i32 s{S_T1}, s{S_T0}, 6")
    g.A(f"s_sub_u32 s{S_T1}, s{S_WG}, s{S_T1}")
    BAL = cfg.BAL and not cfg.WCONT
    if cfg.WCONT:
        g.A(f"s_lshl_b32 s{S_T1}, s{S_T1}, 2")
        g.A(f"s_add_u32 s{S_T1}, s{S_T1}, s{S_WAVE}")
    g.A(f"s_lshl_b32 s{S_T2}, s{S_T1}, {10 if BAL else 8}")
    g.A(f"s_mul_hi_u32 s{S_X0}, s{S_T2}, 0x55555556")
    g.A(f"s_add_u32 s{S_T2}, s{S_T2}, {1024 if BAL else 256}")
    g.A(f"s_mul_hi_u32 s{S_X0+1}, s{S_T2}, 0x55555556")
    g.A(f"s_sub_u32 s{S_X0+1}, s{S_X0+1}, s{S_X0}")
    g.A(f"s_lshl_b32 s{S_X0+2}, s{S_T0}, 22")
    SH = 11 if (cfg.WCONT or BAL) else 13
    g.A(f"s_lshl_b32 s{S_X0+3}, s{S_X0}, {SH}")
    g.A(f"s_add_u32 s{S_X0+2}, s{S_X0+2}, s{S_X0+3}")
    g.A(f"s_lshl_b32 s{S_X0+3}, s{S_X0+1}, {SH}")
    S_BH = S_X0 + 4
    g.A(f"s_mov_b32 s{S_BH}, s{S_T0}")
    V_BIAS = 113
    V_LW, V_MLW, V_ZERO, V_LR, V_GO = 114, 115, 119, 120, 121
    S_DH, S_PREC = 66, 86
    T = V_T
    g.A(f"v_lshrrev_b32 v{T}, 2, v{V_LANE}")
    g.A(f"v_and_b32 v{T}, 3, v{T}")
    g.A(f"v_lshlrev_b32 v{V_OFFK}, 9, v{T}")
    g.A(f"v_lshrrev_b32 v{T+1}, 4, v{V_LANE}")
    g.A(f"v_lshl_add_u32 v{V_OFFK}, v{T+1}, 6, v{V_OFFK}")
    g.A(f"v_and_b32 v{T+2}, 3, v{V_LANE}")
    g.A(f"v_lshl_add_u32 v{V_OFFK}, v{T+2}, 4, v{V_OFFK}")
    if not cfg.WCONT:
        g.A(f"s_lshl_b32 s{S_T1}, s{S_WAVE}, 13")
        g.A(f"v_add_u32 v{V_OFFK}, s{S_T1}, v{V_OFFK}")
    g.A("s_waitcnt lgkmcnt(0)")
    set_srd(g, SRD_A, P_K, off_sreg=S_X0 + 2, nbytes_sreg=S_X0 + 3)

    S_SO = S_OFF
    S_LAST, S_N2 = S_X0 + 9, S_X0 + 10
    def nl(gi):
        return 4 if (BAL and gi % NG == NG - 1) else 8
    def issue_group(gi):
        isv = gi >= NG
        i = gi - NG if isv else gi
        srd = SRD_B if isv else SRD_A
        voff = V_OFFV if isv else V_OFFK
        if BAL and i == NG - 1:
            for a in range(2):
                if a == 1:
                    g.A(f"s_mov_b64 exec, s[{S_N2}:{S_N2+1}]")
                for dh in range(2):
                    n = gi * 8 + a * 2 + dh
                    g.A(f"buffer_load_dwordx4 {slot(n)}, v{voff}, s[{srd}:{srd+3}], s{S_LAST} offen offset:{a*2048 + dh*256}{NT}")
            g.A("s_mov_b64 exec, -1")
            return
        for half in range(2):
            g.A(f"s_mov_b32 s{S_SO+half}, {i*(8192 if cfg.WCONT else 32768) + half*4096}")
        for a in range(4):
            for dh in range(2):
                n = gi * 8 + a * 2 + dh
                imm = (a & 1) * 2048 + dh * 256
                g.A(f"buffer_load_dwordx4 {slot(n)}, v{voff}, s[{srd}:{srd+3}], s{S_SO + (a >> 1)} offen offset:{imm}{NT}")

    issue_group(0)
    issue_group(1)
    set_srd(g, SRD_WS, P_WS, nbytes=WS_SIZE)
    g.A(f"v_mov_b32 v{T+4}, 0")
    g.A(f"buffer_load_dword v{V_EP}, v{T+4}, s[{SRD_WS}:{SRD_WS+3}], 0 offen sc1")
    entry_stamp(g, cfg)
    stamp(g, cfg, 1)
    dbgt(g, cfg, 1, 116, 0, 0)
    entry_prefetch(g, cfg, T + 5)
    set_srd(g, SRD_B, P_V, off_sreg=S_X0 + 2, nbytes_sreg=S_X0 + 3)
    if BAL:
        g.A(f"s_sub_u32 s{S_T0}, s{S_X0+1}, {16*(NG-1)}")
        g.A(f"s_add_u32 s{S_T1}, s{S_T0}, 3")
        g.A(f"s_sub_u32 s{S_T1}, s{S_T1}, s{S_WAVE}")
        g.A(f"s_lshr_b32 s{S_T1}, s{S_T1}, 2")
        g.A(f"s_sub_u32 s{S_T0}, s{S_T0}, 4")
        g.A(f"s_min_u32 s{S_T0}, s{S_T0}, s{S_WAVE}")
        g.A(f"s_add_u32 s{S_T0}, s{S_T0}, s{S_WAVE}")
        g.A(f"s_lshl_b32 s{S_T0}, s{S_T0}, 11")
        g.A(f"s_lshl_b32 s{S_T2}, s{S_WAVE}, 13")
        g.A(f"s_sub_u32 s{S_T0}, s{S_T0}, s{S_T2}")
        g.A(f"s_add_u32 s{S_LAST}, s{S_T0}, {16*(NG-1)*2048}")
        g.A(f"s_cmp_eq_u32 s{S_T1}, 2")
        g.A(f"s_cselect_b64 s[{S_N2}:{S_N2+1}], -1, 0")
        g.A(f"v_lshrrev_b32 v{T}, 2, v{V_LANE}")
        g.A(f"v_and_b32 v{T}, 3, v{T}")
    elif cfg.WCONT:
        g.A(f"s_sub_u32 s{S_T1}, s{S_X0+1}, {4*(NG-1)}")
        g.A(f"v_lshrrev_b32 v{T}, 2, v{V_LANE}")
        g.A(f"v_and_b32 v{T}, 3, v{T}")
    else:
        g.A(f"s_sub_u32 s{S_T1}, s{S_X0+1}, {4*(NG-1)}")
        g.A(f"v_mov_b32 v{T}, s{S_WAVE}")
    g.A(f"v_cmp_gt_u32 vcc, s{S_T1}, v{T}")
    g.A(f"v_mov_b32 v{T+1}, 0xff800000")
    g.A(f"v_lshrrev_b32 v{T+2}, 4, v{V_LANE}")
    g.A(f"v_cndmask_b32 v{V_BIAS}, v{T+1}, 0, vcc")
    g.A(f"v_lshlrev_b32 v{V_OFFV}, 9, v{T+2}")
    g.A(f"v_and_b32 v{T+3}, 15, v{V_LANE}")
    g.A(f"v_lshl_add_u32 v{V_OFFV}, v{T+3}, 4, v{V_OFFV}")
    if not cfg.WCONT:
        g.A(f"s_lshl_b32 s{S_T1}, s{S_WAVE}, 13")
        g.A(f"v_add_u32 v{V_OFFV}, s{S_T1}, v{V_OFFV}")
    g.C("PV masks M_t")
    g.A(f"v_and_b32 v{T}, 7, v{V_LANE}")
    g.A(f"v_lshrrev_b32 v{T+1}, 1, v{T}")
    g.A(f"v_and_b32 v{T+2}, 1, v{V_LANE}")
    g.A(f"v_mov_b32 v{T+3}, 0xffff")
    g.A(f"v_mov_b32 v{T+4}, 0xffff0000")
    g.A(f"v_cmp_eq_u32 vcc, 1, v{T+2}")
    g.A("s_nop 1")
    g.A(f"v_cndmask_b32 v{T+3}, v{T+3}, v{T+4}, vcc")
    for t in range(4):
        g.A(f"v_cmp_eq_u32 vcc, {t}, v{T+1}")
        g.A("s_nop 1")
        g.A(f"v_cndmask_b32 v{V_M+t}, 0, v{T+3}, vcc")
    for a in range(4):
        m = 0x000F000F << (4 * a)
        g.A(f"s_mov_b32 s{S_MSK+2*a}, {m:#x}")
        g.A(f"s_mov_b32 s{S_MSK+2*a+1}, {m:#x}")
    g.A(f"v_lshrrev_b32 v{T}, 4, v{V_LANE}")
    g.A(f"v_and_b32 v{T+1}, 3, v{V_LANE}")
    g.A(f"v_lshl_add_u32 v{T}, v{T}, 2, v{T+1}")
    g.A(f"v_lshlrev_b32 v{V_QOFF}, 5, v{T}")
    S_QB = S_X0 + 6
    g.C("q base: WS_QB + (b*2048 + h*128)*8 ; bh = b*16+h")
    g.A(f"s_lshr_b32 s{S_T0}, s{S_BH}, 4")
    g.A(f"s_and_b32 s{S_T1}, s{S_BH}, 15")
    g.A(f"s_lshl_b32 s{S_T0}, s{S_T0}, 14")
    g.A(f"s_lshl_b32 s{S_T1}, s{S_T1}, 10")
    g.A(f"s_add_u32 s{S_QB}, s{S_T0}, s{S_T1}")
    g.A(f"s_add_u32 s{S_QB}, s{S_QB}, {WS_QB}")
    def q_loads():
        for dh in range(2):
            for k in range(2):
                g.A(f"buffer_load_dwordx4 {vr(V_QL + (dh*2+k)*4, 4)}, v{V_QOFF}, s[{SRD_WS}:{SRD_WS+3}], s{S_QB} offen offset:{dh*512 + k*16} sc1")
    QAT = P - cfg.QBACK
    for gi in range(2, P):
        if gi == QAT:
            q_loads()
        g.A(f"s_waitcnt vmcnt({W1 - 8})")
        if gi == 4:
            make_tag(g, V_EP)
        issue_group(gi)
    stamp(g, cfg, 2)
    tagregs = [V_QL + k * 4 + o for k in range(4) for o in (1, 3)]
    okq = g.lab("qok")
    g.A(f"s_waitcnt vmcnt({(P - QAT) * 8})")
    if not (cfg.X_NOHELP):
        check_tags(g, tagregs, T, okq)
        poll_loop(g, cfg, q_loads, tagregs, T, sleep=2)
    g.L(okq)
    stamp(g, cfg, 3)
    dbgt(g, cfg, 2, 116, 0, 0)
    dbgt(g, cfg, 3, 116, 100, 0)
    for a in range(4):
        for dh in range(2):
            src = [V_QL + (dh * 2) * 4, V_QL + (dh * 2) * 4 + 2, V_QL + (dh * 2 + 1) * 4, V_QL + (dh * 2 + 1) * 4 + 2]
            for r in range(4):
                g.A(f"v_cndmask_b32 v{V_BQ + (a*2+dh)*4 + r}, 0, v{src[r]}, s[{S_MSK+2*a}:{S_MSK+2*a+1}]")
    g.A(f"v_mov_b32 v{V_MAX}, 0xff800000")
    g.A("s_nop 1")

    NTOT = 2 * NG
    def heads_store(off):
        skip = g.lab("nohead")
        g.A(f"s_cmp_lg_u32 s{S_WAVE}, 0")
        g.A(f"s_cbranch_scc1 {skip}")
        g.A(f"s_lshl_b32 s{S_T0}, s{S_WG}, 6")
        g.A(f"s_add_u32 s{S_T0}, s{S_T0}, {WS_HEADS + off}")
        g.A(f"v_mov_b32 v{T}, s{S_TAG}")
        g.A(f"v_mov_b32 v{T+1}, s{S_TAG}")
        g.A(f"v_mov_b32 v{T+2}, 0")
        g.A("s_mov_b64 exec, 1")
        g.A(f"buffer_store_dwordx2 v[{T}:{T+1}], v{T+2}, s[{SRD_WS}:{SRD_WS+3}], s{S_T0} offen sc1")
        g.A("s_mov_b64 exec, -1")
        g.L(skip)
    def I(gi):
        if cfg.SHRINK <= 1:
            return min(NTOT, max(P, gi + DMIN))
        d = max(DMIN, P - (gi + cfg.SHRINK - 1) // cfg.SHRINK)
        return min(NTOT, max(P, gi + d))
    CSC = f2u(0.0625 * LOG2E)
    for gi in range(NTOT):
        n_after = sum(nl(x) for x in range(gi + 1, I(gi)))
        g.A(f"s_waitcnt vmcnt({min(63, n_after)})")
        if gi < NG:
            acc = V_ACC + 4 * (gi & 1)
            for a in range(nl(gi) // 2):
                for dh in range(2):
                    n = gi * 8 + a * 2 + dh
                    c = "0" if (a == 0 and dh == 0) else vr(acc, 4)
                    g.A(f"v_mfma_f32_16x16x32_bf16 {vr(acc,4)}, {slot(n)}, {vr(V_BQ + (a*2+dh)*4, 4)}, {c}")
            nissue = I(gi + 1) - I(gi) if gi + 1 < NTOT else 0
            mark = len(g.o)
            for x in range(nissue):
                if I(gi) + x - gi - 1 > cfg.CAPG:
                    g.A(f"s_waitcnt vmcnt({8*cfg.CAPG - 8})")
                issue_group(I(gi) + x)
            filled = len(g.o) - mark
            if filled < 8:
                g.A(f"s_nop {7 - filled}")
            S = V_S + gi
            g.A(f"v_mov_b32_dpp v{S}, v{acc} quad_perm:[0,0,0,0] row_mask:0xf bank_mask:0xf")
            g.A(f"v_mov_b32_dpp v{T+1}, v{acc+1} quad_perm:[1,1,1,1] row_mask:0xf bank_mask:0xf")
            g.A("s_nop 0")
            g.A(f"v_add_f32_dpp v{S}, v{acc+2}, v{S} quad_perm:[2,2,2,2] row_mask:0xf bank_mask:0xf")
            g.A(f"v_add_f32_dpp v{T+1}, v{acc+3}, v{T+1} quad_perm:[3,3,3,3] row_mask:0xf bank_mask:0xf")
            g.A(f"v_add_f32 v{S}, v{S}, v{T+1}")
            g.A(f"v_cvt_pk_bf16_f32 v{T}, v{S}, v{S}")
            if gi == NG - 1:
                g.A(f"v_lshlrev_b32 v{S}, 16, v{T}")
                g.A(f"v_add_f32 v{S}, v{V_BIAS}, v{S}")
            else:
                g.A(f"v_lshlrev_b32 v{S}, 16, v{T}")
            g.A(f"v_max_f32 v{V_MAX}, v{V_MAX}, v{S}")
            if gi == NG - 1:
                g.C("softmax over this wave's keys")
                g.A("s_nop 1")
                for st in ("row_ror:4", "row_ror:8"):
                    g.A(f"v_max_f32_dpp v{V_MAX}, v{V_MAX}, v{V_MAX} {st} row_mask:0xf bank_mask:0xf")
                    g.A("s_nop 1")
                for st, rm in (("row_bcast:15", "0xa"), ("row_bcast:31", "0xc")):
                    g.A(f"v_max_f32_dpp v{V_MAX}, v{V_MAX}, v{V_MAX} {st} row_mask:{rm} bank_mask:0xf")
                    g.A("s_nop 1")
                g.A(f"v_readlane_b32 s{S_T0}, v{V_MAX}, 63")
                g.A(f"s_mov_b32 s{S_X0+7}, {CSC:#x}")
                g.A("s_nop 1")
                g.A(f"v_mov_b32 v{V_MAX}, s{S_T0}")
                g.A(f"v_mul_f32 v{V_MAX}, s{S_X0+7}, v{V_MAX}")
                g.A(f"v_mov_b32 v{V_L}, 0")
                for i in range(NG):
                    g.A(f"v_fma_f32 v{V_S+i}, v{V_S+i}, s{S_X0+7}, -v{V_MAX}")
                for i in range(NG):
                    g.A(f"v_exp_f32 v{V_S+i}, v{V_S+i}")
                g.A("s_nop 0")
                for i in range(NG):
                    g.A(f"v_add_f32 v{V_L}, v{V_L}, v{V_S+i}")
                    g.A(f"v_cvt_pk_bf16_f32 v{V_S+i}, v{V_S+i}, v{V_S+i}")
                g.A("s_nop 1")
                for st in ("row_ror:4", "row_ror:8"):
                    g.A(f"v_add_f32_dpp v{V_L}, v{V_L}, v{V_L} {st} row_mask:0xf bank_mask:0xf")
                    g.A("s_nop 1")
                for st, rm in (("row_bcast:15", "0xa"), ("row_bcast:31", "0xc")):
                    g.A(f"v_add_f32_dpp v{V_L}, v{V_L}, v{V_L} {st} row_mask:{rm} bank_mask:0xf")
                    g.A("s_nop 1")
                g.A(f"v_readlane_b32 s{S_X0+8}, v{V_L}, 63")
                g.C("addresses for the final combine")
                g.A(f"v_and_b32 v{T}, 8, v{V_LANE}")
                g.A(f"v_cmp_ne_u32 s[{S_DH}:{S_DH+1}], 0, v{T}")
                g.A(f"v_mov_b32 v{V_L}, s{S_X0+8}")
                g.A(f"v_lshlrev_b32 v{T+1}, 4, v{T}")
                g.A(f"v_lshrrev_b32 v{T+2}, 4, v{V_LANE}")
                g.A(f"v_lshl_add_u32 v{T+1}, v{T+2}, 5, v{T+1}")
                g.A(f"v_and_b32 v{T+2}, 7, v{V_LANE}")
                g.A(f"v_add_u32 v{T+1}, v{T+1}, v{T+2}")
                g.A(f"s_lshl_b32 s{S_T0}, s{S_WAVE}, 8")
                g.A(f"v_add_u32 v{T+1}, s{S_T0}, v{T+1}")
                g.A(f"v_lshlrev_b32 v{V_LW}, 2, v{T+1}")
                g.A(f"s_lshl_b32 s{S_T0}, s{S_WAVE}, 3")
                g.A(f"v_mov_b32 v{V_MLW}, s{S_T0}")
                g.A(f"v_mov_b32 v{V_ZERO}, 0")
                g.A(f"s_lshl_b32 s{S_T0}, s{S_WAVE}, 6")
                g.A(f"v_add_u32 v{T}, s{S_T0}, v{V_LANE}")
                g.A(f"v_lshlrev_b32 v{V_LR}, 2, v{T}")
                g.A(f"v_lshlrev_b32 v{V_GO}, 4, v{T}")
                g.A(f"s_lshl_b32 s{S_PREC}, s{S_WG}, 12")
                g.A(f"s_add_u32 s{S_PREC}, s{S_PREC}, {WS_PART}")
                g.A(f"v_mov_b32 v{V_QL+13}, s{S_TAG}")
                g.A(f"v_mov_b32 v{V_QL+15}, s{S_TAG}")
                stamp(g, cfg, 4)
        else:
            i = gi - NG
            Pi = V_S + i
            def build(a):
                bb = V_B + 4 * (a & 1)
                for t in range(4):
                    g.A(f"v_and_b32_dpp v{bb+t}, v{Pi}, v{V_M+t} row_newbcast:{4*a} row_mask:0xf bank_mask:0xf")
            build(0)
            na = nl(gi) // 2
            for a in range(na):
                if a < na - 1:
                    build(a + 1)
                else:
                    g.A("s_nop 1")
                bb = V_B + 4 * (a & 1)
                for dh in range(2):
                    n = gi * 8 + a * 2 + dh
                    acc = V_O + 4 * dh
                    c = "0" if (i == 0 and a == 0) else vr(acc, 4)
                    g.A(f"v_mfma_f32_16x16x32_bf16 {vr(acc,4)}, {slot(n)}, {vr(bb,4)}, {c}")
            nissue = I(gi + 1) - I(gi) if gi + 1 < NTOT else 0
            for x in range(nissue):
                if I(gi) + x - gi - 1 > cfg.CAPG:
                    g.A(f"s_waitcnt vmcnt({8*cfg.CAPG - 8})")
                issue_group(I(gi) + x)
        if gi == cfg.HEADS_STEP:
            heads_store(0)
        if cfg.LATEF and gi == cfg.HEADS2:
            heads_store(8)
        if cfg.LATEWO and gi == cfg.HEADS3:
            heads_store(16)
    if cfg.LATEF and cfg.HEADS2 >= NTOT:
        heads_store(8)
    stamp(g, cfg, 5)
    dbgt(g, cfg, 4, 116, 0, 0)
    dbgt(g, cfg, 5, 116, 100, 0)
    dbgt(g, cfg, 6, 116, 191, 0)
    g.C("workgroup combine")
    g.A("s_nop 7")
    for r in range(4):
        g.A(f"v_cndmask_b32 v{T+2+r}, v{V_O+r}, v{V_O+4+r}, s[{S_DH}:{S_DH+1}]")
    for r in range(4):
        g.A(f"ds_write_b32 v{V_LW}, v{T+2+r} offset:{L_OW + r*32}")
    g.A("s_mov_b64 exec, 1")
    g.A(f"ds_write_b64 v{V_MLW}, {vr(V_MAX,2)} offset:{L_ML}")
    g.A("s_mov_b64 exec, -1")
    g.A("s_waitcnt lgkmcnt(0)")
    g.A("s_barrier")
    Q = V_QL
    g.A(f"ds_read_b128 {vr(Q,4)}, v{V_ZERO} offset:{L_ML}")
    g.A(f"ds_read_b128 {vr(Q+4,4)}, v{V_ZERO} offset:{L_ML+16}")
    for w in range(4):
        g.A(f"ds_read_b32 v{Q+8+w}, v{V_LR} offset:{L_OW + w*1024}")
    g.A("s_waitcnt lgkmcnt(4)")
    g.A(f"v_max_f32 v{T+3}, v{Q}, v{Q+2}")
    g.A(f"v_max3_f32 v{T+3}, v{Q+4}, v{Q+6}, v{T+3}")
    for w in range(4):
        g.A(f"v_sub_f32 v{Q+2*w}, v{Q+2*w}, v{T+3}")
    for w in range(4):
        g.A(f"v_exp_f32 v{Q+2*w}, v{Q+2*w}")
    g.A("s_nop 0")
    g.A(f"v_mul_f32 v{T+4}, v{Q}, v{Q+1}")
    for w in range(1, 4):
        g.A(f"v_fmac_f32 v{T+4}, v{Q+2*w}, v{Q+2*w+1}")
    g.A(f"v_rcp_f32 v{T+5}, v{T+4}")
    g.A(f"v_log_f32 v{T+4}, v{T+4}")
    g.A("s_waitcnt lgkmcnt(0)")
    g.A(f"v_mul_f32 v{Q+12}, v{Q}, v{Q+8}")
    for w in range(1, 4):
        g.A(f"v_fmac_f32 v{Q+12}, v{Q+2*w}, v{Q+8+w}")
    g.A(f"v_add_f32 v{Q+14}, v{T+3}, v{T+4}")
    g.A(f"v_mul_f32 v{Q+12}, v{Q+12}, v{T+5}")
    g.A(f"buffer_store_dwordx4 {vr(Q+12,4)}, v{V_GO}, s[{SRD_WS}:{SRD_WS+3}], s{S_PREC} offen sc1")
    stamp(g, cfg, 6)
    g.A("s_endpgm")

H_LANE = 0
H_T = 2
H_LN = 16
H_SC = 24
H_ACC = 32
H_FR = 64
H_FT = 128
H_ST = 192

def transpose_unit(g, src, dst, dst_acc=False, tmp=None):
    for c in range(4):
        for o in range(2):
            m = 2 * c + o
            for t in range(4):
                sel = S_SEL0 if o == 0 else S_SEL1
                s_lo = src + (2 * t) * 4 + c
                s_hi = src + (2 * t + 1) * 4 + c
                if dst_acc:
                    g.A(f"v_perm_b32 v{tmp + (t & 1)}, v{s_hi}, v{s_lo}, s{sel}")
                    g.A(f"v_accvgpr_write_b32 a{dst + m*4 + t}, v{tmp + (t & 1)}")
                else:
                    g.A(f"v_perm_b32 v{dst + m*4 + t}, v{s_hi}, v{s_lo}, s{sel}")

def unit_loads(g, dst, srd, voff, soffs, flags):
    for e in range(8):
        g.A(f"s_mov_b32 s{S_T0}, {soffs[e]}")
        g.A(f"buffer_load_dwordx4 {vr(dst + 4*e, 4)}, v{voff}, s[{srd}:{srd+3}], s{S_T0} offen{flags}")

def mfma8(g, afrag, frag, first, frag_acc=False):
    for m in range(8):
        acc = H_ACC + 4 * m
        c = "0" if first else vr(acc, 4)
        b = ar(frag + 4 * m, 4) if frag_acc else vr(frag + 4 * m, 4)
        g.A(f"v_mfma_f32_16x16x32_bf16 {vr(acc,4)}, {vr(afrag,4)}, {b}, {c}")

def red_write(g, vaddr):
    for m in range(8):
        g.A(f"ds_write_b32 v{vaddr}, v{H_ACC + 4*m} offset:{m*256}")

def red_read(g, va, vb, dst):
    for w in range(4):
        g.A(f"ds_read2st64_b32 {vr(dst + 2*w, 2)}, v{va} offset0:{w*8} offset1:{w*8+1}")
        g.A(f"ds_read2st64_b32 {vr(dst + 8 + 2*w, 2)}, v{vb} offset0:{w*8} offset1:{w*8+1}")
    g.A("s_waitcnt lgkmcnt(0)")
    for base in (dst, dst + 8):
        for o in range(2):
            g.A(f"v_add_f32 v{base+o}, v{base+o}, v{base+2+o}")
            g.A(f"v_add_f32 v{base+4+o}, v{base+4+o}, v{base+6+o}")
        for o in range(2):
            g.A(f"v_add_f32 v{base+o}, v{base+o}, v{base+4+o}")

def pk(g, op, dst, a, b, bcast=False, neg=False, c=None):
    mods = ""
    if c is not None:
        if bcast: mods += " op_sel_hi:[1,0,1]"
        g.A(f"v_pk_{op}_f32 {vr(dst,2)}, {vr(a,2)}, {vr(b,2)}, {vr(c,2)}{mods}")
        return
    if bcast: mods += " op_sel_hi:[1,0]"
    if neg: mods += " neg_lo:[0,1] neg_hi:[0,1]"
    g.A(f"v_pk_{op}_f32 {vr(dst,2)}, {vr(a,2)}, {vr(b,2)}{mods}")

def ln_normalize(g, x, out, tmp):
    sA, sB, sC = S_X0 + 10, S_X0 + 11, S_T2
    t0, t2, t4, t6 = tmp, tmp + 2, tmp + 4, tmp + 6
    g.A(f"v_readfirstlane_b32 s{sC}, v{x}")
    g.A(f"v_cmp_gt_u32 vcc, 56, v{H_LANE}")
    g.A("s_nop 0")
    g.A(f"v_mov_b32 v{t6}, s{sC}")
    for k in range(4):
        pk(g, "add", out + 2 * k, x + 2 * k, t6, bcast=True, neg=True)
    pk(g, "add", t0, out, out + 2)
    pk(g, "mul", t2, out, out)
    pk(g, "add", t4, out + 4, out + 6)
    pk(g, "fma", t2, out + 2, out + 2, c=t2)
    pk(g, "add", t0, t0, t4)
    pk(g, "fma", t2, out + 4, out + 4, c=t2)
    g.A(f"v_add_f32 v{t0}, v{t0}, v{t0+1}")
    pk(g, "fma", t2, out + 6, out + 6, c=t2)
    g.A(f"v_cndmask_b32 v{t0}, 0, v{t0}, vcc")
    g.A(f"v_add_f32 v{t2}, v{t2}, v{t2+1}")
    g.A(f"v_cndmask_b32 v{t2}, 0, v{t2}, vcc")
    g.A("s_nop 0")
    wave_sum(g, [t0, t2], [sA, sB])
    g.A(f"v_mov_b32 v{t4}, {f2u(1.0/448.0):#x}")
    g.A("s_nop 0")
    g.A(f"v_mul_f32 v{t0}, s{sA}, v{t4}")
    g.A(f"v_mul_f32 v{t2}, s{sB}, v{t4}")
    g.A(f"v_fma_f32 v{t2}, -v{t0}, v{t0}, v{t2}")
    g.A(f"v_add_f32 v{t0}, v{t0}, v{t6}")
    g.A(f"v_max_f32 v{t2}, 0, v{t2}")
    g.A(f"v_cvt_pk_bf16_f32 v{t4}, v{t0}, v{t2}")
    g.A(f"v_and_b32 v{t2}, 0xffff0000, v{t4}")
    g.A(f"v_lshlrev_b32 v{t0}, 16, v{t4}")
    g.A(f"v_add_f32 v{t2}, {f2u(1e-5):#x}, v{t2}")
    for k in range(2):
        pk(g, "add", out + 2 * k, x + 2 * k, t0, bcast=True, neg=True)
    g.A(f"v_cvt_pk_bf16_f32 v{t2}, v{t2}, v{t2}")
    for k in range(2, 4):
        pk(g, "add", out + 2 * k, x + 2 * k, t0, bcast=True, neg=True)
    g.A(f"v_lshlrev_b32 v{t2}, 16, v{t2}")
    g.A(f"v_sqrt_f32 v{t2}, v{t2}")
    bf16_round_pairs(g, [out + e for e in range(4)], t4)
    g.A(f"v_cvt_pk_bf16_f32 v{t2}, v{t2}, v{t2}")
    g.A(f"v_lshlrev_b32 v{t2}, 16, v{t2}")
    g.A(f"v_rcp_f32 v{t2}, v{t2}")
    bf16_round_pairs(g, [out + e for e in range(4, 8)], t4)
    for k in range(4):
        pk(g, "mul", out + 2 * k, out + 2 * k, t2, bcast=True)
    bf16_round_pairs(g, [out + e for e in range(8)], t4)

def exec56(g):
    g.A("s_mov_b32 exec_lo, -1")
    g.A("s_mov_b32 exec_hi, 0x00ffffff")
def exec_all(g):
    g.A("s_mov_b64 exec, -1")

def gather_shift_scale(g, cfg, sbase, voff, ld, shift, scale1, tmp):
    def loads():
        for k, imm in enumerate((0, 16, 1792, 1808)):
            g.A(f"buffer_load_dwordx4 {vr(ld + 4*k, 4)}, v{voff}, s[{SRD_WS}:{SRD_WS+3}], s{sbase} offen offset:{imm} sc1")
    tags = [ld + 4 * k + o for k in range(4) for o in (1, 3)]
    poll_loop(g, cfg, loads, tags, tmp, sleep=1)
    unpack_pairs(g, [ld, ld + 2, ld + 4, ld + 6], [shift + e for e in range(8)])
    unpack_pairs(g, [ld + 8, ld + 10, ld + 12, ld + 14], [scale1 + e for e in range(8)])
    for e in range(8):
        g.A(f"v_add_f32 v{scale1+e}, 1.0, v{scale1+e}")
    bf16_round_pairs(g, [scale1 + e for e in range(8)], tmp)

def modulate_write(g, ln, shift, scale1, vaddr, ldsoff, tmp):
    for k in range(4):
        pk(g, "mul", ln + 2 * k, ln + 2 * k, scale1 + 2 * k)
    bf16_round_pairs(g, [ln + e for e in range(8)], tmp)
    for k in range(4):
        pk(g, "add", ln + 2 * k, ln + 2 * k, shift + 2 * k)
    for k in range(4):
        g.A(f"v_cvt_pk_bf16_f32 v{tmp+k}, v{ln+2*k}, v{ln+2*k+1}")
    g.A(f"ds_write_b128 v{vaddr}, {vr(tmp,4)} offset:{ldsoff}")

def emit_helper(g, cfg):
    NT = cfg.NTW
    T = H_T
    WSR = f"s[{SRD_WS}:{SRD_WS+3}]"
    g.L("L_helper")
    if cfg.X_NOHELP:
        g.A("s_endpgm")
    lazy(g, cfg, 0)
    g.A(f"s_sub_u32 s{S_ROLE}, s{S_WG}, {cfg.NSTREAM}")
    g.A(f"s_mov_b32 s{S_SEL0}, 0x05040100")
    g.A(f"s_mov_b32 s{S_SEL1}, 0x07060302")
    V_L16 = 16
    V_WOFF64 = 17
    V_WOFFQ = 18
    V_AF64 = 19
    V_RW = 20
    V_RA, V_RB = 21, 22
    V_ACTW = 23
    V_G32 = 24
    V_X = 112
    HLN, HSH, HSC, HLD = 160, 168, 176, 144
    g.A(f"v_lshlrev_b32 v{V_L16}, 4, v{H_LANE}")
    g.A(f"v_lshlrev_b32 v{V_G32}, 5, v{H_LANE}")
    g.A(f"s_and_b32 s{S_X0}, s{S_WAVE}, 1")
    S_B = S_X0
    g.A(f"s_mul_i32 s{S_T1}, s{S_B}, 896")
    set_srd(g, SRD_C, P_C, nbytes=1792)
    set_srd(g, SRD_A, P_X, nbytes=1792)
    exec56(g)
    g.A(f"buffer_load_dwordx4 {vr(HLD,4)}, v{V_L16}, s[{SRD_C}:{SRD_C+3}], s{S_T1} offen")
    g.A(f"buffer_load_dwordx4 {vr(HLD+4,4)}, v{V_L16}, s[{SRD_A}:{SRD_A+3}], s{S_T1} offen")
    exec_all(g)
    lazy(g, cfg, 1)
    g.A(f"v_lshrrev_b32 v{T}, 3, v{H_LANE}")
    g.A(f"v_and_b32 v{T}, 1, v{T}")
    g.A(f"v_lshrrev_b32 v{T+1}, 4, v{H_LANE}")
    g.A(f"v_lshlrev_b32 v{T+2}, 5, v{T}")
    g.A(f"v_lshl_add_u32 v{T+2}, v{T+1}, 3, v{T+2}")
    g.A(f"s_lshl_b32 s{S_T0}, s{S_WAVE}, 6")
    g.A(f"v_add_u32 v{T+2}, s{S_T0}, v{T+2}")
    g.A(f"v_and_b32 v{T+3}, 7, v{H_LANE}")
    g.A(f"v_lshlrev_b32 v{T+3}, 4, v{T+3}")
    g.A(f"s_mov_b32 s{S_T0}, 5376")
    g.A(f"v_mul_lo_u32 v{V_WOFF64}, v{T+2}, s{S_T0}")
    g.A(f"v_add_u32 v{V_WOFF64}, v{V_WOFF64}, v{T+3}")
    g.A(f"v_lshl_add_u32 v{V_WOFFQ}, v{T+2}, 13, v{T+3}")
    S_MB = S_X0 + 12
    def m_loads():
        g.A(f"s_lshl_b32 s{S_T2}, s{S_MB}, 7")
        g.A(f"s_sub_u32 s{S_X0+1}, {448*5376}, s{S_T2}")
        set_srd(g, SRD_A, P_WMOD, off_sreg=S_T2, nbytes_sreg=S_X0 + 1)
        for it in range(2):
            unit_loads(g, H_FR + 32 * it, SRD_A, V_WOFF64, [e * 5376 + it * 256 * 5376 for e in range(8)], NT)
    def q_wloads():
        g.A(f"s_lshl_b32 s{S_T2}, s{S_ROLE}, 7")
        g.A(f"s_sub_u32 s{S_X0+1}, {448*8192}, s{S_T2}")
        set_srd(g, SRD_B, P_WQ, off_sreg=S_T2, nbytes_sreg=S_X0 + 1)
        for it in range(2):
            unit_loads(g, H_ST + 32 * it, SRD_B, V_WOFFQ, [e * 8192 + it * 256 * 8192 for e in range(8)], NT)
    nom = g.lab("nomload"); nom_b = g.lab("nomload_b")
    g.A(f"s_sub_u32 s{S_MB}, s{S_ROLE}, 50")
    g.A(f"s_cmp_lt_u32 s{S_ROLE}, 50")
    g.A(f"s_cbranch_scc1 {nom}")
    m_loads()
    g.A(f"s_branch {nom_b}")
    g.L(nom)
    q_wloads()
    g.L(nom_b)
    lazy(g, cfg, 3)
    if cfg.LAZY != 1: stamp(g, cfg, 1)
    entry_prefetch(g, cfg, T + 6)
    g.A(f"v_lshrrev_b32 v{T+3}, 2, v{H_LANE}")
    g.A(f"v_and_b32 v{T+3}, 1, v{T+3}")
    g.A(f"v_mul_u32_u24 v{V_AF64}, {ROWB}, v{T+3}")
    g.A(f"v_lshl_add_u32 v{V_AF64}, v{T}, 6, v{V_AF64}")
    g.A(f"v_lshl_add_u32 v{V_AF64}, v{T+1}, 4, v{V_AF64}")
    g.A(f"s_lshl_b32 s{S_T0}, s{S_WAVE}, 7")
    g.A(f"v_add_u32 v{V_AF64}, s{S_T0}, v{V_AF64}")
    g.A(f"s_lshl_b32 s{S_T0}, s{S_WAVE}, 11")
    g.A(f"s_add_u32 s{S_T0}, s{S_T0}, {L_RED}")
    g.A(f"v_lshlrev_b32 v{V_RW}, 2, v{H_LANE}")
    g.A(f"v_add_u32 v{V_RW}, s{S_T0}, v{V_RW}")
    g.A(f"v_and_b32 v{T+4}, 3, v{H_LANE}")
    g.A(f"v_lshlrev_b32 v{V_RA}, 9, v{T+4}")
    g.A(f"v_lshrrev_b32 v{T+4}, 5, v{H_LANE}")
    g.A(f"v_lshl_add_u32 v{V_RA}, v{T+4}, 6, v{V_RA}")
    g.A(f"v_lshrrev_b32 v{T+4}, 2, v{H_LANE}")
    g.A(f"v_and_b32 v{T+4}, 7, v{T+4}")
    g.A(f"v_lshl_add_u32 v{V_RA}, v{T+4}, 2, v{V_RA}")
    g.A(f"v_add_u32 v{V_RA}, {L_RED}, v{V_RA}")
    g.A(f"v_add_u32 v{V_RB}, 160, v{V_RA}")
    g.A(f"s_mul_i32 s{S_T0}, s{S_B}, {ROWB}")
    g.A(f"v_add_u32 v{V_ACTW}, s{S_T0}, v{V_L16}")
    n1 = S_X0 + 2
    skip = g.lab("noln1")
    g.A("s_waitcnt vmcnt(16)")
    make_tag(g, 1)
    g.A(f"s_cmp_ge_u32 s{S_WAVE}, 2")
    g.A(f"s_cbranch_scc1 {skip}")
    g.A(f"v_cmp_gt_u32 vcc, 56, v{H_LANE}")
    g.A("s_nop 1")
    for k in range(8):
        g.A(f"v_cndmask_b32 v{HLD+k}, 0, v{HLD+k}, vcc")
    unpack_pairs(g, [HLD, HLD + 1, HLD + 2, HLD + 3], [HSH + e for e in range(8)])
    g.A(f"s_mov_b32 s{S_T0}, {f2u(-LOG2E):#x}")
    for e in range(8):
        g.A(f"v_mul_f32 v{HSC+e}, s{S_T0}, v{HSH+e}")
    for e in range(8):
        g.A(f"v_exp_f32 v{HSC+e}, v{HSC+e}")
    g.A("s_nop 0")
    for e in range(8):
        g.A(f"v_add_f32 v{HSC+e}, 1.0, v{HSC+e}")
    for e in range(8):
        g.A(f"v_rcp_f32 v{HSC+e}, v{HSC+e}")
    g.A("s_nop 0")
    for e in range(8):
        g.A(f"v_mul_f32 v{HSC+e}, v{HSC+e}, v{HSH+e}")
    for k in range(4):
        g.A(f"v_cvt_pk_bf16_f32 v{T+k}, v{HSC+2*k}, v{HSC+2*k+1}")
    exec56(g)
    g.A(f"ds_write_b128 v{V_ACTW}, {vr(T,4)} offset:{L_ACTS}")
    exec_all(g)
    unpack_pairs(g, [HLD + 4, HLD + 5, HLD + 6, HLD + 7], [HSH + e for e in range(8)])
    ln_normalize(g, HSH, HLN, T)
    g.L(skip)
    g.A("s_waitcnt lgkmcnt(0)")
    g.A("s_barrier")
    lazy(g, cfg, 2)
    AF = T + 4
    RD = H_FT
    def m_stage():
        g.A(f"ds_read_b128 {vr(AF,4)}, v{V_AF64} offset:{L_ACTS}")
        g.A(f"ds_read_b128 {vr(AF+4,4)}, v{V_AF64} offset:{L_ACTS+512}")
        g.A("s_waitcnt vmcnt(8)")
        transpose_unit(g, H_FR, H_FT)
        g.A("s_waitcnt lgkmcnt(0)")
        g.A("s_nop 0")
        mfma8(g, AF, H_FT, True)
        sk = g.lab("m2")
        g.A(f"s_cmp_eq_u32 s{S_WAVE}, 3")
        g.A(f"s_cbranch_scc1 {sk}")
        g.A("s_waitcnt vmcnt(0)")
        transpose_unit(g, H_FR + 32, H_FT)
        g.A("s_nop 1")
        mfma8(g, AF + 4, H_FT, False)
        g.L(sk)
        g.A("s_nop 7")
        red_write(g, V_RW)
        g.A("s_waitcnt lgkmcnt(0)")
        g.A("s_barrier")
        sk = g.lab("m3")
        g.A(f"s_cmp_lg_u32 s{S_WAVE}, 0")
        g.A(f"s_cbranch_scc1 {sk}")
        red_read(g, V_RA, V_RB, RD)
        for o in range(2):
            g.A(f"v_add_f32 v{RD+o}, v{RD+o}, v{RD+8+o}")
        g.A(f"v_cvt_pk_bf16_f32 v{RD+2}, v{RD}, v{RD+1}")
        g.A(f"v_mov_b32 v{RD+3}, s{S_TAG}")
        g.A(f"v_lshrrev_b32 v{T}, 5, v{H_LANE}")
        g.A(f"v_mul_u32_u24 v{T}, {1344*8}, v{T}")
        g.A(f"v_and_b32 v{T+1}, 31, v{H_LANE}")
        g.A(f"v_lshl_add_u32 v{T}, v{T+1}, 3, v{T}")
        g.A(f"s_lshl_b32 s{S_T0}, s{S_MB}, 8")
        g.A(f"s_add_u32 s{S_T0}, s{S_T0}, {WS_MOD}")
        g.A(f"buffer_store_dwordx2 {vr(RD+2,2)}, v{T}, {WSR}, s{S_T0} offen sc1")
        g.L(sk)
    nom2 = g.lab("nom")
    g.A(f"s_cmp_lt_u32 s{S_ROLE}, 50")
    g.A(f"s_cbranch_scc1 {nom2}")
    m_stage()
    lazy(g, cfg, 4)
    q_wloads()
    g.L(nom2)
    stamp(g, cfg, 2)
    lazy_flush(g, cfg, 5, 16)
    g.A("s_waitcnt vmcnt(8)")
    transpose_unit(g, H_ST, H_FR)
    g.A("s_waitcnt vmcnt(0)")
    transpose_unit(g, H_ST + 32, H_FR + 32)
    skip = g.lab("noh")
    g.A(f"s_cmp_ge_u32 s{S_WAVE}, 2")
    g.A(f"s_cbranch_scc1 {skip}")
    g.A(f"s_mul_i32 s{S_X0+3}, s{S_B}, {1344*8}")
    g.A(f"s_add_u32 s{S_X0+3}, s{S_X0+3}, {WS_MOD}")
    exec56(g)
    gather_shift_scale(g, cfg, S_X0 + 3, V_G32, HLD, HSH, HSC, T)
    modulate_write(g, HLN, HSH, HSC, V_ACTW, L_ACTH, T)
    exec_all(g)
    g.L(skip)
    stamp(g, cfg, 3)
    g.A("s_waitcnt lgkmcnt(0)")
    g.A("s_barrier")
    g.A(f"ds_read_b128 {vr(AF,4)}, v{V_AF64} offset:{L_ACTH}")
    g.A(f"ds_read_b128 {vr(AF+4,4)}, v{V_AF64} offset:{L_ACTH+512}")
    g.A("s_waitcnt lgkmcnt(1)")
    mfma8(g, AF, H_FR, True)
    sk = g.lab("q2")
    g.A(f"s_cmp_eq_u32 s{S_WAVE}, 3")
    g.A(f"s_cbranch_scc1 {sk}")
    g.A("s_waitcnt lgkmcnt(0)")
    mfma8(g, AF + 4, H_FR + 32, False)
    g.L(sk)
    g.A("s_waitcnt lgkmcnt(0)")
    g.A("s_nop 7")
    red_write(g, V_RW)
    g.A("s_waitcnt lgkmcnt(0)")
    g.A("s_barrier")
    sk = g.lab("q3")
    g.A(f"s_cmp_lg_u32 s{S_WAVE}, 0")
    g.A(f"s_cbranch_scc1 {sk}")
    red_read(g, V_RA, V_RB, RD)
    for o in range(2):
        g.A(f"v_add_f32 v{RD+o}, v{RD+o}, v{RD+8+o}")
    g.A(f"v_cvt_pk_bf16_f32 v{RD+2}, v{RD}, v{RD+1}")
    g.A(f"v_mov_b32 v{RD+3}, s{S_TAG}")
    g.A(f"v_lshrrev_b32 v{T}, 5, v{H_LANE}")
    g.A(f"v_lshlrev_b32 v{T}, 14, v{T}")
    g.A(f"v_and_b32 v{T+1}, 31, v{H_LANE}")
    g.A(f"v_lshl_add_u32 v{T}, v{T+1}, 3, v{T}")
    g.A(f"s_lshl_b32 s{S_T0}, s{S_ROLE}, 8")
    g.A(f"s_add_u32 s{S_T0}, s{S_T0}, {WS_QB}")
    g.A(f"buffer_store_dwordx2 {vr(RD+2,2)}, v{T}, {WSR}, s{S_T0} offen sc1")
    g.L(sk)
    stamp(g, cfg, 4)
    dbgt(g, cfg, 9, 28, 192, 0)
    dbgt(g, cfg, 10, 28, 250, 0)
    if cfg.X_NOEPIW:
        g.A("s_endpgm")
    g.A(f"s_cmp_ge_u32 s{S_ROLE}, 32")
    g.A("s_cbranch_scc1 L_rf")

    nomr = g.lab("nomrest")
    g.A(f"s_cmp_lt_u32 s{S_ROLE}, 4")
    g.A(f"s_cbranch_scc1 {nomr}")
    g.A(f"s_add_u32 s{S_MB}, s{S_ROLE}, 10")
    m_loads()
    g.A("s_barrier")
    m_stage()
    g.L(nomr)
    def first_of_8(sidx, off):
        g.A(f"s_mul_i32 s{S_T0}, s{sidx}, 6")
        g.A(f"v_and_b32 v{T+2}, 7, v{H_LANE}")
        g.A(f"v_mul_u32_u24 v{T+2}, 23, v{T+2}")
        g.A(f"v_add_u32 v{T+2}, s{S_T0}, v{T+2}")
        g.A(f"v_subrev_u32 v{T+3}, 192, v{T+2}")
        g.A(f"v_cmp_gt_u32 vcc, 192, v{T+2}")
        g.A("s_nop 1")
        g.A(f"v_cndmask_b32 v{T+2}, v{T+3}, v{T+2}, vcc")
        g.A(f"v_lshlrev_b32 v{T+2}, 6, v{T+2}")
        top = g.lab("lw"); ok = g.lab("lwok")
        g.A(f"s_mov_b32 s{S_CNT}, 0")
        g.A(f"s_mov_b32 s{S_T0}, {WS_HEADS + off}")
        g.L(top)
        g.A(f"buffer_load_dwordx2 {vr(T+4,2)}, v{T+2}, {WSR}, s{S_T0} offen sc1")
        g.A("s_waitcnt vmcnt(0)")
        g.A(f"v_cmp_eq_u32 vcc, s{S_TAG}, v{T+4}")
        g.A("s_nop 1")
        g.A(f"s_cbranch_vccnz {ok}")
        g.A(f"s_sleep {cfg.HSLEEP}")
        g.A(f"s_add_u32 s{S_CNT}, s{S_CNT}, 1")
        g.A(f"s_cmp_lt_u32 s{S_CNT}, {cfg.POLLMAX}")
        g.A(f"s_cbranch_scc1 {top}")
        g.L(ok)
    V_WO = 17
    g.A(f"s_mul_i32 s{S_T2}, s{S_ROLE}, {128*896}")
    g.A(f"s_sub_u32 s{S_X0+1}, {4096*896}, s{S_T2}")
    set_srd(g, SRD_A, P_WO, off_sreg=S_T2, nbytes_sreg=S_X0 + 1)
    def woff128(dst):
        g.A(f"v_lshrrev_b32 v{T}, 4, v{H_LANE}")
        g.A(f"v_mul_u32_u24 v{dst}, {8*896}, v{T}")
        g.A(f"v_and_b32 v{T}, 15, v{H_LANE}")
        g.A(f"v_lshl_add_u32 v{dst}, v{T}, 4, v{dst}")
        g.A(f"s_lshl_b32 s{S_T0}, s{S_WAVE}, 8")
        g.A(f"v_add_u32 v{dst}, s{S_T0}, v{dst}")
    def tile3_mask():
        g.A(f"s_cmp_eq_u32 s{S_WAVE}, 3")
        g.A(f"s_cselect_b32 exec_lo, 0x00ff00ff, -1")
        g.A(f"s_cselect_b32 exec_hi, 0x00ff00ff, -1")
    woff128(V_WO)
    def wo_unit(kb, st):
        tile3_mask()
        unit_loads(g, H_ST + 32 * st, SRD_A, V_WO, [(kb * 32 + e) * 896 for e in range(8)], NT)
        exec_all(g)
    def wo_load():
        wo_unit(0, 0); wo_unit(1, 1)
        g.A("s_waitcnt vmcnt(8)"); transpose_unit(g, H_ST, H_FR)
        wo_unit(2, 0)
        g.A("s_waitcnt vmcnt(8)"); transpose_unit(g, H_ST + 32, H_FR + 32)
        wo_unit(3, 1)
        g.A("s_waitcnt vmcnt(8)"); transpose_unit(g, H_ST, H_FR + 64)
        g.A("s_waitcnt vmcnt(0)"); transpose_unit(g, H_ST + 32, H_FR + 96)
    if not cfg.X_SKIPWO and not cfg.LATEWO:
        wo_load()
    V_RO, V_CX, V_XR, V_GA, V_GB, V_X2 = 25, 26, 232, 234, 236, 238
    S_CB, S_CC = S_X0 + 6, S_X0 + 7
    S_K = S_ROLE
    skipr = g.lab("nor0")
    g.A(f"s_and_b32 s{S_CB}, s{S_K}, 1")
    g.A(f"s_lshr_b32 s{S_T0}, s{S_K}, 3")
    g.A(f"s_lshl_b32 s{S_T0}, s{S_T0}, 7")
    g.A(f"s_lshr_b32 s{S_T1}, s{S_K}, 1")
    g.A(f"s_and_b32 s{S_T1}, s{S_T1}, 3")
    g.A(f"s_lshl_b32 s{S_T1}, s{S_T1}, 1")
    g.A(f"s_add_u32 s{S_CC}, s{S_T0}, s{S_T1}")
    g.A(f"v_and_b32 v{T}, 15, v{H_LANE}")
    g.A(f"v_lshlrev_b32 v{V_CX}, 3, v{T}")
    g.A(f"v_add_u32 v{V_CX}, s{S_CC}, v{V_CX}")
    g.A(f"v_lshrrev_b32 v{T+1}, 4, v{H_LANE}")
    g.A(f"v_lshlrev_b32 v{V_RO}, 13, v{T+1}")
    g.A(f"v_lshl_add_u32 v{V_RO}, v{T}, 4, v{V_RO}")
    g.A(f"v_cmp_gt_u32 vcc, 448, v{V_CX}")
    g.A(f"s_mov_b64 s[{S_MSK}:{S_MSK+1}], vcc")
    g.A(f"s_cmp_lg_u32 s{S_WAVE}, 0")
    g.A(f"s_cbranch_scc1 {skipr}")
    g.A(f"s_mov_b64 exec, s[{S_MSK}:{S_MSK+1}]")
    set_srd(g, SRD_B, P_X, nbytes=1792)
    g.A(f"s_mul_i32 s{S_T0}, s{S_CB}, 896")
    g.A(f"v_lshlrev_b32 v{T+2}, 1, v{V_CX}")
    g.A(f"buffer_load_dword v{T+6}, v{T+2}, s[{SRD_B}:{SRD_B+3}], s{S_T0} offen")
    g.A(f"s_mul_i32 s{S_X0+8}, s{S_CB}, {1344*8}")
    g.A(f"s_add_u32 s{S_X0+8}, s{S_X0+8}, {WS_MOD + 896*4}")
    g.A(f"s_add_u32 s{S_X0+9}, s{S_X0+8}, {(2240-896)*4}")
    g.A(f"v_lshlrev_b32 v{T+3}, 2, v{V_CX}")
    def gl():
        g.A(f"buffer_load_dwordx2 {vr(T+8,2)}, v{T+3}, {WSR}, s{S_X0+8} offen sc1")
        g.A(f"buffer_load_dwordx2 {vr(T+10,2)}, v{T+3}, {WSR}, s{S_X0+9} offen sc1")
    poll_loop(g, cfg, gl, [T + 9, T + 11], T, sleep=4)
    g.A(f"v_mov_b32 v19, v{T+6}")
    g.A(f"v_mov_b32 v22, v{T+8}")
    g.A(f"v_mov_b32 v23, v{T+10}")
    exec_all(g)
    g.L(skipr)
    def r_unpack():
        unpack_pairs(g, [19], [V_XR, V_XR + 1])
        unpack_pairs(g, [22], [V_GA, V_GA + 1])
        unpack_pairs(g, [23], [V_GB, V_GB + 1])
    set_srd(g, SRD_C, P_OUT, nbytes=1792)
    S_REC = S_X0 + 4
    g.A(f"s_lshr_b32 s{S_T0}, s{S_WAVE}, 1")
    g.A(f"s_lshl_b32 s{S_T0}, s{S_T0}, 4")
    g.A(f"s_lshr_b32 s{S_T1}, s{S_ROLE}, 1")
    g.A(f"s_add_u32 s{S_T0}, s{S_T0}, s{S_T1}")
    g.A(f"s_mul_i32 s{S_REC}, s{S_T0}, {6*4096}")
    g.A(f"s_add_u32 s{S_REC}, s{S_REC}, {WS_PART}")
    g.A(f"s_and_b32 s{S_T1}, s{S_ROLE}, 1")
    g.A(f"s_lshl_b32 s{S_T1}, s{S_T1}, 11")
    for s in range(6):
        g.A(f"s_add_u32 s{S_OFF+s}, s{S_REC}, s{S_T1}")
        g.A(f"s_add_u32 s{S_OFF+s}, s{S_OFF+s}, {s*4096}")
    V_PO, V_AOW, V_AFO, V_L16b = 18, 20, 21, 16
    g.A(f"s_and_b32 s{S_T1}, s{S_WAVE}, 1")
    g.A(f"s_lshl_b32 s{S_T1}, s{S_T1}, 6")
    g.A(f"v_add_u32 v{T}, s{S_T1}, v{H_LANE}")
    g.A(f"v_lshlrev_b32 v{V_PO}, 4, v{T}")
    g.A(f"s_lshr_b32 s{S_T1}, s{S_WAVE}, 1")
    g.A(f"s_mul_i32 s{S_T1}, s{S_T1}, {ROWO}")
    g.A(f"v_lshlrev_b32 v{V_AOW}, 1, v{T}")
    g.A(f"v_add_u32 v{V_AOW}, s{S_T1}, v{V_AOW}")
    def afrag_addr(dst, row_stride):
        g.A(f"v_lshrrev_b32 v{T}, 2, v{H_LANE}")
        g.A(f"v_and_b32 v{T}, 1, v{T}")
        g.A(f"v_mul_u32_u24 v{dst}, {row_stride}, v{T}")
        g.A(f"v_lshrrev_b32 v{T}, 4, v{H_LANE}")
        g.A(f"v_lshl_add_u32 v{dst}, v{T}, 4, v{dst}")
    afrag_addr(V_AFO, ROWO)
    S_PUB = S_X0 + 3
    def pub_base(base_const, sidx):
        g.A(f"s_lshl_b32 s{S_PUB}, s{sidx}, 13")
        g.A(f"s_lshl_b32 s{S_T1}, s{S_WAVE}, 11")
        g.A(f"s_add_u32 s{S_PUB}, s{S_PUB}, s{S_T1}")
        g.A(f"s_add_u32 s{S_PUB}, s{S_PUB}, {base_const}")
    pub_base(WS_Y, S_ROLE)
    stamp(g, cfg, 5)
    def heads_wait(sreg_w, off=0):
        g.A(f"s_lshl_b32 s{S_X0+5}, s{sreg_w}, 6")
        g.A(f"s_add_u32 s{S_X0+5}, s{S_X0+5}, {WS_HEADS + off}")
        g.A(f"v_mov_b32 v{T+2}, 0")
        def loads():
            g.A(f"buffer_load_dwordx2 {vr(T+4,2)}, v{T+2}, {WSR}, s{S_X0+5} offen sc1")
        poll_loop(g, cfg, loads, [T + 4, T + 5], T, sleep=cfg.HSLEEP)
    if cfg.X_LOADONLY:
        g.A("s_endpgm")
    if cfg.LATEWO:
        first_of_8(S_ROLE, 16)
        wo_load()
    else:
        g.A(f"s_lshr_b32 s{S_T1}, s{S_ROLE}, 1")
        g.A(f"s_mul_i32 s{S_T1}, s{S_T1}, 6")
        heads_wait(S_T1)
    r_unpack()
    stamp(g, cfg, 6)
    PL = H_ST
    items = []
    for sidx in range(6):
        items.append(((lambda sidx=sidx: g.A(f"buffer_load_dwordx4 {vr(PL + 4*sidx, 4)}, v{V_PO}, {WSR}, s{S_OFF+sidx} offen sc1")), [PL + 4*sidx + 1, PL + 4*sidx + 3]))
    masked_poll(g, cfg, items, None, idle_sleep=cfg.IDLE, trace=16)
    lazy(g, cfg, 0, 2)
    if cfg.LAZY != 2: stamp(g, cfg, 7)
    LM = lambda sidx: PL + 4 * sidx + 2
    g.A(f"v_max3_f32 v{T}, v{LM(0)}, v{LM(1)}, v{LM(2)}")
    g.A(f"v_max3_f32 v{T}, v{LM(3)}, v{LM(4)}, v{T}")
    g.A(f"v_max_f32 v{T}, v{LM(5)}, v{T}")
    for sidx in range(6):
        g.A(f"v_sub_f32 v{LM(sidx)}, v{LM(sidx)}, v{T}")
    for sidx in range(6):
        g.A(f"v_exp_f32 v{LM(sidx)}, v{LM(sidx)}")
    g.A(f"v_add_f32 v{T+1}, v{LM(0)}, v{LM(1)}")
    g.A(f"v_mul_f32 v{T}, v{LM(0)}, v{PL}")
    g.A(f"v_add_f32 v{T+2}, v{LM(2)}, v{LM(3)}")
    g.A(f"v_fmac_f32 v{T}, v{LM(1)}, v{PL+4}")
    g.A(f"v_add_f32 v{T+3}, v{LM(4)}, v{LM(5)}")
    g.A(f"v_fmac_f32 v{T}, v{LM(2)}, v{PL+8}")
    g.A(f"v_add_f32 v{T+1}, v{T+1}, v{T+2}")
    g.A(f"v_fmac_f32 v{T}, v{LM(3)}, v{PL+12}")
    g.A(f"v_add_f32 v{T+1}, v{T+1}, v{T+3}")
    g.A(f"v_fmac_f32 v{T}, v{LM(4)}, v{PL+16}")
    g.A(f"v_rcp_f32 v{T+1}, v{T+1}")
    g.A(f"v_fmac_f32 v{T}, v{LM(5)}, v{PL+20}")
    g.A(f"v_mul_f32 v{T}, v{T}, v{T+1}")
    g.A(f"v_cvt_pk_bf16_f32 v{T}, v{T}, v{T}")
    g.A(f"ds_write_b16 v{V_AOW}, v{T} offset:{L_ACTO}")
    g.A("s_waitcnt lgkmcnt(0)")
    g.A("s_barrier")
    lazy(g, cfg, 1, 2)
    AFO = [4, 8, 12, 216]
    for kb in range(4):
        g.A(f"ds_read_b128 {vr(AFO[kb], 4)}, v{V_AFO} offset:{L_ACTO + kb*64}")
    for kb in range(4):
        g.A(f"s_waitcnt lgkmcnt({3-kb})")
        mfma8(g, AFO[kb], H_FR + 32 * kb, kb == 0)
    lazy(g, cfg, 2, 2)
    def publish_rec():
        g.A("s_mov_b32 exec_lo, -1")
        g.A("s_mov_b32 exec_hi, 0")
        g.A("s_nop 5")
        for p in range(4):
            a0 = H_ACC + 8 * p
            g.A(f"v_mov_b32 v{a0+2}, v{a0+4}")
            g.A(f"v_mov_b32 v{a0+1}, s{S_TAG}")
            g.A(f"v_mov_b32 v{a0+3}, s{S_TAG}")
            g.A(f"buffer_store_dwordx4 {vr(a0, 4)}, v16, {WSR}, s{S_PUB} offen offset:{p*512} sc1")
        exec_all(g)
    publish_rec()
    lazy(g, cfg, 3, 2)
    dbgt(g, cfg, 7, 28, 192, 0)
    dbgt(g, cfg, 8, 28, 210, 0)
    stamp(g, cfg, 8)
    lazy_flush(g, cfg, 4, 21, 2)
    RL = 64
    L_RP = L_RED
    g.A(f"v_lshrrev_b32 v{T}, 4, v{H_LANE}")
    g.A(f"v_lshlrev_b32 v{V_RO}, 15, v{T}")
    g.A(f"v_and_b32 v{T}, 15, v{H_LANE}")
    g.A(f"v_lshl_add_u32 v{V_RO}, v{T}, 4, v{V_RO}")
    g.A(f"v_lshlrev_b32 v22, 3, v{T}")
    g.A(f"s_lshl_b32 s{S_T0}, s{S_WAVE}, 7")
    g.A(f"v_add_u32 v19, s{S_T0}, v22")
    g.A(f"v_lshlrev_b32 v27, 3, v{H_LANE}")
    g.A(f"v_lshlrev_b32 v24, 1, v{V_CX}")
    def rec_gather(base_const, nrec, idle):
        g.A(f"s_lshl_b32 s{S_X0+5}, s{S_K}, 8")
        g.A(f"s_lshl_b32 s{S_T0}, s{S_WAVE}, 13")
        g.A(f"s_add_u32 s{S_X0+5}, s{S_X0+5}, s{S_T0}")
        g.A(f"s_add_u32 s{S_OFF}, s{S_X0+5}, {base_const}")
        g.A(f"s_add_u32 s{S_OFF+1}, s{S_OFF}, {16*8192}")
        init = None
        if nrec == 28:
            g.A("s_mov_b32 exec_lo, 0"); g.A("s_mov_b32 exec_hi, 0xffff0000")
            g.A(f"v_mov_b32 v{RL+4}, 0"); g.A(f"v_mov_b32 v{RL+5}, s{S_TAG}")
            g.A(f"v_mov_b32 v{RL+6}, 0"); g.A(f"v_mov_b32 v{RL+7}, s{S_TAG}")
            exec_all(g)
            init = [None, (0xffffffff, 0x0000ffff)]
        items = [((lambda it=it: g.A(f"buffer_load_dwordx4 {vr(RL + 4*it, 4)}, v{V_RO}, {WSR}, s{S_OFF+it} offen sc1")), [RL + 4*it + 1, RL + 4*it + 3]) for it in range(2)]
        masked_poll(g, cfg, items, None, idle_sleep=idle, trace=(16 if nrec == 32 else 21), init=init)
        g.A(f"v_add_f32 v{RL}, v{RL}, v{RL+4}")
        g.A(f"v_add_f32 v{RL+2}, v{RL+2}, v{RL+6}")
        for swap in ("v_permlane16_swap_b32", "v_permlane32_swap_b32"):
            g.A(f"v_mov_b32 v{RL+1}, v{RL}")
            g.A(f"v_mov_b32 v{RL+3}, v{RL+2}")
            g.A("s_nop 1")
            g.A(f"{swap} v{RL}, v{RL+1}")
            g.A(f"{swap} v{RL+2}, v{RL+3}")
            g.A("s_nop 0")
            g.A(f"v_add_f32 v{RL}, v{RL}, v{RL+1}")
            g.A(f"v_add_f32 v{RL+2}, v{RL+2}, v{RL+3}")
        g.A(f"v_mov_b32 v{RL+1}, v{RL+2}")
        g.A("s_mov_b64 exec, 0xffff")
        g.A(f"ds_write_b64 v19, {vr(RL,2)} offset:{L_RP}")
        exec_all(g)
        g.A("s_waitcnt lgkmcnt(0)")
        g.A("s_barrier")
    def rec_finish():
        for w in range(4):
            g.A(f"ds_read_b64 {vr(RL + 8 + 2*w, 2)}, v22 offset:{L_RP + w*128}")
        g.A("s_waitcnt lgkmcnt(0)")
        pk(g, "add", RL + 8, RL + 8, RL + 10)
        pk(g, "add", RL + 12, RL + 12, RL + 14)
        pk(g, "add", RL + 8, RL + 8, RL + 12)
        g.A(f"v_mov_b32 v{RL}, v{RL+8}")
        g.A(f"v_mov_b32 v{RL+2}, v{RL+9}")
    def resid(base_x, gate):
        bf16_round_pairs(g, [RL, RL + 2], T)
        g.A(f"v_mul_f32 v{RL}, v{RL}, v{gate}")
        g.A(f"v_mul_f32 v{RL+2}, v{RL+2}, v{gate+1}")
        bf16_round_pairs(g, [RL, RL + 2], T)
        g.A(f"v_add_f32 v{RL}, v{RL}, v{base_x}")
        g.A(f"v_add_f32 v{RL+2}, v{RL+2}, v{base_x+1}")
        g.A(f"v_cvt_pk_bf16_f32 v{T}, v{RL}, v{RL+2}")
    g.A(f"s_lshl_b32 s{S_PUB}, s{S_K}, 7")
    g.A(f"s_add_u32 s{S_PUB}, s{S_PUB}, {WS_X2}")
    rec_gather(WS_Y, 32, cfg.IDLE)
    stamp(g, cfg, 9)
    sk = g.lab("nox2")
    g.A(f"s_cmp_lg_u32 s{S_WAVE}, 0")
    g.A(f"s_cbranch_scc1 {sk}")
    rec_finish()
    g.A(f"v_mov_b32 v{T+1}, s{S_TAG}")
    resid(V_XR, V_GA)
    g.A(f"s_and_b32 exec_lo, s{S_MSK}, 0xffff")
    g.A("s_mov_b32 exec_hi, 0")
    for rep in range(NREP_X):
        g.A(f"buffer_store_dwordx2 {vr(T,2)}, v27, {WSR}, s{S_PUB} offen offset:0 sc1")
        if rep + 1 < NREP_X:
            g.A(f"s_add_u32 s{S_PUB}, s{S_PUB}, 4096")
    exec_all(g)
    unpack_pairs(g, [T], [V_X2, V_X2 + 1])
    g.L(sk)
    stamp(g, cfg, 10)
    g.A("s_barrier")
    g.A(f"s_mul_i32 s{S_PUB}, s{S_CB}, 896")
    rec_gather(WS_DN, 28, cfg.IDLE)
    stamp(g, cfg, 11)
    g.A(f"s_cmp_lg_u32 s{S_WAVE}, 0")
    g.A("s_cbranch_scc1 L_exit")
    rec_finish()
    resid(V_X2, V_GB)
    g.A(f"s_and_b32 exec_lo, s{S_MSK}, 0xffff")
    g.A("s_mov_b32 exec_hi, 0")
    g.A(f"buffer_store_dword v{T}, v24, s[{SRD_C}:{SRD_C+3}], s{S_PUB} offen{cfg.OUTF}")
    dbgt(g, cfg, 0, 28, 192, 0)
    g.A(f"s_cmp_lg_u32 s{S_K}, 0")
    g.A("s_cbranch_scc1 L_exit")
    g.A("s_mov_b64 exec, 1")
    g.A(f"v_mov_b32 v{T+3}, s{S_TAG}")
    g.A(f"v_mov_b32 v{T+4}, 0")
    g.A(f"buffer_store_dword v{T+3}, v{T+4}, {WSR}, 0 offen sc1")
    stamp(g, cfg, 12)
    g.A("s_endpgm")

    g.L("L_rf")
    S_I = S_X0 + 4
    g.A(f"s_sub_u32 s{S_I}, s{S_ROLE}, 32")
    g.A(f"s_cmp_ge_u32 s{S_I}, 28")
    g.A("s_cbranch_scc1 L_exit")
    V_WGU, V_WD = 17, 18
    g.A(f"v_lshrrev_b32 v{T}, 4, v{H_LANE}")
    g.A(f"v_lshlrev_b32 v{T}, 3, v{T}")
    g.A(f"s_lshl_b32 s{S_T0}, s{S_WAVE}, 5")
    g.A(f"v_add_u32 v{T}, s{S_T0}, v{T}")
    g.A(f"v_mul_u32_u24 v{V_WGU}, 3584, v{T}")
    g.A(f"v_and_b32 v{T}, 7, v{H_LANE}")
    g.A(f"v_lshl_add_u32 v{V_WGU}, v{T}, 4, v{V_WGU}")
    g.A(f"s_lshl_b32 s{S_T2}, s{S_I}, 7")
    g.A(f"s_sub_u32 s{S_X0+1}, {448*3584}, s{S_T2}")
    set_srd(g, SRD_A, P_WG, off_sreg=S_T2, nbytes_sreg=S_X0 + 1)
    set_srd(g, SRD_B, P_WU, off_sreg=S_T2, nbytes_sreg=S_X0 + 1)
    g.A(f"s_mul_i32 s{S_T2}, s{S_I}, {64*896}")
    g.A(f"s_sub_u32 s{S_X0+1}, {1792*896}, s{S_T2}")
    set_srd(g, SRD_C, P_WD, off_sreg=S_T2, nbytes_sreg=S_X0 + 1)
    woff128(V_WD)
    FSH, FSC, FLD, FLN = 176, 184, 208, 224
    skip = g.lab("nosb")
    g.A(f"s_cmp_ge_u32 s{S_WAVE}, 2")
    g.A(f"s_cbranch_scc1 {skip}")
    g.A(f"s_mul_i32 s{S_X0+3}, s{S_B}, {1344*8}")
    g.A(f"s_add_u32 s{S_X0+3}, s{S_X0+3}, {WS_MOD + 672*8}")
    exec56(g)
    gather_shift_scale(g, cfg, S_X0 + 3, V_G32, FLD, FSH, FSC, T)
    exec_all(g)
    g.L(skip)
    stamp(g, cfg, 5)
    def wd_unit(kb, dst):
        tile3_mask()
        unit_loads(g, dst, SRD_C, V_WD, [(kb * 32 + e) * 896 for e in range(8)], NT)
        exec_all(g)
    if cfg.WDEARLY:
        wd_unit(0, 32); wd_unit(1, 96)
        g.A("s_waitcnt vmcnt(8)"); transpose_unit(g, 32, 0, dst_acc=True, tmp=T)
        g.A("s_waitcnt vmcnt(0)"); transpose_unit(g, 96, 32, dst_acc=True, tmp=T)
    if cfg.LATEF:
        first_of_8(S_I, cfg.LATEOFF)
    stamp(g, cfg, 6)
    def gu_unit(it, st):
        dst = H_ST + 32 * st
        g.A("s_mov_b32 exec_lo, 0x00ff00ff"); g.A("s_mov_b32 exec_hi, 0x00ff00ff")
        unit_loads(g, dst, SRD_A, V_WGU, [e * 3584 + it * 128 * 3584 for e in range(8)], NT)
        g.A("s_mov_b32 exec_lo, 0xff00ff00"); g.A("s_mov_b32 exec_hi, 0xff00ff00")
        unit_loads(g, dst, SRD_B, V_WGU, [e * 3584 + it * 128 * 3584 for e in range(8)], NT)
        exec_all(g)
    V_FXW = 19
    g.A(f"s_lshl_b32 s{S_T0}, s{S_WAVE}, 13")
    g.A(f"s_add_u32 s{S_T0}, s{S_T0}, {L_FX}")
    g.A(f"v_add_u32 v{V_FXW}, s{S_T0}, v16")
    FT = 64
    def fx_write(it):
        for m in range(8):
            g.A(f"ds_write_b128 v{V_FXW}, {vr(FT + 4*m, 4)} offset:{m*1024}")
        if it < 3:
            g.A(f"v_add_u32 v{V_FXW}, {4*8192}, v{V_FXW}")
    GU = [H_ST, H_ST + 32, 96, 128]
    def gu_unit_at(it, dst):
        g.A("s_mov_b32 exec_lo, 0x00ff00ff"); g.A("s_mov_b32 exec_hi, 0x00ff00ff")
        unit_loads(g, dst, SRD_A, V_WGU, [e * 3584 + it * 128 * 3584 for e in range(8)], NT)
        g.A("s_mov_b32 exec_lo, 0xff00ff00"); g.A("s_mov_b32 exec_hi, 0xff00ff00")
        unit_loads(g, dst, SRD_B, V_WGU, [e * 3584 + it * 128 * 3584 for e in range(8)], NT)
        exec_all(g)
    if not cfg.X_SKIPFW and cfg.WDEARLY:
        for it in range(3):
            gu_unit_at(it, GU[it])
        g.A("s_waitcnt vmcnt(32)"); transpose_unit(g, GU[0], FT); fx_write(0)
        gu_unit_at(3, GU[0])
        g.A("s_waitcnt vmcnt(32)"); g.A("s_waitcnt lgkmcnt(0)"); transpose_unit(g, GU[1], FT); fx_write(1)
        g.A("s_waitcnt vmcnt(16)"); g.A("s_waitcnt lgkmcnt(0)"); transpose_unit(g, GU[2], FT); fx_write(2)
        g.A("s_waitcnt vmcnt(0)")
        sk5 = g.lab("nogu3b")
        g.A(f"s_cmp_ge_u32 s{S_WAVE}, 2")
        g.A(f"s_cbranch_scc1 {sk5}")
        g.A("s_waitcnt lgkmcnt(0)"); transpose_unit(g, GU[0], FT); fx_write(3)
        g.L(sk5)
    if not cfg.X_SKIPFW and not cfg.WDEARLY:
        for it in range(3):
            gu_unit_at(it, GU[it])
        wd_unit(0, 32)
        g.A("s_waitcnt vmcnt(40)"); transpose_unit(g, GU[0], FT); fx_write(0)
        gu_unit_at(3, GU[0])
        g.A("s_waitcnt vmcnt(40)"); g.A("s_waitcnt lgkmcnt(0)"); transpose_unit(g, GU[1], FT); fx_write(1)
        wd_unit(1, GU[3])
        g.A("s_waitcnt vmcnt(32)"); g.A("s_waitcnt lgkmcnt(0)"); transpose_unit(g, GU[2], FT); fx_write(2)
        g.A("s_waitcnt vmcnt(24)"); transpose_unit(g, 32, 0, dst_acc=True, tmp=T)
        g.A("s_waitcnt vmcnt(8)")
        sk5 = g.lab("nogu3b")
        g.A(f"s_cmp_ge_u32 s{S_WAVE}, 2")
        g.A(f"s_cbranch_scc1 {sk5}")
        g.A("s_waitcnt lgkmcnt(0)"); transpose_unit(g, GU[0], FT); fx_write(3)
        g.L(sk5)
        g.A("s_waitcnt vmcnt(0)"); transpose_unit(g, GU[3], 32, dst_acc=True, tmp=T)
    g.A("s_waitcnt lgkmcnt(0)")
    g.A("s_barrier")
    g.A(f"s_lshl_b32 s{S_T0}, s{S_WAVE}, 11")
    g.A(f"s_add_u32 s{S_T0}, s{S_T0}, {L_FX}")
    g.A(f"v_add_u32 v{V_FXW}, s{S_T0}, v16")
    for kb in range(14):
        for mm in range(2):
            off = kb * 8192 + mm * 1024
            if off >= 65536:
                if kb == 8 and mm == 0:
                    g.A(f"v_add_u32 v{V_FXW}, 0x10000, v{V_FXW}")
                off -= 65536
            g.A(f"ds_read_b128 {vr(H_FR + (kb*2+mm)*4, 4)}, v{V_FXW} offset:{off}")
        if kb % 4 == 3:
            g.A("s_waitcnt lgkmcnt(0)")
    g.A("s_waitcnt lgkmcnt(0)")
    V_AFH, V_AFD, V_A2W, V_X2O = 17, 18, 19, 27
    afrag_addr(V_AFH, ROWB)
    afrag_addr(V_AFD, ROWO)
    g.A(f"v_lshrrev_b32 v{T}, 4, v{H_LANE}")
    g.A(f"v_mul_u32_u24 v{V_A2W}, {ROWO}, v{T}")
    g.A(f"v_and_b32 v{T}, 7, v{H_LANE}")
    g.A(f"v_lshl_add_u32 v{V_A2W}, v{T}, 4, v{V_A2W}")
    g.A(f"s_lshl_b32 s{S_T0}, s{S_WAVE}, 2")
    g.A(f"v_add_u32 v{V_A2W}, s{S_T0}, v{V_A2W}")
    pub_base(WS_DN, S_I)
    g.A(f"s_and_b32 s{S_X0+5}, s{S_I}, {NREP_X-1}")
    g.A(f"s_lshl_b32 s{S_X0+5}, s{S_X0+5}, 12")
    g.A(f"s_lshl_b32 s{S_T0}, s{S_B}, 7")
    g.A(f"s_add_u32 s{S_X0+5}, s{S_X0+5}, s{S_T0}")
    g.A(f"s_add_u32 s{S_X0+5}, s{S_X0+5}, {WS_X2}")
    g.A(f"v_lshrrev_b32 v{T+2}, 4, v{H_LANE}")
    g.A(f"v_lshlrev_b32 v{T+2}, 10, v{T+2}")
    g.A(f"v_and_b32 v{T+3}, 15, v{H_LANE}")
    g.A(f"v_lshl_add_u32 v{V_X2O}, v{T+3}, 3, v{T+2}")
    g.A(f"s_mov_b32 s{S_X0+8}, -1")
    g.A(f"s_mov_b32 s{S_X0+9}, 0x00ffffff")
    stamp(g, cfg, 7)
    skip = g.lab("noln2")
    g.A(f"s_cmp_ge_u32 s{S_WAVE}, 2")
    g.A(f"s_cbranch_scc1 {skip}")
    exec56(g)
    items = [((lambda p=p: g.A(f"buffer_load_dwordx2 {vr(FLD + 2*p, 2)}, v{V_X2O}, {WSR}, s{S_X0+5} offen offset:{256*p} sc1")), [FLD + 2*p + 1]) for p in range(4)]
    masked_poll(g, cfg, items, S_X0 + 8, idle_sleep=cfg.IDLE, trace=16)
    exec_all(g)
    lazy(g, cfg, 0, 2)
    if cfg.LAZY != 2: stamp(g, cfg, 9)
    XF = FLD + 8
    unpack_pairs(g, [FLD, FLD + 2, FLD + 4, FLD + 6], [XF + e for e in range(8)])
    ln_normalize(g, XF, FLN, T)
    exec56(g)
    modulate_write(g, FLN, FSH, FSC, V_ACTW, L_ACTH, T)
    exec_all(g)
    g.L(skip)
    g.A("s_waitcnt lgkmcnt(0)")
    g.A("s_barrier")
    lazy(g, cfg, 1, 2)
    AFF = 192
    for kb in range(14):
        g.A(f"ds_read_b128 {vr(AFF + 4*kb, 4)}, v{V_AFH} offset:{L_ACTH + kb*64}")
    for kb in range(14):
        g.A(f"s_waitcnt lgkmcnt({min(15, 13-kb)})")
        for mm in range(2):
            acc = H_ACC + 4 * mm
            c = "0" if kb == 0 else vr(acc, 4)
            g.A(f"v_mfma_f32_16x16x32_bf16 {vr(acc,4)}, {vr(AFF + 4*kb, 4)}, {vr(H_FR + (kb*2+mm)*4, 4)}, {c}")
    g.A(f"s_mov_b32 s{S_T0}, {f2u(-LOG2E):#x}")
    g.A("s_nop 6")
    G0, G1, U0, U1 = T, T + 1, T + 2, T + 3
    g.A(f"v_mov_b32_dpp v{U0}, v{H_ACC} row_ror:8 row_mask:0xf bank_mask:0xf")
    g.A(f"v_mov_b32_dpp v{U1}, v{H_ACC+4} row_ror:8 row_mask:0xf bank_mask:0xf")
    g.A(f"v_cvt_pk_bf16_f32 v{T+4}, v{H_ACC}, v{H_ACC+4}")
    g.A(f"v_cvt_pk_bf16_f32 v{T+5}, v{U0}, v{U1}")
    g.A(f"v_lshlrev_b32 v{G0}, 16, v{T+4}")
    g.A(f"v_and_b32 v{G1}, 0xffff0000, v{T+4}")
    g.A(f"v_mul_f32 v{G0}, s{S_T0}, v{G0}")
    g.A(f"v_mul_f32 v{G1}, s{S_T0}, v{G1}")
    g.A(f"v_exp_f32 v{G0}, v{G0}")
    g.A(f"v_exp_f32 v{G1}, v{G1}")
    g.A(f"v_lshlrev_b32 v{U0}, 16, v{T+5}")
    g.A(f"v_and_b32 v{U1}, 0xffff0000, v{T+5}")
    g.A(f"v_add_f32 v{G0}, 1.0, v{G0}")
    g.A(f"v_add_f32 v{G1}, 1.0, v{G1}")
    g.A(f"v_rcp_f32 v{G0}, v{G0}")
    g.A(f"v_rcp_f32 v{G1}, v{G1}")
    g.A("s_nop 0")
    g.A(f"v_cvt_pk_bf16_f32 v{T+4}, v{G0}, v{G1}")
    g.A(f"v_lshlrev_b32 v{G0}, 16, v{T+4}")
    g.A(f"v_and_b32 v{G1}, 0xffff0000, v{T+4}")
    g.A(f"v_mul_f32 v{G0}, v{G0}, v{U0}")
    g.A(f"v_mul_f32 v{G1}, v{G1}, v{U1}")
    g.A(f"v_cvt_pk_bf16_f32 v{T+4}, v{G0}, v{G1}")
    g.A("s_mov_b32 exec_lo, 0x00ff00ff")
    g.A("s_mov_b32 exec_hi, 0")
    g.A(f"ds_write_b32 v{V_A2W}, v{T+4} offset:{L_ACTO}")
    exec_all(g)
    g.A("s_waitcnt lgkmcnt(0)")
    g.A("s_barrier")
    lazy(g, cfg, 3, 2)
    for kb in range(2):
        g.A(f"ds_read_b128 {vr(AFF + 4*kb, 4)}, v{V_AFD} offset:{L_ACTO + kb*64}")
    for kb in range(2):
        g.A(f"s_waitcnt lgkmcnt({1-kb})")
        mfma8(g, AFF + 4 * kb, 32 * kb, kb == 0, frag_acc=True)
    publish_rec()
    lazy(g, cfg, 4, 2)
    stamp(g, cfg, 10)
    lazy_flush(g, cfg, 5, 21, 2)
    g.A("s_endpgm")

def generate(cfg, header_src=None):
    g = G()
    g.A(f"s_cmp_ge_u32 s{S_WG}, {cfg.NSTREAM + cfg.NHELP}")
    g.A("s_cbranch_scc1 L_exit")
    if cfg.STAMPS:
        g.A("s_memrealtime s[84:85]")
    if cfg.DBGT:
        g.A("s_memrealtime s[92:93]")
    g.A("s_load_dwordx16 s[16:31], s[0:1], 0")
    g.A("s_load_dwordx8 s[32:39], s[0:1], 64")
    g.A("s_load_dwordx4 s[40:43], s[0:1], 96")
    g.A("v_lshrrev_b32 v1, 6, v0")
    g.A("v_and_b32 v0, 63, v0")
    g.A(f"s_cmp_lt_u32 s{S_WG}, {cfg.NSTREAM}")
    g.A(f"v_readfirstlane_b32 s{S_WAVE}, v1")
    g.A("s_cbranch_scc0 L_helper0")
    g.A("s_nop 2")
    cfg.STAMP_V = 116
    emit_streamer(g, cfg)
    cfg.STAMP_V = 28
    g.L("L_helper0")
    g.A("v_mov_b32 v2, 0")
    g.A("s_waitcnt lgkmcnt(0)")
    set_srd(g, SRD_WS, P_WS, nbytes=WS_SIZE)
    g.A(f"buffer_load_dword v1, v2, s[{SRD_WS}:{SRD_WS+3}], 0 offen sc1")
    entry_stamp(g, cfg)
    emit_helper(g, cfg)
    g.L("L_exit")
    g.A("s_endpgm")
    g.L("L_codeend")
    hdr = open("adaLN_cond__mha_block_cached__glu_gated_glu__decode.s.ref").read().split("\n")
    head = []
    for line in hdr:
        if line.startswith("; @launch"):
            head.append(f"; @launch grid=({cfg.NSTREAM + cfg.NHELP},1,1) block=(256,1,1) lds={LDS_BYTES}")
            break
        head.append(line)
    txt = "\n".join(head) + "\n"
    txt += '.amdgcn_target "amdgcn-amd-amdhsa--gfx950"\n.text\n'
    txt += f".globl {KNAME}\n.p2align 8\n.type {KNAME},@function\n{KNAME}:\n"
    txt += "\n".join(g.o) + "\n"
    txt += f""".section .rodata,"a"
.p2align 6
.amdhsa_kernel {KNAME}
  .amdhsa_next_free_vgpr 512
  .amdhsa_next_free_sgpr 102
  .amdhsa_accum_offset 256
  .amdhsa_group_segment_fixed_size 0
  .amdhsa_kernarg_size 112
  .amdhsa_user_sgpr_count 2
  .amdhsa_user_sgpr_kernarg_segment_ptr 1
  .amdhsa_system_sgpr_workgroup_id_x 1
  .amdhsa_float_denorm_mode_32 3
.end_amdhsa_kernel
"""
    return txt

if __name__ == "__main__":
    import argparse
    ap = argparse.ArgumentParser()
    ap.add_argument("-o", default="k.s")
    ap.add_argument("--stamps", action="store_true")
    ap.add_argument("--set", nargs="*", default=[])
    a = ap.parse_args()
    cfg = Cfg()
    cfg.STAMPS = a.stamps
    for kv in a.set:
        k, v = kv.split("=")
        if isinstance(getattr(cfg, k), str): v = (" " + v.replace("_", " ")) if v else ""
        setattr(cfg, k, type(getattr(cfg, k))(v) if not isinstance(getattr(cfg, k), bool) else v in ("1", "True"))
    open(a.o, "w").write(generate(cfg))
    print("wrote", a.o)
```

```python
import sys

KNAME = "adaLN_cond__mha_block_cached__glu_gated_glu__decode_kernel"

class Cfg:
    NS = 6
    NSTREAM = 192
    NHELP = 64
    P = 12
    DMIN = 4
    W1 = 16
    NG = 22
    STAMPS = False
    POLLMAX = 200000
    HEADS_STEP = 41
    NT = " nt"
    NTW = " nt"
    CODEPF = True
    STAMP_V = 28
    LAZY = 0
    LATEF = True
    WDEARLY = False
    LATEWO = False
    HEADS3 = 38
    HEADS2 = 38
    LATEOFF = 8
    OUTF = " sc0 sc1"
    X_SKIPFW = False
    X_SKIPWO = False
    POLL_VT = 4
    WCONT = False
    BAL = True
    DBGT = False
    RPK = 3
    RPGAP = 7
    RW0 = 2
    IDLE = 8
    STG = 10
    RPGAP2 = 10
    X_LOADONLY = False
    HSLEEP = 16
    CAPG = 4
    QBACK = 1
    SHRINK = 2
    X_NOHELP = False
    X_NOEPIW = False
    CODEPF2 = False

WS_EPOCH = 0
WS_HEADS = 0x1000
WS_MOD = 0x4000
WS_QB = 0xA000
WS_X2 = 0x12000
NREP_X = 4
WS_PART = 0x20000
WS_Y = 0x100000
WS_DN = 0x140000
WS_STAMP = 0x180000
WS_SIZE = 0x200000

ROWB = 1152
L_ACTS = 0
L_ACTH = 2 * ROWB
L_ACTO = 4 * ROWB
ROWO = 320
L_RED = 4 * ROWB + 2 * ROWO + 128
L_RED = (L_RED + 255) // 256 * 256
L_FX = L_RED
LDS_BYTES = L_FX + 4 * 8192
L_OW = 0
L_ML = 4096

LOG2E = 1.4426950408889634

import struct
def f2u(x):
    return struct.unpack("<I", struct.pack("<f", x))[0]

class G:
    def __init__(self):
        self.o = []
        self.nlab = 0
    def A(self, s):
        self.o.append("    " + s)
    def L(self, name):
        self.o.append(name + ":")
    def lab(self, base):
        self.nlab += 1
        return f"L_{base}_{self.nlab}"
    def C(self, s):
        self.o.append("    ; " + s)

def vr(b, n=1):
    return f"v{b}" if n == 1 else f"v[{b}:{b+n-1}]"
def ar(b, n=1):
    return f"a{b}" if n == 1 else f"a[{b}:{b+n-1}]"
def sr(b, n=1):
    return f"s{b}" if n == 1 else f"s[{b}:{b+n-1}]"

S_WG, S_WAVE, S_ROLE = 2, 3, 4
S_T0, S_T1, S_T2 = 5, 6, 7
SRD_A, SRD_B = 8, 12
P_X, P_K, P_V, P_WQ, P_WO, P_BX, P_WG, P_WU, P_WD, P_C, P_WMOD, P_OUT, P_DBG, P_WS = 16, 18, 20, 22, 24, 26, 28, 30, 32, 34, 36, 38, 40, 42
S_TAG, S_CNT = 44, 45
S_SAVE = 46
SRD_C = 48
SRD_WS = 52
S_OFF = 56
S_SEL0, S_SEL1 = 64, 65
S_MSK = 66
S_X0 = 74
S_STAMP = 88
S_STB = 87
S_MISS = 16
S_PF = 46

def stamp(g, cfg, idx):
    if not cfg.STAMPS:
        return
    g.A(f"s_memrealtime s[{S_STAMP}:{S_STAMP+1}]")
    g.A("s_waitcnt lgkmcnt(0)")
    g.A(f"s_mov_b64 s[100:101], exec")
    g.A("s_mov_b64 exec, 1")
    sv = cfg.STAMP_V
    g.A(f"v_mov_b32 v{sv}, s{S_STAMP}")
    g.A(f"v_mov_b32 v{sv+1}, s{S_STAMP+1}")
    g.A(f"v_mov_b32 v{sv+2}, s{S_STB}")
    g.A(f"buffer_store_dwordx2 v[{sv}:{sv+1}], v{sv+2}, s[{SRD_WS}:{SRD_WS+3}], 0 offen offset:{idx*8}")
    g.A(f"s_mov_b64 exec, s[100:101]")

def lazy(g, cfg, i, mode=1):
    if cfg.STAMPS and cfg.LAZY == mode:
        g.A(f"s_memrealtime s[{90+2*i}:{91+2*i}]")
def lazy_flush(g, cfg, n, idx0, mode=1):
    if not (cfg.STAMPS and cfg.LAZY == mode):
        return
    g.A("s_waitcnt lgkmcnt(0)")
    g.A(f"s_mov_b64 s[100:101], exec")
    g.A("s_mov_b64 exec, 1")
    sv = cfg.STAMP_V
    for i in range(n):
        g.A(f"v_mov_b32 v{sv}, s{90+2*i}")
        g.A(f"v_mov_b32 v{sv+1}, s{91+2*i}")
        g.A(f"v_mov_b32 v{sv+2}, s{S_STB}")
        g.A(f"buffer_store_dwordx2 v[{sv}:{sv+1}], v{sv+2}, s[{SRD_WS}:{SRD_WS+3}], 0 offen offset:{(idx0+i)*8}")
        g.A("s_nop 1")
    g.A(f"s_mov_b64 exec, s[100:101]")

def set_srd(g, srd, ptr, off_sreg=None, nbytes=None, nbytes_sreg=None):
    if off_sreg is None:
        g.A(f"s_mov_b32 s{srd}, s{ptr}")
        g.A(f"s_mov_b32 s{srd+1}, s{ptr+1}")
    else:
        g.A(f"s_add_u32 s{srd}, s{ptr}, s{off_sreg}")
        g.A(f"s_addc_u32 s{srd+1}, s{ptr+1}, 0")
    if nbytes_sreg is not None:
        g.A(f"s_mov_b32 s{srd+2}, s{nbytes_sreg}")
    else:
        g.A(f"s_mov_b32 s{srd+2}, {nbytes}")
    g.A(f"s_mov_b32 s{srd+3}, 0x20000")

def code_prefetch(g, cfg, start_label, end_label, backward, voff, vdst, ninstr=1, per_instr=8192):
    if not cfg.CODEPF:
        return
    here = g.lab("pc")
    g.A(f"s_getpc_b64 s[{S_PF}:{S_PF+1}]")
    g.L(here)
    if backward:
        g.A(f"s_sub_u32 s{S_PF}, s{S_PF}, {here}-{start_label}")
        g.A(f"s_subb_u32 s{S_PF+1}, s{S_PF+1}, 0")
    else:
        g.A(f"s_add_u32 s{S_PF}, s{S_PF}, {start_label}-{here}")
        g.A(f"s_addc_u32 s{S_PF+1}, s{S_PF+1}, 0")
    for k in range(ninstr):
        skip = g.lab("nopf")
        g.A(f"s_mov_b32 s{S_T1}, {end_label}-{start_label}")
        g.A(f"v_cmp_gt_u32 vcc, s{S_T1}, v{voff}")
        g.A("s_nop 0")
        g.A("s_and_b64 exec, exec, vcc")
        g.A(f"s_cbranch_execz {skip}")
        g.A(f"global_load_dword v{vdst}, v{voff}, s[{S_PF}:{S_PF+1}]")
        g.L(skip)
        g.A("s_mov_b64 exec, -1")
        if k + 1 < ninstr:
            g.A(f"v_add_u32 v{voff}, {per_instr}, v{voff}")

def entry_stamp(g, cfg):
    if not cfg.STAMPS:
        return
    g.A(f"s_lshl_b32 s{S_STB}, s{S_WG}, 2")
    g.A(f"s_add_u32 s{S_STB}, s{S_STB}, s{S_WAVE}")
    g.A(f"s_lshl_b32 s{S_STB}, s{S_STB}, 8")
    g.A(f"s_add_u32 s{S_STB}, s{S_STB}, {WS_STAMP}")
    g.A(f"s_mov_b64 s[100:101], exec")
    g.A("s_mov_b64 exec, 1")
    sv = cfg.STAMP_V
    g.A(f"v_mov_b32 v{sv}, s84")
    g.A(f"v_mov_b32 v{sv+1}, s85")
    g.A(f"v_mov_b32 v{sv+2}, s{S_STB}")
    g.A(f"buffer_store_dwordx2 v[{sv}:{sv+1}], v{sv+2}, s[{SRD_WS}:{SRD_WS+3}], 0 offen offset:0")
    g.A(f"s_mov_b64 exec, s[100:101]")

def dbgt(g, cfg, idx, vtmp, cond_wg=None, cond_wave=None):
    if not cfg.DBGT:
        return
    sk = g.lab("dbgsk")
    if cond_wg is not None:
        g.A(f"s_cmp_lg_u32 s{S_WG}, {cond_wg}"); g.A(f"s_cbranch_scc1 {sk}")
    if cond_wave is not None:
        g.A(f"s_cmp_lg_u32 s{S_WAVE}, {cond_wave}"); g.A(f"s_cbranch_scc1 {sk}")
    g.A("s_memrealtime s[98:99]")
    g.A("s_waitcnt lgkmcnt(0)")
    g.A("s_sub_u32 s98, s98, s92")
    g.A("s_mov_b64 s[100:101], exec")
    g.A("s_mov_b64 exec, 1")
    g.A(f"v_mov_b32 v{vtmp}, s98")
    g.A(f"v_mov_b32 v{vtmp+1}, {idx*4}")
    g.A(f"global_store_dword v{vtmp+1}, v{vtmp}, s[{P_DBG}:{P_DBG+1}]")
    g.A("s_mov_b64 exec, s[100:101]")
    g.L(sk)

def entry_prefetch(g, cfg, vtmp):
    if cfg.CODEPF:
        g.A(f"s_lshl_b32 s{S_T0}, s{S_WAVE}, 13")
        g.A(f"v_lshlrev_b32 v{vtmp}, 7, v0")
        g.A(f"v_add_u32 v{vtmp}, s{S_T0}, v{vtmp}")
        code_prefetch(g, cfg, KNAME, 'L_codeend', True, vtmp, 31, ninstr=2 if cfg.CODEPF2 else 1, per_instr=32768)

def make_tag(g, vreg):
    g.A(f"v_readfirstlane_b32 s{S_TAG}, v{vreg}")
    g.A("s_nop 3")
    g.A(f"s_mul_i32 s{S_TAG}, s{S_TAG}, 0x19660d")
    g.A(f"s_add_u32 s{S_TAG}, s{S_TAG}, 0x3c6ef35f")

def check_tags(g, tagregs, tmp, ok_label, set_vcc_only=False):
    g.A(f"v_xor_b32 v{tmp}, s{S_TAG}, v{tagregs[0]}")
    for r in tagregs[1:]:
        g.A(f"v_xor_b32 v{tmp+1}, s{S_TAG}, v{r}")
        g.A(f"v_or_b32 v{tmp}, v{tmp}, v{tmp+1}")
    g.A(f"v_cmp_ne_u32 vcc, 0, v{tmp}")
    g.A("s_nop 1")
    g.A(f"s_cbranch_vccz {ok_label}")

def poll_loop(g, cfg, emit_loads, tagregs, tmp, sleep=1):
    top = g.lab("poll"); ok = g.lab("pollok")
    g.A(f"s_mov_b32 s{S_CNT}, 0")
    g.L(top)
    emit_loads()
    g.A("s_waitcnt vmcnt(0)")
    check_tags(g, tagregs, tmp, ok)
    if sleep:
        g.A(f"s_sleep {sleep}")
    g.A(f"s_add_u32 s{S_CNT}, s{S_CNT}, 1")
    g.A(f"s_cmp_lt_u32 s{S_CNT}, {cfg.POLLMAX}")
    g.A(f"s_cbranch_scc1 {top}")
    g.L(ok)

def rolling_poll(g, cfg, emit_loads, nloads, nregs, tag_offs, sets, res, tmp, gap, copy_offs=None):
    K = len(sets)
    if copy_offs is None:
        copy_offs = [r for r in range(nregs) if r not in tag_offs]
    top = g.lab("rp"); done = g.lab("rpdone")
    oks = [g.lab(f"rpok{i}") for i in range(K)]
    g.A(f"s_mov_b32 s{S_CNT}, 0")
    for i in range(K):
        emit_loads(sets[i])
        if i + 1 < K and gap:
            g.A(f"s_sleep {gap}")
    g.L(top)
    for i in range(K):
        g.A(f"s_waitcnt vmcnt({nloads*(K-1)})")
        check_tags(g, [sets[i] + o for o in tag_offs], tmp, oks[i])
        emit_loads(sets[i])
    g.A(f"s_add_u32 s{S_CNT}, s{S_CNT}, 1")
    g.A(f"s_cmp_lt_u32 s{S_CNT}, {cfg.POLLMAX}")
    g.A(f"s_cbranch_scc1 {top}")
    for i in range(K - 1, -1, -1):
        g.L(oks[i])
        for r in copy_offs:
            g.A(f"v_mov_b32 v{res+r}, v{sets[i]+r}")
        if i > 0:
            g.A(f"s_branch {done}")
    g.L(done)

def masked_poll(g, cfg, items, base, idle_sleep=0, busy_sleep=0, trace=None, init=None):
    n = len(items)
    assert n <= 8
    bs = f"s[{base}:{base+1}]" if base is not None else "-1"
    top = g.lab("mp"); done = g.lab("mpdone")
    for i in range(n):
        if init is not None and init[i] is not None:
            g.A(f"s_mov_b32 s{S_MISS+2*i}, {init[i][0]:#x}")
            g.A(f"s_mov_b32 s{S_MISS+2*i+1}, {init[i][1]:#x}")
        else:
            g.A(f"s_mov_b64 s[{S_MISS+2*i}:{S_MISS+2*i+1}], {bs}")
    g.A(f"s_mov_b32 s{S_CNT}, 0")
    g.L(top)
    if trace is not None and cfg.STAMPS and cfg.LAZY == 3:
        g.A("s_waitcnt lgkmcnt(0)")
        g.A("s_mov_b64 s[90:91], s[92:93]")
        g.A("s_mov_b64 s[92:93], s[94:95]")
        g.A("s_memrealtime s[94:95]")
    for i, (ld, tags) in enumerate(items):
        sk = g.lab("mpsk")
        g.A(f"s_mov_b64 exec, s[{S_MISS+2*i}:{S_MISS+2*i+1}]")
        g.A(f"s_cbranch_execz {sk}")
        ld()
        g.L(sk)
    g.A(f"s_mov_b64 exec, {bs}")
    g.A("s_waitcnt vmcnt(0)")
    VT = cfg.POLL_VT
    for i, (ld, tags) in enumerate(items):
        if len(tags) == 2:
            g.A(f"v_bitop3_b32 v{VT+i}, v{tags[0]}, v{tags[1]}, s{S_TAG} bitop3:0x7e")
        elif len(tags) == 3:
            g.A(f"v_bitop3_b32 v{VT+i}, v{tags[0]}, v{tags[1]}, s{S_TAG} bitop3:0x7e")
            g.A(f"v_xor_b32 v{VT+8}, s{S_TAG}, v{tags[2]}")
            g.A(f"v_or_b32 v{VT+i}, v{VT+i}, v{VT+8}")
    for i, (ld, tags) in enumerate(items):
        if len(tags) == 1:
            g.A(f"v_cmp_ne_u32 s[{S_MISS+2*i}:{S_MISS+2*i+1}], s{S_TAG}, v{tags[0]}")
        else:
            g.A(f"v_cmp_ne_u32 s[{S_MISS+2*i}:{S_MISS+2*i+1}], 0, v{VT+i}")
    if n == 1:
        g.A(f"s_cmp_eq_u64 s[{S_MISS}:{S_MISS+1}], 0")
        g.A(f"s_cbranch_scc1 {done}")
    else:
        g.A(f"s_or_b64 s[{S_SAVE}:{S_SAVE+1}], s[{S_MISS}:{S_MISS+1}], s[{S_MISS+2}:{S_MISS+3}]")
        for i in range(2, n):
            g.A(f"s_or_b64 s[{S_SAVE}:{S_SAVE+1}], s[{S_SAVE}:{S_SAVE+1}], s[{S_MISS+2*i}:{S_MISS+2*i+1}]")
        g.A(f"s_cbranch_scc0 {done}")
    if idle_sleep:
        busy = g.lab("mpbusy")
        g.A(f"s_mov_b64 s[{S_SAVE}:{S_SAVE+1}], s[{S_MISS}:{S_MISS+1}]")
        for i in range(1, n):
            g.A(f"s_and_b64 s[{S_SAVE}:{S_SAVE+1}], s[{S_SAVE}:{S_SAVE+1}], s[{S_MISS+2*i}:{S_MISS+2*i+1}]")
        g.A(f"s_cmp_eq_u32 s{S_SAVE}, -1")
        g.A(f"s_cbranch_scc0 {busy}")
        g.A(f"s_sleep {idle_sleep}")
        g.L(busy)
    if busy_sleep:
        g.A(f"s_sleep {busy_sleep}")
    g.A(f"s_add_u32 s{S_CNT}, s{S_CNT}, 1")
    g.A(f"s_cmp_lt_u32 s{S_CNT}, {cfg.POLLMAX}")
    g.A(f"s_cbranch_scc1 {top}")
    g.L(done)
    g.A(f"s_mov_b64 exec, {bs}")
    if trace is not None and cfg.STAMPS and cfg.LAZY == 3:
        g.A("s_memrealtime s[96:97]")
        g.A("s_waitcnt lgkmcnt(0)")
        g.A(f"s_mov_b32 s98, s{S_CNT}")
        g.A("s_mov_b32 s99, 0")
        lazy_flush(g, cfg, 5, trace, 3)
        g.A(f"s_mov_b64 exec, {bs}")

def bf16_round_pairs(g, regs, tmp):
    for i in range(0, len(regs), 2):
        a, b = regs[i], regs[i + 1]
        g.A(f"v_cvt_pk_bf16_f32 v{tmp}, v{a}, v{b}")
        g.A(f"v_lshlrev_b32 v{a}, 16, v{tmp}")
        g.A(f"v_and_b32 v{b}, 0xffff0000, v{tmp}")

def unpack_pairs(g, src, dst):
    for i, s in enumerate(src):
        g.A(f"v_lshlrev_b32 v{dst[2*i]}, 16, v{s}")
        g.A(f"v_and_b32 v{dst[2*i+1]}, 0xffff0000, v{s}")

def wave_sum(g, regs, sdst, op="add"):
    ins = "v_add_f32_dpp" if op == "add" else "v_max_f32_dpp"
    steps = ["row_shr:1", "row_shr:2", "row_shr:4", "row_shr:8"]
    for st in steps:
        for r in regs:
            if op == "add":
                g.A(f"{ins} v{r}, v{r}, v{r} {st} row_mask:0xf bank_mask:0xf bound_ctrl:0")
            else:
                g.A(f"{ins} v{r}, v{r}, v{r} {st} row_mask:0xf bank_mask:0xf")
        if len(regs) < 3:
            g.A(f"s_nop {2 - len(regs)}")
    for st, rm in (("row_bcast:15", "0xa"), ("row_bcast:31", "0xc")):
        for r in regs:
            g.A(f"{ins} v{r}, v{r}, v{r} {st} row_mask:{rm} bank_mask:0xf")
        g.A(f"s_nop {max(0, 2 - len(regs))}")
    for r, s in zip(regs, sdst):
        g.A(f"v_readlane_b32 s{s}, v{r}, 63")

def emit_streamer(g, cfg):
    NG, P, DMIN, W1 = cfg.NG, cfg.P, cfg.DMIN, cfg.W1
    NT = cfg.NT
    V_LANE = 0
    V_OFFK, V_OFFV = 1, 2
    V_M = 3
    V_EP = 7
    V_BQ = 8
    V_S = 40
    V_MAX, V_L = 62, 63
    V_ACC = 64
    V_O = 72
    V_B = 80
    V_T = 88
    V_QL = 96
    V_QOFF = 112
    V_RING2 = 128
    R = P * 8
    NA = min(R, 64)
    assert V_RING2 + 4 * (R - NA) <= 256
    def slot(n):
        s = n % R
        if s < 64:
            return ar(4 * s, 4)
        return vr(V_RING2 + 4 * (s - 64), 4)

    g.L("L_stream")
    g.C("bh = w/6, s = w%6; wave W = 4s+wave owns 4-key sub-groups [W*256/3, (W+1)*256/3) of its (b,h)")
    g.A(f"s_mul_hi_u32 s{S_T0}, s{S_WG}, 0x2aaaaaab")
    g.A(f"s_mul_i32 s{S_T1}, s{S_T0}, 6")
    g.A(f"s_sub_u32 s{S_T1}, s{S_WG}, s{S_T1}")
    BAL = cfg.BAL and not cfg.WCONT
    if cfg.WCONT:
        g.A(f"s_lshl_b32 s{S_T1}, s{S_T1}, 2")
        g.A(f"s_add_u32 s{S_T1}, s{S_T1}, s{S_WAVE}")
    g.A(f"s_lshl_b32 s{S_T2}, s{S_T1}, {10 if BAL else 8}")
    g.A(f"s_mul_hi_u32 s{S_X0}, s{S_T2}, 0x55555556")
    g.A(f"s_add_u32 s{S_T2}, s{S_T2}, {1024 if BAL else 256}")
    g.A(f"s_mul_hi_u32 s{S_X0+1}, s{S_T2}, 0x55555556")
    g.A(f"s_sub_u32 s{S_X0+1}, s{S_X0+1}, s{S_X0}")
    g.A(f"s_lshl_b32 s{S_X0+2}, s{S_T0}, 22")
    SH = 11 if (cfg.WCONT or BAL) else 13
    g.A(f"s_lshl_b32 s{S_X0+3}, s{S_X0}, {SH}")
    g.A(f"s_add_u32 s{S_X0+2}, s{S_X0+2}, s{S_X0+3}")
    g.A(f"s_lshl_b32 s{S_X0+3}, s{S_X0+1}, {SH}")
    S_BH = S_X0 + 4
    g.A(f"s_mov_b32 s{S_BH}, s{S_T0}")
    V_BIAS = 113
    V_LW, V_MLW, V_ZERO, V_LR, V_GO = 114, 115, 119, 120, 121
    S_DH, S_PREC = 66, 86
    T = V_T
    g.A(f"v_lshrrev_b32 v{T}, 2, v{V_LANE}")
    g.A(f"v_and_b32 v{T}, 3, v{T}")
    g.A(f"v_lshlrev_b32 v{V_OFFK}, 9, v{T}")
    g.A(f"v_lshrrev_b32 v{T+1}, 4, v{V_LANE}")
    g.A(f"v_lshl_add_u32 v{V_OFFK}, v{T+1}, 6, v{V_OFFK}")
    g.A(f"v_and_b32 v{T+2}, 3, v{V_LANE}")
    g.A(f"v_lshl_add_u32 v{V_OFFK}, v{T+2}, 4, v{V_OFFK}")
    if not cfg.WCONT:
        g.A(f"s_lshl_b32 s{S_T1}, s{S_WAVE}, 13")
        g.A(f"v_add_u32 v{V_OFFK}, s{S_T1}, v{V_OFFK}")
    g.A("s_waitcnt lgkmcnt(0)")
    set_srd(g, SRD_A, P_K, off_sreg=S_X0 + 2, nbytes_sreg=S_X0 + 3)

    S_SO = S_OFF
    S_LAST, S_N2 = S_X0 + 9, S_X0 + 10
    def nl(gi):
        return 4 if (BAL and gi % NG == NG - 1) else 8
    def issue_group(gi):
        isv = gi >= NG
        i = gi - NG if isv else gi
        srd = SRD_B if isv else SRD_A
        voff = V_OFFV if isv else V_OFFK
        if BAL and i == NG - 1:
            for a in range(2):
                if a == 1:
                    g.A(f"s_mov_b64 exec, s[{S_N2}:{S_N2+1}]")
                for dh in range(2):
                    n = gi * 8 + a * 2 + dh
                    g.A(f"buffer_load_dwordx4 {slot(n)}, v{voff}, s[{srd}:{srd+3}], s{S_LAST} offen offset:{a*2048 + dh*256}{NT}")
            g.A("s_mov_b64 exec, -1")
            return
        for half in range(2):
            g.A(f"s_mov_b32 s{S_SO+half}, {i*(8192 if cfg.WCONT else 32768) + half*4096}")
        for a in range(4):
            for dh in range(2):
                n = gi * 8 + a * 2 + dh
                imm = (a & 1) * 2048 + dh * 256
                g.A(f"buffer_load_dwordx4 {slot(n)}, v{voff}, s[{srd}:{srd+3}], s{S_SO + (a >> 1)} offen offset:{imm}{NT}")

    issue_group(0)
    issue_group(1)
    set_srd(g, SRD_WS, P_WS, nbytes=WS_SIZE)
    g.A(f"v_mov_b32 v{T+4}, 0")
    g.A(f"buffer_load_dword v{V_EP}, v{T+4}, s[{SRD_WS}:{SRD_WS+3}], 0 offen sc1")
    entry_stamp(g, cfg)
    stamp(g, cfg, 1)
    dbgt(g, cfg, 1, 116, 0, 0)
    entry_prefetch(g, cfg, T + 5)
    set_srd(g, SRD_B, P_V, off_sreg=S_X0 + 2, nbytes_sreg=S_X0 + 3)
    if BAL:
        g.A(f"s_sub_u32 s{S_T0}, s{S_X0+1}, {16*(NG-1)}")
        g.A(f"s_add_u32 s{S_T1}, s{S_T0}, 3")
        g.A(f"s_sub_u32 s{S_T1}, s{S_T1}, s{S_WAVE}")
        g.A(f"s_lshr_b32 s{S_T1}, s{S_T1}, 2")
        g.A(f"s_sub_u32 s{S_T0}, s{S_T0}, 4")
        g.A(f"s_min_u32 s{S_T0}, s{S_T0}, s{S_WAVE}")
        g.A(f"s_add_u32 s{S_T0}, s{S_T0}, s{S_WAVE}")
        g.A(f"s_lshl_b32 s{S_T0}, s{S_T0}, 11")
        g.A(f"s_lshl_b32 s{S_T2}, s{S_WAVE}, 13")
        g.A(f"s_sub_u32 s{S_T0}, s{S_T0}, s{S_T2}")
        g.A(f"s_add_u32 s{S_LAST}, s{S_T0}, {16*(NG-1)*2048}")
        g.A(f"s_cmp_eq_u32 s{S_T1}, 2")
        g.A(f"s_cselect_b64 s[{S_N2}:{S_N2+1}], -1, 0")
        g.A(f"v_lshrrev_b32 v{T}, 2, v{V_LANE}")
        g.A(f"v_and_b32 v{T}, 3, v{T}")
    elif cfg.WCONT:
        g.A(f"s_sub_u32 s{S_T1}, s{S_X0+1}, {4*(NG-1)}")
        g.A(f"v_lshrrev_b32 v{T}, 2, v{V_LANE}")
        g.A(f"v_and_b32 v{T}, 3, v{T}")
    else:
        g.A(f"s_sub_u32 s{S_T1}, s{S_X0+1}, {4*(NG-1)}")
        g.A(f"v_mov_b32 v{T}, s{S_WAVE}")
    g.A(f"v_cmp_gt_u32 vcc, s{S_T1}, v{T}")
    g.A(f"v_mov_b32 v{T+1}, 0xff800000")
    g.A(f"v_lshrrev_b32 v{T+2}, 4, v{V_LANE}")
    g.A(f"v_cndmask_b32 v{V_BIAS}, v{T+1}, 0, vcc")
    g.A(f"v_lshlrev_b32 v{V_OFFV}, 9, v{T+2}")
    g.A(f"v_and_b32 v{T+3}, 15, v{V_LANE}")
    g.A(f"v_lshl_add_u32 v{V_OFFV}, v{T+3}, 4, v{V_OFFV}")
    if not cfg.WCONT:
        g.A(f"s_lshl_b32 s{S_T1}, s{S_WAVE}, 13")
        g.A(f"v_add_u32 v{V_OFFV}, s{S_T1}, v{V_OFFV}")
    g.C("PV masks M_t")
    g.A(f"v_and_b32 v{T}, 7, v{V_LANE}")
    g.A(f"v_lshrrev_b32 v{T+1}, 1, v{T}")
    g.A(f"v_and_b32 v{T+2}, 1, v{V_LANE}")
    g.A(f"v_mov_b32 v{T+3}, 0xffff")
    g.A(f"v_mov_b32 v{T+4}, 0xffff0000")
    g.A(f"v_cmp_eq_u32 vcc, 1, v{T+2}")
    g.A("s_nop 1")
    g.A(f"v_cndmask_b32 v{T+3}, v{T+3}, v{T+4}, vcc")
    for t in range(4):
        g.A(f"v_cmp_eq_u32 vcc, {t}, v{T+1}")
        g.A("s_nop 1")
        g.A(f"v_cndmask_b32 v{V_M+t}, 0, v{T+3}, vcc")
    for a in range(4):
        m = 0x000F000F << (4 * a)
        g.A(f"s_mov_b32 s{S_MSK+2*a}, {m:#x}")
        g.A(f"s_mov_b32 s{S_MSK+2*a+1}, {m:#x}")
    g.A(f"v_lshrrev_b32 v{T}, 4, v{V_LANE}")
    g.A(f"v_and_b32 v{T+1}, 3, v{V_LANE}")
    g.A(f"v_lshl_add_u32 v{T}, v{T}, 2, v{T+1}")
    g.A(f"v_lshlrev_b32 v{V_QOFF}, 5, v{T}")
    S_QB = S_X0 + 6
    g.C("q base: WS_QB + (b*2048 + h*128)*8 ; bh = b*16+h")
    g.A(f"s_lshr_b32 s{S_T0}, s{S_BH}, 4")
    g.A(f"s_and_b32 s{S_T1}, s{S_BH}, 15")
    g.A(f"s_lshl_b32 s{S_T0}, s{S_T0}, 14")
    g.A(f"s_lshl_b32 s{S_T1}, s{S_T1}, 10")
    g.A(f"s_add_u32 s{S_QB}, s{S_T0}, s{S_T1}")
    g.A(f"s_add_u32 s{S_QB}, s{S_QB}, {WS_QB}")
    def q_loads():
        for dh in range(2):
            for k in range(2):
                g.A(f"buffer_load_dwordx4 {vr(V_QL + (dh*2+k)*4, 4)}, v{V_QOFF}, s[{SRD_WS}:{SRD_WS+3}], s{S_QB} offen offset:{dh*512 + k*16} sc1")
    QAT = P - cfg.QBACK
    for gi in range(2, P):
        if gi == QAT:
            q_loads()
        g.A(f"s_waitcnt vmcnt({W1 - 8})")
        if gi == 4:
            make_tag(g, V_EP)
        issue_group(gi)
    stamp(g, cfg, 2)
    tagregs = [V_QL + k * 4 + o for k in range(4) for o in (1, 3)]
    okq = g.lab("qok")
    g.A(f"s_waitcnt vmcnt({(P - QAT) * 8})")
    if not (cfg.X_NOHELP):
        check_tags(g, tagregs, T, okq)
        poll_loop(g, cfg, q_loads, tagregs, T, sleep=2)
    g.L(okq)
    stamp(g, cfg, 3)
    dbgt(g, cfg, 2, 116, 0, 0)
    dbgt(g, cfg, 3, 116, 100, 0)
    for a in range(4):
        for dh in range(2):
            src = [V_QL + (dh * 2) * 4, V_QL + (dh * 2) * 4 + 2, V_QL + (dh * 2 + 1) * 4, V_QL + (dh * 2 + 1) * 4 + 2]
            for r in range(4):
                g.A(f"v_cndmask_b32 v{V_BQ + (a*2+dh)*4 + r}, 0, v{src[r]}, s[{S_MSK+2*a}:{S_MSK+2*a+1}]")
    g.A(f"v_mov_b32 v{V_MAX}, 0xff800000")
    g.A("s_nop 1")

    NTOT = 2 * NG
    def heads_store(off):
        skip = g.lab("nohead")
        g.A(f"s_cmp_lg_u32 s{S_WAVE}, 0")
        g.A(f"s_cbranch_scc1 {skip}")
        g.A(f"s_lshl_b32 s{S_T0}, s{S_WG}, 6")
        g.A(f"s_add_u32 s{S_T0}, s{S_T0}, {WS_HEADS + off}")
        g.A(f"v_mov_b32 v{T}, s{S_TAG}")
        g.A(f"v_mov_b32 v{T+1}, s{S_TAG}")
        g.A(f"v_mov_b32 v{T+2}, 0")
        g.A("s_mov_b64 exec, 1")
        g.A(f"buffer_store_dwordx2 v[{T}:{T+1}], v{T+2}, s[{SRD_WS}:{SRD_WS+3}], s{S_T0} offen sc1")
        g.A("s_mov_b64 exec, -1")
        g.L(skip)
    def I(gi):
        if cfg.SHRINK <= 1:
            return min(NTOT, max(P, gi + DMIN))
        d = max(DMIN, P - (gi + cfg.SHRINK - 1) // cfg.SHRINK)
        return min(NTOT, max(P, gi + d))
    CSC = f2u(0.0625 * LOG2E)
    for gi in range(NTOT):
        n_after = sum(nl(x) for x in range(gi + 1, I(gi)))
        g.A(f"s_waitcnt vmcnt({min(63, n_after)})")
        if gi < NG:
            acc = V_ACC + 4 * (gi & 1)
            for a in range(nl(gi) // 2):
                for dh in range(2):
                    n = gi * 8 + a * 2 + dh
                    c = "0" if (a == 0 and dh == 0) else vr(acc, 4)
                    g.A(f"v_mfma_f32_16x16x32_bf16 {vr(acc,4)}, {slot(n)}, {vr(V_BQ + (a*2+dh)*4, 4)}, {c}")
            nissue = I(gi + 1) - I(gi) if gi + 1 < NTOT else 0
            mark = len(g.o)
            for x in range(nissue):
                if I(gi) + x - gi - 1 > cfg.CAPG:
                    g.A(f"s_waitcnt vmcnt({8*cfg.CAPG - 8})")
                issue_group(I(gi) + x)
            filled = len(g.o) - mark
            if filled < 8:
                g.A(f"s_nop {7 - filled}")
            S = V_S + gi
            g.A(f"v_mov_b32_dpp v{S}, v{acc} quad_perm:[0,0,0,0] row_mask:0xf bank_mask:0xf")
            g.A(f"v_mov_b32_dpp v{T+1}, v{acc+1} quad_perm:[1,1,1,1] row_mask:0xf bank_mask:0xf")
            g.A("s_nop 0")
            g.A(f"v_add_f32_dpp v{S}, v{acc+2}, v{S} quad_perm:[2,2,2,2] row_mask:0xf bank_mask:0xf")
            g.A(f"v_add_f32_dpp v{T+1}, v{acc+3}, v{T+1} quad_perm:[3,3,3,3] row_mask:0xf bank_mask:0xf")
            g.A(f"v_add_f32 v{S}, v{S}, v{T+1}")
            g.A(f"v_cvt_pk_bf16_f32 v{T}, v{S}, v{S}")
            if gi == NG - 1:
                g.A(f"v_lshlrev_b32 v{S}, 16, v{T}")
                g.A(f"v_add_f32 v{S}, v{V_BIAS}, v{S}")
            else:
                g.A(f"v_lshlrev_b32 v{S}, 16, v{T}")
            g.A(f"v_max_f32 v{V_MAX}, v{V_MAX}, v{S}")
            if gi == NG - 1:
                g.C("softmax over this wave's keys")
                g.A("s_nop 1")
                for st in ("row_ror:4", "row_ror:8"):
                    g.A(f"v_max_f32_dpp v{V_MAX}, v{V_MAX}, v{V_MAX} {st} row_mask:0xf bank_mask:0xf")
                    g.A("s_nop 1")
                for st, rm in (("row_bcast:15", "0xa"), ("row_bcast:31", "0xc")):
                    g.A(f"v_max_f32_dpp v{V_MAX}, v{V_MAX}, v{V_MAX} {st} row_mask:{rm} bank_mask:0xf")
                    g.A("s_nop 1")
                g.A(f"v_readlane_b32 s{S_T0}, v{V_MAX}, 63")
                g.A(f"s_mov_b32 s{S_X0+7}, {CSC:#x}")
                g.A("s_nop 1")
                g.A(f"v_mov_b32 v{V_MAX}, s{S_T0}")
                g.A(f"v_mul_f32 v{V_MAX}, s{S_X0+7}, v{V_MAX}")
                g.A(f"v_mov_b32 v{V_L}, 0")
                for i in range(NG):
                    g.A(f"v_fma_f32 v{V_S+i}, v{V_S+i}, s{S_X0+7}, -v{V_MAX}")
                for i in range(NG):
                    g.A(f"v_exp_f32 v{V_S+i}, v{V_S+i}")
                g.A("s_nop 0")
                for i in range(NG):
                    g.A(f"v_add_f32 v{V_L}, v{V_L}, v{V_S+i}")
                    g.A(f"v_cvt_pk_bf16_f32 v{V_S+i}, v{V_S+i}, v{V_S+i}")
                g.A("s_nop 1")
                for st in ("row_ror:4", "row_ror:8"):
                    g.A(f"v_add_f32_dpp v{V_L}, v{V_L}, v{V_L} {st} row_mask:0xf bank_mask:0xf")
                    g.A("s_nop 1")
                for st, rm in (("row_bcast:15", "0xa"), ("row_bcast:31", "0xc")):
                    g.A(f"v_add_f32_dpp v{V_L}, v{V_L}, v{V_L} {st} row_mask:{rm} bank_mask:0xf")
                    g.A("s_nop 1")
                g.A(f"v_readlane_b32 s{S_X0+8}, v{V_L}, 63")
                g.C("addresses for the final combine")
                g.A(f"v_and_b32 v{T}, 8, v{V_LANE}")
                g.A(f"v_cmp_ne_u32 s[{S_DH}:{S_DH+1}], 0, v{T}")
                g.A(f"v_mov_b32 v{V_L}, s{S_X0+8}")
                g.A(f"v_lshlrev_b32 v{T+1}, 4, v{T}")
                g.A(f"v_lshrrev_b32 v{T+2}, 4, v{V_LANE}")
                g.A(f"v_lshl_add_u32 v{T+1}, v{T+2}, 5, v{T+1}")
                g.A(f"v_and_b32 v{T+2}, 7, v{V_LANE}")
                g.A(f"v_add_u32 v{T+1}, v{T+1}, v{T+2}")
                g.A(f"s_lshl_b32 s{S_T0}, s{S_WAVE}, 8")
                g.A(f"v_add_u32 v{T+1}, s{S_T0}, v{T+1}")
                g.A(f"v_lshlrev_b32 v{V_LW}, 2, v{T+1}")
                g.A(f"s_lshl_b32 s{S_T0}, s{S_WAVE}, 3")
                g.A(f"v_mov_b32 v{V_MLW}, s{S_T0}")
                g.A(f"v_mov_b32 v{V_ZERO}, 0")
                g.A(f"s_lshl_b32 s{S_T0}, s{S_WAVE}, 6")
                g.A(f"v_add_u32 v{T}, s{S_T0}, v{V_LANE}")
                g.A(f"v_lshlrev_b32 v{V_LR}, 2, v{T}")
                g.A(f"v_lshlrev_b32 v{V_GO}, 4, v{T}")
                g.A(f"s_lshl_b32 s{S_PREC}, s{S_WG}, 12")
                g.A(f"s_add_u32 s{S_PREC}, s{S_PREC}, {WS_PART}")
                g.A(f"v_mov_b32 v{V_QL+13}, s{S_TAG}")
                g.A(f"v_mov_b32 v{V_QL+15}, s{S_TAG}")
                stamp(g, cfg, 4)
        else:
            i = gi - NG
            Pi = V_S + i
            def build(a):
                bb = V_B + 4 * (a & 1)
                for t in range(4):
                    g.A(f"v_and_b32_dpp v{bb+t}, v{Pi}, v{V_M+t} row_newbcast:{4*a} row_mask:0xf bank_mask:0xf")
            build(0)
            na = nl(gi) // 2
            for a in range(na):
                if a < na - 1:
                    build(a + 1)
                else:
                    g.A("s_nop 1")
                bb = V_B + 4 * (a & 1)
                for dh in range(2):
                    n = gi * 8 + a * 2 + dh
                    acc = V_O + 4 * dh
                    c = "0" if (i == 0 and a == 0) else vr(acc, 4)
                    g.A(f"v_mfma_f32_16x16x32_bf16 {vr(acc,4)}, {slot(n)}, {vr(bb,4)}, {c}")
            nissue = I(gi + 1) - I(gi) if gi + 1 < NTOT else 0
            for x in range(nissue):
                if I(gi) + x - gi - 1 > cfg.CAPG:
                    g.A(f"s_waitcnt vmcnt({8*cfg.CAPG - 8})")
                issue_group(I(gi) + x)
        if gi == cfg.HEADS_STEP:
            heads_store(0)
        if cfg.LATEF and gi == cfg.HEADS2:
            heads_store(8)
        if cfg.LATEWO and gi == cfg.HEADS3:
            heads_store(16)
    if cfg.LATEF and cfg.HEADS2 >= NTOT:
        heads_store(8)
    stamp(g, cfg, 5)
    dbgt(g, cfg, 4, 116, 0, 0)
    dbgt(g, cfg, 5, 116, 100, 0)
    dbgt(g, cfg, 6, 116, 191, 0)
    g.C("workgroup combine")
    g.A("s_nop 7")
    for r in range(4):
        g.A(f"v_cndmask_b32 v{T+2+r}, v{V_O+r}, v{V_O+4+r}, s[{S_DH}:{S_DH+1}]")
    for r in range(4):
        g.A(f"ds_write_b32 v{V_LW}, v{T+2+r} offset:{L_OW + r*32}")
    g.A("s_mov_b64 exec, 1")
    g.A(f"ds_write_b64 v{V_MLW}, {vr(V_MAX,2)} offset:{L_ML}")
    g.A("s_mov_b64 exec, -1")
    g.A("s_waitcnt lgkmcnt(0)")
    g.A("s_barrier")
    Q = V_QL
    g.A(f"ds_read_b128 {vr(Q,4)}, v{V_ZERO} offset:{L_ML}")
    g.A(f"ds_read_b128 {vr(Q+4,4)}, v{V_ZERO} offset:{L_ML+16}")
    for w in range(4):
        g.A(f"ds_read_b32 v{Q+8+w}, v{V_LR} offset:{L_OW + w*1024}")
    g.A("s_waitcnt lgkmcnt(4)")
    g.A(f"v_max_f32 v{T+3}, v{Q}, v{Q+2}")
    g.A(f"v_max3_f32 v{T+3}, v{Q+4}, v{Q+6}, v{T+3}")
    for w in range(4):
        g.A(f"v_sub_f32 v{Q+2*w}, v{Q+2*w}, v{T+3}")
    for w in range(4):
        g.A(f"v_exp_f32 v{Q+2*w}, v{Q+2*w}")
    g.A("s_nop 0")
    g.A(f"v_mul_f32 v{T+4}, v{Q}, v{Q+1}")
    for w in range(1, 4):
        g.A(f"v_fmac_f32 v{T+4}, v{Q+2*w}, v{Q+2*w+1}")
    g.A(f"v_rcp_f32 v{T+5}, v{T+4}")
    g.A(f"v_log_f32 v{T+4}, v{T+4}")
    g.A("s_waitcnt lgkmcnt(0)")
    g.A(f"v_mul_f32 v{Q+12}, v{Q}, v{Q+8}")
    for w in range(1, 4):
        g.A(f"v_fmac_f32 v{Q+12}, v{Q+2*w}, v{Q+8+w}")
    g.A(f"v_add_f32 v{Q+14}, v{T+3}, v{T+4}")
    g.A(f"v_mul_f32 v{Q+12}, v{Q+12}, v{T+5}")
    g.A(f"buffer_store_dwordx4 {vr(Q+12,4)}, v{V_GO}, s[{SRD_WS}:{SRD_WS+3}], s{S_PREC} offen sc1")
    stamp(g, cfg, 6)
    g.A("s_endpgm")

H_LANE = 0
H_T = 2
H_LN = 16
H_SC = 24
H_ACC = 32
H_FR = 64
H_FT = 128
H_ST = 192

def transpose_unit(g, src, dst, dst_acc=False, tmp=None):
    for c in range(4):
        for o in range(2):
            m = 2 * c + o
            for t in range(4):
                sel = S_SEL0 if o == 0 else S_SEL1
                s_lo = src + (2 * t) * 4 + c
                s_hi = src + (2 * t + 1) * 4 + c
                if dst_acc:
                    g.A(f"v_perm_b32 v{tmp + (t & 1)}, v{s_hi}, v{s_lo}, s{sel}")
                    g.A(f"v_accvgpr_write_b32 a{dst + m*4 + t}, v{tmp + (t & 1)}")
                else:
                    g.A(f"v_perm_b32 v{dst + m*4 + t}, v{s_hi}, v{s_lo}, s{sel}")

def unit_loads(g, dst, srd, voff, soffs, flags):
    for e in range(8):
        g.A(f"s_mov_b32 s{S_T0}, {soffs[e]}")
        g.A(f"buffer_load_dwordx4 {vr(dst + 4*e, 4)}, v{voff}, s[{srd}:{srd+3}], s{S_T0} offen{flags}")

def mfma8(g, afrag, frag, first, frag_acc=False):
    for m in range(8):
        acc = H_ACC + 4 * m
        c = "0" if first else vr(acc, 4)
        b = ar(frag + 4 * m, 4) if frag_acc else vr(frag + 4 * m, 4)
        g.A(f"v_mfma_f32_16x16x32_bf16 {vr(acc,4)}, {vr(afrag,4)}, {b}, {c}")

def red_write(g, vaddr):
    for m in range(8):
        g.A(f"ds_write_b32 v{vaddr}, v{H_ACC + 4*m} offset:{m*256}")

def red_read(g, va, vb, dst):
    for w in range(4):
        g.A(f"ds_read2st64_b32 {vr(dst + 2*w, 2)}, v{va} offset0:{w*8} offset1:{w*8+1}")
        g.A(f"ds_read2st64_b32 {vr(dst + 8 + 2*w, 2)}, v{vb} offset0:{w*8} offset1:{w*8+1}")
    g.A("s_waitcnt lgkmcnt(0)")
    for base in (dst, dst + 8):
        for o in range(2):
            g.A(f"v_add_f32 v{base+o}, v{base+o}, v{base+2+o}")
            g.A(f"v_add_f32 v{base+4+o}, v{base+4+o}, v{base+6+o}")
        for o in range(2):
            g.A(f"v_add_f32 v{base+o}, v{base+o}, v{base+4+o}")

def pk(g, op, dst, a, b, bcast=False, neg=False, c=None):
    mods = ""
    if c is not None:
        if bcast: mods += " op_sel_hi:[1,0,1]"
        g.A(f"v_pk_{op}_f32 {vr(dst,2)}, {vr(a,2)}, {vr(b,2)}, {vr(c,2)}{mods}")
        return
    if bcast: mods += " op_sel_hi:[1,0]"
    if neg: mods += " neg_lo:[0,1] neg_hi:[0,1]"
    g.A(f"v_pk_{op}_f32 {vr(dst,2)}, {vr(a,2)}, {vr(b,2)}{mods}")

def ln_normalize(g, x, out, tmp):
    sA, sB, sC = S_X0 + 10, S_X0 + 11, S_T2
    t0, t2, t4, t6 = tmp, tmp + 2, tmp + 4, tmp + 6
    g.A(f"v_readfirstlane_b32 s{sC}, v{x}")
    g.A(f"v_cmp_gt_u32 vcc, 56, v{H_LANE}")
    g.A("s_nop 0")
    g.A(f"v_mov_b32 v{t6}, s{sC}")
    for k in range(4):
        pk(g, "add", out + 2 * k, x + 2 * k, t6, bcast=True, neg=True)
    pk(g, "add", t0, out, out + 2)
    pk(g, "mul", t2, out, out)
    pk(g, "add", t4, out + 4, out + 6)
    pk(g, "fma", t2, out + 2, out + 2, c=t2)
    pk(g, "add", t0, t0, t4)
    pk(g, "fma", t2, out + 4, out + 4, c=t2)
    g.A(f"v_add_f32 v{t0}, v{t0}, v{t0+1}")
    pk(g, "fma", t2, out + 6, out + 6, c=t2)
    g.A(f"v_cndmask_b32 v{t0}, 0, v{t0}, vcc")
    g.A(f"v_add_f32 v{t2}, v{t2}, v{t2+1}")
    g.A(f"v_cndmask_b32 v{t2}, 0, v{t2}, vcc")
    g.A("s_nop 0")
    wave_sum(g, [t0, t2], [sA, sB])
    g.A(f"v_mov_b32 v{t4}, {f2u(1.0/448.0):#x}")
    g.A("s_nop 0")
    g.A(f"v_mul_f32 v{t0}, s{sA}, v{t4}")
    g.A(f"v_mul_f32 v{t2}, s{sB}, v{t4}")
    g.A(f"v_fma_f32 v{t2}, -v{t0}, v{t0}, v{t2}")
    g.A(f"v_add_f32 v{t0}, v{t0}, v{t6}")
    g.A(f"v_max_f32 v{t2}, 0, v{t2}")
    g.A(f"v_cvt_pk_bf16_f32 v{t4}, v{t0}, v{t2}")
    g.A(f"v_and_b32 v{t2}, 0xffff0000, v{t4}")
    g.A(f"v_lshlrev_b32 v{t0}, 16, v{t4}")
    g.A(f"v_add_f32 v{t2}, {f2u(1e-5):#x}, v{t2}")
    for k in range(2):
        pk(g, "add", out + 2 * k, x + 2 * k, t0, bcast=True, neg=True)
    g.A(f"v_cvt_pk_bf16_f32 v{t2}, v{t2}, v{t2}")
    for k in range(2, 4):
        pk(g, "add", out + 2 * k, x + 2 * k, t0, bcast=True, neg=True)
    g.A(f"v_lshlrev_b32 v{t2}, 16, v{t2}")
    g.A(f"v_sqrt_f32 v{t2}, v{t2}")
    bf16_round_pairs(g, [out + e for e in range(4)], t4)
    g.A(f"v_cvt_pk_bf16_f32 v{t2}, v{t2}, v{t2}")
    g.A(f"v_lshlrev_b32 v{t2}, 16, v{t2}")
    g.A(f"v_rcp_f32 v{t2}, v{t2}")
    bf16_round_pairs(g, [out + e for e in range(4, 8)], t4)
    for k in range(4):
        pk(g, "mul", out + 2 * k, out + 2 * k, t2, bcast=True)
    bf16_round_pairs(g, [out + e for e in range(8)], t4)

def exec56(g):
    g.A("s_mov_b32 exec_lo, -1")
    g.A("s_mov_b32 exec_hi, 0x00ffffff")
def exec_all(g):
    g.A("s_mov_b64 exec, -1")

def gather_shift_scale(g, cfg, sbase, voff, ld, shift, scale1, tmp):
    def loads():
        for k, imm in enumerate((0, 16, 1792, 1808)):
            g.A(f"buffer_load_dwordx4 {vr(ld + 4*k, 4)}, v{voff}, s[{SRD_WS}:{SRD_WS+3}], s{sbase} offen offset:{imm} sc1")
    tags = [ld + 4 * k + o for k in range(4) for o in (1, 3)]
    poll_loop(g, cfg, loads, tags, tmp, sleep=1)
    unpack_pairs(g, [ld, ld + 2, ld + 4, ld + 6], [shift + e for e in range(8)])
    unpack_pairs(g, [ld + 8, ld + 10, ld + 12, ld + 14], [scale1 + e for e in range(8)])
    for e in range(8):
        g.A(f"v_add_f32 v{scale1+e}, 1.0, v{scale1+e}")
    bf16_round_pairs(g, [scale1 + e for e in range(8)], tmp)

def modulate_write(g, ln, shift, scale1, vaddr, ldsoff, tmp):
    for k in range(4):
        pk(g, "mul", ln + 2 * k, ln + 2 * k, scale1 + 2 * k)
    bf16_round_pairs(g, [ln + e for e in range(8)], tmp)
    for k in range(4):
        pk(g, "add", ln + 2 * k, ln + 2 * k, shift + 2 * k)
    for k in range(4):
        g.A(f"v_cvt_pk_bf16_f32 v{tmp+k}, v{ln+2*k}, v{ln+2*k+1}")
    g.A(f"ds_write_b128 v{vaddr}, {vr(tmp,4)} offset:{ldsoff}")

def emit_helper(g, cfg):
    NT = cfg.NTW
    T = H_T
    WSR = f"s[{SRD_WS}:{SRD_WS+3}]"
    g.L("L_helper")
    if cfg.X_NOHELP:
        g.A("s_endpgm")
    lazy(g, cfg, 0)
    g.A(f"s_sub_u32 s{S_ROLE}, s{S_WG}, {cfg.NSTREAM}")
    g.A(f"s_mov_b32 s{S_SEL0}, 0x05040100")
    g.A(f"s_mov_b32 s{S_SEL1}, 0x07060302")
    V_L16 = 16
    V_WOFF64 = 17
    V_WOFFQ = 18
    V_AF64 = 19
    V_RW = 20
    V_RA, V_RB = 21, 22
    V_ACTW = 23
    V_G32 = 24
    V_X = 112
    HLN, HSH, HSC, HLD = 160, 168, 176, 144
    g.A(f"v_lshlrev_b32 v{V_L16}, 4, v{H_LANE}")
    g.A(f"v_lshlrev_b32 v{V_G32}, 5, v{H_LANE}")
    g.A(f"s_and_b32 s{S_X0}, s{S_WAVE}, 1")
    S_B = S_X0
    g.A(f"s_mul_i32 s{S_T1}, s{S_B}, 896")
    set_srd(g, SRD_C, P_C, nbytes=1792)
    set_srd(g, SRD_A, P_X, nbytes=1792)
    exec56(g)
    g.A(f"buffer_load_dwordx4 {vr(HLD,4)}, v{V_L16}, s[{SRD_C}:{SRD_C+3}], s{S_T1} offen")
    g.A(f"buffer_load_dwordx4 {vr(HLD+4,4)}, v{V_L16}, s[{SRD_A}:{SRD_A+3}], s{S_T1} offen")
    exec_all(g)
    lazy(g, cfg, 1)
    g.A(f"v_lshrrev_b32 v{T}, 3, v{H_LANE}")
    g.A(f"v_and_b32 v{T}, 1, v{T}")
    g.A(f"v_lshrrev_b32 v{T+1}, 4, v{H_LANE}")
    g.A(f"v_lshlrev_b32 v{T+2}, 5, v{T}")
    g.A(f"v_lshl_add_u32 v{T+2}, v{T+1}, 3, v{T+2}")
    g.A(f"s_lshl_b32 s{S_T0}, s{S_WAVE}, 6")
    g.A(f"v_add_u32 v{T+2}, s{S_T0}, v{T+2}")
    g.A(f"v_and_b32 v{T+3}, 7, v{H_LANE}")
    g.A(f"v_lshlrev_b32 v{T+3}, 4, v{T+3}")
    g.A(f"s_mov_b32 s{S_T0}, 5376")
    g.A(f"v_mul_lo_u32 v{V_WOFF64}, v{T+2}, s{S_T0}")
    g.A(f"v_add_u32 v{V_WOFF64}, v{V_WOFF64}, v{T+3}")
    g.A(f"v_lshl_add_u32 v{V_WOFFQ}, v{T+2}, 13, v{T+3}")
    S_MB = S_X0 + 12
    def m_loads():
        g.A(f"s_lshl_b32 s{S_T2}, s{S_MB}, 7")
        g.A(f"s_sub_u32 s{S_X0+1}, {448*5376}, s{S_T2}")
        set_srd(g, SRD_A, P_WMOD, off_sreg=S_T2, nbytes_sreg=S_X0 + 1)
        for it in range(2):
            unit_loads(g, H_FR + 32 * it, SRD_A, V_WOFF64, [e * 5376 + it * 256 * 5376 for e in range(8)], NT)
    def q_wloads():
        g.A(f"s_lshl_b32 s{S_T2}, s{S_ROLE}, 7")
        g.A(f"s_sub_u32 s{S_X0+1}, {448*8192}, s{S_T2}")
        set_srd(g, SRD_B, P_WQ, off_sreg=S_T2, nbytes_sreg=S_X0 + 1)
        for it in range(2):
            unit_loads(g, H_ST + 32 * it, SRD_B, V_WOFFQ, [e * 8192 + it * 256 * 8192 for e in range(8)], NT)
    nom = g.lab("nomload"); nom_b = g.lab("nomload_b")
    g.A(f"s_sub_u32 s{S_MB}, s{S_ROLE}, 50")
    g.A(f"s_cmp_lt_u32 s{S_ROLE}, 50")
    g.A(f"s_cbranch_scc1 {nom}")
    m_loads()
    g.A(f"s_branch {nom_b}")
    g.L(nom)
    q_wloads()
    g.L(nom_b)
    lazy(g, cfg, 3)
    if cfg.LAZY != 1: stamp(g, cfg, 1)
    entry_prefetch(g, cfg, T + 6)
    g.A(f"v_lshrrev_b32 v{T+3}, 2, v{H_LANE}")
    g.A(f"v_and_b32 v{T+3}, 1, v{T+3}")
    g.A(f"v_mul_u32_u24 v{V_AF64}, {ROWB}, v{T+3}")
    g.A(f"v_lshl_add_u32 v{V_AF64}, v{T}, 6, v{V_AF64}")
    g.A(f"v_lshl_add_u32 v{V_AF64}, v{T+1}, 4, v{V_AF64}")
    g.A(f"s_lshl_b32 s{S_T0}, s{S_WAVE}, 7")
    g.A(f"v_add_u32 v{V_AF64}, s{S_T0}, v{V_AF64}")
    g.A(f"s_lshl_b32 s{S_T0}, s{S_WAVE}, 11")
    g.A(f"s_add_u32 s{S_T0}, s{S_T0}, {L_RED}")
    g.A(f"v_lshlrev_b32 v{V_RW}, 2, v{H_LANE}")
    g.A(f"v_add_u32 v{V_RW}, s{S_T0}, v{V_RW}")
    g.A(f"v_and_b32 v{T+4}, 3, v{H_LANE}")
    g.A(f"v_lshlrev_b32 v{V_RA}, 9, v{T+4}")
    g.A(f"v_lshrrev_b32 v{T+4}, 5, v{H_LANE}")
    g.A(f"v_lshl_add_u32 v{V_RA}, v{T+4}, 6, v{V_RA}")
    g.A(f"v_lshrrev_b32 v{T+4}, 2, v{H_LANE}")
    g.A(f"v_and_b32 v{T+4}, 7, v{T+4}")
    g.A(f"v_lshl_add_u32 v{V_RA}, v{T+4}, 2, v{V_RA}")
    g.A(f"v_add_u32 v{V_RA}, {L_RED}, v{V_RA}")
    g.A(f"v_add_u32 v{V_RB}, 160, v{V_RA}")
    g.A(f"s_mul_i32 s{S_T0}, s{S_B}, {ROWB}")
    g.A(f"v_add_u32 v{V_ACTW}, s{S_T0}, v{V_L16}")
    n1 = S_X0 + 2
    skip = g.lab("noln1")
    g.A("s_waitcnt vmcnt(16)")
    make_tag(g, 1)
    g.A(f"s_cmp_ge_u32 s{S_WAVE}, 2")
    g.A(f"s_cbranch_scc1 {skip}")
    g.A(f"v_cmp_gt_u32 vcc, 56, v{H_LANE}")
    g.A("s_nop 1")
    for k in range(8):
        g.A(f"v_cndmask_b32 v{HLD+k}, 0, v{HLD+k}, vcc")
    unpack_pairs(g, [HLD, HLD + 1, HLD + 2, HLD + 3], [HSH + e for e in range(8)])
    g.A(f"s_mov_b32 s{S_T0}, {f2u(-LOG2E):#x}")
    for e in range(8):
        g.A(f"v_mul_f32 v{HSC+e}, s{S_T0}, v{HSH+e}")
    for e in range(8):
        g.A(f"v_exp_f32 v{HSC+e}, v{HSC+e}")
    g.A("s_nop 0")
    for e in range(8):
        g.A(f"v_add_f32 v{HSC+e}, 1.0, v{HSC+e}")
    for e in range(8):
        g.A(f"v_rcp_f32 v{HSC+e}, v{HSC+e}")
    g.A("s_nop 0")
    for e in range(8):
        g.A(f"v_mul_f32 v{HSC+e}, v{HSC+e}, v{HSH+e}")
    for k in range(4):
        g.A(f"v_cvt_pk_bf16_f32 v{T+k}, v{HSC+2*k}, v{HSC+2*k+1}")
    exec56(g)
    g.A(f"ds_write_b128 v{V_ACTW}, {vr(T,4)} offset:{L_ACTS}")
    exec_all(g)
    unpack_pairs(g, [HLD + 4, HLD + 5, HLD + 6, HLD + 7], [HSH + e for e in range(8)])
    ln_normalize(g, HSH, HLN, T)
    g.L(skip)
    g.A("s_waitcnt lgkmcnt(0)")
    g.A("s_barrier")
    lazy(g, cfg, 2)
    AF = T + 4
    RD = H_FT
    def m_stage():
        g.A(f"ds_read_b128 {vr(AF,4)}, v{V_AF64} offset:{L_ACTS}")
        g.A(f"ds_read_b128 {vr(AF+4,4)}, v{V_AF64} offset:{L_ACTS+512}")
        g.A("s_waitcnt vmcnt(8)")
        transpose_unit(g, H_FR, H_FT)
        g.A("s_waitcnt lgkmcnt(0)")
        g.A("s_nop 0")
        mfma8(g, AF, H_FT, True)
        sk = g.lab("m2")
        g.A(f"s_cmp_eq_u32 s{S_WAVE}, 3")
        g.A(f"s_cbranch_scc1 {sk}")
        g.A("s_waitcnt vmcnt(0)")
        transpose_unit(g, H_FR + 32, H_FT)
        g.A("s_nop 1")
        mfma8(g, AF + 4, H_FT, False)
        g.L(sk)
        g.A("s_nop 7")
        red_write(g, V_RW)
        g.A("s_waitcnt lgkmcnt(0)")
        g.A("s_barrier")
        sk = g.lab("m3")
        g.A(f"s_cmp_lg_u32 s{S_WAVE}, 0")
        g.A(f"s_cbranch_scc1 {sk}")
        red_read(g, V_RA, V_RB, RD)
        for o in range(2):
            g.A(f"v_add_f32 v{RD+o}, v{RD+o}, v{RD+8+o}")
        g.A(f"v_cvt_pk_bf16_f32 v{RD+2}, v{RD}, v{RD+1}")
        g.A(f"v_mov_b32 v{RD+3}, s{S_TAG}")
        g.A(f"v_lshrrev_b32 v{T}, 5, v{H_LANE}")
        g.A(f"v_mul_u32_u24 v{T}, {1344*8}, v{T}")
        g.A(f"v_and_b32 v{T+1}, 31, v{H_LANE}")
        g.A(f"v_lshl_add_u32 v{T}, v{T+1}, 3, v{T}")
        g.A(f"s_lshl_b32 s{S_T0}, s{S_MB}, 8")
        g.A(f"s_add_u32 s{S_T0}, s{S_T0}, {WS_MOD}")
        g.A(f"buffer_store_dwordx2 {vr(RD+2,2)}, v{T}, {WSR}, s{S_T0} offen sc1")
        g.L(sk)
    nom2 = g.lab("nom")
    g.A(f"s_cmp_lt_u32 s{S_ROLE}, 50")
    g.A(f"s_cbranch_scc1 {nom2}")
    m_stage()
    lazy(g, cfg, 4)
    q_wloads()
    g.L(nom2)
    stamp(g, cfg, 2)
    lazy_flush(g, cfg, 5, 16)
    g.A("s_waitcnt vmcnt(8)")
    transpose_unit(g, H_ST, H_FR)
    g.A("s_waitcnt vmcnt(0)")
    transpose_unit(g, H_ST + 32, H_FR + 32)
    skip = g.lab("noh")
    g.A(f"s_cmp_ge_u32 s{S_WAVE}, 2")
    g.A(f"s_cbranch_scc1 {skip}")
    g.A(f"s_mul_i32 s{S_X0+3}, s{S_B}, {1344*8}")
    g.A(f"s_add_u32 s{S_X0+3}, s{S_X0+3}, {WS_MOD}")
    exec56(g)
    gather_shift_scale(g, cfg, S_X0 + 3, V_G32, HLD, HSH, HSC, T)
    modulate_write(g, HLN, HSH, HSC, V_ACTW, L_ACTH, T)
    exec_all(g)
    g.L(skip)
    stamp(g, cfg, 3)
    g.A("s_waitcnt lgkmcnt(0)")
    g.A("s_barrier")
    g.A(f"ds_read_b128 {vr(AF,4)}, v{V_AF64} offset:{L_ACTH}")
    g.A(f"ds_read_b128 {vr(AF+4,4)}, v{V_AF64} offset:{L_ACTH+512}")
    g.A("s_waitcnt lgkmcnt(1)")
    mfma8(g, AF, H_FR, True)
    sk = g.lab("q2")
    g.A(f"s_cmp_eq_u32 s{S_WAVE}, 3")
    g.A(f"s_cbranch_scc1 {sk}")
    g.A("s_waitcnt lgkmcnt(0)")
    mfma8(g, AF + 4, H_FR + 32, False)
    g.L(sk)
    g.A("s_waitcnt lgkmcnt(0)")
    g.A("s_nop 7")
    red_write(g, V_RW)
    g.A("s_waitcnt lgkmcnt(0)")
    g.A("s_barrier")
    sk = g.lab("q3")
    g.A(f"s_cmp_lg_u32 s{S_WAVE}, 0")
    g.A(f"s_cbranch_scc1 {sk}")
    red_read(g, V_RA, V_RB, RD)
    for o in range(2):
        g.A(f"v_add_f32 v{RD+o}, v{RD+o}, v{RD+8+o}")
    g.A(f"v_cvt_pk_bf16_f32 v{RD+2}, v{RD}, v{RD+1}")
    g.A(f"v_mov_b32 v{RD+3}, s{S_TAG}")
    g.A(f"v_lshrrev_b32 v{T}, 5, v{H_LANE}")
    g.A(f"v_lshlrev_b32 v{T}, 14, v{T}")
    g.A(f"v_and_b32 v{T+1}, 31, v{H_LANE}")
    g.A(f"v_lshl_add_u32 v{T}, v{T+1}, 3, v{T}")
    g.A(f"s_lshl_b32 s{S_T0}, s{S_ROLE}, 8")
    g.A(f"s_add_u32 s{S_T0}, s{S_T0}, {WS_QB}")
    g.A(f"buffer_store_dwordx2 {vr(RD+2,2)}, v{T}, {WSR}, s{S_T0} offen sc1")
    g.L(sk)
    stamp(g, cfg, 4)
    dbgt(g, cfg, 9, 28, 192, 0)
    dbgt(g, cfg, 10, 28, 250, 0)
    if cfg.X_NOEPIW:
        g.A("s_endpgm")
    g.A(f"s_cmp_ge_u32 s{S_ROLE}, 32")
    g.A("s_cbranch_scc1 L_rf")

    nomr = g.lab("nomrest")
    g.A(f"s_cmp_lt_u32 s{S_ROLE}, 4")
    g.A(f"s_cbranch_scc1 {nomr}")
    g.A(f"s_add_u32 s{S_MB}, s{S_ROLE}, 10")
    m_loads()
    g.A("s_barrier")
    m_stage()
    g.L(nomr)
    def first_of_8(sidx, off):
        g.A(f"s_mul_i32 s{S_T0}, s{sidx}, 6")
        g.A(f"v_and_b32 v{T+2}, 7, v{H_LANE}")
        g.A(f"v_mul_u32_u24 v{T+2}, 23, v{T+2}")
        g.A(f"v_add_u32 v{T+2}, s{S_T0}, v{T+2}")
        g.A(f"v_subrev_u32 v{T+3}, 192, v{T+2}")
        g.A(f"v_cmp_gt_u32 vcc, 192, v{T+2}")
        g.A("s_nop 1")
        g.A(f"v_cndmask_b32 v{T+2}, v{T+3}, v{T+2}, vcc")
        g.A(f"v_lshlrev_b32 v{T+2}, 6, v{T+2}")
        top = g.lab("lw"); ok = g.lab("lwok")
        g.A(f"s_mov_b32 s{S_CNT}, 0")
        g.A(f"s_mov_b32 s{S_T0}, {WS_HEADS + off}")
        g.L(top)
        g.A(f"buffer_load_dwordx2 {vr(T+4,2)}, v{T+2}, {WSR}, s{S_T0} offen sc1")
        g.A("s_waitcnt vmcnt(0)")
        g.A(f"v_cmp_eq_u32 vcc, s{S_TAG}, v{T+4}")
        g.A("s_nop 1")
        g.A(f"s_cbranch_vccnz {ok}")
        g.A(f"s_sleep {cfg.HSLEEP}")
        g.A(f"s_add_u32 s{S_CNT}, s{S_CNT}, 1")
        g.A(f"s_cmp_lt_u32 s{S_CNT}, {cfg.POLLMAX}")
        g.A(f"s_cbranch_scc1 {top}")
        g.L(ok)
    V_WO = 17
    g.A(f"s_mul_i32 s{S_T2}, s{S_ROLE}, {128*896}")
    g.A(f"s_sub_u32 s{S_X0+1}, {4096*896}, s{S_T2}")
    set_srd(g, SRD_A, P_WO, off_sreg=S_T2, nbytes_sreg=S_X0 + 1)
    def woff128(dst):
        g.A(f"v_lshrrev_b32 v{T}, 4, v{H_LANE}")
        g.A(f"v_mul_u32_u24 v{dst}, {8*896}, v{T}")
        g.A(f"v_and_b32 v{T}, 15, v{H_LANE}")
        g.A(f"v_lshl_add_u32 v{dst}, v{T}, 4, v{dst}")
        g.A(f"s_lshl_b32 s{S_T0}, s{S_WAVE}, 8")
        g.A(f"v_add_u32 v{dst}, s{S_T0}, v{dst}")
    def tile3_mask():
        g.A(f"s_cmp_eq_u32 s{S_WAVE}, 3")
        g.A(f"s_cselect_b32 exec_lo, 0x00ff00ff, -1")
        g.A(f"s_cselect_b32 exec_hi, 0x00ff00ff, -1")
    woff128(V_WO)
    def wo_unit(kb, st):
        tile3_mask()
        unit_loads(g, H_ST + 32 * st, SRD_A, V_WO, [(kb * 32 + e) * 896 for e in range(8)], NT)
        exec_all(g)
    def wo_load():
        wo_unit(0, 0); wo_unit(1, 1)
        g.A("s_waitcnt vmcnt(8)"); transpose_unit(g, H_ST, H_FR)
        wo_unit(2, 0)
        g.A("s_waitcnt vmcnt(8)"); transpose_unit(g, H_ST + 32, H_FR + 32)
        wo_unit(3, 1)
        g.A("s_waitcnt vmcnt(8)"); transpose_unit(g, H_ST, H_FR + 64)
        g.A("s_waitcnt vmcnt(0)"); transpose_unit(g, H_ST + 32, H_FR + 96)
    if not cfg.X_SKIPWO and not cfg.LATEWO:
        wo_load()
    V_RO, V_CX, V_XR, V_GA, V_GB, V_X2 = 25, 26, 232, 234, 236, 238
    S_CB, S_CC = S_X0 + 6, S_X0 + 7
    S_K = S_ROLE
    skipr = g.lab("nor0")
    g.A(f"s_and_b32 s{S_CB}, s{S_K}, 1")
    g.A(f"s_lshr_b32 s{S_T0}, s{S_K}, 3")
    g.A(f"s_lshl_b32 s{S_T0}, s{S_T0}, 7")
    g.A(f"s_lshr_b32 s{S_T1}, s{S_K}, 1")
    g.A(f"s_and_b32 s{S_T1}, s{S_T1}, 3")
    g.A(f"s_lshl_b32 s{S_T1}, s{S_T1}, 1")
    g.A(f"s_add_u32 s{S_CC}, s{S_T0}, s{S_T1}")
    g.A(f"v_and_b32 v{T}, 15, v{H_LANE}")
    g.A(f"v_lshlrev_b32 v{V_CX}, 3, v{T}")
    g.A(f"v_add_u32 v{V_CX}, s{S_CC}, v{V_CX}")
    g.A(f"v_lshrrev_b32 v{T+1}, 4, v{H_LANE}")
    g.A(f"v_lshlrev_b32 v{V_RO}, 13, v{T+1}")
    g.A(f"v_lshl_add_u32 v{V_RO}, v{T}, 4, v{V_RO}")
    g.A(f"v_cmp_gt_u32 vcc, 448, v{V_CX}")
    g.A(f"s_mov_b64 s[{S_MSK}:{S_MSK+1}], vcc")
    g.A(f"s_cmp_lg_u32 s{S_WAVE}, 0")
    g.A(f"s_cbranch_scc1 {skipr}")
    g.A(f"s_mov_b64 exec, s[{S_MSK}:{S_MSK+1}]")
    set_srd(g, SRD_B, P_X, nbytes=1792)
    g.A(f"s_mul_i32 s{S_T0}, s{S_CB}, 896")
    g.A(f"v_lshlrev_b32 v{T+2}, 1, v{V_CX}")
    g.A(f"buffer_load_dword v{T+6}, v{T+2}, s[{SRD_B}:{SRD_B+3}], s{S_T0} offen")
    g.A(f"s_mul_i32 s{S_X0+8}, s{S_CB}, {1344*8}")
    g.A(f"s_add_u32 s{S_X0+8}, s{S_X0+8}, {WS_MOD + 896*4}")
    g.A(f"s_add_u32 s{S_X0+9}, s{S_X0+8}, {(2240-896)*4}")
    g.A(f"v_lshlrev_b32 v{T+3}, 2, v{V_CX}")
    def gl():
        g.A(f"buffer_load_dwordx2 {vr(T+8,2)}, v{T+3}, {WSR}, s{S_X0+8} offen sc1")
        g.A(f"buffer_load_dwordx2 {vr(T+10,2)}, v{T+3}, {WSR}, s{S_X0+9} offen sc1")
    poll_loop(g, cfg, gl, [T + 9, T + 11], T, sleep=4)
    g.A(f"v_mov_b32 v19, v{T+6}")
    g.A(f"v_mov_b32 v22, v{T+8}")
    g.A(f"v_mov_b32 v23, v{T+10}")
    exec_all(g)
    g.L(skipr)
    def r_unpack():
        unpack_pairs(g, [19], [V_XR, V_XR + 1])
        unpack_pairs(g, [22], [V_GA, V_GA + 1])
        unpack_pairs(g, [23], [V_GB, V_GB + 1])
    set_srd(g, SRD_C, P_OUT, nbytes=1792)
    S_REC = S_X0 + 4
    g.A(f"s_lshr_b32 s{S_T0}, s{S_WAVE}, 1")
    g.A(f"s_lshl_b32 s{S_T0}, s{S_T0}, 4")
    g.A(f"s_lshr_b32 s{S_T1}, s{S_ROLE}, 1")
    g.A(f"s_add_u32 s{S_T0}, s{S_T0}, s{S_T1}")
    g.A(f"s_mul_i32 s{S_REC}, s{S_T0}, {6*4096}")
    g.A(f"s_add_u32 s{S_REC}, s{S_REC}, {WS_PART}")
    g.A(f"s_and_b32 s{S_T1}, s{S_ROLE}, 1")
    g.A(f"s_lshl_b32 s{S_T1}, s{S_T1}, 11")
    for s in range(6):
        g.A(f"s_add_u32 s{S_OFF+s}, s{S_REC}, s{S_T1}")
        g.A(f"s_add_u32 s{S_OFF+s}, s{S_OFF+s}, {s*4096}")
    V_PO, V_AOW, V_AFO, V_L16b = 18, 20, 21, 16
    g.A(f"s_and_b32 s{S_T1}, s{S_WAVE}, 1")
    g.A(f"s_lshl_b32 s{S_T1}, s{S_T1}, 6")
    g.A(f"v_add_u32 v{T}, s{S_T1}, v{H_LANE}")
    g.A(f"v_lshlrev_b32 v{V_PO}, 4, v{T}")
    g.A(f"s_lshr_b32 s{S_T1}, s{S_WAVE}, 1")
    g.A(f"s_mul_i32 s{S_T1}, s{S_T1}, {ROWO}")
    g.A(f"v_lshlrev_b32 v{V_AOW}, 1, v{T}")
    g.A(f"v_add_u32 v{V_AOW}, s{S_T1}, v{V_AOW}")
    def afrag_addr(dst, row_stride):
        g.A(f"v_lshrrev_b32 v{T}, 2, v{H_LANE}")
        g.A(f"v_and_b32 v{T}, 1, v{T}")
        g.A(f"v_mul_u32_u24 v{dst}, {row_stride}, v{T}")
        g.A(f"v_lshrrev_b32 v{T}, 4, v{H_LANE}")
        g.A(f"v_lshl_add_u32 v{dst}, v{T}, 4, v{dst}")
    afrag_addr(V_AFO, ROWO)
    S_PUB = S_X0 + 3
    def pub_base(base_const, sidx):
        g.A(f"s_lshl_b32 s{S_PUB}, s{sidx}, 13")
        g.A(f"s_lshl_b32 s{S_T1}, s{S_WAVE}, 11")
        g.A(f"s_add_u32 s{S_PUB}, s{S_PUB}, s{S_T1}")
        g.A(f"s_add_u32 s{S_PUB}, s{S_PUB}, {base_const}")
    pub_base(WS_Y, S_ROLE)
    stamp(g, cfg, 5)
    def heads_wait(sreg_w, off=0):
        g.A(f"s_lshl_b32 s{S_X0+5}, s{sreg_w}, 6")
        g.A(f"s_add_u32 s{S_X0+5}, s{S_X0+5}, {WS_HEADS + off}")
        g.A(f"v_mov_b32 v{T+2}, 0")
        def loads():
            g.A(f"buffer_load_dwordx2 {vr(T+4,2)}, v{T+2}, {WSR}, s{S_X0+5} offen sc1")
        poll_loop(g, cfg, loads, [T + 4, T + 5], T, sleep=cfg.HSLEEP)
    if cfg.X_LOADONLY:
        g.A("s_endpgm")
    if cfg.LATEWO:
        first_of_8(S_ROLE, 16)
        wo_load()
    else:
        g.A(f"s_lshr_b32 s{S_T1}, s{S_ROLE}, 1")
        g.A(f"s_mul_i32 s{S_T1}, s{S_T1}, 6")
        heads_wait(S_T1)
    r_unpack()
    stamp(g, cfg, 6)
    PL = H_ST
    items = []
    for sidx in range(6):
        items.append(((lambda sidx=sidx: g.A(f"buffer_load_dwordx4 {vr(PL + 4*sidx, 4)}, v{V_PO}, {WSR}, s{S_OFF+sidx} offen sc1")), [PL + 4*sidx + 1, PL + 4*sidx + 3]))
    masked_poll(g, cfg, items, None, idle_sleep=cfg.IDLE, trace=16)
    lazy(g, cfg, 0, 2)
    if cfg.LAZY != 2: stamp(g, cfg, 7)
    LM = lambda sidx: PL + 4 * sidx + 2
    g.A(f"v_max3_f32 v{T}, v{LM(0)}, v{LM(1)}, v{LM(2)}")
    g.A(f"v_max3_f32 v{T}, v{LM(3)}, v{LM(4)}, v{T}")
    g.A(f"v_max_f32 v{T}, v{LM(5)}, v{T}")
    for sidx in range(6):
        g.A(f"v_sub_f32 v{LM(sidx)}, v{LM(sidx)}, v{T}")
    for sidx in range(6):
        g.A(f"v_exp_f32 v{LM(sidx)}, v{LM(sidx)}")
    g.A(f"v_add_f32 v{T+1}, v{LM(0)}, v{LM(1)}")
    g.A(f"v_mul_f32 v{T}, v{LM(0)}, v{PL}")
    g.A(f"v_add_f32 v{T+2}, v{LM(2)}, v{LM(3)}")
    g.A(f"v_fmac_f32 v{T}, v{LM(1)}, v{PL+4}")
    g.A(f"v_add_f32 v{T+3}, v{LM(4)}, v{LM(5)}")
    g.A(f"v_fmac_f32 v{T}, v{LM(2)}, v{PL+8}")
    g.A(f"v_add_f32 v{T+1}, v{T+1}, v{T+2}")
    g.A(f"v_fmac_f32 v{T}, v{LM(3)}, v{PL+12}")
    g.A(f"v_add_f32 v{T+1}, v{T+1}, v{T+3}")
    g.A(f"v_fmac_f32 v{T}, v{LM(4)}, v{PL+16}")
    g.A(f"v_rcp_f32 v{T+1}, v{T+1}")
    g.A(f"v_fmac_f32 v{T}, v{LM(5)}, v{PL+20}")
    g.A(f"v_mul_f32 v{T}, v{T}, v{T+1}")
    g.A(f"v_cvt_pk_bf16_f32 v{T}, v{T}, v{T}")
    g.A(f"ds_write_b16 v{V_AOW}, v{T} offset:{L_ACTO}")
    g.A("s_waitcnt lgkmcnt(0)")
    g.A("s_barrier")
    lazy(g, cfg, 1, 2)
    AFO = [4, 8, 12, 216]
    for kb in range(4):
        g.A(f"ds_read_b128 {vr(AFO[kb], 4)}, v{V_AFO} offset:{L_ACTO + kb*64}")
    for kb in range(4):
        g.A(f"s_waitcnt lgkmcnt({3-kb})")
        mfma8(g, AFO[kb], H_FR + 32 * kb, kb == 0)
    lazy(g, cfg, 2, 2)
    def publish_rec():
        g.A("s_mov_b32 exec_lo, -1")
        g.A("s_mov_b32 exec_hi, 0")
        g.A("s_nop 5")
        for p in range(4):
            a0 = H_ACC + 8 * p
            g.A(f"v_mov_b32 v{a0+2}, v{a0+4}")
            g.A(f"v_mov_b32 v{a0+1}, s{S_TAG}")
            g.A(f"v_mov_b32 v{a0+3}, s{S_TAG}")
            g.A(f"buffer_store_dwordx4 {vr(a0, 4)}, v16, {WSR}, s{S_PUB} offen offset:{p*512} sc1")
        exec_all(g)
    publish_rec()
    lazy(g, cfg, 3, 2)
    dbgt(g, cfg, 7, 28, 192, 0)
    dbgt(g, cfg, 8, 28, 210, 0)
    stamp(g, cfg, 8)
    lazy_flush(g, cfg, 4, 21, 2)
    RL = 64
    L_RP = L_RED
    g.A(f"v_lshrrev_b32 v{T}, 4, v{H_LANE}")
    g.A(f"v_lshlrev_b32 v{V_RO}, 15, v{T}")
    g.A(f"v_and_b32 v{T}, 15, v{H_LANE}")
    g.A(f"v_lshl_add_u32 v{V_RO}, v{T}, 4, v{V_RO}")
    g.A(f"v_lshlrev_b32 v22, 3, v{T}")
    g.A(f"s_lshl_b32 s{S_T0}, s{S_WAVE}, 7")
    g.A(f"v_add_u32 v19, s{S_T0}, v22")
    g.A(f"v_lshlrev_b32 v27, 3, v{H_LANE}")
    g.A(f"v_lshlrev_b32 v24, 1, v{V_CX}")
    def rec_gather(base_const, nrec, idle):
        g.A(f"s_lshl_b32 s{S_X0+5}, s{S_K}, 8")
        g.A(f"s_lshl_b32 s{S_T0}, s{S_WAVE}, 13")
        g.A(f"s_add_u32 s{S_X0+5}, s{S_X0+5}, s{S_T0}")
        g.A(f"s_add_u32 s{S_OFF}, s{S_X0+5}, {base_const}")
        g.A(f"s_add_u32 s{S_OFF+1}, s{S_OFF}, {16*8192}")
        init = None
        if nrec == 28:
            g.A("s_mov_b32 exec_lo, 0"); g.A("s_mov_b32 exec_hi, 0xffff0000")
            g.A(f"v_mov_b32 v{RL+4}, 0"); g.A(f"v_mov_b32 v{RL+5}, s{S_TAG}")
            g.A(f"v_mov_b32 v{RL+6}, 0"); g.A(f"v_mov_b32 v{RL+7}, s{S_TAG}")
            exec_all(g)
            init = [None, (0xffffffff, 0x0000ffff)]
        items = [((lambda it=it: g.A(f"buffer_load_dwordx4 {vr(RL + 4*it, 4)}, v{V_RO}, {WSR}, s{S_OFF+it} offen sc1")), [RL + 4*it + 1, RL + 4*it + 3]) for it in range(2)]
        masked_poll(g, cfg, items, None, idle_sleep=idle, trace=(16 if nrec == 32 else 21), init=init)
        g.A(f"v_add_f32 v{RL}, v{RL}, v{RL+4}")
        g.A(f"v_add_f32 v{RL+2}, v{RL+2}, v{RL+6}")
        for swap in ("v_permlane16_swap_b32", "v_permlane32_swap_b32"):
            g.A(f"v_mov_b32 v{RL+1}, v{RL}")
            g.A(f"v_mov_b32 v{RL+3}, v{RL+2}")
            g.A("s_nop 1")
            g.A(f"{swap} v{RL}, v{RL+1}")
            g.A(f"{swap} v{RL+2}, v{RL+3}")
            g.A("s_nop 0")
            g.A(f"v_add_f32 v{RL}, v{RL}, v{RL+1}")
            g.A(f"v_add_f32 v{RL+2}, v{RL+2}, v{RL+3}")
        g.A(f"v_mov_b32 v{RL+1}, v{RL+2}")
        g.A("s_mov_b64 exec, 0xffff")
        g.A(f"ds_write_b64 v19, {vr(RL,2)} offset:{L_RP}")
        exec_all(g)
        g.A("s_waitcnt lgkmcnt(0)")
        g.A("s_barrier")
    def rec_finish():
        for w in range(4):
            g.A(f"ds_read_b64 {vr(RL + 8 + 2*w, 2)}, v22 offset:{L_RP + w*128}")
        g.A("s_waitcnt lgkmcnt(0)")
        pk(g, "add", RL + 8, RL + 8, RL + 10)
        pk(g, "add", RL + 12, RL + 12, RL + 14)
        pk(g, "add", RL + 8, RL + 8, RL + 12)
        g.A(f"v_mov_b32 v{RL}, v{RL+8}")
        g.A(f"v_mov_b32 v{RL+2}, v{RL+9}")
    def resid(base_x, gate):
        bf16_round_pairs(g, [RL, RL + 2], T)
        g.A(f"v_mul_f32 v{RL}, v{RL}, v{gate}")
        g.A(f"v_mul_f32 v{RL+2}, v{RL+2}, v{gate+1}")
        bf16_round_pairs(g, [RL, RL + 2], T)
        g.A(f"v_add_f32 v{RL}, v{RL}, v{base_x}")
        g.A(f"v_add_f32 v{RL+2}, v{RL+2}, v{base_x+1}")
        g.A(f"v_cvt_pk_bf16_f32 v{T}, v{RL}, v{RL+2}")
    g.A(f"s_lshl_b32 s{S_PUB}, s{S_K}, 7")
    g.A(f"s_add_u32 s{S_PUB}, s{S_PUB}, {WS_X2}")
    rec_gather(WS_Y, 32, cfg.IDLE)
    stamp(g, cfg, 9)
    sk = g.lab("nox2")
    g.A(f"s_cmp_lg_u32 s{S_WAVE}, 0")
    g.A(f"s_cbranch_scc1 {sk}")
    rec_finish()
    g.A(f"v_mov_b32 v{T+1}, s{S_TAG}")
    resid(V_XR, V_GA)
    g.A(f"s_and_b32 exec_lo, s{S_MSK}, 0xffff")
    g.A("s_mov_b32 exec_hi, 0")
    for rep in range(NREP_X):
        g.A(f"buffer_store_dwordx2 {vr(T,2)}, v27, {WSR}, s{S_PUB} offen offset:0 sc1")
        if rep + 1 < NREP_X:
            g.A(f"s_add_u32 s{S_PUB}, s{S_PUB}, 4096")
    exec_all(g)
    unpack_pairs(g, [T], [V_X2, V_X2 + 1])
    g.L(sk)
    stamp(g, cfg, 10)
    g.A("s_barrier")
    g.A(f"s_mul_i32 s{S_PUB}, s{S_CB}, 896")
    rec_gather(WS_DN, 28, cfg.IDLE)
    stamp(g, cfg, 11)
    g.A(f"s_cmp_lg_u32 s{S_WAVE}, 0")
    g.A("s_cbranch_scc1 L_exit")
    rec_finish()
    resid(V_X2, V_GB)
    g.A(f"s_and_b32 exec_lo, s{S_MSK}, 0xffff")
    g.A("s_mov_b32 exec_hi, 0")
    g.A(f"buffer_store_dword v{T}, v24, s[{SRD_C}:{SRD_C+3}], s{S_PUB} offen{cfg.OUTF}")
    dbgt(g, cfg, 0, 28, 192, 0)
    g.A(f"s_cmp_lg_u32 s{S_K}, 0")
    g.A("s_cbranch_scc1 L_exit")
    g.A("s_mov_b64 exec, 1")
    g.A(f"v_mov_b32 v{T+3}, s{S_TAG}")
    g.A(f"v_mov_b32 v{T+4}, 0")
    g.A(f"buffer_store_dword v{T+3}, v{T+4}, {WSR}, 0 offen sc1")
    stamp(g, cfg, 12)
    g.A("s_endpgm")

    g.L("L_rf")
    S_I = S_X0 + 4
    g.A(f"s_sub_u32 s{S_I}, s{S_ROLE}, 32")
    g.A(f"s_cmp_ge_u32 s{S_I}, 28")
    g.A("s_cbranch_scc1 L_exit")
    V_WGU, V_WD = 17, 18
    g.A(f"v_lshrrev_b32 v{T}, 4, v{H_LANE}")
    g.A(f"v_lshlrev_b32 v{T}, 3, v{T}")
    g.A(f"s_lshl_b32 s{S_T0}, s{S_WAVE}, 5")
    g.A(f"v_add_u32 v{T}, s{S_T0}, v{T}")
    g.A(f"v_mul_u32_u24 v{V_WGU}, 3584, v{T}")
    g.A(f"v_and_b32 v{T}, 7, v{H_LANE}")
    g.A(f"v_lshl_add_u32 v{V_WGU}, v{T}, 4, v{V_WGU}")
    g.A(f"s_lshl_b32 s{S_T2}, s{S_I}, 7")
    g.A(f"s_sub_u32 s{S_X0+1}, {448*3584}, s{S_T2}")
    set_srd(g, SRD_A, P_WG, off_sreg=S_T2, nbytes_sreg=S_X0 + 1)
    set_srd(g, SRD_B, P_WU, off_sreg=S_T2, nbytes_sreg=S_X0 + 1)
    g.A(f"s_mul_i32 s{S_T2}, s{S_I}, {64*896}")
    g.A(f"s_sub_u32 s{S_X0+1}, {1792*896}, s{S_T2}")
    set_srd(g, SRD_C, P_WD, off_sreg=S_T2, nbytes_sreg=S_X0 + 1)
    woff128(V_WD)
    FSH, FSC, FLD, FLN = 176, 184, 208, 224
    skip = g.lab("nosb")
    g.A(f"s_cmp_ge_u32 s{S_WAVE}, 2")
    g.A(f"s_cbranch_scc1 {skip}")
    g.A(f"s_mul_i32 s{S_X0+3}, s{S_B}, {1344*8}")
    g.A(f"s_add_u32 s{S_X0+3}, s{S_X0+3}, {WS_MOD + 672*8}")
    exec56(g)
    gather_shift_scale(g, cfg, S_X0 + 3, V_G32, FLD, FSH, FSC, T)
    exec_all(g)
    g.L(skip)
    stamp(g, cfg, 5)
    def wd_unit(kb, dst):
        tile3_mask()
        unit_loads(g, dst, SRD_C, V_WD, [(kb * 32 + e) * 896 for e in range(8)], NT)
        exec_all(g)
    if cfg.WDEARLY:
        wd_unit(0, 32); wd_unit(1, 96)
        g.A("s_waitcnt vmcnt(8)"); transpose_unit(g, 32, 0, dst_acc=True, tmp=T)
        g.A("s_waitcnt vmcnt(0)"); transpose_unit(g, 96, 32, dst_acc=True, tmp=T)
    if cfg.LATEF:
        first_of_8(S_I, cfg.LATEOFF)
    stamp(g, cfg, 6)
    V_FXW, V_FXR = 19, 22
    g.A(f"s_lshl_b32 s{S_T0}, s{S_WAVE}, 13")
    g.A(f"s_add_u32 s{S_T0}, s{S_T0}, {L_FX}")
    g.A(f"v_add_u32 v{V_FXW}, s{S_T0}, v16")
    g.A(f"s_lshl_b32 s{S_T0}, s{S_WAVE}, 11")
    g.A(f"s_add_u32 s{S_T0}, s{S_T0}, {L_FX}")
    g.A(f"v_add_u32 v{V_FXR}, s{S_T0}, v16")
    FT = 160 - 32 if False else 32
    GU = [H_ST, H_ST + 32]
    def gu_unit_at(it, dst):
        g.A("s_mov_b32 exec_lo, 0x00ff00ff"); g.A("s_mov_b32 exec_hi, 0x00ff00ff")
        unit_loads(g, dst, SRD_A, V_WGU, [e * 3584 + it * 128 * 3584 for e in range(8)], NT)
        g.A("s_mov_b32 exec_lo, 0xff00ff00"); g.A("s_mov_b32 exec_hi, 0xff00ff00")
        unit_loads(g, dst, SRD_B, V_WGU, [e * 3584 + it * 128 * 3584 for e in range(8)], NT)
        exec_all(g)
    def exchange(it, src):
        transpose_unit(g, src, FT)
        for m in range(8):
            g.A(f"ds_write_b128 v{V_FXW}, {vr(FT + 4*m, 4)} offset:{m*1024}")
        g.A("s_waitcnt lgkmcnt(0)")
        g.A("s_barrier")
        for w in range(4 if it < 3 else 2):
            kb = 4 * it + w
            for mm in range(2):
                g.A(f"ds_read_b128 {vr(H_FR + (kb*2+mm)*4, 4)}, v{V_FXR} offset:{w*8192 + mm*1024}")
        g.A("s_waitcnt lgkmcnt(0)")
        g.A("s_barrier")
    g.A("s_barrier")
    if not cfg.X_SKIPFW:
        gu_unit_at(0, GU[0]); gu_unit_at(1, GU[1])
        g.A("s_waitcnt vmcnt(16)"); exchange(0, GU[0])
        gu_unit_at(2, GU[0])
        g.A("s_waitcnt vmcnt(16)"); exchange(1, GU[1])
        gu_unit_at(3, GU[1])
        g.A("s_waitcnt vmcnt(16)"); exchange(2, GU[0])
        if not cfg.WDEARLY:
            wd_unit(0, GU[0])
            g.A("s_waitcnt vmcnt(8)"); exchange(3, GU[1])
            wd_unit(1, GU[1])
            g.A("s_waitcnt vmcnt(8)"); transpose_unit(g, GU[0], 0, dst_acc=True, tmp=T)
            g.A("s_waitcnt vmcnt(0)"); transpose_unit(g, GU[1], 32, dst_acc=True, tmp=T)
        else:
            g.A("s_waitcnt vmcnt(0)"); exchange(3, GU[1])
    V_AFH, V_AFD, V_A2W, V_X2O = 17, 18, 19, 27
    afrag_addr(V_AFH, ROWB)
    afrag_addr(V_AFD, ROWO)
    g.A(f"v_lshrrev_b32 v{T}, 4, v{H_LANE}")
    g.A(f"v_mul_u32_u24 v{V_A2W}, {ROWO}, v{T}")
    g.A(f"v_and_b32 v{T}, 7, v{H_LANE}")
    g.A(f"v_lshl_add_u32 v{V_A2W}, v{T}, 4, v{V_A2W}")
    g.A(f"s_lshl_b32 s{S_T0}, s{S_WAVE}, 2")
    g.A(f"v_add_u32 v{V_A2W}, s{S_T0}, v{V_A2W}")
    pub_base(WS_DN, S_I)
    g.A(f"s_and_b32 s{S_X0+5}, s{S_I}, {NREP_X-1}")
    g.A(f"s_lshl_b32 s{S_X0+5}, s{S_X0+5}, 12")
    g.A(f"s_lshl_b32 s{S_T0}, s{S_B}, 7")
    g.A(f"s_add_u32 s{S_X0+5}, s{S_X0+5}, s{S_T0}")
    g.A(f"s_add_u32 s{S_X0+5}, s{S_X0+5}, {WS_X2}")
    g.A(f"v_lshrrev_b32 v{T+2}, 4, v{H_LANE}")
    g.A(f"v_lshlrev_b32 v{T+2}, 10, v{T+2}")
    g.A(f"v_and_b32 v{T+3}, 15, v{H_LANE}")
    g.A(f"v_lshl_add_u32 v{V_X2O}, v{T+3}, 3, v{T+2}")
    g.A(f"s_mov_b32 s{S_X0+8}, -1")
    g.A(f"s_mov_b32 s{S_X0+9}, 0x00ffffff")
    stamp(g, cfg, 7)
    skip = g.lab("noln2")
    g.A(f"s_cmp_ge_u32 s{S_WAVE}, 2")
    g.A(f"s_cbranch_scc1 {skip}")
    exec56(g)
    items = [((lambda p=p: g.A(f"buffer_load_dwordx2 {vr(FLD + 2*p, 2)}, v{V_X2O}, {WSR}, s{S_X0+5} offen offset:{256*p} sc1")), [FLD + 2*p + 1]) for p in range(4)]
    masked_poll(g, cfg, items, S_X0 + 8, idle_sleep=cfg.IDLE, trace=16)
    exec_all(g)
    lazy(g, cfg, 0, 2)
    if cfg.LAZY != 2: stamp(g, cfg, 9)
    XF = FLD + 8
    unpack_pairs(g, [FLD, FLD + 2, FLD + 4, FLD + 6], [XF + e for e in range(8)])
    ln_normalize(g, XF, FLN, T)
    exec56(g)
    modulate_write(g, FLN, FSH, FSC, V_ACTW, L_ACTH, T)
    exec_all(g)
    g.L(skip)
    g.A("s_waitcnt lgkmcnt(0)")
    g.A("s_barrier")
    lazy(g, cfg, 1, 2)
    AFF = 192
    for kb in range(14):
        g.A(f"ds_read_b128 {vr(AFF + 4*kb, 4)}, v{V_AFH} offset:{L_ACTH + kb*64}")
    for kb in range(14):
        g.A(f"s_waitcnt lgkmcnt({min(15, 13-kb)})")
        for mm in range(2):
            acc = H_ACC + 4 * mm
            c = "0" if kb == 0 else vr(acc, 4)
            g.A(f"v_mfma_f32_16x16x32_bf16 {vr(acc,4)}, {vr(AFF + 4*kb, 4)}, {vr(H_FR + (kb*2+mm)*4, 4)}, {c}")
    g.A(f"s_mov_b32 s{S_T0}, {f2u(-LOG2E):#x}")
    g.A("s_nop 6")
    G0, G1, U0, U1 = T, T + 1, T + 2, T + 3
    g.A(f"v_mov_b32_dpp v{U0}, v{H_ACC} row_ror:8 row_mask:0xf bank_mask:0xf")
    g.A(f"v_mov_b32_dpp v{U1}, v{H_ACC+4} row_ror:8 row_mask:0xf bank_mask:0xf")
    g.A(f"v_cvt_pk_bf16_f32 v{T+4}, v{H_ACC}, v{H_ACC+4}")
    g.A(f"v_cvt_pk_bf16_f32 v{T+5}, v{U0}, v{U1}")
    g.A(f"v_lshlrev_b32 v{G0}, 16, v{T+4}")
    g.A(f"v_and_b32 v{G1}, 0xffff0000, v{T+4}")
    g.A(f"v_mul_f32 v{G0}, s{S_T0}, v{G0}")
    g.A(f"v_mul_f32 v{G1}, s{S_T0}, v{G1}")
    g.A(f"v_exp_f32 v{G0}, v{G0}")
    g.A(f"v_exp_f32 v{G1}, v{G1}")
    g.A(f"v_lshlrev_b32 v{U0}, 16, v{T+5}")
    g.A(f"v_and_b32 v{U1}, 0xffff0000, v{T+5}")
    g.A(f"v_add_f32 v{G0}, 1.0, v{G0}")
    g.A(f"v_add_f32 v{G1}, 1.0, v{G1}")
    g.A(f"v_rcp_f32 v{G0}, v{G0}")
    g.A(f"v_rcp_f32 v{G1}, v{G1}")
    g.A("s_nop 0")
    g.A(f"v_cvt_pk_bf16_f32 v{T+4}, v{G0}, v{G1}")
    g.A(f"v_lshlrev_b32 v{G0}, 16, v{T+4}")
    g.A(f"v_and_b32 v{G1}, 0xffff0000, v{T+4}")
    g.A(f"v_mul_f32 v{G0}, v{G0}, v{U0}")
    g.A(f"v_mul_f32 v{G1}, v{G1}, v{U1}")
    g.A(f"v_cvt_pk_bf16_f32 v{T+4}, v{G0}, v{G1}")
    g.A("s_mov_b32 exec_lo, 0x00ff00ff")
    g.A("s_mov_b32 exec_hi, 0")
    g.A(f"ds_write_b32 v{V_A2W}, v{T+4} offset:{L_ACTO}")
    exec_all(g)
    g.A("s_waitcnt lgkmcnt(0)")
    g.A("s_barrier")
    lazy(g, cfg, 3, 2)
    for kb in range(2):
        g.A(f"ds_read_b128 {vr(AFF + 4*kb, 4)}, v{V_AFD} offset:{L_ACTO + kb*64}")
    for kb in range(2):
        g.A(f"s_waitcnt lgkmcnt({1-kb})")
        mfma8(g, AFF + 4 * kb, 32 * kb, kb == 0, frag_acc=True)
    publish_rec()
    lazy(g, cfg, 4, 2)
    stamp(g, cfg, 10)
    lazy_flush(g, cfg, 5, 21, 2)
    g.A("s_endpgm")

def generate(cfg, header_src=None):
    g = G()
    g.A(f"s_cmp_ge_u32 s{S_WG}, {cfg.NSTREAM + cfg.NHELP}")
    g.A("s_cbranch_scc1 L_exit")
    if cfg.STAMPS:
        g.A("s_memrealtime s[84:85]")
    if cfg.DBGT:
        g.A("s_memrealtime s[92:93]")
    g.A("s_load_dwordx16 s[16:31], s[0:1], 0")
    g.A("s_load_dwordx8 s[32:39], s[0:1], 64")
    g.A("s_load_dwordx4 s[40:43], s[0:1], 96")
    g.A("v_lshrrev_b32 v1, 6, v0")
    g.A("v_and_b32 v0, 63, v0")
    g.A(f"s_cmp_lt_u32 s{S_WG}, {cfg.NSTREAM}")
    g.A(f"v_readfirstlane_b32 s{S_WAVE}, v1")
    g.A("s_cbranch_scc0 L_helper0")
    g.A("s_nop 2")
    cfg.STAMP_V = 116
    emit_streamer(g, cfg)
    cfg.STAMP_V = 28
    g.L("L_helper0")
    g.A("v_mov_b32 v2, 0")
    g.A("s_waitcnt lgkmcnt(0)")
    set_srd(g, SRD_WS, P_WS, nbytes=WS_SIZE)
    g.A(f"buffer_load_dword v1, v2, s[{SRD_WS}:{SRD_WS+3}], 0 offen sc1")
    entry_stamp(g, cfg)
    emit_helper(g, cfg)
    g.L("L_exit")
    g.A("s_endpgm")
    g.L("L_codeend")
    hdr = open("adaLN_cond__mha_block_cached__glu_gated_glu__decode.s.ref").read().split("\n")
    head = []
    for line in hdr:
        if line.startswith("; @launch"):
            head.append(f"; @launch grid=({cfg.NSTREAM + cfg.NHELP},1,1) block=(256,1,1) lds={LDS_BYTES}")
            break
        head.append(line)
    txt = "\n".join(head) + "\n"
    txt += '.amdgcn_target "amdgcn-amd-amdhsa--gfx950"\n.text\n'
    txt += f".globl {KNAME}\n.p2align 8\n.type {KNAME},@function\n{KNAME}:\n"
    txt += "\n".join(g.o) + "\n"
    txt += f""".section .rodata,"a"
.p2align 6
.amdhsa_kernel {KNAME}
  .amdhsa_next_free_vgpr 512
  .amdhsa_next_free_sgpr 102
  .amdhsa_accum_offset 256
  .amdhsa_group_segment_fixed_size 0
  .amdhsa_kernarg_size 112
  .amdhsa_user_sgpr_count 2
  .amdhsa_user_sgpr_kernarg_segment_ptr 1
  .amdhsa_system_sgpr_workgroup_id_x 1
  .amdhsa_float_denorm_mode_32 3
.end_amdhsa_kernel
"""
    return txt

if __name__ == "__main__":
    import argparse
    ap = argparse.ArgumentParser()
    ap.add_argument("-o", default="k.s")
    ap.add_argument("--stamps", action="store_true")
    ap.add_argument("--set", nargs="*", default=[])
    a = ap.parse_args()
    cfg = Cfg()
    cfg.STAMPS = a.stamps
    for kv in a.set:
        k, v = kv.split("=")
        if isinstance(getattr(cfg, k), str): v = (" " + v.replace("_", " ")) if v else ""
        setattr(cfg, k, type(getattr(cfg, k))(v) if not isinstance(getattr(cfg, k), bool) else v in ("1", "True"))
    open(a.o, "w").write(generate(cfg))
    print("wrote", a.o)
```

```python
import sys

KNAME = "adaLN_cond__mha_block_cached__glu_gated_glu__decode_kernel"

class Cfg:
    NS = 6
    NSTREAM = 192
    NHELP = 64
    P = 12
    DMIN = 4
    W1 = 16
    NG = 22
    STAMPS = False
    POLLMAX = 200000
    HEADS_STEP = 41
    NT = " nt"
    NTW = " nt"
    CODEPF = True
    STAMP_V = 28
    LAZY = 0
    EARLYPF = True
    LATEF = True
    WDEARLY = False
    LATEWO = False
    HEADS3 = 38
    HEADS2 = 40
    LATEOFF = 8
    OUTF = " sc0 sc1"
    X_SKIPFW = False
    X_SKIPWO = False
    POLL_VT = 4
    WCONT = False
    BAL = True
    DBGT = False
    RPK = 3
    RPGAP = 7
    RW0 = 2
    IDLE = 8
    STG = 10
    RPGAP2 = 10
    X_LOADONLY = False
    HSLEEP = 16
    CAPG = 4
    QBACK = 1
    SHRINK = 2
    X_NOHELP = False
    X_NOEPIW = False
    CODEPF2 = False

WS_EPOCH = 0
WS_HEADS = 0x1000
WS_MOD = 0x4000
WS_QB = 0xA000
WS_X2 = 0x12000
NREP_X = 4
WS_PART = 0x20000
WS_Y = 0x100000
WS_DN = 0x140000
WS_STAMP = 0x180000
WS_SIZE = 0x200000

ROWB = 1152
L_ACTS = 0
L_ACTH = 2 * ROWB
L_ACTO = 4 * ROWB
ROWO = 320
L_RED = 4 * ROWB + 2 * ROWO + 128
L_RED = (L_RED + 255) // 256 * 256
L_FX = L_RED
LDS_BYTES = L_FX + 4 * 8192
L_OW = 0
L_ML = 4096

LOG2E = 1.4426950408889634

import struct
def f2u(x):
    return struct.unpack("<I", struct.pack("<f", x))[0]

class G:
    def __init__(self):
        self.o = []
        self.nlab = 0
    def A(self, s):
        self.o.append("    " + s)
    def L(self, name):
        self.o.append(name + ":")
    def lab(self, base):
        self.nlab += 1
        return f"L_{base}_{self.nlab}"
    def C(self, s):
        self.o.append("    ; " + s)

def vr(b, n=1):
    return f"v{b}" if n == 1 else f"v[{b}:{b+n-1}]"
def ar(b, n=1):
    return f"a{b}" if n == 1 else f"a[{b}:{b+n-1}]"
def sr(b, n=1):
    return f"s{b}" if n == 1 else f"s[{b}:{b+n-1}]"

S_WG, S_WAVE, S_ROLE = 2, 3, 4
S_T0, S_T1, S_T2 = 5, 6, 7
SRD_A, SRD_B = 8, 12
P_X, P_K, P_V, P_WQ, P_WO, P_BX, P_WG, P_WU, P_WD, P_C, P_WMOD, P_OUT, P_DBG, P_WS = 16, 18, 20, 22, 24, 26, 28, 30, 32, 34, 36, 38, 40, 42
S_TAG, S_CNT = 44, 45
S_SAVE = 46
SRD_C = 48
SRD_WS = 52
S_OFF = 56
S_SEL0, S_SEL1 = 64, 65
S_MSK = 66
S_X0 = 74
S_STAMP = 88
S_STB = 87
S_MISS = 16
S_PF = 46

def stamp(g, cfg, idx):
    if not cfg.STAMPS:
        return
    g.A(f"s_memrealtime s[{S_STAMP}:{S_STAMP+1}]")
    g.A("s_waitcnt lgkmcnt(0)")
    g.A(f"s_mov_b64 s[100:101], exec")
    g.A("s_mov_b64 exec, 1")
    sv = cfg.STAMP_V
    g.A(f"v_mov_b32 v{sv}, s{S_STAMP}")
    g.A(f"v_mov_b32 v{sv+1}, s{S_STAMP+1}")
    g.A(f"v_mov_b32 v{sv+2}, s{S_STB}")
    g.A(f"buffer_store_dwordx2 v[{sv}:{sv+1}], v{sv+2}, s[{SRD_WS}:{SRD_WS+3}], 0 offen offset:{idx*8}")
    g.A(f"s_mov_b64 exec, s[100:101]")

def lazy(g, cfg, i, mode=1):
    if cfg.STAMPS and cfg.LAZY == mode:
        g.A(f"s_memrealtime s[{90+2*i}:{91+2*i}]")
def lazy_flush(g, cfg, n, idx0, mode=1):
    if not (cfg.STAMPS and cfg.LAZY == mode):
        return
    g.A("s_waitcnt lgkmcnt(0)")
    g.A(f"s_mov_b64 s[100:101], exec")
    g.A("s_mov_b64 exec, 1")
    sv = cfg.STAMP_V
    for i in range(n):
        g.A(f"v_mov_b32 v{sv}, s{90+2*i}")
        g.A(f"v_mov_b32 v{sv+1}, s{91+2*i}")
        g.A(f"v_mov_b32 v{sv+2}, s{S_STB}")
        g.A(f"buffer_store_dwordx2 v[{sv}:{sv+1}], v{sv+2}, s[{SRD_WS}:{SRD_WS+3}], 0 offen offset:{(idx0+i)*8}")
        g.A("s_nop 1")
    g.A(f"s_mov_b64 exec, s[100:101]")

def set_srd(g, srd, ptr, off_sreg=None, nbytes=None, nbytes_sreg=None):
    if off_sreg is None:
        g.A(f"s_mov_b32 s{srd}, s{ptr}")
        g.A(f"s_mov_b32 s{srd+1}, s{ptr+1}")
    else:
        g.A(f"s_add_u32 s{srd}, s{ptr}, s{off_sreg}")
        g.A(f"s_addc_u32 s{srd+1}, s{ptr+1}, 0")
    if nbytes_sreg is not None:
        g.A(f"s_mov_b32 s{srd+2}, s{nbytes_sreg}")
    else:
        g.A(f"s_mov_b32 s{srd+2}, {nbytes}")
    g.A(f"s_mov_b32 s{srd+3}, 0x20000")

def code_prefetch(g, cfg, start_label, end_label, backward, voff, vdst, ninstr=1, per_instr=8192):
    if not cfg.CODEPF:
        return
    here = g.lab("pc")
    g.A(f"s_getpc_b64 s[{S_PF}:{S_PF+1}]")
    g.L(here)
    if backward:
        g.A(f"s_sub_u32 s{S_PF}, s{S_PF}, {here}-{start_label}")
        g.A(f"s_subb_u32 s{S_PF+1}, s{S_PF+1}, 0")
    else:
        g.A(f"s_add_u32 s{S_PF}, s{S_PF}, {start_label}-{here}")
        g.A(f"s_addc_u32 s{S_PF+1}, s{S_PF+1}, 0")
    for k in range(ninstr):
        skip = g.lab("nopf")
        g.A(f"s_mov_b32 s{S_T1}, {end_label}-{start_label}")
        g.A(f"v_cmp_gt_u32 vcc, s{S_T1}, v{voff}")
        g.A("s_nop 0")
        g.A("s_and_b64 exec, exec, vcc")
        g.A(f"s_cbranch_execz {skip}")
        g.A(f"global_load_dword v{vdst}, v{voff}, s[{S_PF}:{S_PF+1}]")
        g.L(skip)
        g.A("s_mov_b64 exec, -1")
        if k + 1 < ninstr:
            g.A(f"v_add_u32 v{voff}, {per_instr}, v{voff}")

def entry_stamp(g, cfg):
    if not cfg.STAMPS:
        return
    g.A(f"s_lshl_b32 s{S_STB}, s{S_WG}, 2")
    g.A(f"s_add_u32 s{S_STB}, s{S_STB}, s{S_WAVE}")
    g.A(f"s_lshl_b32 s{S_STB}, s{S_STB}, 8")
    g.A(f"s_add_u32 s{S_STB}, s{S_STB}, {WS_STAMP}")
    g.A(f"s_mov_b64 s[100:101], exec")
    g.A("s_mov_b64 exec, 1")
    sv = cfg.STAMP_V
    g.A(f"v_mov_b32 v{sv}, s84")
    g.A(f"v_mov_b32 v{sv+1}, s85")
    g.A(f"v_mov_b32 v{sv+2}, s{S_STB}")
    g.A(f"buffer_store_dwordx2 v[{sv}:{sv+1}], v{sv+2}, s[{SRD_WS}:{SRD_WS+3}], 0 offen offset:0")
    g.A(f"s_mov_b64 exec, s[100:101]")

def dbgt(g, cfg, idx, vtmp, cond_wg=None, cond_wave=None):
    if not cfg.DBGT:
        return
    sk = g.lab("dbgsk")
    if cond_wg is not None:
        g.A(f"s_cmp_lg_u32 s{S_WG}, {cond_wg}"); g.A(f"s_cbranch_scc1 {sk}")
    if cond_wave is not None:
        g.A(f"s_cmp_lg_u32 s{S_WAVE}, {cond_wave}"); g.A(f"s_cbranch_scc1 {sk}")
    g.A("s_memrealtime s[98:99]")
    g.A("s_waitcnt lgkmcnt(0)")
    g.A("s_sub_u32 s98, s98, s92")
    g.A("s_mov_b64 s[100:101], exec")
    g.A("s_mov_b64 exec, 1")
    g.A(f"v_mov_b32 v{vtmp}, s98")
    g.A(f"v_mov_b32 v{vtmp+1}, {idx*4}")
    g.A(f"global_store_dword v{vtmp+1}, v{vtmp}, s[{P_DBG}:{P_DBG+1}]")
    g.A("s_mov_b64 exec, s[100:101]")
    g.L(sk)

def entry_prefetch(g, cfg, vtmp):
    if cfg.CODEPF and not cfg.EARLYPF:
        g.A(f"s_lshl_b32 s{S_T0}, s{S_WAVE}, 13")
        g.A(f"v_lshlrev_b32 v{vtmp}, 7, v0")
        g.A(f"v_add_u32 v{vtmp}, s{S_T0}, v{vtmp}")
        code_prefetch(g, cfg, KNAME, 'L_codeend', True, vtmp, 31, ninstr=2 if cfg.CODEPF2 else 1, per_instr=32768)

def make_tag(g, vreg):
    g.A(f"v_readfirstlane_b32 s{S_TAG}, v{vreg}")
    g.A("s_nop 3")
    g.A(f"s_mul_i32 s{S_TAG}, s{S_TAG}, 0x19660d")
    g.A(f"s_add_u32 s{S_TAG}, s{S_TAG}, 0x3c6ef35f")

def check_tags(g, tagregs, tmp, ok_label, set_vcc_only=False):
    g.A(f"v_xor_b32 v{tmp}, s{S_TAG}, v{tagregs[0]}")
    for r in tagregs[1:]:
        g.A(f"v_xor_b32 v{tmp+1}, s{S_TAG}, v{r}")
        g.A(f"v_or_b32 v{tmp}, v{tmp}, v{tmp+1}")
    g.A(f"v_cmp_ne_u32 vcc, 0, v{tmp}")
    g.A("s_nop 1")
    g.A(f"s_cbranch_vccz {ok_label}")

def poll_loop(g, cfg, emit_loads, tagregs, tmp, sleep=1):
    top = g.lab("poll"); ok = g.lab("pollok")
    g.A(f"s_mov_b32 s{S_CNT}, 0")
    g.L(top)
    emit_loads()
    g.A("s_waitcnt vmcnt(0)")
    check_tags(g, tagregs, tmp, ok)
    if sleep:
        g.A(f"s_sleep {sleep}")
    g.A(f"s_add_u32 s{S_CNT}, s{S_CNT}, 1")
    g.A(f"s_cmp_lt_u32 s{S_CNT}, {cfg.POLLMAX}")
    g.A(f"s_cbranch_scc1 {top}")
    g.L(ok)

def rolling_poll(g, cfg, emit_loads, nloads, nregs, tag_offs, sets, res, tmp, gap, copy_offs=None):
    K = len(sets)
    if copy_offs is None:
        copy_offs = [r for r in range(nregs) if r not in tag_offs]
    top = g.lab("rp"); done = g.lab("rpdone")
    oks = [g.lab(f"rpok{i}") for i in range(K)]
    g.A(f"s_mov_b32 s{S_CNT}, 0")
    for i in range(K):
        emit_loads(sets[i])
        if i + 1 < K and gap:
            g.A(f"s_sleep {gap}")
    g.L(top)
    for i in range(K):
        g.A(f"s_waitcnt vmcnt({nloads*(K-1)})")
        check_tags(g, [sets[i] + o for o in tag_offs], tmp, oks[i])
        emit_loads(sets[i])
    g.A(f"s_add_u32 s{S_CNT}, s{S_CNT}, 1")
    g.A(f"s_cmp_lt_u32 s{S_CNT}, {cfg.POLLMAX}")
    g.A(f"s_cbranch_scc1 {top}")
    for i in range(K - 1, -1, -1):
        g.L(oks[i])
        for r in copy_offs:
            g.A(f"v_mov_b32 v{res+r}, v{sets[i]+r}")
        if i > 0:
            g.A(f"s_branch {done}")
    g.L(done)

def masked_poll(g, cfg, items, base, idle_sleep=0, busy_sleep=0, trace=None, init=None):
    n = len(items)
    assert n <= 8
    bs = f"s[{base}:{base+1}]" if base is not None else "-1"
    top = g.lab("mp"); done = g.lab("mpdone")
    for i in range(n):
        if init is not None and init[i] is not None:
            g.A(f"s_mov_b32 s{S_MISS+2*i}, {init[i][0]:#x}")
            g.A(f"s_mov_b32 s{S_MISS+2*i+1}, {init[i][1]:#x}")
        else:
            g.A(f"s_mov_b64 s[{S_MISS+2*i}:{S_MISS+2*i+1}], {bs}")
    g.A(f"s_mov_b32 s{S_CNT}, 0")
    g.L(top)
    if trace is not None and cfg.STAMPS and cfg.LAZY == 3:
        g.A("s_waitcnt lgkmcnt(0)")
        g.A("s_mov_b64 s[90:91], s[92:93]")
        g.A("s_mov_b64 s[92:93], s[94:95]")
        g.A("s_memrealtime s[94:95]")
    for i, (ld, tags) in enumerate(items):
        sk = g.lab("mpsk")
        g.A(f"s_mov_b64 exec, s[{S_MISS+2*i}:{S_MISS+2*i+1}]")
        g.A(f"s_cbranch_execz {sk}")
        ld()
        g.L(sk)
    g.A(f"s_mov_b64 exec, {bs}")
    g.A("s_waitcnt vmcnt(0)")
    VT = cfg.POLL_VT
    for i, (ld, tags) in enumerate(items):
        if len(tags) == 2:
            g.A(f"v_bitop3_b32 v{VT+i}, v{tags[0]}, v{tags[1]}, s{S_TAG} bitop3:0x7e")
        elif len(tags) == 3:
            g.A(f"v_bitop3_b32 v{VT+i}, v{tags[0]}, v{tags[1]}, s{S_TAG} bitop3:0x7e")
            g.A(f"v_xor_b32 v{VT+8}, s{S_TAG}, v{tags[2]}")
            g.A(f"v_or_b32 v{VT+i}, v{VT+i}, v{VT+8}")
    for i, (ld, tags) in enumerate(items):
        if len(tags) == 1:
            g.A(f"v_cmp_ne_u32 s[{S_MISS+2*i}:{S_MISS+2*i+1}], s{S_TAG}, v{tags[0]}")
        else:
            g.A(f"v_cmp_ne_u32 s[{S_MISS+2*i}:{S_MISS+2*i+1}], 0, v{VT+i}")
    if n == 1:
        g.A(f"s_cmp_eq_u64 s[{S_MISS}:{S_MISS+1}], 0")
        g.A(f"s_cbranch_scc1 {done}")
    else:
        g.A(f"s_or_b64 s[{S_SAVE}:{S_SAVE+1}], s[{S_MISS}:{S_MISS+1}], s[{S_MISS+2}:{S_MISS+3}]")
        for i in range(2, n):
            g.A(f"s_or_b64 s[{S_SAVE}:{S_SAVE+1}], s[{S_SAVE}:{S_SAVE+1}], s[{S_MISS+2*i}:{S_MISS+2*i+1}]")
        g.A(f"s_cbranch_scc0 {done}")
    if idle_sleep:
        busy = g.lab("mpbusy")
        g.A(f"s_mov_b64 s[{S_SAVE}:{S_SAVE+1}], s[{S_MISS}:{S_MISS+1}]")
        for i in range(1, n):
            g.A(f"s_and_b64 s[{S_SAVE}:{S_SAVE+1}], s[{S_SAVE}:{S_SAVE+1}], s[{S_MISS+2*i}:{S_MISS+2*i+1}]")
        g.A(f"s_cmp_eq_u32 s{S_SAVE}, -1")
        g.A(f"s_cbranch_scc0 {busy}")
        g.A(f"s_sleep {idle_sleep}")
        g.L(busy)
    if busy_sleep:
        g.A(f"s_sleep {busy_sleep}")
    g.A(f"s_add_u32 s{S_CNT}, s{S_CNT}, 1")
    g.A(f"s_cmp_lt_u32 s{S_CNT}, {cfg.POLLMAX}")
    g.A(f"s_cbranch_scc1 {top}")
    g.L(done)
    g.A(f"s_mov_b64 exec, {bs}")
    if trace is not None and cfg.STAMPS and cfg.LAZY == 3:
        g.A("s_memrealtime s[96:97]")
        g.A("s_waitcnt lgkmcnt(0)")
        g.A(f"s_mov_b32 s98, s{S_CNT}")
        g.A("s_mov_b32 s99, 0")
        lazy_flush(g, cfg, 5, trace, 3)
        g.A(f"s_mov_b64 exec, {bs}")

def bf16_round_pairs(g, regs, tmp):
    for i in range(0, len(regs), 2):
        a, b = regs[i], regs[i + 1]
        g.A(f"v_cvt_pk_bf16_f32 v{tmp}, v{a}, v{b}")
        g.A(f"v_lshlrev_b32 v{a}, 16, v{tmp}")
        g.A(f"v_and_b32 v{b}, 0xffff0000, v{tmp}")

def unpack_pairs(g, src, dst):
    for i, s in enumerate(src):
        g.A(f"v_lshlrev_b32 v{dst[2*i]}, 16, v{s}")
        g.A(f"v_and_b32 v{dst[2*i+1]}, 0xffff0000, v{s}")

def wave_sum(g, regs, sdst, op="add"):
    ins = "v_add_f32_dpp" if op == "add" else "v_max_f32_dpp"
    steps = ["row_shr:1", "row_shr:2", "row_shr:4", "row_shr:8"]
    for st in steps:
        for r in regs:
            if op == "add":
                g.A(f"{ins} v{r}, v{r}, v{r} {st} row_mask:0xf bank_mask:0xf bound_ctrl:0")
            else:
                g.A(f"{ins} v{r}, v{r}, v{r} {st} row_mask:0xf bank_mask:0xf")
        if len(regs) < 3:
            g.A(f"s_nop {2 - len(regs)}")
    for st, rm in (("row_bcast:15", "0xa"), ("row_bcast:31", "0xc")):
        for r in regs:
            g.A(f"{ins} v{r}, v{r}, v{r} {st} row_mask:{rm} bank_mask:0xf")
        g.A(f"s_nop {max(0, 2 - len(regs))}")
    for r, s in zip(regs, sdst):
        g.A(f"v_readlane_b32 s{s}, v{r}, 63")

def emit_streamer(g, cfg):
    NG, P, DMIN, W1 = cfg.NG, cfg.P, cfg.DMIN, cfg.W1
    NT = cfg.NT
    V_LANE = 0
    V_OFFK, V_OFFV = 1, 2
    V_M = 3
    V_EP = 7
    V_BQ = 8
    V_S = 40
    V_MAX, V_L = 62, 63
    V_ACC = 64
    V_O = 72
    V_B = 80
    V_T = 88
    V_QL = 96
    V_QOFF = 112
    V_RING2 = 128
    R = P * 8
    NA = min(R, 64)
    assert V_RING2 + 4 * (R - NA) <= 256
    def slot(n):
        s = n % R
        if s < 64:
            return ar(4 * s, 4)
        return vr(V_RING2 + 4 * (s - 64), 4)

    g.L("L_stream")
    g.C("bh = w/6, s = w%6; wave W = 4s+wave owns 4-key sub-groups [W*256/3, (W+1)*256/3) of its (b,h)")
    g.A(f"s_mul_hi_u32 s{S_T0}, s{S_WG}, 0x2aaaaaab")
    g.A(f"s_mul_i32 s{S_T1}, s{S_T0}, 6")
    g.A(f"s_sub_u32 s{S_T1}, s{S_WG}, s{S_T1}")
    BAL = cfg.BAL and not cfg.WCONT
    if cfg.WCONT:
        g.A(f"s_lshl_b32 s{S_T1}, s{S_T1}, 2")
        g.A(f"s_add_u32 s{S_T1}, s{S_T1}, s{S_WAVE}")
    g.A(f"s_lshl_b32 s{S_T2}, s{S_T1}, {10 if BAL else 8}")
    g.A(f"s_mul_hi_u32 s{S_X0}, s{S_T2}, 0x55555556")
    g.A(f"s_add_u32 s{S_T2}, s{S_T2}, {1024 if BAL else 256}")
    g.A(f"s_mul_hi_u32 s{S_X0+1}, s{S_T2}, 0x55555556")
    g.A(f"s_sub_u32 s{S_X0+1}, s{S_X0+1}, s{S_X0}")
    g.A(f"s_lshl_b32 s{S_X0+2}, s{S_T0}, 22")
    SH = 11 if (cfg.WCONT or BAL) else 13
    g.A(f"s_lshl_b32 s{S_X0+3}, s{S_X0}, {SH}")
    g.A(f"s_add_u32 s{S_X0+2}, s{S_X0+2}, s{S_X0+3}")
    g.A(f"s_lshl_b32 s{S_X0+3}, s{S_X0+1}, {SH}")
    S_BH = S_X0 + 4
    g.A(f"s_mov_b32 s{S_BH}, s{S_T0}")
    V_BIAS = 113
    V_LW, V_MLW, V_ZERO, V_LR, V_GO = 114, 115, 119, 120, 121
    S_DH, S_PREC = 66, 86
    T = V_T
    g.A(f"v_lshrrev_b32 v{T}, 2, v{V_LANE}")
    g.A(f"v_and_b32 v{T}, 3, v{T}")
    g.A(f"v_lshlrev_b32 v{V_OFFK}, 9, v{T}")
    g.A(f"v_lshrrev_b32 v{T+1}, 4, v{V_LANE}")
    g.A(f"v_lshl_add_u32 v{V_OFFK}, v{T+1}, 6, v{V_OFFK}")
    g.A(f"v_and_b32 v{T+2}, 3, v{V_LANE}")
    g.A(f"v_lshl_add_u32 v{V_OFFK}, v{T+2}, 4, v{V_OFFK}")
    if not cfg.WCONT:
        g.A(f"s_lshl_b32 s{S_T1}, s{S_WAVE}, 13")
        g.A(f"v_add_u32 v{V_OFFK}, s{S_T1}, v{V_OFFK}")
    g.A("s_waitcnt lgkmcnt(0)")
    set_srd(g, SRD_A, P_K, off_sreg=S_X0 + 2, nbytes_sreg=S_X0 + 3)

    S_SO = S_OFF
    S_LAST, S_N2 = S_X0 + 9, S_X0 + 10
    def nl(gi):
        return 4 if (BAL and gi % NG == NG - 1) else 8
    def issue_group(gi):
        isv = gi >= NG
        i = gi - NG if isv else gi
        srd = SRD_B if isv else SRD_A
        voff = V_OFFV if isv else V_OFFK
        if BAL and i == NG - 1:
            for a in range(2):
                if a == 1:
                    g.A(f"s_mov_b64 exec, s[{S_N2}:{S_N2+1}]")
                for dh in range(2):
                    n = gi * 8 + a * 2 + dh
                    g.A(f"buffer_load_dwordx4 {slot(n)}, v{voff}, s[{srd}:{srd+3}], s{S_LAST} offen offset:{a*2048 + dh*256}{NT}")
            g.A("s_mov_b64 exec, -1")
            return
        for half in range(2):
            g.A(f"s_mov_b32 s{S_SO+half}, {i*(8192 if cfg.WCONT else 32768) + half*4096}")
        for a in range(4):
            for dh in range(2):
                n = gi * 8 + a * 2 + dh
                imm = (a & 1) * 2048 + dh * 256
                g.A(f"buffer_load_dwordx4 {slot(n)}, v{voff}, s[{srd}:{srd+3}], s{S_SO + (a >> 1)} offen offset:{imm}{NT}")

    issue_group(0)
    issue_group(1)
    set_srd(g, SRD_WS, P_WS, nbytes=WS_SIZE)
    g.A(f"v_mov_b32 v{T+4}, 0")
    g.A(f"buffer_load_dword v{V_EP}, v{T+4}, s[{SRD_WS}:{SRD_WS+3}], 0 offen sc1")
    entry_stamp(g, cfg)
    stamp(g, cfg, 1)
    dbgt(g, cfg, 1, 116, 0, 0)
    entry_prefetch(g, cfg, T + 5)
    set_srd(g, SRD_B, P_V, off_sreg=S_X0 + 2, nbytes_sreg=S_X0 + 3)
    if BAL:
        g.A(f"s_sub_u32 s{S_T0}, s{S_X0+1}, {16*(NG-1)}")
        g.A(f"s_add_u32 s{S_T1}, s{S_T0}, 3")
        g.A(f"s_sub_u32 s{S_T1}, s{S_T1}, s{S_WAVE}")
        g.A(f"s_lshr_b32 s{S_T1}, s{S_T1}, 2")
        g.A(f"s_sub_u32 s{S_T0}, s{S_T0}, 4")
        g.A(f"s_min_u32 s{S_T0}, s{S_T0}, s{S_WAVE}")
        g.A(f"s_add_u32 s{S_T0}, s{S_T0}, s{S_WAVE}")
        g.A(f"s_lshl_b32 s{S_T0}, s{S_T0}, 11")
        g.A(f"s_lshl_b32 s{S_T2}, s{S_WAVE}, 13")
        g.A(f"s_sub_u32 s{S_T0}, s{S_T0}, s{S_T2}")
        g.A(f"s_add_u32 s{S_LAST}, s{S_T0}, {16*(NG-1)*2048}")
        g.A(f"s_cmp_eq_u32 s{S_T1}, 2")
        g.A(f"s_cselect_b64 s[{S_N2}:{S_N2+1}], -1, 0")
        g.A(f"v_lshrrev_b32 v{T}, 2, v{V_LANE}")
        g.A(f"v_and_b32 v{T}, 3, v{T}")
    elif cfg.WCONT:
        g.A(f"s_sub_u32 s{S_T1}, s{S_X0+1}, {4*(NG-1)}")
        g.A(f"v_lshrrev_b32 v{T}, 2, v{V_LANE}")
        g.A(f"v_and_b32 v{T}, 3, v{T}")
    else:
        g.A(f"s_sub_u32 s{S_T1}, s{S_X0+1}, {4*(NG-1)}")
        g.A(f"v_mov_b32 v{T}, s{S_WAVE}")
    g.A(f"v_cmp_gt_u32 vcc, s{S_T1}, v{T}")
    g.A(f"v_mov_b32 v{T+1}, 0xff800000")
    g.A(f"v_lshrrev_b32 v{T+2}, 4, v{V_LANE}")
    g.A(f"v_cndmask_b32 v{V_BIAS}, v{T+1}, 0, vcc")
    g.A(f"v_lshlrev_b32 v{V_OFFV}, 9, v{T+2}")
    g.A(f"v_and_b32 v{T+3}, 15, v{V_LANE}")
    g.A(f"v_lshl_add_u32 v{V_OFFV}, v{T+3}, 4, v{V_OFFV}")
    if not cfg.WCONT:
        g.A(f"s_lshl_b32 s{S_T1}, s{S_WAVE}, 13")
        g.A(f"v_add_u32 v{V_OFFV}, s{S_T1}, v{V_OFFV}")
    g.C("PV masks M_t")
    g.A(f"v_and_b32 v{T}, 7, v{V_LANE}")
    g.A(f"v_lshrrev_b32 v{T+1}, 1, v{T}")
    g.A(f"v_and_b32 v{T+2}, 1, v{V_LANE}")
    g.A(f"v_mov_b32 v{T+3}, 0xffff")
    g.A(f"v_mov_b32 v{T+4}, 0xffff0000")
    g.A(f"v_cmp_eq_u32 vcc, 1, v{T+2}")
    g.A("s_nop 1")
    g.A(f"v_cndmask_b32 v{T+3}, v{T+3}, v{T+4}, vcc")
    for t in range(4):
        g.A(f"v_cmp_eq_u32 vcc, {t}, v{T+1}")
        g.A("s_nop 1")
        g.A(f"v_cndmask_b32 v{V_M+t}, 0, v{T+3}, vcc")
    for a in range(4):
        m = 0x000F000F << (4 * a)
        g.A(f"s_mov_b32 s{S_MSK+2*a}, {m:#x}")
        g.A(f"s_mov_b32 s{S_MSK+2*a+1}, {m:#x}")
    g.A(f"v_lshrrev_b32 v{T}, 4, v{V_LANE}")
    g.A(f"v_and_b32 v{T+1}, 3, v{V_LANE}")
    g.A(f"v_lshl_add_u32 v{T}, v{T}, 2, v{T+1}")
    g.A(f"v_lshlrev_b32 v{V_QOFF}, 5, v{T}")
    S_QB = S_X0 + 6
    g.C("q base: WS_QB + (b*2048 + h*128)*8 ; bh = b*16+h")
    g.A(f"s_lshr_b32 s{S_T0}, s{S_BH}, 4")
    g.A(f"s_and_b32 s{S_T1}, s{S_BH}, 15")
    g.A(f"s_lshl_b32 s{S_T0}, s{S_T0}, 14")
    g.A(f"s_lshl_b32 s{S_T1}, s{S_T1}, 10")
    g.A(f"s_add_u32 s{S_QB}, s{S_T0}, s{S_T1}")
    g.A(f"s_add_u32 s{S_QB}, s{S_QB}, {WS_QB}")
    def q_loads():
        for dh in range(2):
            for k in range(2):
                g.A(f"buffer_load_dwordx4 {vr(V_QL + (dh*2+k)*4, 4)}, v{V_QOFF}, s[{SRD_WS}:{SRD_WS+3}], s{S_QB} offen offset:{dh*512 + k*16} sc1")
    QAT = P - cfg.QBACK
    for gi in range(2, P):
        if gi == QAT:
            q_loads()
        g.A(f"s_waitcnt vmcnt({W1 - 8})")
        if gi == 4:
            make_tag(g, V_EP)
        issue_group(gi)
    stamp(g, cfg, 2)
    tagregs = [V_QL + k * 4 + o for k in range(4) for o in (1, 3)]
    okq = g.lab("qok")
    g.A(f"s_waitcnt vmcnt({(P - QAT) * 8})")
    if not (cfg.X_NOHELP):
        check_tags(g, tagregs, T, okq)
        poll_loop(g, cfg, q_loads, tagregs, T, sleep=2)
    g.L(okq)
    stamp(g, cfg, 3)
    dbgt(g, cfg, 2, 116, 0, 0)
    dbgt(g, cfg, 3, 116, 100, 0)
    for a in range(4):
        for dh in range(2):
            src = [V_QL + (dh * 2) * 4, V_QL + (dh * 2) * 4 + 2, V_QL + (dh * 2 + 1) * 4, V_QL + (dh * 2 + 1) * 4 + 2]
            for r in range(4):
                g.A(f"v_cndmask_b32 v{V_BQ + (a*2+dh)*4 + r}, 0, v{src[r]}, s[{S_MSK+2*a}:{S_MSK+2*a+1}]")
    g.A(f"v_mov_b32 v{V_MAX}, 0xff800000")
    g.A("s_nop 1")

    NTOT = 2 * NG
    def heads_store(off):
        skip = g.lab("nohead")
        g.A(f"s_cmp_lg_u32 s{S_WAVE}, 0")
        g.A(f"s_cbranch_scc1 {skip}")
        g.A(f"s_lshl_b32 s{S_T0}, s{S_WG}, 6")
        g.A(f"s_add_u32 s{S_T0}, s{S_T0}, {WS_HEADS + off}")
        g.A(f"v_mov_b32 v{T}, s{S_TAG}")
        g.A(f"v_mov_b32 v{T+1}, s{S_TAG}")
        g.A(f"v_mov_b32 v{T+2}, 0")
        g.A("s_mov_b64 exec, 1")
        g.A(f"buffer_store_dwordx2 v[{T}:{T+1}], v{T+2}, s[{SRD_WS}:{SRD_WS+3}], s{S_T0} offen sc1")
        g.A("s_mov_b64 exec, -1")
        g.L(skip)
    def I(gi):
        if cfg.SHRINK <= 1:
            return min(NTOT, max(P, gi + DMIN))
        d = max(DMIN, P - (gi + cfg.SHRINK - 1) // cfg.SHRINK)
        return min(NTOT, max(P, gi + d))
    CSC = f2u(0.0625 * LOG2E)
    for gi in range(NTOT):
        n_after = sum(nl(x) for x in range(gi + 1, I(gi)))
        g.A(f"s_waitcnt vmcnt({min(63, n_after)})")
        if gi < NG:
            acc = V_ACC + 4 * (gi & 1)
            for a in range(nl(gi) // 2):
                for dh in range(2):
                    n = gi * 8 + a * 2 + dh
                    c = "0" if (a == 0 and dh == 0) else vr(acc, 4)
                    g.A(f"v_mfma_f32_16x16x32_bf16 {vr(acc,4)}, {slot(n)}, {vr(V_BQ + (a*2+dh)*4, 4)}, {c}")
            nissue = I(gi + 1) - I(gi) if gi + 1 < NTOT else 0
            mark = len(g.o)
            for x in range(nissue):
                if I(gi) + x - gi - 1 > cfg.CAPG:
                    g.A(f"s_waitcnt vmcnt({8*cfg.CAPG - 8})")
                issue_group(I(gi) + x)
            filled = len(g.o) - mark
            if filled < 8:
                g.A(f"s_nop {7 - filled}")
            S = V_S + gi
            g.A(f"v_mov_b32_dpp v{S}, v{acc} quad_perm:[0,0,0,0] row_mask:0xf bank_mask:0xf")
            g.A(f"v_mov_b32_dpp v{T+1}, v{acc+1} quad_perm:[1,1,1,1] row_mask:0xf bank_mask:0xf")
            g.A("s_nop 0")
            g.A(f"v_add_f32_dpp v{S}, v{acc+2}, v{S} quad_perm:[2,2,2,2] row_mask:0xf bank_mask:0xf")
            g.A(f"v_add_f32_dpp v{T+1}, v{acc+3}, v{T+1} quad_perm:[3,3,3,3] row_mask:0xf bank_mask:0xf")
            g.A(f"v_add_f32 v{S}, v{S}, v{T+1}")
            g.A(f"v_cvt_pk_bf16_f32 v{T}, v{S}, v{S}")
            if gi == NG - 1:
                g.A(f"v_lshlrev_b32 v{S}, 16, v{T}")
                g.A(f"v_add_f32 v{S}, v{V_BIAS}, v{S}")
            else:
                g.A(f"v_lshlrev_b32 v{S}, 16, v{T}")
            g.A(f"v_max_f32 v{V_MAX}, v{V_MAX}, v{S}")
            if gi == NG - 1:
                g.C("softmax over this wave's keys")
                g.A("s_nop 1")
                for st in ("row_ror:4", "row_ror:8"):
                    g.A(f"v_max_f32_dpp v{V_MAX}, v{V_MAX}, v{V_MAX} {st} row_mask:0xf bank_mask:0xf")
                    g.A("s_nop 1")
                for st, rm in (("row_bcast:15", "0xa"), ("row_bcast:31", "0xc")):
                    g.A(f"v_max_f32_dpp v{V_MAX}, v{V_MAX}, v{V_MAX} {st} row_mask:{rm} bank_mask:0xf")
                    g.A("s_nop 1")
                g.A(f"v_readlane_b32 s{S_T0}, v{V_MAX}, 63")
                g.A(f"s_mov_b32 s{S_X0+7}, {CSC:#x}")
                g.A("s_nop 1")
                g.A(f"v_mov_b32 v{V_MAX}, s{S_T0}")
                g.A(f"v_mul_f32 v{V_MAX}, s{S_X0+7}, v{V_MAX}")
                g.A(f"v_mov_b32 v{V_L}, 0")
                for i in range(NG):
                    g.A(f"v_fma_f32 v{V_S+i}, v{V_S+i}, s{S_X0+7}, -v{V_MAX}")
                for i in range(NG):
                    g.A(f"v_exp_f32 v{V_S+i}, v{V_S+i}")
                g.A("s_nop 0")
                for i in range(NG):
                    g.A(f"v_add_f32 v{V_L}, v{V_L}, v{V_S+i}")
                    g.A(f"v_cvt_pk_bf16_f32 v{V_S+i}, v{V_S+i}, v{V_S+i}")
                g.A("s_nop 1")
                for st in ("row_ror:4", "row_ror:8"):
                    g.A(f"v_add_f32_dpp v{V_L}, v{V_L}, v{V_L} {st} row_mask:0xf bank_mask:0xf")
                    g.A("s_nop 1")
                for st, rm in (("row_bcast:15", "0xa"), ("row_bcast:31", "0xc")):
                    g.A(f"v_add_f32_dpp v{V_L}, v{V_L}, v{V_L} {st} row_mask:{rm} bank_mask:0xf")
                    g.A("s_nop 1")
                g.A(f"v_readlane_b32 s{S_X0+8}, v{V_L}, 63")
                g.C("addresses for the final combine")
                g.A(f"v_and_b32 v{T}, 8, v{V_LANE}")
                g.A(f"v_cmp_ne_u32 s[{S_DH}:{S_DH+1}], 0, v{T}")
                g.A(f"v_mov_b32 v{V_L}, s{S_X0+8}")
                g.A(f"v_lshlrev_b32 v{T+1}, 4, v{T}")
                g.A(f"v_lshrrev_b32 v{T+2}, 4, v{V_LANE}")
                g.A(f"v_lshl_add_u32 v{T+1}, v{T+2}, 5, v{T+1}")
                g.A(f"v_and_b32 v{T+2}, 7, v{V_LANE}")
                g.A(f"v_add_u32 v{T+1}, v{T+1}, v{T+2}")
                g.A(f"s_lshl_b32 s{S_T0}, s{S_WAVE}, 8")
                g.A(f"v_add_u32 v{T+1}, s{S_T0}, v{T+1}")
                g.A(f"v_lshlrev_b32 v{V_LW}, 2, v{T+1}")
                g.A(f"s_lshl_b32 s{S_T0}, s{S_WAVE}, 3")
                g.A(f"v_mov_b32 v{V_MLW}, s{S_T0}")
                g.A(f"v_mov_b32 v{V_ZERO}, 0")
                g.A(f"s_lshl_b32 s{S_T0}, s{S_WAVE}, 6")
                g.A(f"v_add_u32 v{T}, s{S_T0}, v{V_LANE}")
                g.A(f"v_lshlrev_b32 v{V_LR}, 2, v{T}")
                g.A(f"v_lshlrev_b32 v{V_GO}, 4, v{T}")
                g.A(f"s_lshl_b32 s{S_PREC}, s{S_WG}, 12")
                g.A(f"s_add_u32 s{S_PREC}, s{S_PREC}, {WS_PART}")
                g.A(f"v_mov_b32 v{V_QL+13}, s{S_TAG}")
                g.A(f"v_mov_b32 v{V_QL+15}, s{S_TAG}")
                stamp(g, cfg, 4)
        else:
            i = gi - NG
            Pi = V_S + i
            def build(a):
                bb = V_B + 4 * (a & 1)
                for t in range(4):
                    g.A(f"v_and_b32_dpp v{bb+t}, v{Pi}, v{V_M+t} row_newbcast:{4*a} row_mask:0xf bank_mask:0xf")
            build(0)
            na = nl(gi) // 2
            for a in range(na):
                if a < na - 1:
                    build(a + 1)
                else:
                    g.A("s_nop 1")
                bb = V_B + 4 * (a & 1)
                for dh in range(2):
                    n = gi * 8 + a * 2 + dh
                    acc = V_O + 4 * dh
                    c = "0" if (i == 0 and a == 0) else vr(acc, 4)
                    g.A(f"v_mfma_f32_16x16x32_bf16 {vr(acc,4)}, {slot(n)}, {vr(bb,4)}, {c}")
            nissue = I(gi + 1) - I(gi) if gi + 1 < NTOT else 0
            for x in range(nissue):
                if I(gi) + x - gi - 1 > cfg.CAPG:
                    g.A(f"s_waitcnt vmcnt({8*cfg.CAPG - 8})")
                issue_group(I(gi) + x)
        if gi == cfg.HEADS_STEP:
            heads_store(0)
        if cfg.LATEF and gi == cfg.HEADS2:
            heads_store(8)
        if cfg.LATEWO and gi == cfg.HEADS3:
            heads_store(16)
    if cfg.LATEF and cfg.HEADS2 >= NTOT:
        heads_store(8)
    stamp(g, cfg, 5)
    dbgt(g, cfg, 4, 116, 0, 0)
    dbgt(g, cfg, 5, 116, 100, 0)
    dbgt(g, cfg, 6, 116, 191, 0)
    g.C("workgroup combine")
    g.A("s_nop 7")
    for r in range(4):
        g.A(f"v_cndmask_b32 v{T+2+r}, v{V_O+r}, v{V_O+4+r}, s[{S_DH}:{S_DH+1}]")
    for r in range(4):
        g.A(f"ds_write_b32 v{V_LW}, v{T+2+r} offset:{L_OW + r*32}")
    g.A("s_mov_b64 exec, 1")
    g.A(f"ds_write_b64 v{V_MLW}, {vr(V_MAX,2)} offset:{L_ML}")
    g.A("s_mov_b64 exec, -1")
    g.A("s_waitcnt lgkmcnt(0)")
    g.A("s_barrier")
    Q = V_QL
    g.A(f"ds_read_b128 {vr(Q,4)}, v{V_ZERO} offset:{L_ML}")
    g.A(f"ds_read_b128 {vr(Q+4,4)}, v{V_ZERO} offset:{L_ML+16}")
    for w in range(4):
        g.A(f"ds_read_b32 v{Q+8+w}, v{V_LR} offset:{L_OW + w*1024}")
    g.A("s_waitcnt lgkmcnt(4)")
    g.A(f"v_max_f32 v{T+3}, v{Q}, v{Q+2}")
    g.A(f"v_max3_f32 v{T+3}, v{Q+4}, v{Q+6}, v{T+3}")
    for w in range(4):
        g.A(f"v_sub_f32 v{Q+2*w}, v{Q+2*w}, v{T+3}")
    for w in range(4):
        g.A(f"v_exp_f32 v{Q+2*w}, v{Q+2*w}")
    g.A("s_nop 0")
    g.A(f"v_mul_f32 v{T+4}, v{Q}, v{Q+1}")
    for w in range(1, 4):
        g.A(f"v_fmac_f32 v{T+4}, v{Q+2*w}, v{Q+2*w+1}")
    g.A(f"v_rcp_f32 v{T+5}, v{T+4}")
    g.A(f"v_log_f32 v{T+4}, v{T+4}")
    g.A("s_waitcnt lgkmcnt(0)")
    g.A(f"v_mul_f32 v{Q+12}, v{Q}, v{Q+8}")
    for w in range(1, 4):
        g.A(f"v_fmac_f32 v{Q+12}, v{Q+2*w}, v{Q+8+w}")
    g.A(f"v_add_f32 v{Q+14}, v{T+3}, v{T+4}")
    g.A(f"v_mul_f32 v{Q+12}, v{Q+12}, v{T+5}")
    g.A(f"buffer_store_dwordx4 {vr(Q+12,4)}, v{V_GO}, s[{SRD_WS}:{SRD_WS+3}], s{S_PREC} offen sc1")
    stamp(g, cfg, 6)
    g.A("s_endpgm")

H_LANE = 0
H_T = 2
H_LN = 16
H_SC = 24
H_ACC = 32
H_FR = 64
H_FT = 128
H_ST = 192

def transpose_unit(g, src, dst, dst_acc=False, tmp=None):
    for c in range(4):
        for o in range(2):
            m = 2 * c + o
            for t in range(4):
                sel = S_SEL0 if o == 0 else S_SEL1
                s_lo = src + (2 * t) * 4 + c
                s_hi = src + (2 * t + 1) * 4 + c
                if dst_acc:
                    g.A(f"v_perm_b32 v{tmp + (t & 1)}, v{s_hi}, v{s_lo}, s{sel}")
                    g.A(f"v_accvgpr_write_b32 a{dst + m*4 + t}, v{tmp + (t & 1)}")
                else:
                    g.A(f"v_perm_b32 v{dst + m*4 + t}, v{s_hi}, v{s_lo}, s{sel}")

def unit_loads(g, dst, srd, voff, soffs, flags):
    for e in range(8):
        g.A(f"s_mov_b32 s{S_T0}, {soffs[e]}")
        g.A(f"buffer_load_dwordx4 {vr(dst + 4*e, 4)}, v{voff}, s[{srd}:{srd+3}], s{S_T0} offen{flags}")

def mfma8(g, afrag, frag, first, frag_acc=False):
    for m in range(8):
        acc = H_ACC + 4 * m
        c = "0" if first else vr(acc, 4)
        b = ar(frag + 4 * m, 4) if frag_acc else vr(frag + 4 * m, 4)
        g.A(f"v_mfma_f32_16x16x32_bf16 {vr(acc,4)}, {vr(afrag,4)}, {b}, {c}")

def red_write(g, vaddr):
    for m in range(8):
        g.A(f"ds_write_b32 v{vaddr}, v{H_ACC + 4*m} offset:{m*256}")

def red_read(g, va, vb, dst):
    for w in range(4):
        g.A(f"ds_read2st64_b32 {vr(dst + 2*w, 2)}, v{va} offset0:{w*8} offset1:{w*8+1}")
        g.A(f"ds_read2st64_b32 {vr(dst + 8 + 2*w, 2)}, v{vb} offset0:{w*8} offset1:{w*8+1}")
    g.A("s_waitcnt lgkmcnt(0)")
    for base in (dst, dst + 8):
        for o in range(2):
            g.A(f"v_add_f32 v{base+o}, v{base+o}, v{base+2+o}")
            g.A(f"v_add_f32 v{base+4+o}, v{base+4+o}, v{base+6+o}")
        for o in range(2):
            g.A(f"v_add_f32 v{base+o}, v{base+o}, v{base+4+o}")

def pk(g, op, dst, a, b, bcast=False, neg=False, c=None):
    mods = ""
    if c is not None:
        if bcast: mods += " op_sel_hi:[1,0,1]"
        g.A(f"v_pk_{op}_f32 {vr(dst,2)}, {vr(a,2)}, {vr(b,2)}, {vr(c,2)}{mods}")
        return
    if bcast: mods += " op_sel_hi:[1,0]"
    if neg: mods += " neg_lo:[0,1] neg_hi:[0,1]"
    g.A(f"v_pk_{op}_f32 {vr(dst,2)}, {vr(a,2)}, {vr(b,2)}{mods}")

def ln_normalize(g, x, out, tmp):
    sA, sB, sC = S_X0 + 10, S_X0 + 11, S_T2
    t0, t2, t4, t6 = tmp, tmp + 2, tmp + 4, tmp + 6
    g.A(f"v_readfirstlane_b32 s{sC}, v{x}")
    g.A(f"v_cmp_gt_u32 vcc, 56, v{H_LANE}")
    g.A("s_nop 0")
    g.A(f"v_mov_b32 v{t6}, s{sC}")
    for k in range(4):
        pk(g, "add", out + 2 * k, x + 2 * k, t6, bcast=True, neg=True)
    pk(g, "add", t0, out, out + 2)
    pk(g, "mul", t2, out, out)
    pk(g, "add", t4, out + 4, out + 6)
    pk(g, "fma", t2, out + 2, out + 2, c=t2)
    pk(g, "add", t0, t0, t4)
    pk(g, "fma", t2, out + 4, out + 4, c=t2)
    g.A(f"v_add_f32 v{t0}, v{t0}, v{t0+1}")
    pk(g, "fma", t2, out + 6, out + 6, c=t2)
    g.A(f"v_cndmask_b32 v{t0}, 0, v{t0}, vcc")
    g.A(f"v_add_f32 v{t2}, v{t2}, v{t2+1}")
    g.A(f"v_cndmask_b32 v{t2}, 0, v{t2}, vcc")
    g.A("s_nop 0")
    wave_sum(g, [t0, t2], [sA, sB])
    g.A(f"v_mov_b32 v{t4}, {f2u(1.0/448.0):#x}")
    g.A("s_nop 0")
    g.A(f"v_mul_f32 v{t0}, s{sA}, v{t4}")
    g.A(f"v_mul_f32 v{t2}, s{sB}, v{t4}")
    g.A(f"v_fma_f32 v{t2}, -v{t0}, v{t0}, v{t2}")
    g.A(f"v_add_f32 v{t0}, v{t0}, v{t6}")
    g.A(f"v_max_f32 v{t2}, 0, v{t2}")
    g.A(f"v_cvt_pk_bf16_f32 v{t4}, v{t0}, v{t2}")
    g.A(f"v_and_b32 v{t2}, 0xffff0000, v{t4}")
    g.A(f"v_lshlrev_b32 v{t0}, 16, v{t4}")
    g.A(f"v_add_f32 v{t2}, {f2u(1e-5):#x}, v{t2}")
    for k in range(2):
        pk(g, "add", out + 2 * k, x + 2 * k, t0, bcast=True, neg=True)
    g.A(f"v_cvt_pk_bf16_f32 v{t2}, v{t2}, v{t2}")
    for k in range(2, 4):
        pk(g, "add", out + 2 * k, x + 2 * k, t0, bcast=True, neg=True)
    g.A(f"v_lshlrev_b32 v{t2}, 16, v{t2}")
    g.A(f"v_sqrt_f32 v{t2}, v{t2}")
    bf16_round_pairs(g, [out + e for e in range(4)], t4)
    g.A(f"v_cvt_pk_bf16_f32 v{t2}, v{t2}, v{t2}")
    g.A(f"v_lshlrev_b32 v{t2}, 16, v{t2}")
    g.A(f"v_rcp_f32 v{t2}, v{t2}")
    bf16_round_pairs(g, [out + e for e in range(4, 8)], t4)
    for k in range(4):
        pk(g, "mul", out + 2 * k, out + 2 * k, t2, bcast=True)
    bf16_round_pairs(g, [out + e for e in range(8)], t4)

def exec56(g):
    g.A("s_mov_b32 exec_lo, -1")
    g.A("s_mov_b32 exec_hi, 0x00ffffff")
def exec_all(g):
    g.A("s_mov_b64 exec, -1")

def gather_shift_scale(g, cfg, sbase, voff, ld, shift, scale1, tmp):
    def loads():
        for k, imm in enumerate((0, 16, 1792, 1808)):
            g.A(f"buffer_load_dwordx4 {vr(ld + 4*k, 4)}, v{voff}, s[{SRD_WS}:{SRD_WS+3}], s{sbase} offen offset:{imm} sc1")
    tags = [ld + 4 * k + o for k in range(4) for o in (1, 3)]
    poll_loop(g, cfg, loads, tags, tmp, sleep=1)
    unpack_pairs(g, [ld, ld + 2, ld + 4, ld + 6], [shift + e for e in range(8)])
    unpack_pairs(g, [ld + 8, ld + 10, ld + 12, ld + 14], [scale1 + e for e in range(8)])
    for e in range(8):
        g.A(f"v_add_f32 v{scale1+e}, 1.0, v{scale1+e}")
    bf16_round_pairs(g, [scale1 + e for e in range(8)], tmp)

def modulate_write(g, ln, shift, scale1, vaddr, ldsoff, tmp):
    for k in range(4):
        pk(g, "mul", ln + 2 * k, ln + 2 * k, scale1 + 2 * k)
    bf16_round_pairs(g, [ln + e for e in range(8)], tmp)
    for k in range(4):
        pk(g, "add", ln + 2 * k, ln + 2 * k, shift + 2 * k)
    for k in range(4):
        g.A(f"v_cvt_pk_bf16_f32 v{tmp+k}, v{ln+2*k}, v{ln+2*k+1}")
    g.A(f"ds_write_b128 v{vaddr}, {vr(tmp,4)} offset:{ldsoff}")

def emit_helper(g, cfg):
    NT = cfg.NTW
    T = H_T
    WSR = f"s[{SRD_WS}:{SRD_WS+3}]"
    g.L("L_helper")
    if cfg.X_NOHELP:
        g.A("s_endpgm")
    lazy(g, cfg, 0)
    g.A(f"s_sub_u32 s{S_ROLE}, s{S_WG}, {cfg.NSTREAM}")
    g.A(f"s_mov_b32 s{S_SEL0}, 0x05040100")
    g.A(f"s_mov_b32 s{S_SEL1}, 0x07060302")
    V_L16 = 16
    V_WOFF64 = 17
    V_WOFFQ = 18
    V_AF64 = 19
    V_RW = 20
    V_RA, V_RB = 21, 22
    V_ACTW = 23
    V_G32 = 24
    V_X = 112
    HLN, HSH, HSC, HLD = 160, 168, 176, 144
    g.A(f"v_lshlrev_b32 v{V_L16}, 4, v{H_LANE}")
    g.A(f"v_lshlrev_b32 v{V_G32}, 5, v{H_LANE}")
    g.A(f"s_and_b32 s{S_X0}, s{S_WAVE}, 1")
    S_B = S_X0
    g.A(f"s_mul_i32 s{S_T1}, s{S_B}, 896")
    set_srd(g, SRD_C, P_C, nbytes=1792)
    set_srd(g, SRD_A, P_X, nbytes=1792)
    exec56(g)
    g.A(f"buffer_load_dwordx4 {vr(HLD,4)}, v{V_L16}, s[{SRD_C}:{SRD_C+3}], s{S_T1} offen")
    g.A(f"buffer_load_dwordx4 {vr(HLD+4,4)}, v{V_L16}, s[{SRD_A}:{SRD_A+3}], s{S_T1} offen")
    exec_all(g)
    lazy(g, cfg, 1)
    g.A(f"v_lshrrev_b32 v{T}, 3, v{H_LANE}")
    g.A(f"v_and_b32 v{T}, 1, v{T}")
    g.A(f"v_lshrrev_b32 v{T+1}, 4, v{H_LANE}")
    g.A(f"v_lshlrev_b32 v{T+2}, 5, v{T}")
    g.A(f"v_lshl_add_u32 v{T+2}, v{T+1}, 3, v{T+2}")
    g.A(f"s_lshl_b32 s{S_T0}, s{S_WAVE}, 6")
    g.A(f"v_add_u32 v{T+2}, s{S_T0}, v{T+2}")
    g.A(f"v_and_b32 v{T+3}, 7, v{H_LANE}")
    g.A(f"v_lshlrev_b32 v{T+3}, 4, v{T+3}")
    g.A(f"s_mov_b32 s{S_T0}, 5376")
    g.A(f"v_mul_lo_u32 v{V_WOFF64}, v{T+2}, s{S_T0}")
    g.A(f"v_add_u32 v{V_WOFF64}, v{V_WOFF64}, v{T+3}")
    g.A(f"v_lshl_add_u32 v{V_WOFFQ}, v{T+2}, 13, v{T+3}")
    S_MB = S_X0 + 12
    def m_loads():
        g.A(f"s_lshl_b32 s{S_T2}, s{S_MB}, 7")
        g.A(f"s_sub_u32 s{S_X0+1}, {448*5376}, s{S_T2}")
        set_srd(g, SRD_A, P_WMOD, off_sreg=S_T2, nbytes_sreg=S_X0 + 1)
        for it in range(2):
            unit_loads(g, H_FR + 32 * it, SRD_A, V_WOFF64, [e * 5376 + it * 256 * 5376 for e in range(8)], NT)
    def q_wloads():
        g.A(f"s_lshl_b32 s{S_T2}, s{S_ROLE}, 7")
        g.A(f"s_sub_u32 s{S_X0+1}, {448*8192}, s{S_T2}")
        set_srd(g, SRD_B, P_WQ, off_sreg=S_T2, nbytes_sreg=S_X0 + 1)
        for it in range(2):
            unit_loads(g, H_ST + 32 * it, SRD_B, V_WOFFQ, [e * 8192 + it * 256 * 8192 for e in range(8)], NT)
    nom = g.lab("nomload"); nom_b = g.lab("nomload_b")
    g.A(f"s_sub_u32 s{S_MB}, s{S_ROLE}, 50")
    g.A(f"s_cmp_lt_u32 s{S_ROLE}, 50")
    g.A(f"s_cbranch_scc1 {nom}")
    m_loads()
    g.A(f"s_branch {nom_b}")
    g.L(nom)
    q_wloads()
    g.L(nom_b)
    lazy(g, cfg, 3)
    if cfg.LAZY != 1: stamp(g, cfg, 1)
    entry_prefetch(g, cfg, T + 6)
    g.A(f"v_lshrrev_b32 v{T+3}, 2, v{H_LANE}")
    g.A(f"v_and_b32 v{T+3}, 1, v{T+3}")
    g.A(f"v_mul_u32_u24 v{V_AF64}, {ROWB}, v{T+3}")
    g.A(f"v_lshl_add_u32 v{V_AF64}, v{T}, 6, v{V_AF64}")
    g.A(f"v_lshl_add_u32 v{V_AF64}, v{T+1}, 4, v{V_AF64}")
    g.A(f"s_lshl_b32 s{S_T0}, s{S_WAVE}, 7")
    g.A(f"v_add_u32 v{V_AF64}, s{S_T0}, v{V_AF64}")
    g.A(f"s_lshl_b32 s{S_T0}, s{S_WAVE}, 11")
    g.A(f"s_add_u32 s{S_T0}, s{S_T0}, {L_RED}")
    g.A(f"v_lshlrev_b32 v{V_RW}, 2, v{H_LANE}")
    g.A(f"v_add_u32 v{V_RW}, s{S_T0}, v{V_RW}")
    g.A(f"v_and_b32 v{T+4}, 3, v{H_LANE}")
    g.A(f"v_lshlrev_b32 v{V_RA}, 9, v{T+4}")
    g.A(f"v_lshrrev_b32 v{T+4}, 5, v{H_LANE}")
    g.A(f"v_lshl_add_u32 v{V_RA}, v{T+4}, 6, v{V_RA}")
    g.A(f"v_lshrrev_b32 v{T+4}, 2, v{H_LANE}")
    g.A(f"v_and_b32 v{T+4}, 7, v{T+4}")
    g.A(f"v_lshl_add_u32 v{V_RA}, v{T+4}, 2, v{V_RA}")
    g.A(f"v_add_u32 v{V_RA}, {L_RED}, v{V_RA}")
    g.A(f"v_add_u32 v{V_RB}, 160, v{V_RA}")
    g.A(f"s_mul_i32 s{S_T0}, s{S_B}, {ROWB}")
    g.A(f"v_add_u32 v{V_ACTW}, s{S_T0}, v{V_L16}")
    n1 = S_X0 + 2
    skip = g.lab("noln1")
    g.A("s_waitcnt vmcnt(16)")
    make_tag(g, 1)
    g.A(f"s_cmp_ge_u32 s{S_WAVE}, 2")
    g.A(f"s_cbranch_scc1 {skip}")
    g.A(f"v_cmp_gt_u32 vcc, 56, v{H_LANE}")
    g.A("s_nop 1")
    for k in range(8):
        g.A(f"v_cndmask_b32 v{HLD+k}, 0, v{HLD+k}, vcc")
    unpack_pairs(g, [HLD, HLD + 1, HLD + 2, HLD + 3], [HSH + e for e in range(8)])
    g.A(f"s_mov_b32 s{S_T0}, {f2u(-LOG2E):#x}")
    for e in range(8):
        g.A(f"v_mul_f32 v{HSC+e}, s{S_T0}, v{HSH+e}")
    for e in range(8):
        g.A(f"v_exp_f32 v{HSC+e}, v{HSC+e}")
    g.A("s_nop 0")
    for e in range(8):
        g.A(f"v_add_f32 v{HSC+e}, 1.0, v{HSC+e}")
    for e in range(8):
        g.A(f"v_rcp_f32 v{HSC+e}, v{HSC+e}")
    g.A("s_nop 0")
    for e in range(8):
        g.A(f"v_mul_f32 v{HSC+e}, v{HSC+e}, v{HSH+e}")
    for k in range(4):
        g.A(f"v_cvt_pk_bf16_f32 v{T+k}, v{HSC+2*k}, v{HSC+2*k+1}")
    exec56(g)
    g.A(f"ds_write_b128 v{V_ACTW}, {vr(T,4)} offset:{L_ACTS}")
    exec_all(g)
    unpack_pairs(g, [HLD + 4, HLD + 5, HLD + 6, HLD + 7], [HSH + e for e in range(8)])
    ln_normalize(g, HSH, HLN, T)
    g.L(skip)
    g.A("s_waitcnt lgkmcnt(0)")
    g.A("s_barrier")
    lazy(g, cfg, 2)
    AF = T + 4
    RD = H_FT
    def m_stage():
        g.A(f"ds_read_b128 {vr(AF,4)}, v{V_AF64} offset:{L_ACTS}")
        g.A(f"ds_read_b128 {vr(AF+4,4)}, v{V_AF64} offset:{L_ACTS+512}")
        g.A("s_waitcnt vmcnt(8)")
        transpose_unit(g, H_FR, H_FT)
        g.A("s_waitcnt lgkmcnt(0)")
        g.A("s_nop 0")
        mfma8(g, AF, H_FT, True)
        sk = g.lab("m2")
        g.A(f"s_cmp_eq_u32 s{S_WAVE}, 3")
        g.A(f"s_cbranch_scc1 {sk}")
        g.A("s_waitcnt vmcnt(0)")
        transpose_unit(g, H_FR + 32, H_FT)
        g.A("s_nop 1")
        mfma8(g, AF + 4, H_FT, False)
        g.L(sk)
        g.A("s_nop 7")
        red_write(g, V_RW)
        g.A("s_waitcnt lgkmcnt(0)")
        g.A("s_barrier")
        sk = g.lab("m3")
        g.A(f"s_cmp_lg_u32 s{S_WAVE}, 0")
        g.A(f"s_cbranch_scc1 {sk}")
        red_read(g, V_RA, V_RB, RD)
        for o in range(2):
            g.A(f"v_add_f32 v{RD+o}, v{RD+o}, v{RD+8+o}")
        g.A(f"v_cvt_pk_bf16_f32 v{RD+2}, v{RD}, v{RD+1}")
        g.A(f"v_mov_b32 v{RD+3}, s{S_TAG}")
        g.A(f"v_lshrrev_b32 v{T}, 5, v{H_LANE}")
        g.A(f"v_mul_u32_u24 v{T}, {1344*8}, v{T}")
        g.A(f"v_and_b32 v{T+1}, 31, v{H_LANE}")
        g.A(f"v_lshl_add_u32 v{T}, v{T+1}, 3, v{T}")
        g.A(f"s_lshl_b32 s{S_T0}, s{S_MB}, 8")
        g.A(f"s_add_u32 s{S_T0}, s{S_T0}, {WS_MOD}")
        g.A(f"buffer_store_dwordx2 {vr(RD+2,2)}, v{T}, {WSR}, s{S_T0} offen sc1")
        g.L(sk)
    nom2 = g.lab("nom")
    g.A(f"s_cmp_lt_u32 s{S_ROLE}, 50")
    g.A(f"s_cbranch_scc1 {nom2}")
    m_stage()
    lazy(g, cfg, 4)
    q_wloads()
    g.L(nom2)
    stamp(g, cfg, 2)
    lazy_flush(g, cfg, 5, 16)
    g.A("s_waitcnt vmcnt(8)")
    transpose_unit(g, H_ST, H_FR)
    g.A("s_waitcnt vmcnt(0)")
    transpose_unit(g, H_ST + 32, H_FR + 32)
    skip = g.lab("noh")
    g.A(f"s_cmp_ge_u32 s{S_WAVE}, 2")
    g.A(f"s_cbranch_scc1 {skip}")
    g.A(f"s_mul_i32 s{S_X0+3}, s{S_B}, {1344*8}")
    g.A(f"s_add_u32 s{S_X0+3}, s{S_X0+3}, {WS_MOD}")
    exec56(g)
    gather_shift_scale(g, cfg, S_X0 + 3, V_G32, HLD, HSH, HSC, T)
    modulate_write(g, HLN, HSH, HSC, V_ACTW, L_ACTH, T)
    exec_all(g)
    g.L(skip)
    stamp(g, cfg, 3)
    g.A("s_waitcnt lgkmcnt(0)")
    g.A("s_barrier")
    g.A(f"ds_read_b128 {vr(AF,4)}, v{V_AF64} offset:{L_ACTH}")
    g.A(f"ds_read_b128 {vr(AF+4,4)}, v{V_AF64} offset:{L_ACTH+512}")
    g.A("s_waitcnt lgkmcnt(1)")
    mfma8(g, AF, H_FR, True)
    sk = g.lab("q2")
    g.A(f"s_cmp_eq_u32 s{S_WAVE}, 3")
    g.A(f"s_cbranch_scc1 {sk}")
    g.A("s_waitcnt lgkmcnt(0)")
    mfma8(g, AF + 4, H_FR + 32, False)
    g.L(sk)
    g.A("s_waitcnt lgkmcnt(0)")
    g.A("s_nop 7")
    red_write(g, V_RW)
    g.A("s_waitcnt lgkmcnt(0)")
    g.A("s_barrier")
    sk = g.lab("q3")
    g.A(f"s_cmp_lg_u32 s{S_WAVE}, 0")
    g.A(f"s_cbranch_scc1 {sk}")
    red_read(g, V_RA, V_RB, RD)
    for o in range(2):
        g.A(f"v_add_f32 v{RD+o}, v{RD+o}, v{RD+8+o}")
    g.A(f"v_cvt_pk_bf16_f32 v{RD+2}, v{RD}, v{RD+1}")
    g.A(f"v_mov_b32 v{RD+3}, s{S_TAG}")
    g.A(f"v_lshrrev_b32 v{T}, 5, v{H_LANE}")
    g.A(f"v_lshlrev_b32 v{T}, 14, v{T}")
    g.A(f"v_and_b32 v{T+1}, 31, v{H_LANE}")
    g.A(f"v_lshl_add_u32 v{T}, v{T+1}, 3, v{T}")
    g.A(f"s_lshl_b32 s{S_T0}, s{S_ROLE}, 8")
    g.A(f"s_add_u32 s{S_T0}, s{S_T0}, {WS_QB}")
    g.A(f"buffer_store_dwordx2 {vr(RD+2,2)}, v{T}, {WSR}, s{S_T0} offen sc1")
    g.L(sk)
    stamp(g, cfg, 4)
    dbgt(g, cfg, 9, 28, 192, 0)
    dbgt(g, cfg, 10, 28, 250, 0)
    if cfg.X_NOEPIW:
        g.A("s_endpgm")
    g.A(f"s_cmp_ge_u32 s{S_ROLE}, 32")
    g.A("s_cbranch_scc1 L_rf")

    nomr = g.lab("nomrest")
    g.A(f"s_cmp_lt_u32 s{S_ROLE}, 4")
    g.A(f"s_cbranch_scc1 {nomr}")
    g.A(f"s_add_u32 s{S_MB}, s{S_ROLE}, 10")
    m_loads()
    g.A("s_barrier")
    m_stage()
    g.L(nomr)
    def first_of_8(sidx, off):
        g.A(f"s_mul_i32 s{S_T0}, s{sidx}, 6")
        g.A(f"v_and_b32 v{T+2}, 7, v{H_LANE}")
        g.A(f"v_mul_u32_u24 v{T+2}, 23, v{T+2}")
        g.A(f"v_add_u32 v{T+2}, s{S_T0}, v{T+2}")
        g.A(f"v_subrev_u32 v{T+3}, 192, v{T+2}")
        g.A(f"v_cmp_gt_u32 vcc, 192, v{T+2}")
        g.A("s_nop 1")
        g.A(f"v_cndmask_b32 v{T+2}, v{T+3}, v{T+2}, vcc")
        g.A(f"v_lshlrev_b32 v{T+2}, 6, v{T+2}")
        top = g.lab("lw"); ok = g.lab("lwok")
        g.A(f"s_mov_b32 s{S_CNT}, 0")
        g.A(f"s_mov_b32 s{S_T0}, {WS_HEADS + off}")
        g.L(top)
        g.A(f"buffer_load_dwordx2 {vr(T+4,2)}, v{T+2}, {WSR}, s{S_T0} offen sc1")
        g.A("s_waitcnt vmcnt(0)")
        g.A(f"v_cmp_eq_u32 vcc, s{S_TAG}, v{T+4}")
        g.A("s_nop 1")
        g.A(f"s_cbranch_vccnz {ok}")
        g.A(f"s_sleep {cfg.HSLEEP}")
        g.A(f"s_add_u32 s{S_CNT}, s{S_CNT}, 1")
        g.A(f"s_cmp_lt_u32 s{S_CNT}, {cfg.POLLMAX}")
        g.A(f"s_cbranch_scc1 {top}")
        g.L(ok)
    V_WO = 17
    g.A(f"s_mul_i32 s{S_T2}, s{S_ROLE}, {128*896}")
    g.A(f"s_sub_u32 s{S_X0+1}, {4096*896}, s{S_T2}")
    set_srd(g, SRD_A, P_WO, off_sreg=S_T2, nbytes_sreg=S_X0 + 1)
    def woff128(dst):
        g.A(f"v_lshrrev_b32 v{T}, 4, v{H_LANE}")
        g.A(f"v_mul_u32_u24 v{dst}, {8*896}, v{T}")
        g.A(f"v_and_b32 v{T}, 15, v{H_LANE}")
        g.A(f"v_lshl_add_u32 v{dst}, v{T}, 4, v{dst}")
        g.A(f"s_lshl_b32 s{S_T0}, s{S_WAVE}, 8")
        g.A(f"v_add_u32 v{dst}, s{S_T0}, v{dst}")
    def tile3_mask():
        g.A(f"s_cmp_eq_u32 s{S_WAVE}, 3")
        g.A(f"s_cselect_b32 exec_lo, 0x00ff00ff, -1")
        g.A(f"s_cselect_b32 exec_hi, 0x00ff00ff, -1")
    woff128(V_WO)
    def wo_unit(kb, st):
        tile3_mask()
        unit_loads(g, H_ST + 32 * st, SRD_A, V_WO, [(kb * 32 + e) * 896 for e in range(8)], NT)
        exec_all(g)
    def wo_load():
        wo_unit(0, 0); wo_unit(1, 1)
        g.A("s_waitcnt vmcnt(8)"); transpose_unit(g, H_ST, H_FR)
        wo_unit(2, 0)
        g.A("s_waitcnt vmcnt(8)"); transpose_unit(g, H_ST + 32, H_FR + 32)
        wo_unit(3, 1)
        g.A("s_waitcnt vmcnt(8)"); transpose_unit(g, H_ST, H_FR + 64)
        g.A("s_waitcnt vmcnt(0)"); transpose_unit(g, H_ST + 32, H_FR + 96)
    if not cfg.X_SKIPWO and not cfg.LATEWO:
        wo_load()
    V_RO, V_CX, V_XR, V_GA, V_GB, V_X2 = 25, 26, 232, 234, 236, 238
    S_CB, S_CC = S_X0 + 6, S_X0 + 7
    S_K = S_ROLE
    skipr = g.lab("nor0")
    g.A(f"s_and_b32 s{S_CB}, s{S_K}, 1")
    g.A(f"s_lshr_b32 s{S_T0}, s{S_K}, 3")
    g.A(f"s_lshl_b32 s{S_T0}, s{S_T0}, 7")
    g.A(f"s_lshr_b32 s{S_T1}, s{S_K}, 1")
    g.A(f"s_and_b32 s{S_T1}, s{S_T1}, 3")
    g.A(f"s_lshl_b32 s{S_T1}, s{S_T1}, 1")
    g.A(f"s_add_u32 s{S_CC}, s{S_T0}, s{S_T1}")
    g.A(f"v_and_b32 v{T}, 15, v{H_LANE}")
    g.A(f"v_lshlrev_b32 v{V_CX}, 3, v{T}")
    g.A(f"v_add_u32 v{V_CX}, s{S_CC}, v{V_CX}")
    g.A(f"v_lshrrev_b32 v{T+1}, 4, v{H_LANE}")
    g.A(f"v_lshlrev_b32 v{V_RO}, 13, v{T+1}")
    g.A(f"v_lshl_add_u32 v{V_RO}, v{T}, 4, v{V_RO}")
    g.A(f"v_cmp_gt_u32 vcc, 448, v{V_CX}")
    g.A(f"s_mov_b64 s[{S_MSK}:{S_MSK+1}], vcc")
    g.A(f"s_cmp_lg_u32 s{S_WAVE}, 0")
    g.A(f"s_cbranch_scc1 {skipr}")
    g.A(f"s_mov_b64 exec, s[{S_MSK}:{S_MSK+1}]")
    set_srd(g, SRD_B, P_X, nbytes=1792)
    g.A(f"s_mul_i32 s{S_T0}, s{S_CB}, 896")
    g.A(f"v_lshlrev_b32 v{T+2}, 1, v{V_CX}")
    g.A(f"buffer_load_dword v{T+6}, v{T+2}, s[{SRD_B}:{SRD_B+3}], s{S_T0} offen")
    g.A(f"s_mul_i32 s{S_X0+8}, s{S_CB}, {1344*8}")
    g.A(f"s_add_u32 s{S_X0+8}, s{S_X0+8}, {WS_MOD + 896*4}")
    g.A(f"s_add_u32 s{S_X0+9}, s{S_X0+8}, {(2240-896)*4}")
    g.A(f"v_lshlrev_b32 v{T+3}, 2, v{V_CX}")
    def gl():
        g.A(f"buffer_load_dwordx2 {vr(T+8,2)}, v{T+3}, {WSR}, s{S_X0+8} offen sc1")
        g.A(f"buffer_load_dwordx2 {vr(T+10,2)}, v{T+3}, {WSR}, s{S_X0+9} offen sc1")
    poll_loop(g, cfg, gl, [T + 9, T + 11], T, sleep=4)
    g.A(f"v_mov_b32 v19, v{T+6}")
    g.A(f"v_mov_b32 v22, v{T+8}")
    g.A(f"v_mov_b32 v23, v{T+10}")
    exec_all(g)
    g.L(skipr)
    def r_unpack():
        unpack_pairs(g, [19], [V_XR, V_XR + 1])
        unpack_pairs(g, [22], [V_GA, V_GA + 1])
        unpack_pairs(g, [23], [V_GB, V_GB + 1])
    set_srd(g, SRD_C, P_OUT, nbytes=1792)
    S_REC = S_X0 + 4
    g.A(f"s_lshr_b32 s{S_T0}, s{S_WAVE}, 1")
    g.A(f"s_lshl_b32 s{S_T0}, s{S_T0}, 4")
    g.A(f"s_lshr_b32 s{S_T1}, s{S_ROLE}, 1")
    g.A(f"s_add_u32 s{S_T0}, s{S_T0}, s{S_T1}")
    g.A(f"s_mul_i32 s{S_REC}, s{S_T0}, {6*4096}")
    g.A(f"s_add_u32 s{S_REC}, s{S_REC}, {WS_PART}")
    g.A(f"s_and_b32 s{S_T1}, s{S_ROLE}, 1")
    g.A(f"s_lshl_b32 s{S_T1}, s{S_T1}, 11")
    for s in range(6):
        g.A(f"s_add_u32 s{S_OFF+s}, s{S_REC}, s{S_T1}")
        g.A(f"s_add_u32 s{S_OFF+s}, s{S_OFF+s}, {s*4096}")
    V_PO, V_AOW, V_AFO, V_L16b = 18, 20, 21, 16
    g.A(f"s_and_b32 s{S_T1}, s{S_WAVE}, 1")
    g.A(f"s_lshl_b32 s{S_T1}, s{S_T1}, 6")
    g.A(f"v_add_u32 v{T}, s{S_T1}, v{H_LANE}")
    g.A(f"v_lshlrev_b32 v{V_PO}, 4, v{T}")
    g.A(f"s_lshr_b32 s{S_T1}, s{S_WAVE}, 1")
    g.A(f"s_mul_i32 s{S_T1}, s{S_T1}, {ROWO}")
    g.A(f"v_lshlrev_b32 v{V_AOW}, 1, v{T}")
    g.A(f"v_add_u32 v{V_AOW}, s{S_T1}, v{V_AOW}")
    def afrag_addr(dst, row_stride):
        g.A(f"v_lshrrev_b32 v{T}, 2, v{H_LANE}")
        g.A(f"v_and_b32 v{T}, 1, v{T}")
        g.A(f"v_mul_u32_u24 v{dst}, {row_stride}, v{T}")
        g.A(f"v_lshrrev_b32 v{T}, 4, v{H_LANE}")
        g.A(f"v_lshl_add_u32 v{dst}, v{T}, 4, v{dst}")
    afrag_addr(V_AFO, ROWO)
    S_PUB = S_X0 + 3
    def pub_base(base_const, sidx):
        g.A(f"s_lshl_b32 s{S_PUB}, s{sidx}, 13")
        g.A(f"s_lshl_b32 s{S_T1}, s{S_WAVE}, 11")
        g.A(f"s_add_u32 s{S_PUB}, s{S_PUB}, s{S_T1}")
        g.A(f"s_add_u32 s{S_PUB}, s{S_PUB}, {base_const}")
    pub_base(WS_Y, S_ROLE)
    stamp(g, cfg, 5)
    def heads_wait(sreg_w, off=0):
        g.A(f"s_lshl_b32 s{S_X0+5}, s{sreg_w}, 6")
        g.A(f"s_add_u32 s{S_X0+5}, s{S_X0+5}, {WS_HEADS + off}")
        g.A(f"v_mov_b32 v{T+2}, 0")
        def loads():
            g.A(f"buffer_load_dwordx2 {vr(T+4,2)}, v{T+2}, {WSR}, s{S_X0+5} offen sc1")
        poll_loop(g, cfg, loads, [T + 4, T + 5], T, sleep=cfg.HSLEEP)
    if cfg.X_LOADONLY:
        g.A("s_endpgm")
    if cfg.LATEWO:
        first_of_8(S_ROLE, 16)
        wo_load()
    else:
        g.A(f"s_lshr_b32 s{S_T1}, s{S_ROLE}, 1")
        g.A(f"s_mul_i32 s{S_T1}, s{S_T1}, 6")
        heads_wait(S_T1)
    r_unpack()
    stamp(g, cfg, 6)
    PL = H_ST
    items = []
    for sidx in range(6):
        items.append(((lambda sidx=sidx: g.A(f"buffer_load_dwordx4 {vr(PL + 4*sidx, 4)}, v{V_PO}, {WSR}, s{S_OFF+sidx} offen sc1")), [PL + 4*sidx + 1, PL + 4*sidx + 3]))
    masked_poll(g, cfg, items, None, idle_sleep=cfg.IDLE, trace=16)
    lazy(g, cfg, 0, 2)
    if cfg.LAZY != 2: stamp(g, cfg, 7)
    LM = lambda sidx: PL + 4 * sidx + 2
    g.A(f"v_max3_f32 v{T}, v{LM(0)}, v{LM(1)}, v{LM(2)}")
    g.A(f"v_max3_f32 v{T}, v{LM(3)}, v{LM(4)}, v{T}")
    g.A(f"v_max_f32 v{T}, v{LM(5)}, v{T}")
    for sidx in range(6):
        g.A(f"v_sub_f32 v{LM(sidx)}, v{LM(sidx)}, v{T}")
    for sidx in range(6):
        g.A(f"v_exp_f32 v{LM(sidx)}, v{LM(sidx)}")
    g.A(f"v_add_f32 v{T+1}, v{LM(0)}, v{LM(1)}")
    g.A(f"v_mul_f32 v{T}, v{LM(0)}, v{PL}")
    g.A(f"v_add_f32 v{T+2}, v{LM(2)}, v{LM(3)}")
    g.A(f"v_fmac_f32 v{T}, v{LM(1)}, v{PL+4}")
    g.A(f"v_add_f32 v{T+3}, v{LM(4)}, v{LM(5)}")
    g.A(f"v_fmac_f32 v{T}, v{LM(2)}, v{PL+8}")
    g.A(f"v_add_f32 v{T+1}, v{T+1}, v{T+2}")
    g.A(f"v_fmac_f32 v{T}, v{LM(3)}, v{PL+12}")
    g.A(f"v_add_f32 v{T+1}, v{T+1}, v{T+3}")
    g.A(f"v_fmac_f32 v{T}, v{LM(4)}, v{PL+16}")
    g.A(f"v_rcp_f32 v{T+1}, v{T+1}")
    g.A(f"v_fmac_f32 v{T}, v{LM(5)}, v{PL+20}")
    g.A(f"v_mul_f32 v{T}, v{T}, v{T+1}")
    g.A(f"v_cvt_pk_bf16_f32 v{T}, v{T}, v{T}")
    g.A(f"ds_write_b16 v{V_AOW}, v{T} offset:{L_ACTO}")
    g.A("s_waitcnt lgkmcnt(0)")
    g.A("s_barrier")
    lazy(g, cfg, 1, 2)
    AFO = [4, 8, 12, 216]
    for kb in range(4):
        g.A(f"ds_read_b128 {vr(AFO[kb], 4)}, v{V_AFO} offset:{L_ACTO + kb*64}")
    for kb in range(4):
        g.A(f"s_waitcnt lgkmcnt({3-kb})")
        mfma8(g, AFO[kb], H_FR + 32 * kb, kb == 0)
    lazy(g, cfg, 2, 2)
    def publish_rec():
        g.A("s_mov_b32 exec_lo, -1")
        g.A("s_mov_b32 exec_hi, 0")
        g.A("s_nop 5")
        for p in range(4):
            a0 = H_ACC + 8 * p
            g.A(f"v_mov_b32 v{a0+2}, v{a0+4}")
            g.A(f"v_mov_b32 v{a0+1}, s{S_TAG}")
            g.A(f"v_mov_b32 v{a0+3}, s{S_TAG}")
            g.A(f"buffer_store_dwordx4 {vr(a0, 4)}, v16, {WSR}, s{S_PUB} offen offset:{p*512} sc1")
        exec_all(g)
    publish_rec()
    lazy(g, cfg, 3, 2)
    dbgt(g, cfg, 7, 28, 192, 0)
    dbgt(g, cfg, 8, 28, 210, 0)
    stamp(g, cfg, 8)
    lazy_flush(g, cfg, 4, 21, 2)
    RL = 64
    L_RP = L_RED
    g.A(f"v_lshrrev_b32 v{T}, 4, v{H_LANE}")
    g.A(f"v_lshlrev_b32 v{V_RO}, 15, v{T}")
    g.A(f"v_and_b32 v{T}, 15, v{H_LANE}")
    g.A(f"v_lshl_add_u32 v{V_RO}, v{T}, 4, v{V_RO}")
    g.A(f"v_lshlrev_b32 v22, 3, v{T}")
    g.A(f"s_lshl_b32 s{S_T0}, s{S_WAVE}, 7")
    g.A(f"v_add_u32 v19, s{S_T0}, v22")
    g.A(f"v_lshlrev_b32 v27, 3, v{H_LANE}")
    g.A(f"v_lshlrev_b32 v24, 1, v{V_CX}")
    def rec_gather(base_const, nrec, idle):
        g.A(f"s_lshl_b32 s{S_X0+5}, s{S_K}, 8")
        g.A(f"s_lshl_b32 s{S_T0}, s{S_WAVE}, 13")
        g.A(f"s_add_u32 s{S_X0+5}, s{S_X0+5}, s{S_T0}")
        g.A(f"s_add_u32 s{S_OFF}, s{S_X0+5}, {base_const}")
        g.A(f"s_add_u32 s{S_OFF+1}, s{S_OFF}, {16*8192}")
        init = None
        if nrec == 28:
            g.A("s_mov_b32 exec_lo, 0"); g.A("s_mov_b32 exec_hi, 0xffff0000")
            g.A(f"v_mov_b32 v{RL+4}, 0"); g.A(f"v_mov_b32 v{RL+5}, s{S_TAG}")
            g.A(f"v_mov_b32 v{RL+6}, 0"); g.A(f"v_mov_b32 v{RL+7}, s{S_TAG}")
            exec_all(g)
            init = [None, (0xffffffff, 0x0000ffff)]
        items = [((lambda it=it: g.A(f"buffer_load_dwordx4 {vr(RL + 4*it, 4)}, v{V_RO}, {WSR}, s{S_OFF+it} offen sc1")), [RL + 4*it + 1, RL + 4*it + 3]) for it in range(2)]
        masked_poll(g, cfg, items, None, idle_sleep=idle, trace=(16 if nrec == 32 else 21), init=init)
        g.A(f"v_add_f32 v{RL}, v{RL}, v{RL+4}")
        g.A(f"v_add_f32 v{RL+2}, v{RL+2}, v{RL+6}")
        for swap in ("v_permlane16_swap_b32", "v_permlane32_swap_b32"):
            g.A(f"v_mov_b32 v{RL+1}, v{RL}")
            g.A(f"v_mov_b32 v{RL+3}, v{RL+2}")
            g.A("s_nop 1")
            g.A(f"{swap} v{RL}, v{RL+1}")
            g.A(f"{swap} v{RL+2}, v{RL+3}")
            g.A("s_nop 0")
            g.A(f"v_add_f32 v{RL}, v{RL}, v{RL+1}")
            g.A(f"v_add_f32 v{RL+2}, v{RL+2}, v{RL+3}")
        g.A(f"v_mov_b32 v{RL+1}, v{RL+2}")
        g.A("s_mov_b64 exec, 0xffff")
        g.A(f"ds_write_b64 v19, {vr(RL,2)} offset:{L_RP}")
        exec_all(g)
        g.A("s_waitcnt lgkmcnt(0)")
        g.A("s_barrier")
    def rec_finish():
        for w in range(4):
            g.A(f"ds_read_b64 {vr(RL + 8 + 2*w, 2)}, v22 offset:{L_RP + w*128}")
        g.A("s_waitcnt lgkmcnt(0)")
        pk(g, "add", RL + 8, RL + 8, RL + 10)
        pk(g, "add", RL + 12, RL + 12, RL + 14)
        pk(g, "add", RL + 8, RL + 8, RL + 12)
        g.A(f"v_mov_b32 v{RL}, v{RL+8}")
        g.A(f"v_mov_b32 v{RL+2}, v{RL+9}")
    def resid(base_x, gate):
        bf16_round_pairs(g, [RL, RL + 2], T)
        g.A(f"v_mul_f32 v{RL}, v{RL}, v{gate}")
        g.A(f"v_mul_f32 v{RL+2}, v{RL+2}, v{gate+1}")
        bf16_round_pairs(g, [RL, RL + 2], T)
        g.A(f"v_add_f32 v{RL}, v{RL}, v{base_x}")
        g.A(f"v_add_f32 v{RL+2}, v{RL+2}, v{base_x+1}")
        g.A(f"v_cvt_pk_bf16_f32 v{T}, v{RL}, v{RL+2}")
    g.A(f"s_lshl_b32 s{S_PUB}, s{S_K}, 7")
    g.A(f"s_add_u32 s{S_PUB}, s{S_PUB}, {WS_X2}")
    rec_gather(WS_Y, 32, cfg.IDLE)
    stamp(g, cfg, 9)
    sk = g.lab("nox2")
    g.A(f"s_cmp_lg_u32 s{S_WAVE}, 0")
    g.A(f"s_cbranch_scc1 {sk}")
    rec_finish()
    g.A(f"v_mov_b32 v{T+1}, s{S_TAG}")
    resid(V_XR, V_GA)
    g.A(f"s_and_b32 exec_lo, s{S_MSK}, 0xffff")
    g.A("s_mov_b32 exec_hi, 0")
    for rep in range(NREP_X):
        g.A(f"buffer_store_dwordx2 {vr(T,2)}, v27, {WSR}, s{S_PUB} offen offset:0 sc1")
        if rep + 1 < NREP_X:
            g.A(f"s_add_u32 s{S_PUB}, s{S_PUB}, 4096")
    exec_all(g)
    unpack_pairs(g, [T], [V_X2, V_X2 + 1])
    g.L(sk)
    stamp(g, cfg, 10)
    g.A("s_barrier")
    g.A(f"s_mul_i32 s{S_PUB}, s{S_CB}, 896")
    rec_gather(WS_DN, 28, cfg.IDLE)
    stamp(g, cfg, 11)
    g.A(f"s_cmp_lg_u32 s{S_WAVE}, 0")
    g.A("s_cbranch_scc1 L_exit")
    rec_finish()
    resid(V_X2, V_GB)
    g.A(f"s_and_b32 exec_lo, s{S_MSK}, 0xffff")
    g.A("s_mov_b32 exec_hi, 0")
    g.A(f"buffer_store_dword v{T}, v24, s[{SRD_C}:{SRD_C+3}], s{S_PUB} offen{cfg.OUTF}")
    dbgt(g, cfg, 0, 28, 192, 0)
    g.A(f"s_cmp_lg_u32 s{S_K}, 0")
    g.A("s_cbranch_scc1 L_exit")
    g.A("s_mov_b64 exec, 1")
    g.A(f"v_mov_b32 v{T+3}, s{S_TAG}")
    g.A(f"v_mov_b32 v{T+4}, 0")
    g.A(f"buffer_store_dword v{T+3}, v{T+4}, {WSR}, 0 offen sc1")
    stamp(g, cfg, 12)
    g.A("s_endpgm")

    g.L("L_rf")
    S_I = S_X0 + 4
    g.A(f"s_sub_u32 s{S_I}, s{S_ROLE}, 32")
    g.A(f"s_cmp_ge_u32 s{S_I}, 28")
    g.A("s_cbranch_scc1 L_exit")
    V_WGU, V_WD = 17, 18
    g.A(f"v_lshrrev_b32 v{T}, 4, v{H_LANE}")
    g.A(f"v_lshlrev_b32 v{T}, 3, v{T}")
    g.A(f"s_lshl_b32 s{S_T0}, s{S_WAVE}, 5")
    g.A(f"v_add_u32 v{T}, s{S_T0}, v{T}")
    g.A(f"v_mul_u32_u24 v{V_WGU}, 3584, v{T}")
    g.A(f"v_and_b32 v{T}, 7, v{H_LANE}")
    g.A(f"v_lshl_add_u32 v{V_WGU}, v{T}, 4, v{V_WGU}")
    g.A(f"s_lshl_b32 s{S_T2}, s{S_I}, 7")
    g.A(f"s_sub_u32 s{S_X0+1}, {448*3584}, s{S_T2}")
    set_srd(g, SRD_A, P_WG, off_sreg=S_T2, nbytes_sreg=S_X0 + 1)
    set_srd(g, SRD_B, P_WU, off_sreg=S_T2, nbytes_sreg=S_X0 + 1)
    g.A(f"s_mul_i32 s{S_T2}, s{S_I}, {64*896}")
    g.A(f"s_sub_u32 s{S_X0+1}, {1792*896}, s{S_T2}")
    set_srd(g, SRD_C, P_WD, off_sreg=S_T2, nbytes_sreg=S_X0 + 1)
    woff128(V_WD)
    FSH, FSC, FLD, FLN = 176, 184, 208, 224
    skip = g.lab("nosb")
    g.A(f"s_cmp_ge_u32 s{S_WAVE}, 2")
    g.A(f"s_cbranch_scc1 {skip}")
    g.A(f"s_mul_i32 s{S_X0+3}, s{S_B}, {1344*8}")
    g.A(f"s_add_u32 s{S_X0+3}, s{S_X0+3}, {WS_MOD + 672*8}")
    exec56(g)
    gather_shift_scale(g, cfg, S_X0 + 3, V_G32, FLD, FSH, FSC, T)
    exec_all(g)
    g.L(skip)
    stamp(g, cfg, 5)
    def wd_unit(kb, dst):
        tile3_mask()
        unit_loads(g, dst, SRD_C, V_WD, [(kb * 32 + e) * 896 for e in range(8)], NT)
        exec_all(g)
    if cfg.WDEARLY:
        wd_unit(0, 32); wd_unit(1, 96)
        g.A("s_waitcnt vmcnt(8)"); transpose_unit(g, 32, 0, dst_acc=True, tmp=T)
        g.A("s_waitcnt vmcnt(0)"); transpose_unit(g, 96, 32, dst_acc=True, tmp=T)
    if cfg.LATEF:
        first_of_8(S_I, cfg.LATEOFF)
    stamp(g, cfg, 6)
    V_FXW, V_FXR = 19, 22
    g.A(f"s_lshl_b32 s{S_T0}, s{S_WAVE}, 13")
    g.A(f"s_add_u32 s{S_T0}, s{S_T0}, {L_FX}")
    g.A(f"v_add_u32 v{V_FXW}, s{S_T0}, v16")
    g.A(f"s_lshl_b32 s{S_T0}, s{S_WAVE}, 11")
    g.A(f"s_add_u32 s{S_T0}, s{S_T0}, {L_FX}")
    g.A(f"v_add_u32 v{V_FXR}, s{S_T0}, v16")
    FT = 160 - 32 if False else 32
    GU = [H_ST, H_ST + 32]
    def gu_unit_at(it, dst):
        g.A("s_mov_b32 exec_lo, 0x00ff00ff"); g.A("s_mov_b32 exec_hi, 0x00ff00ff")
        unit_loads(g, dst, SRD_A, V_WGU, [e * 3584 + it * 128 * 3584 for e in range(8)], NT)
        g.A("s_mov_b32 exec_lo, 0xff00ff00"); g.A("s_mov_b32 exec_hi, 0xff00ff00")
        unit_loads(g, dst, SRD_B, V_WGU, [e * 3584 + it * 128 * 3584 for e in range(8)], NT)
        exec_all(g)
    def exchange(it, src):
        transpose_unit(g, src, FT)
        for m in range(8):
            g.A(f"ds_write_b128 v{V_FXW}, {vr(FT + 4*m, 4)} offset:{m*1024}")
        g.A("s_waitcnt lgkmcnt(0)")
        g.A("s_barrier")
        for w in range(4 if it < 3 else 2):
            kb = 4 * it + w
            for mm in range(2):
                g.A(f"ds_read_b128 {vr(H_FR + (kb*2+mm)*4, 4)}, v{V_FXR} offset:{w*8192 + mm*1024}")
        g.A("s_waitcnt lgkmcnt(0)")
        g.A("s_barrier")
    g.A("s_barrier")
    if not cfg.X_SKIPFW:
        gu_unit_at(0, 192); gu_unit_at(1, 224); gu_unit_at(2, 128)
        g.A("s_waitcnt vmcnt(32)"); exchange(0, 192)
        gu_unit_at(3, 192)
        g.A("s_waitcnt vmcnt(32)"); exchange(1, 224)
        if not cfg.WDEARLY:
            wd_unit(0, 224)
            g.A("s_waitcnt vmcnt(24)"); exchange(2, 128)
            g.A("s_waitcnt vmcnt(8)"); exchange(3, 192)
            wd_unit(1, 192)
            g.A("s_waitcnt vmcnt(8)"); transpose_unit(g, 224, 0, dst_acc=True, tmp=T)
            g.A("s_waitcnt vmcnt(0)"); transpose_unit(g, 192, 32, dst_acc=True, tmp=T)
        else:
            g.A("s_waitcnt vmcnt(16)"); exchange(2, 128)
            g.A("s_waitcnt vmcnt(0)"); exchange(3, 192)
    V_AFH, V_AFD, V_A2W, V_X2O = 17, 18, 19, 27
    afrag_addr(V_AFH, ROWB)
    afrag_addr(V_AFD, ROWO)
    g.A(f"v_lshrrev_b32 v{T}, 4, v{H_LANE}")
    g.A(f"v_mul_u32_u24 v{V_A2W}, {ROWO}, v{T}")
    g.A(f"v_and_b32 v{T}, 7, v{H_LANE}")
    g.A(f"v_lshl_add_u32 v{V_A2W}, v{T}, 4, v{V_A2W}")
    g.A(f"s_lshl_b32 s{S_T0}, s{S_WAVE}, 2")
    g.A(f"v_add_u32 v{V_A2W}, s{S_T0}, v{V_A2W}")
    pub_base(WS_DN, S_I)
    g.A(f"s_and_b32 s{S_X0+5}, s{S_I}, {NREP_X-1}")
    g.A(f"s_lshl_b32 s{S_X0+5}, s{S_X0+5}, 12")
    g.A(f"s_lshl_b32 s{S_T0}, s{S_B}, 7")
    g.A(f"s_add_u32 s{S_X0+5}, s{S_X0+5}, s{S_T0}")
    g.A(f"s_add_u32 s{S_X0+5}, s{S_X0+5}, {WS_X2}")
    g.A(f"v_lshrrev_b32 v{T+2}, 4, v{H_LANE}")
    g.A(f"v_lshlrev_b32 v{T+2}, 10, v{T+2}")
    g.A(f"v_and_b32 v{T+3}, 15, v{H_LANE}")
    g.A(f"v_lshl_add_u32 v{V_X2O}, v{T+3}, 3, v{T+2}")
    g.A(f"s_mov_b32 s{S_X0+8}, -1")
    g.A(f"s_mov_b32 s{S_X0+9}, 0x00ffffff")
    stamp(g, cfg, 7)
    skip = g.lab("noln2")
    g.A(f"s_cmp_ge_u32 s{S_WAVE}, 2")
    g.A(f"s_cbranch_scc1 {skip}")
    exec56(g)
    items = [((lambda p=p: g.A(f"buffer_load_dwordx2 {vr(FLD + 2*p, 2)}, v{V_X2O}, {WSR}, s{S_X0+5} offen offset:{256*p} sc1")), [FLD + 2*p + 1]) for p in range(4)]
    masked_poll(g, cfg, items, S_X0 + 8, idle_sleep=cfg.IDLE, trace=16)
    exec_all(g)
    lazy(g, cfg, 0, 2)
    if cfg.LAZY != 2: stamp(g, cfg, 9)
    XF = FLD + 8
    unpack_pairs(g, [FLD, FLD + 2, FLD + 4, FLD + 6], [XF + e for e in range(8)])
    ln_normalize(g, XF, FLN, T)
    exec56(g)
    modulate_write(g, FLN, FSH, FSC, V_ACTW, L_ACTH, T)
    exec_all(g)
    g.L(skip)
    g.A("s_waitcnt lgkmcnt(0)")
    g.A("s_barrier")
    lazy(g, cfg, 1, 2)
    AFF = 192
    for kb in range(14):
        g.A(f"ds_read_b128 {vr(AFF + 4*kb, 4)}, v{V_AFH} offset:{L_ACTH + kb*64}")
    for kb in range(14):
        g.A(f"s_waitcnt lgkmcnt({min(15, 13-kb)})")
        for mm in range(2):
            acc = H_ACC + 4 * mm
            c = "0" if kb == 0 else vr(acc, 4)
            g.A(f"v_mfma_f32_16x16x32_bf16 {vr(acc,4)}, {vr(AFF + 4*kb, 4)}, {vr(H_FR + (kb*2+mm)*4, 4)}, {c}")
    g.A(f"s_mov_b32 s{S_T0}, {f2u(-LOG2E):#x}")
    g.A("s_nop 6")
    G0, G1, U0, U1 = T, T + 1, T + 2, T + 3
    g.A(f"v_mov_b32_dpp v{U0}, v{H_ACC} row_ror:8 row_mask:0xf bank_mask:0xf")
    g.A(f"v_mov_b32_dpp v{U1}, v{H_ACC+4} row_ror:8 row_mask:0xf bank_mask:0xf")
    g.A(f"v_cvt_pk_bf16_f32 v{T+4}, v{H_ACC}, v{H_ACC+4}")
    g.A(f"v_cvt_pk_bf16_f32 v{T+5}, v{U0}, v{U1}")
    g.A(f"v_lshlrev_b32 v{G0}, 16, v{T+4}")
    g.A(f"v_and_b32 v{G1}, 0xffff0000, v{T+4}")
    g.A(f"v_mul_f32 v{G0}, s{S_T0}, v{G0}")
    g.A(f"v_mul_f32 v{G1}, s{S_T0}, v{G1}")
    g.A(f"v_exp_f32 v{G0}, v{G0}")
    g.A(f"v_exp_f32 v{G1}, v{G1}")
    g.A(f"v_lshlrev_b32 v{U0}, 16, v{T+5}")
    g.A(f"v_and_b32 v{U1}, 0xffff0000, v{T+5}")
    g.A(f"v_add_f32 v{G0}, 1.0, v{G0}")
    g.A(f"v_add_f32 v{G1}, 1.0, v{G1}")
    g.A(f"v_rcp_f32 v{G0}, v{G0}")
    g.A(f"v_rcp_f32 v{G1}, v{G1}")
    g.A("s_nop 0")
    g.A(f"v_cvt_pk_bf16_f32 v{T+4}, v{G0}, v{G1}")
    g.A(f"v_lshlrev_b32 v{G0}, 16, v{T+4}")
    g.A(f"v_and_b32 v{G1}, 0xffff0000, v{T+4}")
    g.A(f"v_mul_f32 v{G0}, v{G0}, v{U0}")
    g.A(f"v_mul_f32 v{G1}, v{G1}, v{U1}")
    g.A(f"v_cvt_pk_bf16_f32 v{T+4}, v{G0}, v{G1}")
    g.A("s_mov_b32 exec_lo, 0x00ff00ff")
    g.A("s_mov_b32 exec_hi, 0")
    g.A(f"ds_write_b32 v{V_A2W}, v{T+4} offset:{L_ACTO}")
    exec_all(g)
    g.A("s_waitcnt lgkmcnt(0)")
    g.A("s_barrier")
    lazy(g, cfg, 3, 2)
    for kb in range(2):
        g.A(f"ds_read_b128 {vr(AFF + 4*kb, 4)}, v{V_AFD} offset:{L_ACTO + kb*64}")
    for kb in range(2):
        g.A(f"s_waitcnt lgkmcnt({1-kb})")
        mfma8(g, AFF + 4 * kb, 32 * kb, kb == 0, frag_acc=True)
    publish_rec()
    lazy(g, cfg, 4, 2)
    stamp(g, cfg, 10)
    lazy_flush(g, cfg, 5, 21, 2)
    g.A("s_endpgm")

def generate(cfg, header_src=None):
    g = G()
    g.A(f"s_cmp_ge_u32 s{S_WG}, {cfg.NSTREAM + cfg.NHELP}")
    g.A("s_cbranch_scc1 L_exit")
    if cfg.STAMPS:
        g.A("s_memrealtime s[84:85]")
    if cfg.DBGT:
        g.A("s_memrealtime s[92:93]")
    g.A("s_load_dwordx16 s[16:31], s[0:1], 0")
    g.A("s_load_dwordx8 s[32:39], s[0:1], 64")
    g.A("s_load_dwordx4 s[40:43], s[0:1], 96")
    if cfg.CODEPF and cfg.EARLYPF:
        g.A("v_lshlrev_b32 v3, 7, v0")
        code_prefetch(g, cfg, KNAME, 'L_codeend', True, 3, 31, ninstr=2 if cfg.CODEPF2 else 1, per_instr=32768)
    g.A("v_lshrrev_b32 v1, 6, v0")
    g.A("v_and_b32 v0, 63, v0")
    g.A(f"s_cmp_lt_u32 s{S_WG}, {cfg.NSTREAM}")
    g.A(f"v_readfirstlane_b32 s{S_WAVE}, v1")
    g.A("s_cbranch_scc0 L_helper0")
    g.A("s_nop 2")
    cfg.STAMP_V = 116
    emit_streamer(g, cfg)
    cfg.STAMP_V = 28
    g.L("L_helper0")
    g.A("v_mov_b32 v2, 0")
    g.A("s_waitcnt lgkmcnt(0)")
    set_srd(g, SRD_WS, P_WS, nbytes=WS_SIZE)
    g.A(f"buffer_load_dword v1, v2, s[{SRD_WS}:{SRD_WS+3}], 0 offen sc1")
    entry_stamp(g, cfg)
    emit_helper(g, cfg)
    g.L("L_exit")
    g.A("s_endpgm")
    g.L("L_codeend")
    hdr = open("adaLN_cond__mha_block_cached__glu_gated_glu__decode.s.ref").read().split("\n")
    head = []
    for line in hdr:
        if line.startswith("; @launch"):
            head.append(f"; @launch grid=({cfg.NSTREAM + cfg.NHELP},1,1) block=(256,1,1) lds={LDS_BYTES}")
            break
        head.append(line)
    txt = "\n".join(head) + "\n"
    txt += '.amdgcn_target "amdgcn-amd-amdhsa--gfx950"\n.text\n'
    txt += f".globl {KNAME}\n.p2align 8\n.type {KNAME},@function\n{KNAME}:\n"
    txt += "\n".join(g.o) + "\n"
    txt += f""".section .rodata,"a"
.p2align 6
.amdhsa_kernel {KNAME}
  .amdhsa_next_free_vgpr 512
  .amdhsa_next_free_sgpr 102
  .amdhsa_accum_offset 256
  .amdhsa_group_segment_fixed_size 0
  .amdhsa_kernarg_size 112
  .amdhsa_user_sgpr_count 2
  .amdhsa_user_sgpr_kernarg_segment_ptr 1
  .amdhsa_system_sgpr_workgroup_id_x 1
  .amdhsa_float_denorm_mode_32 3
.end_amdhsa_kernel
"""
    return txt

if __name__ == "__main__":
    import argparse
    ap = argparse.ArgumentParser()
    ap.add_argument("-o", default="k.s")
    ap.add_argument("--stamps", action="store_true")
    ap.add_argument("--set", nargs="*", default=[])
    a = ap.parse_args()
    cfg = Cfg()
    cfg.STAMPS = a.stamps
    for kv in a.set:
        k, v = kv.split("=")
        if isinstance(getattr(cfg, k), str): v = (" " + v.replace("_", " ")) if v else ""
        setattr(cfg, k, type(getattr(cfg, k))(v) if not isinstance(getattr(cfg, k), bool) else v in ("1", "True"))
    open(a.o, "w").write(generate(cfg))
    print("wrote", a.o)
```

```python
import sys

KNAME = "adaLN_cond__mha_block_cached__glu_gated_glu__decode_kernel"

class Cfg:
    NS = 6
    NSTREAM = 192
    NHELP = 64
    P = 12
    DMIN = 4
    W1 = 16
    NG = 22
    STAMPS = False
    POLLMAX = 200000
    HEADS_STEP = 41
    NT = " nt"
    NTW = " nt"
    CODEPF = True
    STAMP_V = 28
    LAZY = 0
    EARLYPF = True
    LATEF = True
    WDEARLY = False
    LATEWO = False
    HEADS3 = 38
    HEADS2 = 40
    LATEOFF = 8
    OUTF = " sc0 sc1"
    X_SKIPFW = False
    X_SKIPWO = False
    POLL_VT = 4
    WCONT = False
    BAL = True
    DBGT = False
    RPK = 3
    RPGAP = 7
    RW0 = 2
    IDLE = 8
    STG = 10
    RPGAP2 = 10
    X_LOADONLY = False
    HSLEEP = 16
    CAPG = 4
    QBACK = 1
    SHRINK = 2
    X_NOHELP = False
    X_NOEPIW = False
    CODEPF2 = False

WS_EPOCH = 0
WS_HEADS = 0x1000
WS_MOD = 0x4000
WS_QB = 0xA000
WS_X2 = 0x12000
NREP_X = 4
WS_PART = 0x20000
WS_Y = 0x100000
WS_DN = 0x140000
WS_STAMP = 0x180000
WS_SIZE = 0x200000

ROWB = 1152
L_ACTS = 0
L_ACTH = 2 * ROWB
L_ACTO = 4 * ROWB
ROWO = 320
L_RED = 4 * ROWB + 2 * ROWO + 128
L_RED = (L_RED + 255) // 256 * 256
L_FX = L_RED
LDS_BYTES = L_FX + 4 * 8192
L_OW = 0
L_ML = 4096

LOG2E = 1.4426950408889634

import struct
def f2u(x):
    return struct.unpack("<I", struct.pack("<f", x))[0]


DOC = """;
;   ids   0..191  streamers: (b,h) = id/6, split = id%6.  Each wave streams K then V for its 16-key groups straight into a
; Hand-offs go through d_ws as self-validating 8-byte granules {data, tag} written and read with sc1.  The tag is derived from
"""

class G:
    def __init__(self):
        self.o = []
        self.nlab = 0
    def A(self, s):
        self.o.append("    " + s)
    def L(self, name):
        self.o.append(name + ":")
    def lab(self, base):
        self.nlab += 1
        return f"L_{base}_{self.nlab}"
    def C(self, s):
        self.o.append("    ; " + s)

def vr(b, n=1):
    return f"v{b}" if n == 1 else f"v[{b}:{b+n-1}]"
def ar(b, n=1):
    return f"a{b}" if n == 1 else f"a[{b}:{b+n-1}]"
def sr(b, n=1):
    return f"s{b}" if n == 1 else f"s[{b}:{b+n-1}]"

S_WG, S_WAVE, S_ROLE = 2, 3, 4
S_T0, S_T1, S_T2 = 5, 6, 7
SRD_A, SRD_B = 8, 12
P_X, P_K, P_V, P_WQ, P_WO, P_BX, P_WG, P_WU, P_WD, P_C, P_WMOD, P_OUT, P_DBG, P_WS = 16, 18, 20, 22, 24, 26, 28, 30, 32, 34, 36, 38, 40, 42
S_TAG, S_CNT = 44, 45
S_SAVE = 46
SRD_C = 48
SRD_WS = 52
S_OFF = 56
S_SEL0, S_SEL1 = 64, 65
S_MSK = 66
S_X0 = 74
S_STAMP = 88
S_STB = 87
S_MISS = 16
S_PF = 46

def stamp(g, cfg, idx):
    if not cfg.STAMPS:
        return
    g.A(f"s_memrealtime s[{S_STAMP}:{S_STAMP+1}]")
    g.A("s_waitcnt lgkmcnt(0)")
    g.A(f"s_mov_b64 s[100:101], exec")
    g.A("s_mov_b64 exec, 1")
    sv = cfg.STAMP_V
    g.A(f"v_mov_b32 v{sv}, s{S_STAMP}")
    g.A(f"v_mov_b32 v{sv+1}, s{S_STAMP+1}")
    g.A(f"v_mov_b32 v{sv+2}, s{S_STB}")
    g.A(f"buffer_store_dwordx2 v[{sv}:{sv+1}], v{sv+2}, s[{SRD_WS}:{SRD_WS+3}], 0 offen offset:{idx*8}")
    g.A(f"s_mov_b64 exec, s[100:101]")

def lazy(g, cfg, i, mode=1):
    if cfg.STAMPS and cfg.LAZY == mode:
        g.A(f"s_memrealtime s[{90+2*i}:{91+2*i}]")
def lazy_flush(g, cfg, n, idx0, mode=1):
    if not (cfg.STAMPS and cfg.LAZY == mode):
        return
    g.A("s_waitcnt lgkmcnt(0)")
    g.A(f"s_mov_b64 s[100:101], exec")
    g.A("s_mov_b64 exec, 1")
    sv = cfg.STAMP_V
    for i in range(n):
        g.A(f"v_mov_b32 v{sv}, s{90+2*i}")
        g.A(f"v_mov_b32 v{sv+1}, s{91+2*i}")
        g.A(f"v_mov_b32 v{sv+2}, s{S_STB}")
        g.A(f"buffer_store_dwordx2 v[{sv}:{sv+1}], v{sv+2}, s[{SRD_WS}:{SRD_WS+3}], 0 offen offset:{(idx0+i)*8}")
        g.A("s_nop 1")
    g.A(f"s_mov_b64 exec, s[100:101]")

def set_srd(g, srd, ptr, off_sreg=None, nbytes=None, nbytes_sreg=None):
    if off_sreg is None:
        g.A(f"s_mov_b32 s{srd}, s{ptr}")
        g.A(f"s_mov_b32 s{srd+1}, s{ptr+1}")
    else:
        g.A(f"s_add_u32 s{srd}, s{ptr}, s{off_sreg}")
        g.A(f"s_addc_u32 s{srd+1}, s{ptr+1}, 0")
    if nbytes_sreg is not None:
        g.A(f"s_mov_b32 s{srd+2}, s{nbytes_sreg}")
    else:
        g.A(f"s_mov_b32 s{srd+2}, {nbytes}")
    g.A(f"s_mov_b32 s{srd+3}, 0x20000")

def code_prefetch(g, cfg, start_label, end_label, backward, voff, vdst, ninstr=1, per_instr=8192):
    if not cfg.CODEPF:
        return
    here = g.lab("pc")
    g.A(f"s_getpc_b64 s[{S_PF}:{S_PF+1}]")
    g.L(here)
    if backward:
        g.A(f"s_sub_u32 s{S_PF}, s{S_PF}, {here}-{start_label}")
        g.A(f"s_subb_u32 s{S_PF+1}, s{S_PF+1}, 0")
    else:
        g.A(f"s_add_u32 s{S_PF}, s{S_PF}, {start_label}-{here}")
        g.A(f"s_addc_u32 s{S_PF+1}, s{S_PF+1}, 0")
    for k in range(ninstr):
        skip = g.lab("nopf")
        g.A(f"s_mov_b32 s{S_T1}, {end_label}-{start_label}")
        g.A(f"v_cmp_gt_u32 vcc, s{S_T1}, v{voff}")
        g.A("s_nop 0")
        g.A("s_and_b64 exec, exec, vcc")
        g.A(f"s_cbranch_execz {skip}")
        g.A(f"global_load_dword v{vdst}, v{voff}, s[{S_PF}:{S_PF+1}]")
        g.L(skip)
        g.A("s_mov_b64 exec, -1")
        if k + 1 < ninstr:
            g.A(f"v_add_u32 v{voff}, {per_instr}, v{voff}")

def entry_stamp(g, cfg):
    if not cfg.STAMPS:
        return
    g.A(f"s_lshl_b32 s{S_STB}, s{S_WG}, 2")
    g.A(f"s_add_u32 s{S_STB}, s{S_STB}, s{S_WAVE}")
    g.A(f"s_lshl_b32 s{S_STB}, s{S_STB}, 8")
    g.A(f"s_add_u32 s{S_STB}, s{S_STB}, {WS_STAMP}")
    g.A(f"s_mov_b64 s[100:101], exec")
    g.A("s_mov_b64 exec, 1")
    sv = cfg.STAMP_V
    g.A(f"v_mov_b32 v{sv}, s84")
    g.A(f"v_mov_b32 v{sv+1}, s85")
    g.A(f"v_mov_b32 v{sv+2}, s{S_STB}")
    g.A(f"buffer_store_dwordx2 v[{sv}:{sv+1}], v{sv+2}, s[{SRD_WS}:{SRD_WS+3}], 0 offen offset:0")
    g.A(f"s_mov_b64 exec, s[100:101]")

def dbgt(g, cfg, idx, vtmp, cond_wg=None, cond_wave=None):
    if not cfg.DBGT:
        return
    sk = g.lab("dbgsk")
    if cond_wg is not None:
        g.A(f"s_cmp_lg_u32 s{S_WG}, {cond_wg}"); g.A(f"s_cbranch_scc1 {sk}")
    if cond_wave is not None:
        g.A(f"s_cmp_lg_u32 s{S_WAVE}, {cond_wave}"); g.A(f"s_cbranch_scc1 {sk}")
    g.A("s_memrealtime s[98:99]")
    g.A("s_waitcnt lgkmcnt(0)")
    g.A("s_sub_u32 s98, s98, s92")
    g.A("s_mov_b64 s[100:101], exec")
    g.A("s_mov_b64 exec, 1")
    g.A(f"v_mov_b32 v{vtmp}, s98")
    g.A(f"v_mov_b32 v{vtmp+1}, {idx*4}")
    g.A(f"global_store_dword v{vtmp+1}, v{vtmp}, s[{P_DBG}:{P_DBG+1}]")
    g.A("s_mov_b64 exec, s[100:101]")
    g.L(sk)

def entry_prefetch(g, cfg, vtmp):
    if cfg.CODEPF and not cfg.EARLYPF:
        g.A(f"s_lshl_b32 s{S_T0}, s{S_WAVE}, 13")
        g.A(f"v_lshlrev_b32 v{vtmp}, 7, v0")
        g.A(f"v_add_u32 v{vtmp}, s{S_T0}, v{vtmp}")
        code_prefetch(g, cfg, KNAME, 'L_codeend', True, vtmp, 31, ninstr=2 if cfg.CODEPF2 else 1, per_instr=32768)

def make_tag(g, vreg):
    g.A(f"v_readfirstlane_b32 s{S_TAG}, v{vreg}")
    g.A("s_nop 3")
    g.A(f"s_mul_i32 s{S_TAG}, s{S_TAG}, 0x19660d")
    g.A(f"s_add_u32 s{S_TAG}, s{S_TAG}, 0x3c6ef35f")

def check_tags(g, tagregs, tmp, ok_label, set_vcc_only=False):
    g.A(f"v_xor_b32 v{tmp}, s{S_TAG}, v{tagregs[0]}")
    for r in tagregs[1:]:
        g.A(f"v_xor_b32 v{tmp+1}, s{S_TAG}, v{r}")
        g.A(f"v_or_b32 v{tmp}, v{tmp}, v{tmp+1}")
    g.A(f"v_cmp_ne_u32 vcc, 0, v{tmp}")
    g.A("s_nop 1")
    g.A(f"s_cbranch_vccz {ok_label}")

def poll_loop(g, cfg, emit_loads, tagregs, tmp, sleep=1):
    top = g.lab("poll"); ok = g.lab("pollok")
    g.A(f"s_mov_b32 s{S_CNT}, 0")
    g.L(top)
    emit_loads()
    g.A("s_waitcnt vmcnt(0)")
    check_tags(g, tagregs, tmp, ok)
    if sleep:
        g.A(f"s_sleep {sleep}")
    g.A(f"s_add_u32 s{S_CNT}, s{S_CNT}, 1")
    g.A(f"s_cmp_lt_u32 s{S_CNT}, {cfg.POLLMAX}")
    g.A(f"s_cbranch_scc1 {top}")
    g.L(ok)

def rolling_poll(g, cfg, emit_loads, nloads, nregs, tag_offs, sets, res, tmp, gap, copy_offs=None):
    K = len(sets)
    if copy_offs is None:
        copy_offs = [r for r in range(nregs) if r not in tag_offs]
    top = g.lab("rp"); done = g.lab("rpdone")
    oks = [g.lab(f"rpok{i}") for i in range(K)]
    g.A(f"s_mov_b32 s{S_CNT}, 0")
    for i in range(K):
        emit_loads(sets[i])
        if i + 1 < K and gap:
            g.A(f"s_sleep {gap}")
    g.L(top)
    for i in range(K):
        g.A(f"s_waitcnt vmcnt({nloads*(K-1)})")
        check_tags(g, [sets[i] + o for o in tag_offs], tmp, oks[i])
        emit_loads(sets[i])
    g.A(f"s_add_u32 s{S_CNT}, s{S_CNT}, 1")
    g.A(f"s_cmp_lt_u32 s{S_CNT}, {cfg.POLLMAX}")
    g.A(f"s_cbranch_scc1 {top}")
    for i in range(K - 1, -1, -1):
        g.L(oks[i])
        for r in copy_offs:
            g.A(f"v_mov_b32 v{res+r}, v{sets[i]+r}")
        if i > 0:
            g.A(f"s_branch {done}")
    g.L(done)

def masked_poll(g, cfg, items, base, idle_sleep=0, busy_sleep=0, trace=None, init=None):
    n = len(items)
    assert n <= 8
    bs = f"s[{base}:{base+1}]" if base is not None else "-1"
    top = g.lab("mp"); done = g.lab("mpdone")
    for i in range(n):
        if init is not None and init[i] is not None:
            g.A(f"s_mov_b32 s{S_MISS+2*i}, {init[i][0]:#x}")
            g.A(f"s_mov_b32 s{S_MISS+2*i+1}, {init[i][1]:#x}")
        else:
            g.A(f"s_mov_b64 s[{S_MISS+2*i}:{S_MISS+2*i+1}], {bs}")
    g.A(f"s_mov_b32 s{S_CNT}, 0")
    g.L(top)
    if trace is not None and cfg.STAMPS and cfg.LAZY == 3:
        g.A("s_waitcnt lgkmcnt(0)")
        g.A("s_mov_b64 s[90:91], s[92:93]")
        g.A("s_mov_b64 s[92:93], s[94:95]")
        g.A("s_memrealtime s[94:95]")
    for i, (ld, tags) in enumerate(items):
        sk = g.lab("mpsk")
        g.A(f"s_mov_b64 exec, s[{S_MISS+2*i}:{S_MISS+2*i+1}]")
        g.A(f"s_cbranch_execz {sk}")
        ld()
        g.L(sk)
    g.A(f"s_mov_b64 exec, {bs}")
    g.A("s_waitcnt vmcnt(0)")
    VT = cfg.POLL_VT
    for i, (ld, tags) in enumerate(items):
        if len(tags) == 2:
            g.A(f"v_bitop3_b32 v{VT+i}, v{tags[0]}, v{tags[1]}, s{S_TAG} bitop3:0x7e")
        elif len(tags) == 3:
            g.A(f"v_bitop3_b32 v{VT+i}, v{tags[0]}, v{tags[1]}, s{S_TAG} bitop3:0x7e")
            g.A(f"v_xor_b32 v{VT+8}, s{S_TAG}, v{tags[2]}")
            g.A(f"v_or_b32 v{VT+i}, v{VT+i}, v{VT+8}")
    for i, (ld, tags) in enumerate(items):
        if len(tags) == 1:
            g.A(f"v_cmp_ne_u32 s[{S_MISS+2*i}:{S_MISS+2*i+1}], s{S_TAG}, v{tags[0]}")
        else:
            g.A(f"v_cmp_ne_u32 s[{S_MISS+2*i}:{S_MISS+2*i+1}], 0, v{VT+i}")
    if n == 1:
        g.A(f"s_cmp_eq_u64 s[{S_MISS}:{S_MISS+1}], 0")
        g.A(f"s_cbranch_scc1 {done}")
    else:
        g.A(f"s_or_b64 s[{S_SAVE}:{S_SAVE+1}], s[{S_MISS}:{S_MISS+1}], s[{S_MISS+2}:{S_MISS+3}]")
        for i in range(2, n):
            g.A(f"s_or_b64 s[{S_SAVE}:{S_SAVE+1}], s[{S_SAVE}:{S_SAVE+1}], s[{S_MISS+2*i}:{S_MISS+2*i+1}]")
        g.A(f"s_cbranch_scc0 {done}")
    if idle_sleep:
        busy = g.lab("mpbusy")
        g.A(f"s_mov_b64 s[{S_SAVE}:{S_SAVE+1}], s[{S_MISS}:{S_MISS+1}]")
        for i in range(1, n):
            g.A(f"s_and_b64 s[{S_SAVE}:{S_SAVE+1}], s[{S_SAVE}:{S_SAVE+1}], s[{S_MISS+2*i}:{S_MISS+2*i+1}]")
        g.A(f"s_cmp_eq_u32 s{S_SAVE}, -1")
        g.A(f"s_cbranch_scc0 {busy}")
        g.A(f"s_sleep {idle_sleep}")
        g.L(busy)
    if busy_sleep:
        g.A(f"s_sleep {busy_sleep}")
    g.A(f"s_add_u32 s{S_CNT}, s{S_CNT}, 1")
    g.A(f"s_cmp_lt_u32 s{S_CNT}, {cfg.POLLMAX}")
    g.A(f"s_cbranch_scc1 {top}")
    g.L(done)
    g.A(f"s_mov_b64 exec, {bs}")
    if trace is not None and cfg.STAMPS and cfg.LAZY == 3:
        g.A("s_memrealtime s[96:97]")
        g.A("s_waitcnt lgkmcnt(0)")
        g.A(f"s_mov_b32 s98, s{S_CNT}")
        g.A("s_mov_b32 s99, 0")
        lazy_flush(g, cfg, 5, trace, 3)
        g.A(f"s_mov_b64 exec, {bs}")

def bf16_round_pairs(g, regs, tmp):
    for i in range(0, len(regs), 2):
        a, b = regs[i], regs[i + 1]
        g.A(f"v_cvt_pk_bf16_f32 v{tmp}, v{a}, v{b}")
        g.A(f"v_lshlrev_b32 v{a}, 16, v{tmp}")
        g.A(f"v_and_b32 v{b}, 0xffff0000, v{tmp}")

def unpack_pairs(g, src, dst):
    for i, s in enumerate(src):
        g.A(f"v_lshlrev_b32 v{dst[2*i]}, 16, v{s}")
        g.A(f"v_and_b32 v{dst[2*i+1]}, 0xffff0000, v{s}")

def wave_sum(g, regs, sdst, op="add"):
    ins = "v_add_f32_dpp" if op == "add" else "v_max_f32_dpp"
    steps = ["row_shr:1", "row_shr:2", "row_shr:4", "row_shr:8"]
    for st in steps:
        for r in regs:
            if op == "add":
                g.A(f"{ins} v{r}, v{r}, v{r} {st} row_mask:0xf bank_mask:0xf bound_ctrl:0")
            else:
                g.A(f"{ins} v{r}, v{r}, v{r} {st} row_mask:0xf bank_mask:0xf")
        if len(regs) < 3:
            g.A(f"s_nop {2 - len(regs)}")
    for st, rm in (("row_bcast:15", "0xa"), ("row_bcast:31", "0xc")):
        for r in regs:
            g.A(f"{ins} v{r}, v{r}, v{r} {st} row_mask:{rm} bank_mask:0xf")
        g.A(f"s_nop {max(0, 2 - len(regs))}")
    for r, s in zip(regs, sdst):
        g.A(f"v_readlane_b32 s{s}, v{r}, 63")

def emit_streamer(g, cfg):
    NG, P, DMIN, W1 = cfg.NG, cfg.P, cfg.DMIN, cfg.W1
    NT = cfg.NT
    V_LANE = 0
    V_OFFK, V_OFFV = 1, 2
    V_M = 3
    V_EP = 7
    V_BQ = 8
    V_S = 40
    V_MAX, V_L = 62, 63
    V_ACC = 64
    V_O = 72
    V_B = 80
    V_T = 88
    V_QL = 96
    V_QOFF = 112
    V_RING2 = 128
    R = P * 8
    NA = min(R, 64)
    assert V_RING2 + 4 * (R - NA) <= 256
    def slot(n):
        s = n % R
        if s < 64:
            return ar(4 * s, 4)
        return vr(V_RING2 + 4 * (s - 64), 4)

    g.L("L_stream")
    g.C("bh = w/6, s = w%6; wave W = 4s+wave owns 4-key sub-groups [W*256/3, (W+1)*256/3) of its (b,h)")
    g.A(f"s_mul_hi_u32 s{S_T0}, s{S_WG}, 0x2aaaaaab")
    g.A(f"s_mul_i32 s{S_T1}, s{S_T0}, 6")
    g.A(f"s_sub_u32 s{S_T1}, s{S_WG}, s{S_T1}")
    BAL = cfg.BAL and not cfg.WCONT
    if cfg.WCONT:
        g.A(f"s_lshl_b32 s{S_T1}, s{S_T1}, 2")
        g.A(f"s_add_u32 s{S_T1}, s{S_T1}, s{S_WAVE}")
    g.A(f"s_lshl_b32 s{S_T2}, s{S_T1}, {10 if BAL else 8}")
    g.A(f"s_mul_hi_u32 s{S_X0}, s{S_T2}, 0x55555556")
    g.A(f"s_add_u32 s{S_T2}, s{S_T2}, {1024 if BAL else 256}")
    g.A(f"s_mul_hi_u32 s{S_X0+1}, s{S_T2}, 0x55555556")
    g.A(f"s_sub_u32 s{S_X0+1}, s{S_X0+1}, s{S_X0}")
    g.A(f"s_lshl_b32 s{S_X0+2}, s{S_T0}, 22")
    SH = 11 if (cfg.WCONT or BAL) else 13
    g.A(f"s_lshl_b32 s{S_X0+3}, s{S_X0}, {SH}")
    g.A(f"s_add_u32 s{S_X0+2}, s{S_X0+2}, s{S_X0+3}")
    g.A(f"s_lshl_b32 s{S_X0+3}, s{S_X0+1}, {SH}")
    S_BH = S_X0 + 4
    g.A(f"s_mov_b32 s{S_BH}, s{S_T0}")
    V_BIAS = 113
    V_LW, V_MLW, V_ZERO, V_LR, V_GO = 114, 115, 119, 120, 121
    S_DH, S_PREC = 66, 86
    T = V_T
    g.A(f"v_lshrrev_b32 v{T}, 2, v{V_LANE}")
    g.A(f"v_and_b32 v{T}, 3, v{T}")
    g.A(f"v_lshlrev_b32 v{V_OFFK}, 9, v{T}")
    g.A(f"v_lshrrev_b32 v{T+1}, 4, v{V_LANE}")
    g.A(f"v_lshl_add_u32 v{V_OFFK}, v{T+1}, 6, v{V_OFFK}")
    g.A(f"v_and_b32 v{T+2}, 3, v{V_LANE}")
    g.A(f"v_lshl_add_u32 v{V_OFFK}, v{T+2}, 4, v{V_OFFK}")
    if not cfg.WCONT:
        g.A(f"s_lshl_b32 s{S_T1}, s{S_WAVE}, 13")
        g.A(f"v_add_u32 v{V_OFFK}, s{S_T1}, v{V_OFFK}")
    g.A("s_waitcnt lgkmcnt(0)")
    set_srd(g, SRD_A, P_K, off_sreg=S_X0 + 2, nbytes_sreg=S_X0 + 3)

    S_SO = S_OFF
    S_LAST, S_N2 = S_X0 + 9, S_X0 + 10
    def nl(gi):
        return 4 if (BAL and gi % NG == NG - 1) else 8
    def issue_group(gi):
        isv = gi >= NG
        i = gi - NG if isv else gi
        srd = SRD_B if isv else SRD_A
        voff = V_OFFV if isv else V_OFFK
        if BAL and i == NG - 1:
            for a in range(2):
                if a == 1:
                    g.A(f"s_mov_b64 exec, s[{S_N2}:{S_N2+1}]")
                for dh in range(2):
                    n = gi * 8 + a * 2 + dh
                    g.A(f"buffer_load_dwordx4 {slot(n)}, v{voff}, s[{srd}:{srd+3}], s{S_LAST} offen offset:{a*2048 + dh*256}{NT}")
            g.A("s_mov_b64 exec, -1")
            return
        for half in range(2):
            g.A(f"s_mov_b32 s{S_SO+half}, {i*(8192 if cfg.WCONT else 32768) + half*4096}")
        for a in range(4):
            for dh in range(2):
                n = gi * 8 + a * 2 + dh
                imm = (a & 1) * 2048 + dh * 256
                g.A(f"buffer_load_dwordx4 {slot(n)}, v{voff}, s[{srd}:{srd+3}], s{S_SO + (a >> 1)} offen offset:{imm}{NT}")

    issue_group(0)
    issue_group(1)
    set_srd(g, SRD_WS, P_WS, nbytes=WS_SIZE)
    g.A(f"v_mov_b32 v{T+4}, 0")
    g.A(f"buffer_load_dword v{V_EP}, v{T+4}, s[{SRD_WS}:{SRD_WS+3}], 0 offen sc1")
    entry_stamp(g, cfg)
    stamp(g, cfg, 1)
    dbgt(g, cfg, 1, 116, 0, 0)
    entry_prefetch(g, cfg, T + 5)
    set_srd(g, SRD_B, P_V, off_sreg=S_X0 + 2, nbytes_sreg=S_X0 + 3)
    if BAL:
        g.A(f"s_sub_u32 s{S_T0}, s{S_X0+1}, {16*(NG-1)}")
        g.A(f"s_add_u32 s{S_T1}, s{S_T0}, 3")
        g.A(f"s_sub_u32 s{S_T1}, s{S_T1}, s{S_WAVE}")
        g.A(f"s_lshr_b32 s{S_T1}, s{S_T1}, 2")
        g.A(f"s_sub_u32 s{S_T0}, s{S_T0}, 4")
        g.A(f"s_min_u32 s{S_T0}, s{S_T0}, s{S_WAVE}")
        g.A(f"s_add_u32 s{S_T0}, s{S_T0}, s{S_WAVE}")
        g.A(f"s_lshl_b32 s{S_T0}, s{S_T0}, 11")
        g.A(f"s_lshl_b32 s{S_T2}, s{S_WAVE}, 13")
        g.A(f"s_sub_u32 s{S_T0}, s{S_T0}, s{S_T2}")
        g.A(f"s_add_u32 s{S_LAST}, s{S_T0}, {16*(NG-1)*2048}")
        g.A(f"s_cmp_eq_u32 s{S_T1}, 2")
        g.A(f"s_cselect_b64 s[{S_N2}:{S_N2+1}], -1, 0")
        g.A(f"v_lshrrev_b32 v{T}, 2, v{V_LANE}")
        g.A(f"v_and_b32 v{T}, 3, v{T}")
    elif cfg.WCONT:
        g.A(f"s_sub_u32 s{S_T1}, s{S_X0+1}, {4*(NG-1)}")
        g.A(f"v_lshrrev_b32 v{T}, 2, v{V_LANE}")
        g.A(f"v_and_b32 v{T}, 3, v{T}")
    else:
        g.A(f"s_sub_u32 s{S_T1}, s{S_X0+1}, {4*(NG-1)}")
        g.A(f"v_mov_b32 v{T}, s{S_WAVE}")
    g.A(f"v_cmp_gt_u32 vcc, s{S_T1}, v{T}")
    g.A(f"v_mov_b32 v{T+1}, 0xff800000")
    g.A(f"v_lshrrev_b32 v{T+2}, 4, v{V_LANE}")
    g.A(f"v_cndmask_b32 v{V_BIAS}, v{T+1}, 0, vcc")
    g.A(f"v_lshlrev_b32 v{V_OFFV}, 9, v{T+2}")
    g.A(f"v_and_b32 v{T+3}, 15, v{V_LANE}")
    g.A(f"v_lshl_add_u32 v{V_OFFV}, v{T+3}, 4, v{V_OFFV}")
    if not cfg.WCONT:
        g.A(f"s_lshl_b32 s{S_T1}, s{S_WAVE}, 13")
        g.A(f"v_add_u32 v{V_OFFV}, s{S_T1}, v{V_OFFV}")
    g.C("PV masks M_t")
    g.A(f"v_and_b32 v{T}, 7, v{V_LANE}")
    g.A(f"v_lshrrev_b32 v{T+1}, 1, v{T}")
    g.A(f"v_and_b32 v{T+2}, 1, v{V_LANE}")
    g.A(f"v_mov_b32 v{T+3}, 0xffff")
    g.A(f"v_mov_b32 v{T+4}, 0xffff0000")
    g.A(f"v_cmp_eq_u32 vcc, 1, v{T+2}")
    g.A("s_nop 1")
    g.A(f"v_cndmask_b32 v{T+3}, v{T+3}, v{T+4}, vcc")
    for t in range(4):
        g.A(f"v_cmp_eq_u32 vcc, {t}, v{T+1}")
        g.A("s_nop 1")
        g.A(f"v_cndmask_b32 v{V_M+t}, 0, v{T+3}, vcc")
    for a in range(4):
        m = 0x000F000F << (4 * a)
        g.A(f"s_mov_b32 s{S_MSK+2*a}, {m:#x}")
        g.A(f"s_mov_b32 s{S_MSK+2*a+1}, {m:#x}")
    g.A(f"v_lshrrev_b32 v{T}, 4, v{V_LANE}")
    g.A(f"v_and_b32 v{T+1}, 3, v{V_LANE}")
    g.A(f"v_lshl_add_u32 v{T}, v{T}, 2, v{T+1}")
    g.A(f"v_lshlrev_b32 v{V_QOFF}, 5, v{T}")
    S_QB = S_X0 + 6
    g.C("q base: WS_QB + (b*2048 + h*128)*8 ; bh = b*16+h")
    g.A(f"s_lshr_b32 s{S_T0}, s{S_BH}, 4")
    g.A(f"s_and_b32 s{S_T1}, s{S_BH}, 15")
    g.A(f"s_lshl_b32 s{S_T0}, s{S_T0}, 14")
    g.A(f"s_lshl_b32 s{S_T1}, s{S_T1}, 10")
    g.A(f"s_add_u32 s{S_QB}, s{S_T0}, s{S_T1}")
    g.A(f"s_add_u32 s{S_QB}, s{S_QB}, {WS_QB}")
    def q_loads():
        for dh in range(2):
            for k in range(2):
                g.A(f"buffer_load_dwordx4 {vr(V_QL + (dh*2+k)*4, 4)}, v{V_QOFF}, s[{SRD_WS}:{SRD_WS+3}], s{S_QB} offen offset:{dh*512 + k*16} sc1")
    QAT = P - cfg.QBACK
    for gi in range(2, P):
        if gi == QAT:
            q_loads()
        g.A(f"s_waitcnt vmcnt({W1 - 8})")
        if gi == 4:
            make_tag(g, V_EP)
        issue_group(gi)
    stamp(g, cfg, 2)
    tagregs = [V_QL + k * 4 + o for k in range(4) for o in (1, 3)]
    okq = g.lab("qok")
    g.A(f"s_waitcnt vmcnt({(P - QAT) * 8})")
    if not (cfg.X_NOHELP):
        check_tags(g, tagregs, T, okq)
        poll_loop(g, cfg, q_loads, tagregs, T, sleep=2)
    g.L(okq)
    stamp(g, cfg, 3)
    dbgt(g, cfg, 2, 116, 0, 0)
    dbgt(g, cfg, 3, 116, 100, 0)
    for a in range(4):
        for dh in range(2):
            src = [V_QL + (dh * 2) * 4, V_QL + (dh * 2) * 4 + 2, V_QL + (dh * 2 + 1) * 4, V_QL + (dh * 2 + 1) * 4 + 2]
            for r in range(4):
                g.A(f"v_cndmask_b32 v{V_BQ + (a*2+dh)*4 + r}, 0, v{src[r]}, s[{S_MSK+2*a}:{S_MSK+2*a+1}]")
    g.A(f"v_mov_b32 v{V_MAX}, 0xff800000")
    g.A("s_nop 1")

    NTOT = 2 * NG
    def heads_store(off):
        skip = g.lab("nohead")
        g.A(f"s_cmp_lg_u32 s{S_WAVE}, 0")
        g.A(f"s_cbranch_scc1 {skip}")
        g.A(f"s_lshl_b32 s{S_T0}, s{S_WG}, 6")
        g.A(f"s_add_u32 s{S_T0}, s{S_T0}, {WS_HEADS + off}")
        g.A(f"v_mov_b32 v{T}, s{S_TAG}")
        g.A(f"v_mov_b32 v{T+1}, s{S_TAG}")
        g.A(f"v_mov_b32 v{T+2}, 0")
        g.A("s_mov_b64 exec, 1")
        g.A(f"buffer_store_dwordx2 v[{T}:{T+1}], v{T+2}, s[{SRD_WS}:{SRD_WS+3}], s{S_T0} offen sc1")
        g.A("s_mov_b64 exec, -1")
        g.L(skip)
    def I(gi):
        if cfg.SHRINK <= 1:
            return min(NTOT, max(P, gi + DMIN))
        d = max(DMIN, P - (gi + cfg.SHRINK - 1) // cfg.SHRINK)
        return min(NTOT, max(P, gi + d))
    CSC = f2u(0.0625 * LOG2E)
    for gi in range(NTOT):
        n_after = sum(nl(x) for x in range(gi + 1, I(gi)))
        g.A(f"s_waitcnt vmcnt({min(63, n_after)})")
        if gi < NG:
            acc = V_ACC + 4 * (gi & 1)
            for a in range(nl(gi) // 2):
                for dh in range(2):
                    n = gi * 8 + a * 2 + dh
                    c = "0" if (a == 0 and dh == 0) else vr(acc, 4)
                    g.A(f"v_mfma_f32_16x16x32_bf16 {vr(acc,4)}, {slot(n)}, {vr(V_BQ + (a*2+dh)*4, 4)}, {c}")
            nissue = I(gi + 1) - I(gi) if gi + 1 < NTOT else 0
            mark = len(g.o)
            for x in range(nissue):
                if I(gi) + x - gi - 1 > cfg.CAPG:
                    g.A(f"s_waitcnt vmcnt({8*cfg.CAPG - 8})")
                issue_group(I(gi) + x)
            filled = len(g.o) - mark
            if filled < 8:
                g.A(f"s_nop {7 - filled}")
            S = V_S + gi
            g.A(f"v_mov_b32_dpp v{S}, v{acc} quad_perm:[0,0,0,0] row_mask:0xf bank_mask:0xf")
            g.A(f"v_mov_b32_dpp v{T+1}, v{acc+1} quad_perm:[1,1,1,1] row_mask:0xf bank_mask:0xf")
            g.A("s_nop 0")
            g.A(f"v_add_f32_dpp v{S}, v{acc+2}, v{S} quad_perm:[2,2,2,2] row_mask:0xf bank_mask:0xf")
            g.A(f"v_add_f32_dpp v{T+1}, v{acc+3}, v{T+1} quad_perm:[3,3,3,3] row_mask:0xf bank_mask:0xf")
            g.A(f"v_add_f32 v{S}, v{S}, v{T+1}")
            g.A(f"v_cvt_pk_bf16_f32 v{T}, v{S}, v{S}")
            if gi == NG - 1:
                g.A(f"v_lshlrev_b32 v{S}, 16, v{T}")
                g.A(f"v_add_f32 v{S}, v{V_BIAS}, v{S}")
            else:
                g.A(f"v_lshlrev_b32 v{S}, 16, v{T}")
            g.A(f"v_max_f32 v{V_MAX}, v{V_MAX}, v{S}")
            if gi == NG - 1:
                g.C("softmax over this wave's keys")
                g.A("s_nop 1")
                for st in ("row_ror:4", "row_ror:8"):
                    g.A(f"v_max_f32_dpp v{V_MAX}, v{V_MAX}, v{V_MAX} {st} row_mask:0xf bank_mask:0xf")
                    g.A("s_nop 1")
                for st, rm in (("row_bcast:15", "0xa"), ("row_bcast:31", "0xc")):
                    g.A(f"v_max_f32_dpp v{V_MAX}, v{V_MAX}, v{V_MAX} {st} row_mask:{rm} bank_mask:0xf")
                    g.A("s_nop 1")
                g.A(f"v_readlane_b32 s{S_T0}, v{V_MAX}, 63")
                g.A(f"s_mov_b32 s{S_X0+7}, {CSC:#x}")
                g.A("s_nop 1")
                g.A(f"v_mov_b32 v{V_MAX}, s{S_T0}")
                g.A(f"v_mul_f32 v{V_MAX}, s{S_X0+7}, v{V_MAX}")
                g.A(f"v_mov_b32 v{V_L}, 0")
                for i in range(NG):
                    g.A(f"v_fma_f32 v{V_S+i}, v{V_S+i}, s{S_X0+7}, -v{V_MAX}")
                for i in range(NG):
                    g.A(f"v_exp_f32 v{V_S+i}, v{V_S+i}")
                g.A("s_nop 0")
                for i in range(NG):
                    g.A(f"v_add_f32 v{V_L}, v{V_L}, v{V_S+i}")
                    g.A(f"v_cvt_pk_bf16_f32 v{V_S+i}, v{V_S+i}, v{V_S+i}")
                g.A("s_nop 1")
                for st in ("row_ror:4", "row_ror:8"):
                    g.A(f"v_add_f32_dpp v{V_L}, v{V_L}, v{V_L} {st} row_mask:0xf bank_mask:0xf")
                    g.A("s_nop 1")
                for st, rm in (("row_bcast:15", "0xa"), ("row_bcast:31", "0xc")):
                    g.A(f"v_add_f32_dpp v{V_L}, v{V_L}, v{V_L} {st} row_mask:{rm} bank_mask:0xf")
                    g.A("s_nop 1")
                g.A(f"v_readlane_b32 s{S_X0+8}, v{V_L}, 63")
                g.C("addresses for the final combine")
                g.A(f"v_and_b32 v{T}, 8, v{V_LANE}")
                g.A(f"v_cmp_ne_u32 s[{S_DH}:{S_DH+1}], 0, v{T}")
                g.A(f"v_mov_b32 v{V_L}, s{S_X0+8}")
                g.A(f"v_lshlrev_b32 v{T+1}, 4, v{T}")
                g.A(f"v_lshrrev_b32 v{T+2}, 4, v{V_LANE}")
                g.A(f"v_lshl_add_u32 v{T+1}, v{T+2}, 5, v{T+1}")
                g.A(f"v_and_b32 v{T+2}, 7, v{V_LANE}")
                g.A(f"v_add_u32 v{T+1}, v{T+1}, v{T+2}")
                g.A(f"s_lshl_b32 s{S_T0}, s{S_WAVE}, 8")
                g.A(f"v_add_u32 v{T+1}, s{S_T0}, v{T+1}")
                g.A(f"v_lshlrev_b32 v{V_LW}, 2, v{T+1}")
                g.A(f"s_lshl_b32 s{S_T0}, s{S_WAVE}, 3")
                g.A(f"v_mov_b32 v{V_MLW}, s{S_T0}")
                g.A(f"v_mov_b32 v{V_ZERO}, 0")
                g.A(f"s_lshl_b32 s{S_T0}, s{S_WAVE}, 6")
                g.A(f"v_add_u32 v{T}, s{S_T0}, v{V_LANE}")
                g.A(f"v_lshlrev_b32 v{V_LR}, 2, v{T}")
                g.A(f"v_lshlrev_b32 v{V_GO}, 4, v{T}")
                g.A(f"s_lshl_b32 s{S_PREC}, s{S_WG}, 12")
                g.A(f"s_add_u32 s{S_PREC}, s{S_PREC}, {WS_PART}")
                g.A(f"v_mov_b32 v{V_QL+13}, s{S_TAG}")
                g.A(f"v_mov_b32 v{V_QL+15}, s{S_TAG}")
                stamp(g, cfg, 4)
        else:
            i = gi - NG
            Pi = V_S + i
            def build(a):
                bb = V_B + 4 * (a & 1)
                for t in range(4):
                    g.A(f"v_and_b32_dpp v{bb+t}, v{Pi}, v{V_M+t} row_newbcast:{4*a} row_mask:0xf bank_mask:0xf")
            build(0)
            na = nl(gi) // 2
            for a in range(na):
                if a < na - 1:
                    build(a + 1)
                else:
                    g.A("s_nop 1")
                bb = V_B + 4 * (a & 1)
                for dh in range(2):
                    n = gi * 8 + a * 2 + dh
                    acc = V_O + 4 * dh
                    c = "0" if (i == 0 and a == 0) else vr(acc, 4)
                    g.A(f"v_mfma_f32_16x16x32_bf16 {vr(acc,4)}, {slot(n)}, {vr(bb,4)}, {c}")
            nissue = I(gi + 1) - I(gi) if gi + 1 < NTOT else 0
            for x in range(nissue):
                if I(gi) + x - gi - 1 > cfg.CAPG:
                    g.A(f"s_waitcnt vmcnt({8*cfg.CAPG - 8})")
                issue_group(I(gi) + x)
        if gi == cfg.HEADS_STEP:
            heads_store(0)
        if cfg.LATEF and gi == cfg.HEADS2:
            heads_store(8)
        if cfg.LATEWO and gi == cfg.HEADS3:
            heads_store(16)
    if cfg.LATEF and cfg.HEADS2 >= NTOT:
        heads_store(8)
    stamp(g, cfg, 5)
    dbgt(g, cfg, 4, 116, 0, 0)
    dbgt(g, cfg, 5, 116, 100, 0)
    dbgt(g, cfg, 6, 116, 191, 0)
    g.C("workgroup combine")
    g.A("s_nop 7")
    for r in range(4):
        g.A(f"v_cndmask_b32 v{T+2+r}, v{V_O+r}, v{V_O+4+r}, s[{S_DH}:{S_DH+1}]")
    for r in range(4):
        g.A(f"ds_write_b32 v{V_LW}, v{T+2+r} offset:{L_OW + r*32}")
    g.A("s_mov_b64 exec, 1")
    g.A(f"ds_write_b64 v{V_MLW}, {vr(V_MAX,2)} offset:{L_ML}")
    g.A("s_mov_b64 exec, -1")
    g.A("s_waitcnt lgkmcnt(0)")
    g.A("s_barrier")
    Q = V_QL
    g.A(f"ds_read_b128 {vr(Q,4)}, v{V_ZERO} offset:{L_ML}")
    g.A(f"ds_read_b128 {vr(Q+4,4)}, v{V_ZERO} offset:{L_ML+16}")
    for w in range(4):
        g.A(f"ds_read_b32 v{Q+8+w}, v{V_LR} offset:{L_OW + w*1024}")
    g.A("s_waitcnt lgkmcnt(4)")
    g.A(f"v_max_f32 v{T+3}, v{Q}, v{Q+2}")
    g.A(f"v_max3_f32 v{T+3}, v{Q+4}, v{Q+6}, v{T+3}")
    for w in range(4):
        g.A(f"v_sub_f32 v{Q+2*w}, v{Q+2*w}, v{T+3}")
    for w in range(4):
        g.A(f"v_exp_f32 v{Q+2*w}, v{Q+2*w}")
    g.A("s_nop 0")
    g.A(f"v_mul_f32 v{T+4}, v{Q}, v{Q+1}")
    for w in range(1, 4):
        g.A(f"v_fmac_f32 v{T+4}, v{Q+2*w}, v{Q+2*w+1}")
    g.A(f"v_rcp_f32 v{T+5}, v{T+4}")
    g.A(f"v_log_f32 v{T+4}, v{T+4}")
    g.A("s_waitcnt lgkmcnt(0)")
    g.A(f"v_mul_f32 v{Q+12}, v{Q}, v{Q+8}")
    for w in range(1, 4):
        g.A(f"v_fmac_f32 v{Q+12}, v{Q+2*w}, v{Q+8+w}")
    g.A(f"v_add_f32 v{Q+14}, v{T+3}, v{T+4}")
    g.A(f"v_mul_f32 v{Q+12}, v{Q+12}, v{T+5}")
    g.A(f"buffer_store_dwordx4 {vr(Q+12,4)}, v{V_GO}, s[{SRD_WS}:{SRD_WS+3}], s{S_PREC} offen sc1")
    stamp(g, cfg, 6)
    g.A("s_endpgm")

H_LANE = 0
H_T = 2
H_LN = 16
H_SC = 24
H_ACC = 32
H_FR = 64
H_FT = 128
H_ST = 192

def transpose_unit(g, src, dst, dst_acc=False, tmp=None):
    for c in range(4):
        for o in range(2):
            m = 2 * c + o
            for t in range(4):
                sel = S_SEL0 if o == 0 else S_SEL1
                s_lo = src + (2 * t) * 4 + c
                s_hi = src + (2 * t + 1) * 4 + c
                if dst_acc:
                    g.A(f"v_perm_b32 v{tmp + (t & 1)}, v{s_hi}, v{s_lo}, s{sel}")
                    g.A(f"v_accvgpr_write_b32 a{dst + m*4 + t}, v{tmp + (t & 1)}")
                else:
                    g.A(f"v_perm_b32 v{dst + m*4 + t}, v{s_hi}, v{s_lo}, s{sel}")

def unit_loads(g, dst, srd, voff, soffs, flags):
    for e in range(8):
        g.A(f"s_mov_b32 s{S_T0}, {soffs[e]}")
        g.A(f"buffer_load_dwordx4 {vr(dst + 4*e, 4)}, v{voff}, s[{srd}:{srd+3}], s{S_T0} offen{flags}")

def mfma8(g, afrag, frag, first, frag_acc=False):
    for m in range(8):
        acc = H_ACC + 4 * m
        c = "0" if first else vr(acc, 4)
        b = ar(frag + 4 * m, 4) if frag_acc else vr(frag + 4 * m, 4)
        g.A(f"v_mfma_f32_16x16x32_bf16 {vr(acc,4)}, {vr(afrag,4)}, {b}, {c}")

def red_write(g, vaddr):
    for m in range(8):
        g.A(f"ds_write_b32 v{vaddr}, v{H_ACC + 4*m} offset:{m*256}")

def red_read(g, va, vb, dst):
    for w in range(4):
        g.A(f"ds_read2st64_b32 {vr(dst + 2*w, 2)}, v{va} offset0:{w*8} offset1:{w*8+1}")
        g.A(f"ds_read2st64_b32 {vr(dst + 8 + 2*w, 2)}, v{vb} offset0:{w*8} offset1:{w*8+1}")
    g.A("s_waitcnt lgkmcnt(0)")
    for base in (dst, dst + 8):
        for o in range(2):
            g.A(f"v_add_f32 v{base+o}, v{base+o}, v{base+2+o}")
            g.A(f"v_add_f32 v{base+4+o}, v{base+4+o}, v{base+6+o}")
        for o in range(2):
            g.A(f"v_add_f32 v{base+o}, v{base+o}, v{base+4+o}")

def pk(g, op, dst, a, b, bcast=False, neg=False, c=None):
    mods = ""
    if c is not None:
        if bcast: mods += " op_sel_hi:[1,0,1]"
        g.A(f"v_pk_{op}_f32 {vr(dst,2)}, {vr(a,2)}, {vr(b,2)}, {vr(c,2)}{mods}")
        return
    if bcast: mods += " op_sel_hi:[1,0]"
    if neg: mods += " neg_lo:[0,1] neg_hi:[0,1]"
    g.A(f"v_pk_{op}_f32 {vr(dst,2)}, {vr(a,2)}, {vr(b,2)}{mods}")

def ln_normalize(g, x, out, tmp):
    sA, sB, sC = S_X0 + 10, S_X0 + 11, S_T2
    t0, t2, t4, t6 = tmp, tmp + 2, tmp + 4, tmp + 6
    g.A(f"v_readfirstlane_b32 s{sC}, v{x}")
    g.A(f"v_cmp_gt_u32 vcc, 56, v{H_LANE}")
    g.A("s_nop 0")
    g.A(f"v_mov_b32 v{t6}, s{sC}")
    for k in range(4):
        pk(g, "add", out + 2 * k, x + 2 * k, t6, bcast=True, neg=True)
    pk(g, "add", t0, out, out + 2)
    pk(g, "mul", t2, out, out)
    pk(g, "add", t4, out + 4, out + 6)
    pk(g, "fma", t2, out + 2, out + 2, c=t2)
    pk(g, "add", t0, t0, t4)
    pk(g, "fma", t2, out + 4, out + 4, c=t2)
    g.A(f"v_add_f32 v{t0}, v{t0}, v{t0+1}")
    pk(g, "fma", t2, out + 6, out + 6, c=t2)
    g.A(f"v_cndmask_b32 v{t0}, 0, v{t0}, vcc")
    g.A(f"v_add_f32 v{t2}, v{t2}, v{t2+1}")
    g.A(f"v_cndmask_b32 v{t2}, 0, v{t2}, vcc")
    g.A("s_nop 0")
    wave_sum(g, [t0, t2], [sA, sB])
    g.A(f"v_mov_b32 v{t4}, {f2u(1.0/448.0):#x}")
    g.A("s_nop 0")
    g.A(f"v_mul_f32 v{t0}, s{sA}, v{t4}")
    g.A(f"v_mul_f32 v{t2}, s{sB}, v{t4}")
    g.A(f"v_fma_f32 v{t2}, -v{t0}, v{t0}, v{t2}")
    g.A(f"v_add_f32 v{t0}, v{t0}, v{t6}")
    g.A(f"v_max_f32 v{t2}, 0, v{t2}")
    g.A(f"v_cvt_pk_bf16_f32 v{t4}, v{t0}, v{t2}")
    g.A(f"v_and_b32 v{t2}, 0xffff0000, v{t4}")
    g.A(f"v_lshlrev_b32 v{t0}, 16, v{t4}")
    g.A(f"v_add_f32 v{t2}, {f2u(1e-5):#x}, v{t2}")
    for k in range(2):
        pk(g, "add", out + 2 * k, x + 2 * k, t0, bcast=True, neg=True)
    g.A(f"v_cvt_pk_bf16_f32 v{t2}, v{t2}, v{t2}")
    for k in range(2, 4):
        pk(g, "add", out + 2 * k, x + 2 * k, t0, bcast=True, neg=True)
    g.A(f"v_lshlrev_b32 v{t2}, 16, v{t2}")
    g.A(f"v_sqrt_f32 v{t2}, v{t2}")
    bf16_round_pairs(g, [out + e for e in range(4)], t4)
    g.A(f"v_cvt_pk_bf16_f32 v{t2}, v{t2}, v{t2}")
    g.A(f"v_lshlrev_b32 v{t2}, 16, v{t2}")
    g.A(f"v_rcp_f32 v{t2}, v{t2}")
    bf16_round_pairs(g, [out + e for e in range(4, 8)], t4)
    for k in range(4):
        pk(g, "mul", out + 2 * k, out + 2 * k, t2, bcast=True)
    bf16_round_pairs(g, [out + e for e in range(8)], t4)

def exec56(g):
    g.A("s_mov_b32 exec_lo, -1")
    g.A("s_mov_b32 exec_hi, 0x00ffffff")
def exec_all(g):
    g.A("s_mov_b64 exec, -1")

def gather_shift_scale(g, cfg, sbase, voff, ld, shift, scale1, tmp):
    def loads():
        for k, imm in enumerate((0, 16, 1792, 1808)):
            g.A(f"buffer_load_dwordx4 {vr(ld + 4*k, 4)}, v{voff}, s[{SRD_WS}:{SRD_WS+3}], s{sbase} offen offset:{imm} sc1")
    tags = [ld + 4 * k + o for k in range(4) for o in (1, 3)]
    poll_loop(g, cfg, loads, tags, tmp, sleep=1)
    unpack_pairs(g, [ld, ld + 2, ld + 4, ld + 6], [shift + e for e in range(8)])
    unpack_pairs(g, [ld + 8, ld + 10, ld + 12, ld + 14], [scale1 + e for e in range(8)])
    for e in range(8):
        g.A(f"v_add_f32 v{scale1+e}, 1.0, v{scale1+e}")
    bf16_round_pairs(g, [scale1 + e for e in range(8)], tmp)

def modulate_write(g, ln, shift, scale1, vaddr, ldsoff, tmp):
    for k in range(4):
        pk(g, "mul", ln + 2 * k, ln + 2 * k, scale1 + 2 * k)
    bf16_round_pairs(g, [ln + e for e in range(8)], tmp)
    for k in range(4):
        pk(g, "add", ln + 2 * k, ln + 2 * k, shift + 2 * k)
    for k in range(4):
        g.A(f"v_cvt_pk_bf16_f32 v{tmp+k}, v{ln+2*k}, v{ln+2*k+1}")
    g.A(f"ds_write_b128 v{vaddr}, {vr(tmp,4)} offset:{ldsoff}")

def emit_helper(g, cfg):
    NT = cfg.NTW
    T = H_T
    WSR = f"s[{SRD_WS}:{SRD_WS+3}]"
    g.L("L_helper")
    if cfg.X_NOHELP:
        g.A("s_endpgm")
    lazy(g, cfg, 0)
    g.A(f"s_sub_u32 s{S_ROLE}, s{S_WG}, {cfg.NSTREAM}")
    g.A(f"s_mov_b32 s{S_SEL0}, 0x05040100")
    g.A(f"s_mov_b32 s{S_SEL1}, 0x07060302")
    V_L16 = 16
    V_WOFF64 = 17
    V_WOFFQ = 18
    V_AF64 = 19
    V_RW = 20
    V_RA, V_RB = 21, 22
    V_ACTW = 23
    V_G32 = 24
    V_X = 112
    HLN, HSH, HSC, HLD = 160, 168, 176, 144
    g.A(f"v_lshlrev_b32 v{V_L16}, 4, v{H_LANE}")
    g.A(f"v_lshlrev_b32 v{V_G32}, 5, v{H_LANE}")
    g.A(f"s_and_b32 s{S_X0}, s{S_WAVE}, 1")
    S_B = S_X0
    g.A(f"s_mul_i32 s{S_T1}, s{S_B}, 896")
    set_srd(g, SRD_C, P_C, nbytes=1792)
    set_srd(g, SRD_A, P_X, nbytes=1792)
    exec56(g)
    g.A(f"buffer_load_dwordx4 {vr(HLD,4)}, v{V_L16}, s[{SRD_C}:{SRD_C+3}], s{S_T1} offen")
    g.A(f"buffer_load_dwordx4 {vr(HLD+4,4)}, v{V_L16}, s[{SRD_A}:{SRD_A+3}], s{S_T1} offen")
    exec_all(g)
    lazy(g, cfg, 1)
    g.A(f"v_lshrrev_b32 v{T}, 3, v{H_LANE}")
    g.A(f"v_and_b32 v{T}, 1, v{T}")
    g.A(f"v_lshrrev_b32 v{T+1}, 4, v{H_LANE}")
    g.A(f"v_lshlrev_b32 v{T+2}, 5, v{T}")
    g.A(f"v_lshl_add_u32 v{T+2}, v{T+1}, 3, v{T+2}")
    g.A(f"s_lshl_b32 s{S_T0}, s{S_WAVE}, 6")
    g.A(f"v_add_u32 v{T+2}, s{S_T0}, v{T+2}")
    g.A(f"v_and_b32 v{T+3}, 7, v{H_LANE}")
    g.A(f"v_lshlrev_b32 v{T+3}, 4, v{T+3}")
    g.A(f"s_mov_b32 s{S_T0}, 5376")
    g.A(f"v_mul_lo_u32 v{V_WOFF64}, v{T+2}, s{S_T0}")
    g.A(f"v_add_u32 v{V_WOFF64}, v{V_WOFF64}, v{T+3}")
    g.A(f"v_lshl_add_u32 v{V_WOFFQ}, v{T+2}, 13, v{T+3}")
    S_MB = S_X0 + 12
    def m_loads():
        g.A(f"s_lshl_b32 s{S_T2}, s{S_MB}, 7")
        g.A(f"s_sub_u32 s{S_X0+1}, {448*5376}, s{S_T2}")
        set_srd(g, SRD_A, P_WMOD, off_sreg=S_T2, nbytes_sreg=S_X0 + 1)
        for it in range(2):
            unit_loads(g, H_FR + 32 * it, SRD_A, V_WOFF64, [e * 5376 + it * 256 * 5376 for e in range(8)], NT)
    def q_wloads():
        g.A(f"s_lshl_b32 s{S_T2}, s{S_ROLE}, 7")
        g.A(f"s_sub_u32 s{S_X0+1}, {448*8192}, s{S_T2}")
        set_srd(g, SRD_B, P_WQ, off_sreg=S_T2, nbytes_sreg=S_X0 + 1)
        for it in range(2):
            unit_loads(g, H_ST + 32 * it, SRD_B, V_WOFFQ, [e * 8192 + it * 256 * 8192 for e in range(8)], NT)
    nom = g.lab("nomload"); nom_b = g.lab("nomload_b")
    g.A(f"s_sub_u32 s{S_MB}, s{S_ROLE}, 50")
    g.A(f"s_cmp_lt_u32 s{S_ROLE}, 50")
    g.A(f"s_cbranch_scc1 {nom}")
    m_loads()
    g.A(f"s_branch {nom_b}")
    g.L(nom)
    q_wloads()
    g.L(nom_b)
    lazy(g, cfg, 3)
    if cfg.LAZY != 1: stamp(g, cfg, 1)
    entry_prefetch(g, cfg, T + 6)
    g.A(f"v_lshrrev_b32 v{T+3}, 2, v{H_LANE}")
    g.A(f"v_and_b32 v{T+3}, 1, v{T+3}")
    g.A(f"v_mul_u32_u24 v{V_AF64}, {ROWB}, v{T+3}")
    g.A(f"v_lshl_add_u32 v{V_AF64}, v{T}, 6, v{V_AF64}")
    g.A(f"v_lshl_add_u32 v{V_AF64}, v{T+1}, 4, v{V_AF64}")
    g.A(f"s_lshl_b32 s{S_T0}, s{S_WAVE}, 7")
    g.A(f"v_add_u32 v{V_AF64}, s{S_T0}, v{V_AF64}")
    g.A(f"s_lshl_b32 s{S_T0}, s{S_WAVE}, 11")
    g.A(f"s_add_u32 s{S_T0}, s{S_T0}, {L_RED}")
    g.A(f"v_lshlrev_b32 v{V_RW}, 2, v{H_LANE}")
    g.A(f"v_add_u32 v{V_RW}, s{S_T0}, v{V_RW}")
    g.A(f"v_and_b32 v{T+4}, 3, v{H_LANE}")
    g.A(f"v_lshlrev_b32 v{V_RA}, 9, v{T+4}")
    g.A(f"v_lshrrev_b32 v{T+4}, 5, v{H_LANE}")
    g.A(f"v_lshl_add_u32 v{V_RA}, v{T+4}, 6, v{V_RA}")
    g.A(f"v_lshrrev_b32 v{T+4}, 2, v{H_LANE}")
    g.A(f"v_and_b32 v{T+4}, 7, v{T+4}")
    g.A(f"v_lshl_add_u32 v{V_RA}, v{T+4}, 2, v{V_RA}")
    g.A(f"v_add_u32 v{V_RA}, {L_RED}, v{V_RA}")
    g.A(f"v_add_u32 v{V_RB}, 160, v{V_RA}")
    g.A(f"s_mul_i32 s{S_T0}, s{S_B}, {ROWB}")
    g.A(f"v_add_u32 v{V_ACTW}, s{S_T0}, v{V_L16}")
    n1 = S_X0 + 2
    skip = g.lab("noln1")
    g.A("s_waitcnt vmcnt(16)")
    make_tag(g, 1)
    g.A(f"s_cmp_ge_u32 s{S_WAVE}, 2")
    g.A(f"s_cbranch_scc1 {skip}")
    g.A(f"v_cmp_gt_u32 vcc, 56, v{H_LANE}")
    g.A("s_nop 1")
    for k in range(8):
        g.A(f"v_cndmask_b32 v{HLD+k}, 0, v{HLD+k}, vcc")
    unpack_pairs(g, [HLD, HLD + 1, HLD + 2, HLD + 3], [HSH + e for e in range(8)])
    g.A(f"s_mov_b32 s{S_T0}, {f2u(-LOG2E):#x}")
    for e in range(8):
        g.A(f"v_mul_f32 v{HSC+e}, s{S_T0}, v{HSH+e}")
    for e in range(8):
        g.A(f"v_exp_f32 v{HSC+e}, v{HSC+e}")
    g.A("s_nop 0")
    for e in range(8):
        g.A(f"v_add_f32 v{HSC+e}, 1.0, v{HSC+e}")
    for e in range(8):
        g.A(f"v_rcp_f32 v{HSC+e}, v{HSC+e}")
    g.A("s_nop 0")
    for e in range(8):
        g.A(f"v_mul_f32 v{HSC+e}, v{HSC+e}, v{HSH+e}")
    for k in range(4):
        g.A(f"v_cvt_pk_bf16_f32 v{T+k}, v{HSC+2*k}, v{HSC+2*k+1}")
    exec56(g)
    g.A(f"ds_write_b128 v{V_ACTW}, {vr(T,4)} offset:{L_ACTS}")
    exec_all(g)
    unpack_pairs(g, [HLD + 4, HLD + 5, HLD + 6, HLD + 7], [HSH + e for e in range(8)])
    ln_normalize(g, HSH, HLN, T)
    g.L(skip)
    g.A("s_waitcnt lgkmcnt(0)")
    g.A("s_barrier")
    lazy(g, cfg, 2)
    AF = T + 4
    RD = H_FT
    def m_stage():
        g.A(f"ds_read_b128 {vr(AF,4)}, v{V_AF64} offset:{L_ACTS}")
        g.A(f"ds_read_b128 {vr(AF+4,4)}, v{V_AF64} offset:{L_ACTS+512}")
        g.A("s_waitcnt vmcnt(8)")
        transpose_unit(g, H_FR, H_FT)
        g.A("s_waitcnt lgkmcnt(0)")
        g.A("s_nop 0")
        mfma8(g, AF, H_FT, True)
        sk = g.lab("m2")
        g.A(f"s_cmp_eq_u32 s{S_WAVE}, 3")
        g.A(f"s_cbranch_scc1 {sk}")
        g.A("s_waitcnt vmcnt(0)")
        transpose_unit(g, H_FR + 32, H_FT)
        g.A("s_nop 1")
        mfma8(g, AF + 4, H_FT, False)
        g.L(sk)
        g.A("s_nop 7")
        red_write(g, V_RW)
        g.A("s_waitcnt lgkmcnt(0)")
        g.A("s_barrier")
        sk = g.lab("m3")
        g.A(f"s_cmp_lg_u32 s{S_WAVE}, 0")
        g.A(f"s_cbranch_scc1 {sk}")
        red_read(g, V_RA, V_RB, RD)
        for o in range(2):
            g.A(f"v_add_f32 v{RD+o}, v{RD+o}, v{RD+8+o}")
        g.A(f"v_cvt_pk_bf16_f32 v{RD+2}, v{RD}, v{RD+1}")
        g.A(f"v_mov_b32 v{RD+3}, s{S_TAG}")
        g.A(f"v_lshrrev_b32 v{T}, 5, v{H_LANE}")
        g.A(f"v_mul_u32_u24 v{T}, {1344*8}, v{T}")
        g.A(f"v_and_b32 v{T+1}, 31, v{H_LANE}")
        g.A(f"v_lshl_add_u32 v{T}, v{T+1}, 3, v{T}")
        g.A(f"s_lshl_b32 s{S_T0}, s{S_MB}, 8")
        g.A(f"s_add_u32 s{S_T0}, s{S_T0}, {WS_MOD}")
        g.A(f"buffer_store_dwordx2 {vr(RD+2,2)}, v{T}, {WSR}, s{S_T0} offen sc1")
        g.L(sk)
    nom2 = g.lab("nom")
    g.A(f"s_cmp_lt_u32 s{S_ROLE}, 50")
    g.A(f"s_cbranch_scc1 {nom2}")
    m_stage()
    lazy(g, cfg, 4)
    q_wloads()
    g.L(nom2)
    stamp(g, cfg, 2)
    lazy_flush(g, cfg, 5, 16)
    g.A("s_waitcnt vmcnt(8)")
    transpose_unit(g, H_ST, H_FR)
    g.A("s_waitcnt vmcnt(0)")
    transpose_unit(g, H_ST + 32, H_FR + 32)
    skip = g.lab("noh")
    g.A(f"s_cmp_ge_u32 s{S_WAVE}, 2")
    g.A(f"s_cbranch_scc1 {skip}")
    g.A(f"s_mul_i32 s{S_X0+3}, s{S_B}, {1344*8}")
    g.A(f"s_add_u32 s{S_X0+3}, s{S_X0+3}, {WS_MOD}")
    exec56(g)
    gather_shift_scale(g, cfg, S_X0 + 3, V_G32, HLD, HSH, HSC, T)
    modulate_write(g, HLN, HSH, HSC, V_ACTW, L_ACTH, T)
    exec_all(g)
    g.L(skip)
    stamp(g, cfg, 3)
    g.A("s_waitcnt lgkmcnt(0)")
    g.A("s_barrier")
    g.A(f"ds_read_b128 {vr(AF,4)}, v{V_AF64} offset:{L_ACTH}")
    g.A(f"ds_read_b128 {vr(AF+4,4)}, v{V_AF64} offset:{L_ACTH+512}")
    g.A("s_waitcnt lgkmcnt(1)")
    mfma8(g, AF, H_FR, True)
    sk = g.lab("q2")
    g.A(f"s_cmp_eq_u32 s{S_WAVE}, 3")
    g.A(f"s_cbranch_scc1 {sk}")
    g.A("s_waitcnt lgkmcnt(0)")
    mfma8(g, AF + 4, H_FR + 32, False)
    g.L(sk)
    g.A("s_waitcnt lgkmcnt(0)")
    g.A("s_nop 7")
    red_write(g, V_RW)
    g.A("s_waitcnt lgkmcnt(0)")
    g.A("s_barrier")
    sk = g.lab("q3")
    g.A(f"s_cmp_lg_u32 s{S_WAVE}, 0")
    g.A(f"s_cbranch_scc1 {sk}")
    red_read(g, V_RA, V_RB, RD)
    for o in range(2):
        g.A(f"v_add_f32 v{RD+o}, v{RD+o}, v{RD+8+o}")
    g.A(f"v_cvt_pk_bf16_f32 v{RD+2}, v{RD}, v{RD+1}")
    g.A(f"v_mov_b32 v{RD+3}, s{S_TAG}")
    g.A(f"v_lshrrev_b32 v{T}, 5, v{H_LANE}")
    g.A(f"v_lshlrev_b32 v{T}, 14, v{T}")
    g.A(f"v_and_b32 v{T+1}, 31, v{H_LANE}")
    g.A(f"v_lshl_add_u32 v{T}, v{T+1}, 3, v{T}")
    g.A(f"s_lshl_b32 s{S_T0}, s{S_ROLE}, 8")
    g.A(f"s_add_u32 s{S_T0}, s{S_T0}, {WS_QB}")
    g.A(f"buffer_store_dwordx2 {vr(RD+2,2)}, v{T}, {WSR}, s{S_T0} offen sc1")
    g.L(sk)
    stamp(g, cfg, 4)
    dbgt(g, cfg, 9, 28, 192, 0)
    dbgt(g, cfg, 10, 28, 250, 0)
    if cfg.X_NOEPIW:
        g.A("s_endpgm")
    g.A(f"s_cmp_ge_u32 s{S_ROLE}, 32")
    g.A("s_cbranch_scc1 L_rf")

    nomr = g.lab("nomrest")
    g.A(f"s_cmp_lt_u32 s{S_ROLE}, 4")
    g.A(f"s_cbranch_scc1 {nomr}")
    g.A(f"s_add_u32 s{S_MB}, s{S_ROLE}, 10")
    m_loads()
    g.A("s_barrier")
    m_stage()
    g.L(nomr)
    def first_of_8(sidx, off):
        g.A(f"s_mul_i32 s{S_T0}, s{sidx}, 6")
        g.A(f"v_and_b32 v{T+2}, 7, v{H_LANE}")
        g.A(f"v_mul_u32_u24 v{T+2}, 23, v{T+2}")
        g.A(f"v_add_u32 v{T+2}, s{S_T0}, v{T+2}")
        g.A(f"v_subrev_u32 v{T+3}, 192, v{T+2}")
        g.A(f"v_cmp_gt_u32 vcc, 192, v{T+2}")
        g.A("s_nop 1")
        g.A(f"v_cndmask_b32 v{T+2}, v{T+3}, v{T+2}, vcc")
        g.A(f"v_lshlrev_b32 v{T+2}, 6, v{T+2}")
        top = g.lab("lw"); ok = g.lab("lwok")
        g.A(f"s_mov_b32 s{S_CNT}, 0")
        g.A(f"s_mov_b32 s{S_T0}, {WS_HEADS + off}")
        g.L(top)
        g.A(f"buffer_load_dwordx2 {vr(T+4,2)}, v{T+2}, {WSR}, s{S_T0} offen sc1")
        g.A("s_waitcnt vmcnt(0)")
        g.A(f"v_cmp_eq_u32 vcc, s{S_TAG}, v{T+4}")
        g.A("s_nop 1")
        g.A(f"s_cbranch_vccnz {ok}")
        g.A(f"s_sleep {cfg.HSLEEP}")
        g.A(f"s_add_u32 s{S_CNT}, s{S_CNT}, 1")
        g.A(f"s_cmp_lt_u32 s{S_CNT}, {cfg.POLLMAX}")
        g.A(f"s_cbranch_scc1 {top}")
        g.L(ok)
    V_WO = 17
    g.A(f"s_mul_i32 s{S_T2}, s{S_ROLE}, {128*896}")
    g.A(f"s_sub_u32 s{S_X0+1}, {4096*896}, s{S_T2}")
    set_srd(g, SRD_A, P_WO, off_sreg=S_T2, nbytes_sreg=S_X0 + 1)
    def woff128(dst):
        g.A(f"v_lshrrev_b32 v{T}, 4, v{H_LANE}")
        g.A(f"v_mul_u32_u24 v{dst}, {8*896}, v{T}")
        g.A(f"v_and_b32 v{T}, 15, v{H_LANE}")
        g.A(f"v_lshl_add_u32 v{dst}, v{T}, 4, v{dst}")
        g.A(f"s_lshl_b32 s{S_T0}, s{S_WAVE}, 8")
        g.A(f"v_add_u32 v{dst}, s{S_T0}, v{dst}")
    def tile3_mask():
        g.A(f"s_cmp_eq_u32 s{S_WAVE}, 3")
        g.A(f"s_cselect_b32 exec_lo, 0x00ff00ff, -1")
        g.A(f"s_cselect_b32 exec_hi, 0x00ff00ff, -1")
    woff128(V_WO)
    def wo_unit(kb, st):
        tile3_mask()
        unit_loads(g, H_ST + 32 * st, SRD_A, V_WO, [(kb * 32 + e) * 896 for e in range(8)], NT)
        exec_all(g)
    def wo_load():
        wo_unit(0, 0); wo_unit(1, 1)
        g.A("s_waitcnt vmcnt(8)"); transpose_unit(g, H_ST, H_FR)
        wo_unit(2, 0)
        g.A("s_waitcnt vmcnt(8)"); transpose_unit(g, H_ST + 32, H_FR + 32)
        wo_unit(3, 1)
        g.A("s_waitcnt vmcnt(8)"); transpose_unit(g, H_ST, H_FR + 64)
        g.A("s_waitcnt vmcnt(0)"); transpose_unit(g, H_ST + 32, H_FR + 96)
    if not cfg.X_SKIPWO and not cfg.LATEWO:
        wo_load()
    V_RO, V_CX, V_XR, V_GA, V_GB, V_X2 = 25, 26, 232, 234, 236, 238
    S_CB, S_CC = S_X0 + 6, S_X0 + 7
    S_K = S_ROLE
    skipr = g.lab("nor0")
    g.A(f"s_and_b32 s{S_CB}, s{S_K}, 1")
    g.A(f"s_lshr_b32 s{S_T0}, s{S_K}, 3")
    g.A(f"s_lshl_b32 s{S_T0}, s{S_T0}, 7")
    g.A(f"s_lshr_b32 s{S_T1}, s{S_K}, 1")
    g.A(f"s_and_b32 s{S_T1}, s{S_T1}, 3")
    g.A(f"s_lshl_b32 s{S_T1}, s{S_T1}, 1")
    g.A(f"s_add_u32 s{S_CC}, s{S_T0}, s{S_T1}")
    g.A(f"v_and_b32 v{T}, 15, v{H_LANE}")
    g.A(f"v_lshlrev_b32 v{V_CX}, 3, v{T}")
    g.A(f"v_add_u32 v{V_CX}, s{S_CC}, v{V_CX}")
    g.A(f"v_lshrrev_b32 v{T+1}, 4, v{H_LANE}")
    g.A(f"v_lshlrev_b32 v{V_RO}, 13, v{T+1}")
    g.A(f"v_lshl_add_u32 v{V_RO}, v{T}, 4, v{V_RO}")
    g.A(f"v_cmp_gt_u32 vcc, 448, v{V_CX}")
    g.A(f"s_mov_b64 s[{S_MSK}:{S_MSK+1}], vcc")
    g.A(f"s_cmp_lg_u32 s{S_WAVE}, 0")
    g.A(f"s_cbranch_scc1 {skipr}")
    g.A(f"s_mov_b64 exec, s[{S_MSK}:{S_MSK+1}]")
    set_srd(g, SRD_B, P_X, nbytes=1792)
    g.A(f"s_mul_i32 s{S_T0}, s{S_CB}, 896")
    g.A(f"v_lshlrev_b32 v{T+2}, 1, v{V_CX}")
    g.A(f"buffer_load_dword v{T+6}, v{T+2}, s[{SRD_B}:{SRD_B+3}], s{S_T0} offen")
    g.A(f"s_mul_i32 s{S_X0+8}, s{S_CB}, {1344*8}")
    g.A(f"s_add_u32 s{S_X0+8}, s{S_X0+8}, {WS_MOD + 896*4}")
    g.A(f"s_add_u32 s{S_X0+9}, s{S_X0+8}, {(2240-896)*4}")
    g.A(f"v_lshlrev_b32 v{T+3}, 2, v{V_CX}")
    def gl():
        g.A(f"buffer_load_dwordx2 {vr(T+8,2)}, v{T+3}, {WSR}, s{S_X0+8} offen sc1")
        g.A(f"buffer_load_dwordx2 {vr(T+10,2)}, v{T+3}, {WSR}, s{S_X0+9} offen sc1")
    poll_loop(g, cfg, gl, [T + 9, T + 11], T, sleep=4)
    g.A(f"v_mov_b32 v19, v{T+6}")
    g.A(f"v_mov_b32 v22, v{T+8}")
    g.A(f"v_mov_b32 v23, v{T+10}")
    exec_all(g)
    g.L(skipr)
    def r_unpack():
        unpack_pairs(g, [19], [V_XR, V_XR + 1])
        unpack_pairs(g, [22], [V_GA, V_GA + 1])
        unpack_pairs(g, [23], [V_GB, V_GB + 1])
    set_srd(g, SRD_C, P_OUT, nbytes=1792)
    S_REC = S_X0 + 4
    g.A(f"s_lshr_b32 s{S_T0}, s{S_WAVE}, 1")
    g.A(f"s_lshl_b32 s{S_T0}, s{S_T0}, 4")
    g.A(f"s_lshr_b32 s{S_T1}, s{S_ROLE}, 1")
    g.A(f"s_add_u32 s{S_T0}, s{S_T0}, s{S_T1}")
    g.A(f"s_mul_i32 s{S_REC}, s{S_T0}, {6*4096}")
    g.A(f"s_add_u32 s{S_REC}, s{S_REC}, {WS_PART}")
    g.A(f"s_and_b32 s{S_T1}, s{S_ROLE}, 1")
    g.A(f"s_lshl_b32 s{S_T1}, s{S_T1}, 11")
    for s in range(6):
        g.A(f"s_add_u32 s{S_OFF+s}, s{S_REC}, s{S_T1}")
        g.A(f"s_add_u32 s{S_OFF+s}, s{S_OFF+s}, {s*4096}")
    V_PO, V_AOW, V_AFO, V_L16b = 18, 20, 21, 16
    g.A(f"s_and_b32 s{S_T1}, s{S_WAVE}, 1")
    g.A(f"s_lshl_b32 s{S_T1}, s{S_T1}, 6")
    g.A(f"v_add_u32 v{T}, s{S_T1}, v{H_LANE}")
    g.A(f"v_lshlrev_b32 v{V_PO}, 4, v{T}")
    g.A(f"s_lshr_b32 s{S_T1}, s{S_WAVE}, 1")
    g.A(f"s_mul_i32 s{S_T1}, s{S_T1}, {ROWO}")
    g.A(f"v_lshlrev_b32 v{V_AOW}, 1, v{T}")
    g.A(f"v_add_u32 v{V_AOW}, s{S_T1}, v{V_AOW}")
    def afrag_addr(dst, row_stride):
        g.A(f"v_lshrrev_b32 v{T}, 2, v{H_LANE}")
        g.A(f"v_and_b32 v{T}, 1, v{T}")
        g.A(f"v_mul_u32_u24 v{dst}, {row_stride}, v{T}")
        g.A(f"v_lshrrev_b32 v{T}, 4, v{H_LANE}")
        g.A(f"v_lshl_add_u32 v{dst}, v{T}, 4, v{dst}")
    afrag_addr(V_AFO, ROWO)
    S_PUB = S_X0 + 3
    def pub_base(base_const, sidx):
        g.A(f"s_lshl_b32 s{S_PUB}, s{sidx}, 13")
        g.A(f"s_lshl_b32 s{S_T1}, s{S_WAVE}, 11")
        g.A(f"s_add_u32 s{S_PUB}, s{S_PUB}, s{S_T1}")
        g.A(f"s_add_u32 s{S_PUB}, s{S_PUB}, {base_const}")
    pub_base(WS_Y, S_ROLE)
    stamp(g, cfg, 5)
    def heads_wait(sreg_w, off=0):
        g.A(f"s_lshl_b32 s{S_X0+5}, s{sreg_w}, 6")
        g.A(f"s_add_u32 s{S_X0+5}, s{S_X0+5}, {WS_HEADS + off}")
        g.A(f"v_mov_b32 v{T+2}, 0")
        def loads():
            g.A(f"buffer_load_dwordx2 {vr(T+4,2)}, v{T+2}, {WSR}, s{S_X0+5} offen sc1")
        poll_loop(g, cfg, loads, [T + 4, T + 5], T, sleep=cfg.HSLEEP)
    if cfg.X_LOADONLY:
        g.A("s_endpgm")
    if cfg.LATEWO:
        first_of_8(S_ROLE, 16)
        wo_load()
    else:
        g.A(f"s_lshr_b32 s{S_T1}, s{S_ROLE}, 1")
        g.A(f"s_mul_i32 s{S_T1}, s{S_T1}, 6")
        heads_wait(S_T1)
    r_unpack()
    stamp(g, cfg, 6)
    PL = H_ST
    items = []
    for sidx in range(6):
        items.append(((lambda sidx=sidx: g.A(f"buffer_load_dwordx4 {vr(PL + 4*sidx, 4)}, v{V_PO}, {WSR}, s{S_OFF+sidx} offen sc1")), [PL + 4*sidx + 1, PL + 4*sidx + 3]))
    masked_poll(g, cfg, items, None, idle_sleep=cfg.IDLE, trace=16)
    lazy(g, cfg, 0, 2)
    if cfg.LAZY != 2: stamp(g, cfg, 7)
    LM = lambda sidx: PL + 4 * sidx + 2
    g.A(f"v_max3_f32 v{T}, v{LM(0)}, v{LM(1)}, v{LM(2)}")
    g.A(f"v_max3_f32 v{T}, v{LM(3)}, v{LM(4)}, v{T}")
    g.A(f"v_max_f32 v{T}, v{LM(5)}, v{T}")
    for sidx in range(6):
        g.A(f"v_sub_f32 v{LM(sidx)}, v{LM(sidx)}, v{T}")
    for sidx in range(6):
        g.A(f"v_exp_f32 v{LM(sidx)}, v{LM(sidx)}")
    g.A(f"v_add_f32 v{T+1}, v{LM(0)}, v{LM(1)}")
    g.A(f"v_mul_f32 v{T}, v{LM(0)}, v{PL}")
    g.A(f"v_add_f32 v{T+2}, v{LM(2)}, v{LM(3)}")
    g.A(f"v_fmac_f32 v{T}, v{LM(1)}, v{PL+4}")
    g.A(f"v_add_f32 v{T+3}, v{LM(4)}, v{LM(5)}")
    g.A(f"v_fmac_f32 v{T}, v{LM(2)}, v{PL+8}")
    g.A(f"v_add_f32 v{T+1}, v{T+1}, v{T+2}")
    g.A(f"v_fmac_f32 v{T}, v{LM(3)}, v{PL+12}")
    g.A(f"v_add_f32 v{T+1}, v{T+1}, v{T+3}")
    g.A(f"v_fmac_f32 v{T}, v{LM(4)}, v{PL+16}")
    g.A(f"v_rcp_f32 v{T+1}, v{T+1}")
    g.A(f"v_fmac_f32 v{T}, v{LM(5)}, v{PL+20}")
    g.A(f"v_mul_f32 v{T}, v{T}, v{T+1}")
    g.A(f"v_cvt_pk_bf16_f32 v{T}, v{T}, v{T}")
    g.A(f"ds_write_b16 v{V_AOW}, v{T} offset:{L_ACTO}")
    g.A("s_waitcnt lgkmcnt(0)")
    g.A("s_barrier")
    lazy(g, cfg, 1, 2)
    AFO = [4, 8, 12, 216]
    for kb in range(4):
        g.A(f"ds_read_b128 {vr(AFO[kb], 4)}, v{V_AFO} offset:{L_ACTO + kb*64}")
    for kb in range(4):
        g.A(f"s_waitcnt lgkmcnt({3-kb})")
        mfma8(g, AFO[kb], H_FR + 32 * kb, kb == 0)
    lazy(g, cfg, 2, 2)
    def publish_rec():
        g.A("s_mov_b32 exec_lo, -1")
        g.A("s_mov_b32 exec_hi, 0")
        g.A("s_nop 5")
        for p in range(4):
            a0 = H_ACC + 8 * p
            g.A(f"v_mov_b32 v{a0+2}, v{a0+4}")
            g.A(f"v_mov_b32 v{a0+1}, s{S_TAG}")
            g.A(f"v_mov_b32 v{a0+3}, s{S_TAG}")
            g.A(f"buffer_store_dwordx4 {vr(a0, 4)}, v16, {WSR}, s{S_PUB} offen offset:{p*512} sc1")
        exec_all(g)
    publish_rec()
    lazy(g, cfg, 3, 2)
    dbgt(g, cfg, 7, 28, 192, 0)
    dbgt(g, cfg, 8, 28, 210, 0)
    stamp(g, cfg, 8)
    lazy_flush(g, cfg, 4, 21, 2)
    RL = 64
    L_RP = L_RED
    g.A(f"v_lshrrev_b32 v{T}, 4, v{H_LANE}")
    g.A(f"v_lshlrev_b32 v{V_RO}, 15, v{T}")
    g.A(f"v_and_b32 v{T}, 15, v{H_LANE}")
    g.A(f"v_lshl_add_u32 v{V_RO}, v{T}, 4, v{V_RO}")
    g.A(f"v_lshlrev_b32 v22, 3, v{T}")
    g.A(f"s_lshl_b32 s{S_T0}, s{S_WAVE}, 7")
    g.A(f"v_add_u32 v19, s{S_T0}, v22")
    g.A(f"v_lshlrev_b32 v27, 3, v{H_LANE}")
    g.A(f"v_lshlrev_b32 v24, 1, v{V_CX}")
    def rec_gather(base_const, nrec, idle):
        g.A(f"s_lshl_b32 s{S_X0+5}, s{S_K}, 8")
        g.A(f"s_lshl_b32 s{S_T0}, s{S_WAVE}, 13")
        g.A(f"s_add_u32 s{S_X0+5}, s{S_X0+5}, s{S_T0}")
        g.A(f"s_add_u32 s{S_OFF}, s{S_X0+5}, {base_const}")
        g.A(f"s_add_u32 s{S_OFF+1}, s{S_OFF}, {16*8192}")
        init = None
        if nrec == 28:
            g.A("s_mov_b32 exec_lo, 0"); g.A("s_mov_b32 exec_hi, 0xffff0000")
            g.A(f"v_mov_b32 v{RL+4}, 0"); g.A(f"v_mov_b32 v{RL+5}, s{S_TAG}")
            g.A(f"v_mov_b32 v{RL+6}, 0"); g.A(f"v_mov_b32 v{RL+7}, s{S_TAG}")
            exec_all(g)
            init = [None, (0xffffffff, 0x0000ffff)]
        items = [((lambda it=it: g.A(f"buffer_load_dwordx4 {vr(RL + 4*it, 4)}, v{V_RO}, {WSR}, s{S_OFF+it} offen sc1")), [RL + 4*it + 1, RL + 4*it + 3]) for it in range(2)]
        masked_poll(g, cfg, items, None, idle_sleep=idle, trace=(16 if nrec == 32 else 21), init=init)
        g.A(f"v_add_f32 v{RL}, v{RL}, v{RL+4}")
        g.A(f"v_add_f32 v{RL+2}, v{RL+2}, v{RL+6}")
        for swap in ("v_permlane16_swap_b32", "v_permlane32_swap_b32"):
            g.A(f"v_mov_b32 v{RL+1}, v{RL}")
            g.A(f"v_mov_b32 v{RL+3}, v{RL+2}")
            g.A("s_nop 1")
            g.A(f"{swap} v{RL}, v{RL+1}")
            g.A(f"{swap} v{RL+2}, v{RL+3}")
            g.A("s_nop 0")
            g.A(f"v_add_f32 v{RL}, v{RL}, v{RL+1}")
            g.A(f"v_add_f32 v{RL+2}, v{RL+2}, v{RL+3}")
        g.A(f"v_mov_b32 v{RL+1}, v{RL+2}")
        g.A("s_mov_b64 exec, 0xffff")
        g.A(f"ds_write_b64 v19, {vr(RL,2)} offset:{L_RP}")
        exec_all(g)
        g.A("s_waitcnt lgkmcnt(0)")
        g.A("s_barrier")
    def rec_finish():
        for w in range(4):
            g.A(f"ds_read_b64 {vr(RL + 8 + 2*w, 2)}, v22 offset:{L_RP + w*128}")
        g.A("s_waitcnt lgkmcnt(0)")
        pk(g, "add", RL + 8, RL + 8, RL + 10)
        pk(g, "add", RL + 12, RL + 12, RL + 14)
        pk(g, "add", RL + 8, RL + 8, RL + 12)
        g.A(f"v_mov_b32 v{RL}, v{RL+8}")
        g.A(f"v_mov_b32 v{RL+2}, v{RL+9}")
    def resid(base_x, gate):
        bf16_round_pairs(g, [RL, RL + 2], T)
        g.A(f"v_mul_f32 v{RL}, v{RL}, v{gate}")
        g.A(f"v_mul_f32 v{RL+2}, v{RL+2}, v{gate+1}")
        bf16_round_pairs(g, [RL, RL + 2], T)
        g.A(f"v_add_f32 v{RL}, v{RL}, v{base_x}")
        g.A(f"v_add_f32 v{RL+2}, v{RL+2}, v{base_x+1}")
        g.A(f"v_cvt_pk_bf16_f32 v{T}, v{RL}, v{RL+2}")
    g.A(f"s_lshl_b32 s{S_PUB}, s{S_K}, 7")
    g.A(f"s_add_u32 s{S_PUB}, s{S_PUB}, {WS_X2}")
    rec_gather(WS_Y, 32, cfg.IDLE)
    stamp(g, cfg, 9)
    sk = g.lab("nox2")
    g.A(f"s_cmp_lg_u32 s{S_WAVE}, 0")
    g.A(f"s_cbranch_scc1 {sk}")
    rec_finish()
    g.A(f"v_mov_b32 v{T+1}, s{S_TAG}")
    resid(V_XR, V_GA)
    g.A(f"s_and_b32 exec_lo, s{S_MSK}, 0xffff")
    g.A("s_mov_b32 exec_hi, 0")
    for rep in range(NREP_X):
        g.A(f"buffer_store_dwordx2 {vr(T,2)}, v27, {WSR}, s{S_PUB} offen offset:0 sc1")
        if rep + 1 < NREP_X:
            g.A(f"s_add_u32 s{S_PUB}, s{S_PUB}, 4096")
    exec_all(g)
    unpack_pairs(g, [T], [V_X2, V_X2 + 1])
    g.L(sk)
    stamp(g, cfg, 10)
    g.A("s_barrier")
    g.A(f"s_mul_i32 s{S_PUB}, s{S_CB}, 896")
    rec_gather(WS_DN, 28, cfg.IDLE)
    stamp(g, cfg, 11)
    g.A(f"s_cmp_lg_u32 s{S_WAVE}, 0")
    g.A("s_cbranch_scc1 L_exit")
    rec_finish()
    resid(V_X2, V_GB)
    g.A(f"s_and_b32 exec_lo, s{S_MSK}, 0xffff")
    g.A("s_mov_b32 exec_hi, 0")
    g.A(f"buffer_store_dword v{T}, v24, s[{SRD_C}:{SRD_C+3}], s{S_PUB} offen{cfg.OUTF}")
    dbgt(g, cfg, 0, 28, 192, 0)
    g.A(f"s_cmp_lg_u32 s{S_K}, 0")
    g.A("s_cbranch_scc1 L_exit")
    g.A("s_mov_b64 exec, 1")
    g.A(f"v_mov_b32 v{T+3}, s{S_TAG}")
    g.A(f"v_mov_b32 v{T+4}, 0")
    g.A(f"buffer_store_dword v{T+3}, v{T+4}, {WSR}, 0 offen sc1")
    stamp(g, cfg, 12)
    g.A("s_endpgm")

    g.L("L_rf")
    S_I = S_X0 + 4
    g.A(f"s_sub_u32 s{S_I}, s{S_ROLE}, 32")
    g.A(f"s_cmp_ge_u32 s{S_I}, 28")
    g.A("s_cbranch_scc1 L_exit")
    V_WGU, V_WD = 17, 18
    g.A(f"v_lshrrev_b32 v{T}, 4, v{H_LANE}")
    g.A(f"v_lshlrev_b32 v{T}, 3, v{T}")
    g.A(f"s_lshl_b32 s{S_T0}, s{S_WAVE}, 5")
    g.A(f"v_add_u32 v{T}, s{S_T0}, v{T}")
    g.A(f"v_mul_u32_u24 v{V_WGU}, 3584, v{T}")
    g.A(f"v_and_b32 v{T}, 7, v{H_LANE}")
    g.A(f"v_lshl_add_u32 v{V_WGU}, v{T}, 4, v{V_WGU}")
    g.A(f"s_lshl_b32 s{S_T2}, s{S_I}, 7")
    g.A(f"s_sub_u32 s{S_X0+1}, {448*3584}, s{S_T2}")
    set_srd(g, SRD_A, P_WG, off_sreg=S_T2, nbytes_sreg=S_X0 + 1)
    set_srd(g, SRD_B, P_WU, off_sreg=S_T2, nbytes_sreg=S_X0 + 1)
    g.A(f"s_mul_i32 s{S_T2}, s{S_I}, {64*896}")
    g.A(f"s_sub_u32 s{S_X0+1}, {1792*896}, s{S_T2}")
    set_srd(g, SRD_C, P_WD, off_sreg=S_T2, nbytes_sreg=S_X0 + 1)
    woff128(V_WD)
    FSH, FSC, FLD, FLN = 176, 184, 208, 224
    skip = g.lab("nosb")
    g.A(f"s_cmp_ge_u32 s{S_WAVE}, 2")
    g.A(f"s_cbranch_scc1 {skip}")
    g.A(f"s_mul_i32 s{S_X0+3}, s{S_B}, {1344*8}")
    g.A(f"s_add_u32 s{S_X0+3}, s{S_X0+3}, {WS_MOD + 672*8}")
    exec56(g)
    gather_shift_scale(g, cfg, S_X0 + 3, V_G32, FLD, FSH, FSC, T)
    exec_all(g)
    g.L(skip)
    stamp(g, cfg, 5)
    def wd_unit(kb, dst):
        tile3_mask()
        unit_loads(g, dst, SRD_C, V_WD, [(kb * 32 + e) * 896 for e in range(8)], NT)
        exec_all(g)
    if cfg.WDEARLY:
        wd_unit(0, 32); wd_unit(1, 96)
        g.A("s_waitcnt vmcnt(8)"); transpose_unit(g, 32, 0, dst_acc=True, tmp=T)
        g.A("s_waitcnt vmcnt(0)"); transpose_unit(g, 96, 32, dst_acc=True, tmp=T)
    if cfg.LATEF:
        first_of_8(S_I, cfg.LATEOFF)
    stamp(g, cfg, 6)
    V_FXW, V_FXR = 19, 22
    g.A(f"s_lshl_b32 s{S_T0}, s{S_WAVE}, 13")
    g.A(f"s_add_u32 s{S_T0}, s{S_T0}, {L_FX}")
    g.A(f"v_add_u32 v{V_FXW}, s{S_T0}, v16")
    g.A(f"s_lshl_b32 s{S_T0}, s{S_WAVE}, 11")
    g.A(f"s_add_u32 s{S_T0}, s{S_T0}, {L_FX}")
    g.A(f"v_add_u32 v{V_FXR}, s{S_T0}, v16")
    FT = 160 - 32 if False else 32
    GU = [H_ST, H_ST + 32]
    def gu_unit_at(it, dst):
        g.A("s_mov_b32 exec_lo, 0x00ff00ff"); g.A("s_mov_b32 exec_hi, 0x00ff00ff")
        unit_loads(g, dst, SRD_A, V_WGU, [e * 3584 + it * 128 * 3584 for e in range(8)], NT)
        g.A("s_mov_b32 exec_lo, 0xff00ff00"); g.A("s_mov_b32 exec_hi, 0xff00ff00")
        unit_loads(g, dst, SRD_B, V_WGU, [e * 3584 + it * 128 * 3584 for e in range(8)], NT)
        exec_all(g)
    def exchange(it, src):
        transpose_unit(g, src, FT)
        for m in range(8):
            g.A(f"ds_write_b128 v{V_FXW}, {vr(FT + 4*m, 4)} offset:{m*1024}")
        g.A("s_waitcnt lgkmcnt(0)")
        g.A("s_barrier")
        for w in range(4 if it < 3 else 2):
            kb = 4 * it + w
            for mm in range(2):
                g.A(f"ds_read_b128 {vr(H_FR + (kb*2+mm)*4, 4)}, v{V_FXR} offset:{w*8192 + mm*1024}")
        g.A("s_waitcnt lgkmcnt(0)")
        g.A("s_barrier")
    g.A("s_barrier")
    if not cfg.X_SKIPFW:
        gu_unit_at(0, 192); gu_unit_at(1, 224); gu_unit_at(2, 128)
        g.A("s_waitcnt vmcnt(32)"); exchange(0, 192)
        gu_unit_at(3, 192)
        g.A("s_waitcnt vmcnt(32)"); exchange(1, 224)
        if not cfg.WDEARLY:
            wd_unit(0, 224)
            g.A("s_waitcnt vmcnt(24)"); exchange(2, 128)
            g.A("s_waitcnt vmcnt(8)"); exchange(3, 192)
            wd_unit(1, 192)
            g.A("s_waitcnt vmcnt(8)"); transpose_unit(g, 224, 0, dst_acc=True, tmp=T)
            g.A("s_waitcnt vmcnt(0)"); transpose_unit(g, 192, 32, dst_acc=True, tmp=T)
        else:
            g.A("s_waitcnt vmcnt(16)"); exchange(2, 128)
            g.A("s_waitcnt vmcnt(0)"); exchange(3, 192)
    V_AFH, V_AFD, V_A2W, V_X2O = 17, 18, 19, 27
    afrag_addr(V_AFH, ROWB)
    afrag_addr(V_AFD, ROWO)
    g.A(f"v_lshrrev_b32 v{T}, 4, v{H_LANE}")
    g.A(f"v_mul_u32_u24 v{V_A2W}, {ROWO}, v{T}")
    g.A(f"v_and_b32 v{T}, 7, v{H_LANE}")
    g.A(f"v_lshl_add_u32 v{V_A2W}, v{T}, 4, v{V_A2W}")
    g.A(f"s_lshl_b32 s{S_T0}, s{S_WAVE}, 2")
    g.A(f"v_add_u32 v{V_A2W}, s{S_T0}, v{V_A2W}")
    pub_base(WS_DN, S_I)
    g.A(f"s_and_b32 s{S_X0+5}, s{S_I}, {NREP_X-1}")
    g.A(f"s_lshl_b32 s{S_X0+5}, s{S_X0+5}, 12")
    g.A(f"s_lshl_b32 s{S_T0}, s{S_B}, 7")
    g.A(f"s_add_u32 s{S_X0+5}, s{S_X0+5}, s{S_T0}")
    g.A(f"s_add_u32 s{S_X0+5}, s{S_X0+5}, {WS_X2}")
    g.A(f"v_lshrrev_b32 v{T+2}, 4, v{H_LANE}")
    g.A(f"v_lshlrev_b32 v{T+2}, 10, v{T+2}")
    g.A(f"v_and_b32 v{T+3}, 15, v{H_LANE}")
    g.A(f"v_lshl_add_u32 v{V_X2O}, v{T+3}, 3, v{T+2}")
    g.A(f"s_mov_b32 s{S_X0+8}, -1")
    g.A(f"s_mov_b32 s{S_X0+9}, 0x00ffffff")
    stamp(g, cfg, 7)
    skip = g.lab("noln2")
    g.A(f"s_cmp_ge_u32 s{S_WAVE}, 2")
    g.A(f"s_cbranch_scc1 {skip}")
    exec56(g)
    items = [((lambda p=p: g.A(f"buffer_load_dwordx2 {vr(FLD + 2*p, 2)}, v{V_X2O}, {WSR}, s{S_X0+5} offen offset:{256*p} sc1")), [FLD + 2*p + 1]) for p in range(4)]
    masked_poll(g, cfg, items, S_X0 + 8, idle_sleep=cfg.IDLE, trace=16)
    exec_all(g)
    lazy(g, cfg, 0, 2)
    if cfg.LAZY != 2: stamp(g, cfg, 9)
    XF = FLD + 8
    unpack_pairs(g, [FLD, FLD + 2, FLD + 4, FLD + 6], [XF + e for e in range(8)])
    ln_normalize(g, XF, FLN, T)
    exec56(g)
    modulate_write(g, FLN, FSH, FSC, V_ACTW, L_ACTH, T)
    exec_all(g)
    g.L(skip)
    g.A("s_waitcnt lgkmcnt(0)")
    g.A("s_barrier")
    lazy(g, cfg, 1, 2)
    AFF = 192
    for kb in range(14):
        g.A(f"ds_read_b128 {vr(AFF + 4*kb, 4)}, v{V_AFH} offset:{L_ACTH + kb*64}")
    for kb in range(14):
        g.A(f"s_waitcnt lgkmcnt({min(15, 13-kb)})")
        for mm in range(2):
            acc = H_ACC + 4 * mm
            c = "0" if kb == 0 else vr(acc, 4)
            g.A(f"v_mfma_f32_16x16x32_bf16 {vr(acc,4)}, {vr(AFF + 4*kb, 4)}, {vr(H_FR + (kb*2+mm)*4, 4)}, {c}")
    g.A(f"s_mov_b32 s{S_T0}, {f2u(-LOG2E):#x}")
    g.A("s_nop 6")
    G0, G1, U0, U1 = T, T + 1, T + 2, T + 3
    g.A(f"v_mov_b32_dpp v{U0}, v{H_ACC} row_ror:8 row_mask:0xf bank_mask:0xf")
    g.A(f"v_mov_b32_dpp v{U1}, v{H_ACC+4} row_ror:8 row_mask:0xf bank_mask:0xf")
    g.A(f"v_cvt_pk_bf16_f32 v{T+4}, v{H_ACC}, v{H_ACC+4}")
    g.A(f"v_cvt_pk_bf16_f32 v{T+5}, v{U0}, v{U1}")
    g.A(f"v_lshlrev_b32 v{G0}, 16, v{T+4}")
    g.A(f"v_and_b32 v{G1}, 0xffff0000, v{T+4}")
    g.A(f"v_mul_f32 v{G0}, s{S_T0}, v{G0}")
    g.A(f"v_mul_f32 v{G1}, s{S_T0}, v{G1}")
    g.A(f"v_exp_f32 v{G0}, v{G0}")
    g.A(f"v_exp_f32 v{G1}, v{G1}")
    g.A(f"v_lshlrev_b32 v{U0}, 16, v{T+5}")
    g.A(f"v_and_b32 v{U1}, 0xffff0000, v{T+5}")
    g.A(f"v_add_f32 v{G0}, 1.0, v{G0}")
    g.A(f"v_add_f32 v{G1}, 1.0, v{G1}")
    g.A(f"v_rcp_f32 v{G0}, v{G0}")
    g.A(f"v_rcp_f32 v{G1}, v{G1}")
    g.A("s_nop 0")
    g.A(f"v_cvt_pk_bf16_f32 v{T+4}, v{G0}, v{G1}")
    g.A(f"v_lshlrev_b32 v{G0}, 16, v{T+4}")
    g.A(f"v_and_b32 v{G1}, 0xffff0000, v{T+4}")
    g.A(f"v_mul_f32 v{G0}, v{G0}, v{U0}")
    g.A(f"v_mul_f32 v{G1}, v{G1}, v{U1}")
    g.A(f"v_cvt_pk_bf16_f32 v{T+4}, v{G0}, v{G1}")
    g.A("s_mov_b32 exec_lo, 0x00ff00ff")
    g.A("s_mov_b32 exec_hi, 0")
    g.A(f"ds_write_b32 v{V_A2W}, v{T+4} offset:{L_ACTO}")
    exec_all(g)
    g.A("s_waitcnt lgkmcnt(0)")
    g.A("s_barrier")
    lazy(g, cfg, 3, 2)
    for kb in range(2):
        g.A(f"ds_read_b128 {vr(AFF + 4*kb, 4)}, v{V_AFD} offset:{L_ACTO + kb*64}")
    for kb in range(2):
        g.A(f"s_waitcnt lgkmcnt({1-kb})")
        mfma8(g, AFF + 4 * kb, 32 * kb, kb == 0, frag_acc=True)
    publish_rec()
    lazy(g, cfg, 4, 2)
    stamp(g, cfg, 10)
    lazy_flush(g, cfg, 5, 21, 2)
    g.A("s_endpgm")

def generate(cfg, header_src=None):
    g = G()
    g.A(f"s_cmp_ge_u32 s{S_WG}, {cfg.NSTREAM + cfg.NHELP}")
    g.A("s_cbranch_scc1 L_exit")
    if cfg.STAMPS:
        g.A("s_memrealtime s[84:85]")
    if cfg.DBGT:
        g.A("s_memrealtime s[92:93]")
    g.A("s_load_dwordx16 s[16:31], s[0:1], 0")
    g.A("s_load_dwordx8 s[32:39], s[0:1], 64")
    g.A("s_load_dwordx4 s[40:43], s[0:1], 96")
    if cfg.CODEPF and cfg.EARLYPF:
        g.A("v_lshlrev_b32 v3, 7, v0")
        code_prefetch(g, cfg, KNAME, 'L_codeend', True, 3, 31, ninstr=2 if cfg.CODEPF2 else 1, per_instr=32768)
    g.A("v_lshrrev_b32 v1, 6, v0")
    g.A("v_and_b32 v0, 63, v0")
    g.A(f"s_cmp_lt_u32 s{S_WG}, {cfg.NSTREAM}")
    g.A(f"v_readfirstlane_b32 s{S_WAVE}, v1")
    g.A("s_cbranch_scc0 L_helper0")
    g.A("s_nop 2")
    cfg.STAMP_V = 116
    emit_streamer(g, cfg)
    cfg.STAMP_V = 28
    g.L("L_helper0")
    g.A("v_mov_b32 v2, 0")
    g.A("s_waitcnt lgkmcnt(0)")
    set_srd(g, SRD_WS, P_WS, nbytes=WS_SIZE)
    g.A(f"buffer_load_dword v1, v2, s[{SRD_WS}:{SRD_WS+3}], 0 offen sc1")
    entry_stamp(g, cfg)
    emit_helper(g, cfg)
    g.L("L_exit")
    g.A("s_endpgm")
    g.L("L_codeend")
    hdr = open("adaLN_cond__mha_block_cached__glu_gated_glu__decode.s.ref").read().split("\n")
    head = []
    for line in hdr:
        if line.startswith("; @launch"):
            head.append(f"; @launch grid=({cfg.NSTREAM + cfg.NHELP},1,1) block=(256,1,1) lds={LDS_BYTES}")
            break
        head.append(line)
    txt = "\n".join(head) + "\n"
    txt += DOC
    txt += '.amdgcn_target "amdgcn-amd-amdhsa--gfx950"\n.text\n'
    txt += f".globl {KNAME}\n.p2align 8\n.type {KNAME},@function\n{KNAME}:\n"
    txt += "\n".join(g.o) + "\n"
    txt += f""".section .rodata,"a"
.p2align 6
.amdhsa_kernel {KNAME}
  .amdhsa_next_free_vgpr 512
  .amdhsa_next_free_sgpr 102
  .amdhsa_accum_offset 256
  .amdhsa_group_segment_fixed_size 0
  .amdhsa_kernarg_size 112
  .amdhsa_user_sgpr_count 2
  .amdhsa_user_sgpr_kernarg_segment_ptr 1
  .amdhsa_system_sgpr_workgroup_id_x 1
  .amdhsa_float_denorm_mode_32 3
.end_amdhsa_kernel
"""
    return txt

if __name__ == "__main__":
    import argparse
    ap = argparse.ArgumentParser()
    ap.add_argument("-o", default="k.s")
    ap.add_argument("--stamps", action="store_true")
    ap.add_argument("--set", nargs="*", default=[])
    a = ap.parse_args()
    cfg = Cfg()
    cfg.STAMPS = a.stamps
    for kv in a.set:
        k, v = kv.split("=")
        if isinstance(getattr(cfg, k), str): v = (" " + v.replace("_", " ")) if v else ""
        setattr(cfg, k, type(getattr(cfg, k))(v) if not isinstance(getattr(cfg, k), bool) else v in ("1", "True"))
    open(a.o, "w").write(generate(cfg))
    print("wrote", a.o)
```

```python
import sys

KNAME = "adaLN_cond__mha_block_cached__glu_gated_glu__decode_kernel"

class Cfg:
    NS = 6
    NSTREAM = 192
    NHELP = 64
    P = 12
    DMIN = 4
    W1 = 16
    NG = 22
    STAMPS = False
    POLLMAX = 200000
    HEADS_STEP = 41
    NT = " nt"
    NTW = " nt"
    CODEPF = True
    STAMP_V = 28
    LAZY = 0
    FASTK = False
    EARLYPF = True
    LATEF = True
    WDEARLY = False
    LATEWO = False
    HEADS3 = 38
    HEADS2 = 40
    LATEOFF = 8
    OUTF = " sc0 sc1"
    X_SKIPFW = False
    X_SKIPWO = False
    POLL_VT = 4
    WCONT = False
    BAL = True
    DBGT = False
    RPK = 3
    RPGAP = 7
    RW0 = 2
    IDLE = 8
    STG = 10
    RPGAP2 = 10
    X_LOADONLY = False
    HSLEEP = 16
    CAPG = 4
    QBACK = 1
    SHRINK = 2
    X_NOHELP = False
    X_NOEPIW = False
    CODEPF2 = False

WS_EPOCH = 0
WS_HEADS = 0x1000
WS_MOD = 0x4000
WS_QB = 0xA000
WS_X2 = 0x12000
NREP_X = 4
WS_PART = 0x20000
WS_Y = 0x100000
WS_DN = 0x140000
WS_STAMP = 0x180000
WS_SIZE = 0x200000

ROWB = 1152
L_ACTS = 0
L_ACTH = 2 * ROWB
L_ACTO = 4 * ROWB
ROWO = 320
L_RED = 4 * ROWB + 2 * ROWO + 128
L_RED = (L_RED + 255) // 256 * 256
L_FX = L_RED
LDS_BYTES = L_FX + 4 * 8192
L_OW = 0
L_ML = 4096

LOG2E = 1.4426950408889634

import struct
def f2u(x):
    return struct.unpack("<I", struct.pack("<f", x))[0]


DOC = """;
;   ids   0..191  streamers: (b,h) = id/6, split = id%6.  Each wave streams K then V for its 16-key groups straight into a
; Hand-offs go through d_ws as self-validating 8-byte granules {data, tag} written and read with sc1.  The tag is derived from
"""

class G:
    def __init__(self):
        self.o = []
        self.nlab = 0
    def A(self, s):
        self.o.append("    " + s)
    def L(self, name):
        self.o.append(name + ":")
    def lab(self, base):
        self.nlab += 1
        return f"L_{base}_{self.nlab}"
    def C(self, s):
        self.o.append("    ; " + s)

def vr(b, n=1):
    return f"v{b}" if n == 1 else f"v[{b}:{b+n-1}]"
def ar(b, n=1):
    return f"a{b}" if n == 1 else f"a[{b}:{b+n-1}]"
def sr(b, n=1):
    return f"s{b}" if n == 1 else f"s[{b}:{b+n-1}]"

S_WG, S_WAVE, S_ROLE = 2, 3, 4
S_T0, S_T1, S_T2 = 5, 6, 7
SRD_A, SRD_B = 8, 12
P_X, P_K, P_V, P_WQ, P_WO, P_BX, P_WG, P_WU, P_WD, P_C, P_WMOD, P_OUT, P_DBG, P_WS = 16, 18, 20, 22, 24, 26, 28, 30, 32, 34, 36, 38, 40, 42
S_TAG, S_CNT = 44, 45
S_SAVE = 46
SRD_C = 48
SRD_WS = 52
S_OFF = 56
S_SEL0, S_SEL1 = 64, 65
S_MSK = 66
S_X0 = 74
S_STAMP = 88
S_STB = 87
S_MISS = 16
S_PF = 46

def stamp(g, cfg, idx):
    if not cfg.STAMPS:
        return
    g.A(f"s_memrealtime s[{S_STAMP}:{S_STAMP+1}]")
    g.A("s_waitcnt lgkmcnt(0)")
    g.A(f"s_mov_b64 s[100:101], exec")
    g.A("s_mov_b64 exec, 1")
    sv = cfg.STAMP_V
    g.A(f"v_mov_b32 v{sv}, s{S_STAMP}")
    g.A(f"v_mov_b32 v{sv+1}, s{S_STAMP+1}")
    g.A(f"v_mov_b32 v{sv+2}, s{S_STB}")
    g.A(f"buffer_store_dwordx2 v[{sv}:{sv+1}], v{sv+2}, s[{SRD_WS}:{SRD_WS+3}], 0 offen offset:{idx*8}")
    g.A(f"s_mov_b64 exec, s[100:101]")

def lazy(g, cfg, i, mode=1):
    if cfg.STAMPS and cfg.LAZY == mode:
        g.A(f"s_memrealtime s[{90+2*i}:{91+2*i}]")
def lazy_flush(g, cfg, n, idx0, mode=1):
    if not (cfg.STAMPS and cfg.LAZY == mode):
        return
    g.A("s_waitcnt lgkmcnt(0)")
    g.A(f"s_mov_b64 s[100:101], exec")
    g.A("s_mov_b64 exec, 1")
    sv = cfg.STAMP_V
    for i in range(n):
        g.A(f"v_mov_b32 v{sv}, s{90+2*i}")
        g.A(f"v_mov_b32 v{sv+1}, s{91+2*i}")
        g.A(f"v_mov_b32 v{sv+2}, s{S_STB}")
        g.A(f"buffer_store_dwordx2 v[{sv}:{sv+1}], v{sv+2}, s[{SRD_WS}:{SRD_WS+3}], 0 offen offset:{(idx0+i)*8}")
        g.A("s_nop 1")
    g.A(f"s_mov_b64 exec, s[100:101]")

def set_srd(g, srd, ptr, off_sreg=None, nbytes=None, nbytes_sreg=None):
    if off_sreg is None:
        g.A(f"s_mov_b32 s{srd}, s{ptr}")
        g.A(f"s_mov_b32 s{srd+1}, s{ptr+1}")
    else:
        g.A(f"s_add_u32 s{srd}, s{ptr}, s{off_sreg}")
        g.A(f"s_addc_u32 s{srd+1}, s{ptr+1}, 0")
    if nbytes_sreg is not None:
        g.A(f"s_mov_b32 s{srd+2}, s{nbytes_sreg}")
    else:
        g.A(f"s_mov_b32 s{srd+2}, {nbytes}")
    g.A(f"s_mov_b32 s{srd+3}, 0x20000")

def code_prefetch(g, cfg, start_label, end_label, backward, voff, vdst, ninstr=1, per_instr=8192):
    if not cfg.CODEPF:
        return
    here = g.lab("pc")
    g.A(f"s_getpc_b64 s[{S_PF}:{S_PF+1}]")
    g.L(here)
    if backward:
        g.A(f"s_sub_u32 s{S_PF}, s{S_PF}, {here}-{start_label}")
        g.A(f"s_subb_u32 s{S_PF+1}, s{S_PF+1}, 0")
    else:
        g.A(f"s_add_u32 s{S_PF}, s{S_PF}, {start_label}-{here}")
        g.A(f"s_addc_u32 s{S_PF+1}, s{S_PF+1}, 0")
    for k in range(ninstr):
        skip = g.lab("nopf")
        g.A(f"s_mov_b32 s{S_T1}, {end_label}-{start_label}")
        g.A(f"v_cmp_gt_u32 vcc, s{S_T1}, v{voff}")
        g.A("s_nop 0")
        g.A("s_and_b64 exec, exec, vcc")
        g.A(f"s_cbranch_execz {skip}")
        g.A(f"global_load_dword v{vdst}, v{voff}, s[{S_PF}:{S_PF+1}]")
        g.L(skip)
        g.A("s_mov_b64 exec, -1")
        if k + 1 < ninstr:
            g.A(f"v_add_u32 v{voff}, {per_instr}, v{voff}")

def entry_stamp(g, cfg):
    if not cfg.STAMPS:
        return
    g.A(f"s_lshl_b32 s{S_STB}, s{S_WG}, 2")
    g.A(f"s_add_u32 s{S_STB}, s{S_STB}, s{S_WAVE}")
    g.A(f"s_lshl_b32 s{S_STB}, s{S_STB}, 8")
    g.A(f"s_add_u32 s{S_STB}, s{S_STB}, {WS_STAMP}")
    g.A(f"s_mov_b64 s[100:101], exec")
    g.A("s_mov_b64 exec, 1")
    sv = cfg.STAMP_V
    g.A(f"v_mov_b32 v{sv}, s84")
    g.A(f"v_mov_b32 v{sv+1}, s85")
    g.A(f"v_mov_b32 v{sv+2}, s{S_STB}")
    g.A(f"buffer_store_dwordx2 v[{sv}:{sv+1}], v{sv+2}, s[{SRD_WS}:{SRD_WS+3}], 0 offen offset:0")
    g.A(f"s_mov_b64 exec, s[100:101]")

def dbgt(g, cfg, idx, vtmp, cond_wg=None, cond_wave=None):
    if not cfg.DBGT:
        return
    sk = g.lab("dbgsk")
    if cond_wg is not None:
        g.A(f"s_cmp_lg_u32 s{S_WG}, {cond_wg}"); g.A(f"s_cbranch_scc1 {sk}")
    if cond_wave is not None:
        g.A(f"s_cmp_lg_u32 s{S_WAVE}, {cond_wave}"); g.A(f"s_cbranch_scc1 {sk}")
    g.A("s_memrealtime s[98:99]")
    g.A("s_waitcnt lgkmcnt(0)")
    g.A("s_sub_u32 s98, s98, s92")
    g.A("s_mov_b64 s[100:101], exec")
    g.A("s_mov_b64 exec, 1")
    g.A(f"v_mov_b32 v{vtmp}, s98")
    g.A(f"v_mov_b32 v{vtmp+1}, {idx*4}")
    g.A(f"global_store_dword v{vtmp+1}, v{vtmp}, s[{P_DBG}:{P_DBG+1}]")
    g.A("s_mov_b64 exec, s[100:101]")
    g.L(sk)

def entry_prefetch(g, cfg, vtmp):
    if cfg.CODEPF and not cfg.EARLYPF:
        g.A(f"s_lshl_b32 s{S_T0}, s{S_WAVE}, 13")
        g.A(f"v_lshlrev_b32 v{vtmp}, 7, v0")
        g.A(f"v_add_u32 v{vtmp}, s{S_T0}, v{vtmp}")
        code_prefetch(g, cfg, KNAME, 'L_codeend', True, vtmp, 31, ninstr=2 if cfg.CODEPF2 else 1, per_instr=32768)

def make_tag(g, vreg):
    g.A(f"v_readfirstlane_b32 s{S_TAG}, v{vreg}")
    g.A("s_nop 3")
    g.A(f"s_mul_i32 s{S_TAG}, s{S_TAG}, 0x19660d")
    g.A(f"s_add_u32 s{S_TAG}, s{S_TAG}, 0x3c6ef35f")

def check_tags(g, tagregs, tmp, ok_label, set_vcc_only=False):
    g.A(f"v_xor_b32 v{tmp}, s{S_TAG}, v{tagregs[0]}")
    for r in tagregs[1:]:
        g.A(f"v_xor_b32 v{tmp+1}, s{S_TAG}, v{r}")
        g.A(f"v_or_b32 v{tmp}, v{tmp}, v{tmp+1}")
    g.A(f"v_cmp_ne_u32 vcc, 0, v{tmp}")
    g.A("s_nop 1")
    g.A(f"s_cbranch_vccz {ok_label}")

def poll_loop(g, cfg, emit_loads, tagregs, tmp, sleep=1):
    top = g.lab("poll"); ok = g.lab("pollok")
    g.A(f"s_mov_b32 s{S_CNT}, 0")
    g.L(top)
    emit_loads()
    g.A("s_waitcnt vmcnt(0)")
    check_tags(g, tagregs, tmp, ok)
    if sleep:
        g.A(f"s_sleep {sleep}")
    g.A(f"s_add_u32 s{S_CNT}, s{S_CNT}, 1")
    g.A(f"s_cmp_lt_u32 s{S_CNT}, {cfg.POLLMAX}")
    g.A(f"s_cbranch_scc1 {top}")
    g.L(ok)

def rolling_poll(g, cfg, emit_loads, nloads, nregs, tag_offs, sets, res, tmp, gap, copy_offs=None):
    K = len(sets)
    if copy_offs is None:
        copy_offs = [r for r in range(nregs) if r not in tag_offs]
    top = g.lab("rp"); done = g.lab("rpdone")
    oks = [g.lab(f"rpok{i}") for i in range(K)]
    g.A(f"s_mov_b32 s{S_CNT}, 0")
    for i in range(K):
        emit_loads(sets[i])
        if i + 1 < K and gap:
            g.A(f"s_sleep {gap}")
    g.L(top)
    for i in range(K):
        g.A(f"s_waitcnt vmcnt({nloads*(K-1)})")
        check_tags(g, [sets[i] + o for o in tag_offs], tmp, oks[i])
        emit_loads(sets[i])
    g.A(f"s_add_u32 s{S_CNT}, s{S_CNT}, 1")
    g.A(f"s_cmp_lt_u32 s{S_CNT}, {cfg.POLLMAX}")
    g.A(f"s_cbranch_scc1 {top}")
    for i in range(K - 1, -1, -1):
        g.L(oks[i])
        for r in copy_offs:
            g.A(f"v_mov_b32 v{res+r}, v{sets[i]+r}")
        if i > 0:
            g.A(f"s_branch {done}")
    g.L(done)

def masked_poll(g, cfg, items, base, idle_sleep=0, busy_sleep=0, trace=None, init=None):
    n = len(items)
    assert n <= 8
    bs = f"s[{base}:{base+1}]" if base is not None else "-1"
    top = g.lab("mp"); done = g.lab("mpdone")
    for i in range(n):
        if init is not None and init[i] is not None:
            g.A(f"s_mov_b32 s{S_MISS+2*i}, {init[i][0]:#x}")
            g.A(f"s_mov_b32 s{S_MISS+2*i+1}, {init[i][1]:#x}")
        else:
            g.A(f"s_mov_b64 s[{S_MISS+2*i}:{S_MISS+2*i+1}], {bs}")
    g.A(f"s_mov_b32 s{S_CNT}, 0")
    g.L(top)
    if trace is not None and cfg.STAMPS and cfg.LAZY == 3:
        g.A("s_waitcnt lgkmcnt(0)")
        g.A("s_mov_b64 s[90:91], s[92:93]")
        g.A("s_mov_b64 s[92:93], s[94:95]")
        g.A("s_memrealtime s[94:95]")
    for i, (ld, tags) in enumerate(items):
        sk = g.lab("mpsk")
        g.A(f"s_mov_b64 exec, s[{S_MISS+2*i}:{S_MISS+2*i+1}]")
        g.A(f"s_cbranch_execz {sk}")
        ld()
        g.L(sk)
    g.A(f"s_mov_b64 exec, {bs}")
    g.A("s_waitcnt vmcnt(0)")
    VT = cfg.POLL_VT
    for i, (ld, tags) in enumerate(items):
        if len(tags) == 2:
            g.A(f"v_bitop3_b32 v{VT+i}, v{tags[0]}, v{tags[1]}, s{S_TAG} bitop3:0x7e")
        elif len(tags) == 3:
            g.A(f"v_bitop3_b32 v{VT+i}, v{tags[0]}, v{tags[1]}, s{S_TAG} bitop3:0x7e")
            g.A(f"v_xor_b32 v{VT+8}, s{S_TAG}, v{tags[2]}")
            g.A(f"v_or_b32 v{VT+i}, v{VT+i}, v{VT+8}")
    for i, (ld, tags) in enumerate(items):
        if len(tags) == 1:
            g.A(f"v_cmp_ne_u32 s[{S_MISS+2*i}:{S_MISS+2*i+1}], s{S_TAG}, v{tags[0]}")
        else:
            g.A(f"v_cmp_ne_u32 s[{S_MISS+2*i}:{S_MISS+2*i+1}], 0, v{VT+i}")
    if n == 1:
        g.A(f"s_cmp_eq_u64 s[{S_MISS}:{S_MISS+1}], 0")
        g.A(f"s_cbranch_scc1 {done}")
    else:
        g.A(f"s_or_b64 s[{S_SAVE}:{S_SAVE+1}], s[{S_MISS}:{S_MISS+1}], s[{S_MISS+2}:{S_MISS+3}]")
        for i in range(2, n):
            g.A(f"s_or_b64 s[{S_SAVE}:{S_SAVE+1}], s[{S_SAVE}:{S_SAVE+1}], s[{S_MISS+2*i}:{S_MISS+2*i+1}]")
        g.A(f"s_cbranch_scc0 {done}")
    if idle_sleep:
        busy = g.lab("mpbusy")
        g.A(f"s_mov_b64 s[{S_SAVE}:{S_SAVE+1}], s[{S_MISS}:{S_MISS+1}]")
        for i in range(1, n):
            g.A(f"s_and_b64 s[{S_SAVE}:{S_SAVE+1}], s[{S_SAVE}:{S_SAVE+1}], s[{S_MISS+2*i}:{S_MISS+2*i+1}]")
        g.A(f"s_cmp_eq_u32 s{S_SAVE}, -1")
        g.A(f"s_cbranch_scc0 {busy}")
        g.A(f"s_sleep {idle_sleep}")
        g.L(busy)
    if busy_sleep:
        g.A(f"s_sleep {busy_sleep}")
    g.A(f"s_add_u32 s{S_CNT}, s{S_CNT}, 1")
    g.A(f"s_cmp_lt_u32 s{S_CNT}, {cfg.POLLMAX}")
    g.A(f"s_cbranch_scc1 {top}")
    g.L(done)
    g.A(f"s_mov_b64 exec, {bs}")
    if trace is not None and cfg.STAMPS and cfg.LAZY == 3:
        g.A("s_memrealtime s[96:97]")
        g.A("s_waitcnt lgkmcnt(0)")
        g.A(f"s_mov_b32 s98, s{S_CNT}")
        g.A("s_mov_b32 s99, 0")
        lazy_flush(g, cfg, 5, trace, 3)
        g.A(f"s_mov_b64 exec, {bs}")

def bf16_round_pairs(g, regs, tmp):
    for i in range(0, len(regs), 2):
        a, b = regs[i], regs[i + 1]
        g.A(f"v_cvt_pk_bf16_f32 v{tmp}, v{a}, v{b}")
        g.A(f"v_lshlrev_b32 v{a}, 16, v{tmp}")
        g.A(f"v_and_b32 v{b}, 0xffff0000, v{tmp}")

def unpack_pairs(g, src, dst):
    for i, s in enumerate(src):
        g.A(f"v_lshlrev_b32 v{dst[2*i]}, 16, v{s}")
        g.A(f"v_and_b32 v{dst[2*i+1]}, 0xffff0000, v{s}")

def wave_sum(g, regs, sdst, op="add"):
    ins = "v_add_f32_dpp" if op == "add" else "v_max_f32_dpp"
    steps = ["row_shr:1", "row_shr:2", "row_shr:4", "row_shr:8"]
    for st in steps:
        for r in regs:
            if op == "add":
                g.A(f"{ins} v{r}, v{r}, v{r} {st} row_mask:0xf bank_mask:0xf bound_ctrl:0")
            else:
                g.A(f"{ins} v{r}, v{r}, v{r} {st} row_mask:0xf bank_mask:0xf")
        if len(regs) < 3:
            g.A(f"s_nop {2 - len(regs)}")
    for st, rm in (("row_bcast:15", "0xa"), ("row_bcast:31", "0xc")):
        for r in regs:
            g.A(f"{ins} v{r}, v{r}, v{r} {st} row_mask:{rm} bank_mask:0xf")
        g.A(f"s_nop {max(0, 2 - len(regs))}")
    for r, s in zip(regs, sdst):
        g.A(f"v_readlane_b32 s{s}, v{r}, 63")

def emit_streamer(g, cfg):
    NG, P, DMIN, W1 = cfg.NG, cfg.P, cfg.DMIN, cfg.W1
    NT = cfg.NT
    V_LANE = 0
    V_OFFK, V_OFFV = 1, 2
    V_M = 3
    V_EP = 7
    V_BQ = 8
    V_S = 40
    V_MAX, V_L = 62, 63
    V_ACC = 64
    V_O = 72
    V_B = 80
    V_T = 88
    V_QL = 96
    V_QOFF = 112
    V_RING2 = 128
    R = P * 8
    NA = min(R, 64)
    assert V_RING2 + 4 * (R - NA) <= 256
    def slot(n):
        s = n % R
        if s < 64:
            return ar(4 * s, 4)
        return vr(V_RING2 + 4 * (s - 64), 4)

    g.L("L_stream")
    g.C("bh = w/6, s = w%6; the workgroup owns 4-key sub-groups [s*1024/3, (s+1)*1024/3) of its (b,h); waves interleave 16-key groups")
    g.A(f"s_mul_hi_u32 s{S_T0}, s{S_WG}, 0x2aaaaaab")
    g.A(f"s_mul_i32 s{S_T1}, s{S_T0}, 6")
    g.A(f"s_sub_u32 s{S_T1}, s{S_WG}, s{S_T1}")
    BAL = cfg.BAL and not cfg.WCONT
    if cfg.WCONT:
        g.A(f"s_lshl_b32 s{S_T1}, s{S_T1}, 2")
        g.A(f"s_add_u32 s{S_T1}, s{S_T1}, s{S_WAVE}")
    g.A(f"s_lshl_b32 s{S_T2}, s{S_T1}, {10 if BAL else 8}")
    g.A(f"s_mul_hi_u32 s{S_X0}, s{S_T2}, 0x55555556")
    g.A(f"s_add_u32 s{S_T2}, s{S_T2}, {1024 if BAL else 256}")
    g.A(f"s_mul_hi_u32 s{S_X0+1}, s{S_T2}, 0x55555556")
    g.A(f"s_sub_u32 s{S_X0+1}, s{S_X0+1}, s{S_X0}")
    g.A(f"s_lshl_b32 s{S_X0+2}, s{S_T0}, 22")
    SH = 11 if (cfg.WCONT or BAL) else 13
    g.A(f"s_lshl_b32 s{S_X0+3}, s{S_X0}, {SH}")
    g.A(f"s_add_u32 s{S_X0+2}, s{S_X0+2}, s{S_X0+3}")
    g.A(f"s_lshl_b32 s{S_X0+3}, s{S_X0+1}, {SH}")
    S_BH = S_X0 + 4
    g.A(f"s_mov_b32 s{S_BH}, s{S_T0}")
    V_BIAS = 113
    V_LW, V_MLW, V_ZERO, V_LR, V_GO = 114, 115, 119, 120, 121
    S_DH, S_PREC = 66, 86
    T = V_T
    g.A(f"v_lshrrev_b32 v{T}, 2, v{V_LANE}")
    g.A(f"v_and_b32 v{T}, 3, v{T}")
    g.A(f"v_lshlrev_b32 v{V_OFFK}, 9, v{T}")
    g.A(f"v_lshrrev_b32 v{T+1}, 4, v{V_LANE}")
    g.A(f"v_lshl_add_u32 v{V_OFFK}, v{T+1}, 6, v{V_OFFK}")
    g.A(f"v_and_b32 v{T+2}, 3, v{V_LANE}")
    g.A(f"v_lshl_add_u32 v{V_OFFK}, v{T+2}, 4, v{V_OFFK}")
    if not cfg.WCONT:
        g.A(f"s_lshl_b32 s{S_T1}, s{S_WAVE}, 13")
        g.A(f"v_add_u32 v{V_OFFK}, s{S_T1}, v{V_OFFK}")
    g.A("s_waitcnt lgkmcnt(0)")
    set_srd(g, SRD_A, P_K, off_sreg=S_X0 + 2, nbytes_sreg=S_X0 + 3)

    S_SO = S_OFF
    S_LAST, S_N2 = S_X0 + 9, S_X0 + 10
    def nl(gi):
        return 4 if (BAL and gi % NG == NG - 1) else 8
    def issue_group(gi):
        isv = gi >= NG
        i = gi - NG if isv else gi
        srd = SRD_B if isv else SRD_A
        voff = V_OFFV if isv else V_OFFK
        if BAL and i == NG - 1:
            for a in range(2):
                if a == 1:
                    g.A(f"s_mov_b64 exec, s[{S_N2}:{S_N2+1}]")
                for dh in range(2):
                    n = gi * 8 + a * 2 + dh
                    g.A(f"buffer_load_dwordx4 {slot(n)}, v{voff}, s[{srd}:{srd+3}], s{S_LAST} offen offset:{a*2048 + dh*256}{NT}")
            g.A("s_mov_b64 exec, -1")
            return
        for half in range(2):
            g.A(f"s_mov_b32 s{S_SO+half}, {i*(8192 if cfg.WCONT else 32768) + half*4096}")
        for a in range(4):
            for dh in range(2):
                n = gi * 8 + a * 2 + dh
                imm = (a & 1) * 2048 + dh * 256
                g.A(f"buffer_load_dwordx4 {slot(n)}, v{voff}, s[{srd}:{srd+3}], s{S_SO + (a >> 1)} offen offset:{imm}{NT}")

    if cfg.FASTK:
        g.A(f"s_load_dwordx2 s[{P_V}:{P_V+1}], s[0:1], 16")
        g.A("s_load_dwordx4 s[40:43], s[0:1], 96")
    issue_group(0)
    issue_group(1)
    if cfg.FASTK:
        g.A("s_waitcnt lgkmcnt(0)")
    set_srd(g, SRD_WS, P_WS, nbytes=WS_SIZE)
    g.A(f"v_mov_b32 v{T+4}, 0")
    g.A(f"buffer_load_dword v{V_EP}, v{T+4}, s[{SRD_WS}:{SRD_WS+3}], 0 offen sc1")
    entry_stamp(g, cfg)
    stamp(g, cfg, 1)
    dbgt(g, cfg, 1, 116, 0, 0)
    entry_prefetch(g, cfg, T + 5)
    set_srd(g, SRD_B, P_V, off_sreg=S_X0 + 2, nbytes_sreg=S_X0 + 3)
    if BAL:
        g.A(f"s_sub_u32 s{S_T0}, s{S_X0+1}, {16*(NG-1)}")
        g.A(f"s_add_u32 s{S_T1}, s{S_T0}, 3")
        g.A(f"s_sub_u32 s{S_T1}, s{S_T1}, s{S_WAVE}")
        g.A(f"s_lshr_b32 s{S_T1}, s{S_T1}, 2")
        g.A(f"s_sub_u32 s{S_T0}, s{S_T0}, 4")
        g.A(f"s_min_u32 s{S_T0}, s{S_T0}, s{S_WAVE}")
        g.A(f"s_add_u32 s{S_T0}, s{S_T0}, s{S_WAVE}")
        g.A(f"s_lshl_b32 s{S_T0}, s{S_T0}, 11")
        g.A(f"s_lshl_b32 s{S_T2}, s{S_WAVE}, 13")
        g.A(f"s_sub_u32 s{S_T0}, s{S_T0}, s{S_T2}")
        g.A(f"s_add_u32 s{S_LAST}, s{S_T0}, {16*(NG-1)*2048}")
        g.A(f"s_cmp_eq_u32 s{S_T1}, 2")
        g.A(f"s_cselect_b64 s[{S_N2}:{S_N2+1}], -1, 0")
        g.A(f"v_lshrrev_b32 v{T}, 2, v{V_LANE}")
        g.A(f"v_and_b32 v{T}, 3, v{T}")
    elif cfg.WCONT:
        g.A(f"s_sub_u32 s{S_T1}, s{S_X0+1}, {4*(NG-1)}")
        g.A(f"v_lshrrev_b32 v{T}, 2, v{V_LANE}")
        g.A(f"v_and_b32 v{T}, 3, v{T}")
    else:
        g.A(f"s_sub_u32 s{S_T1}, s{S_X0+1}, {4*(NG-1)}")
        g.A(f"v_mov_b32 v{T}, s{S_WAVE}")
    g.A(f"v_cmp_gt_u32 vcc, s{S_T1}, v{T}")
    g.A(f"v_mov_b32 v{T+1}, 0xff800000")
    g.A(f"v_lshrrev_b32 v{T+2}, 4, v{V_LANE}")
    g.A(f"v_cndmask_b32 v{V_BIAS}, v{T+1}, 0, vcc")
    g.A(f"v_lshlrev_b32 v{V_OFFV}, 9, v{T+2}")
    g.A(f"v_and_b32 v{T+3}, 15, v{V_LANE}")
    g.A(f"v_lshl_add_u32 v{V_OFFV}, v{T+3}, 4, v{V_OFFV}")
    if not cfg.WCONT:
        g.A(f"s_lshl_b32 s{S_T1}, s{S_WAVE}, 13")
        g.A(f"v_add_u32 v{V_OFFV}, s{S_T1}, v{V_OFFV}")
    g.C("PV masks M_t")
    g.A(f"v_and_b32 v{T}, 7, v{V_LANE}")
    g.A(f"v_lshrrev_b32 v{T+1}, 1, v{T}")
    g.A(f"v_and_b32 v{T+2}, 1, v{V_LANE}")
    g.A(f"v_mov_b32 v{T+3}, 0xffff")
    g.A(f"v_mov_b32 v{T+4}, 0xffff0000")
    g.A(f"v_cmp_eq_u32 vcc, 1, v{T+2}")
    g.A("s_nop 1")
    g.A(f"v_cndmask_b32 v{T+3}, v{T+3}, v{T+4}, vcc")
    for t in range(4):
        g.A(f"v_cmp_eq_u32 vcc, {t}, v{T+1}")
        g.A("s_nop 1")
        g.A(f"v_cndmask_b32 v{V_M+t}, 0, v{T+3}, vcc")
    for a in range(4):
        m = 0x000F000F << (4 * a)
        g.A(f"s_mov_b32 s{S_MSK+2*a}, {m:#x}")
        g.A(f"s_mov_b32 s{S_MSK+2*a+1}, {m:#x}")
    g.A(f"v_lshrrev_b32 v{T}, 4, v{V_LANE}")
    g.A(f"v_and_b32 v{T+1}, 3, v{V_LANE}")
    g.A(f"v_lshl_add_u32 v{T}, v{T}, 2, v{T+1}")
    g.A(f"v_lshlrev_b32 v{V_QOFF}, 5, v{T}")
    S_QB = S_X0 + 6
    g.C("q base: WS_QB + (b*2048 + h*128)*8 ; bh = b*16+h")
    g.A(f"s_lshr_b32 s{S_T0}, s{S_BH}, 4")
    g.A(f"s_and_b32 s{S_T1}, s{S_BH}, 15")
    g.A(f"s_lshl_b32 s{S_T0}, s{S_T0}, 14")
    g.A(f"s_lshl_b32 s{S_T1}, s{S_T1}, 10")
    g.A(f"s_add_u32 s{S_QB}, s{S_T0}, s{S_T1}")
    g.A(f"s_add_u32 s{S_QB}, s{S_QB}, {WS_QB}")
    def q_loads():
        for dh in range(2):
            for k in range(2):
                g.A(f"buffer_load_dwordx4 {vr(V_QL + (dh*2+k)*4, 4)}, v{V_QOFF}, s[{SRD_WS}:{SRD_WS+3}], s{S_QB} offen offset:{dh*512 + k*16} sc1")
    QAT = P - cfg.QBACK
    for gi in range(2, P):
        if gi == QAT:
            q_loads()
        g.A(f"s_waitcnt vmcnt({W1 - 8})")
        if gi in (2, 3, 4, 6, 8):
            lazy(g, cfg, (2, 3, 4, 6, 8).index(gi), 4)
        if gi == 4:
            make_tag(g, V_EP)
        issue_group(gi)
    lazy_flush(g, cfg, 5, 16, 4)
    stamp(g, cfg, 2)
    tagregs = [V_QL + k * 4 + o for k in range(4) for o in (1, 3)]
    okq = g.lab("qok")
    g.A(f"s_waitcnt vmcnt({(P - QAT) * 8})")
    if not (cfg.X_NOHELP):
        check_tags(g, tagregs, T, okq)
        poll_loop(g, cfg, q_loads, tagregs, T, sleep=2)
    g.L(okq)
    stamp(g, cfg, 3)
    dbgt(g, cfg, 2, 116, 0, 0)
    dbgt(g, cfg, 3, 116, 100, 0)
    for a in range(4):
        for dh in range(2):
            src = [V_QL + (dh * 2) * 4, V_QL + (dh * 2) * 4 + 2, V_QL + (dh * 2 + 1) * 4, V_QL + (dh * 2 + 1) * 4 + 2]
            for r in range(4):
                g.A(f"v_cndmask_b32 v{V_BQ + (a*2+dh)*4 + r}, 0, v{src[r]}, s[{S_MSK+2*a}:{S_MSK+2*a+1}]")
    g.A(f"v_mov_b32 v{V_MAX}, 0xff800000")
    g.A("s_nop 1")

    NTOT = 2 * NG
    def heads_store(off):
        skip = g.lab("nohead")
        g.A(f"s_cmp_lg_u32 s{S_WAVE}, 0")
        g.A(f"s_cbranch_scc1 {skip}")
        g.A(f"s_lshl_b32 s{S_T0}, s{S_WG}, 6")
        g.A(f"s_add_u32 s{S_T0}, s{S_T0}, {WS_HEADS + off}")
        g.A(f"v_mov_b32 v{T}, s{S_TAG}")
        g.A(f"v_mov_b32 v{T+1}, s{S_TAG}")
        g.A(f"v_mov_b32 v{T+2}, 0")
        g.A("s_mov_b64 exec, 1")
        g.A(f"buffer_store_dwordx2 v[{T}:{T+1}], v{T+2}, s[{SRD_WS}:{SRD_WS+3}], s{S_T0} offen sc1")
        g.A("s_mov_b64 exec, -1")
        g.L(skip)
    def I(gi):
        if cfg.SHRINK <= 1:
            return min(NTOT, max(P, gi + DMIN))
        d = max(DMIN, P - (gi + cfg.SHRINK - 1) // cfg.SHRINK)
        return min(NTOT, max(P, gi + d))
    CSC = f2u(0.0625 * LOG2E)
    for gi in range(NTOT):
        n_after = sum(nl(x) for x in range(gi + 1, I(gi)))
        g.A(f"s_waitcnt vmcnt({min(63, n_after)})")
        if gi < NG:
            acc = V_ACC + 4 * (gi & 1)
            for a in range(nl(gi) // 2):
                for dh in range(2):
                    n = gi * 8 + a * 2 + dh
                    c = "0" if (a == 0 and dh == 0) else vr(acc, 4)
                    g.A(f"v_mfma_f32_16x16x32_bf16 {vr(acc,4)}, {slot(n)}, {vr(V_BQ + (a*2+dh)*4, 4)}, {c}")
            nissue = I(gi + 1) - I(gi) if gi + 1 < NTOT else 0
            mark = len(g.o)
            for x in range(nissue):
                if I(gi) + x - gi - 1 > cfg.CAPG:
                    g.A(f"s_waitcnt vmcnt({8*cfg.CAPG - 8})")
                issue_group(I(gi) + x)
            filled = len(g.o) - mark
            if filled < 8:
                g.A(f"s_nop {7 - filled}")
            S = V_S + gi
            g.A(f"v_mov_b32_dpp v{S}, v{acc} quad_perm:[0,0,0,0] row_mask:0xf bank_mask:0xf")
            g.A(f"v_mov_b32_dpp v{T+1}, v{acc+1} quad_perm:[1,1,1,1] row_mask:0xf bank_mask:0xf")
            g.A("s_nop 0")
            g.A(f"v_add_f32_dpp v{S}, v{acc+2}, v{S} quad_perm:[2,2,2,2] row_mask:0xf bank_mask:0xf")
            g.A(f"v_add_f32_dpp v{T+1}, v{acc+3}, v{T+1} quad_perm:[3,3,3,3] row_mask:0xf bank_mask:0xf")
            g.A(f"v_add_f32 v{S}, v{S}, v{T+1}")
            g.A(f"v_cvt_pk_bf16_f32 v{T}, v{S}, v{S}")
            if gi == NG - 1:
                g.A(f"v_lshlrev_b32 v{S}, 16, v{T}")
                g.A(f"v_add_f32 v{S}, v{V_BIAS}, v{S}")
            else:
                g.A(f"v_lshlrev_b32 v{S}, 16, v{T}")
            g.A(f"v_max_f32 v{V_MAX}, v{V_MAX}, v{S}")
            if gi == NG - 1:
                g.C("softmax over this wave's keys")
                g.A("s_nop 1")
                for st in ("row_ror:4", "row_ror:8"):
                    g.A(f"v_max_f32_dpp v{V_MAX}, v{V_MAX}, v{V_MAX} {st} row_mask:0xf bank_mask:0xf")
                    g.A("s_nop 1")
                for st, rm in (("row_bcast:15", "0xa"), ("row_bcast:31", "0xc")):
                    g.A(f"v_max_f32_dpp v{V_MAX}, v{V_MAX}, v{V_MAX} {st} row_mask:{rm} bank_mask:0xf")
                    g.A("s_nop 1")
                g.A(f"v_readlane_b32 s{S_T0}, v{V_MAX}, 63")
                g.A(f"s_mov_b32 s{S_X0+7}, {CSC:#x}")
                g.A("s_nop 1")
                g.A(f"v_mov_b32 v{V_MAX}, s{S_T0}")
                g.A(f"v_mul_f32 v{V_MAX}, s{S_X0+7}, v{V_MAX}")
                g.A(f"v_mov_b32 v{V_L}, 0")
                for i in range(NG):
                    g.A(f"v_fma_f32 v{V_S+i}, v{V_S+i}, s{S_X0+7}, -v{V_MAX}")
                for i in range(NG):
                    g.A(f"v_exp_f32 v{V_S+i}, v{V_S+i}")
                g.A("s_nop 0")
                for i in range(NG):
                    g.A(f"v_add_f32 v{V_L}, v{V_L}, v{V_S+i}")
                    g.A(f"v_cvt_pk_bf16_f32 v{V_S+i}, v{V_S+i}, v{V_S+i}")
                g.A("s_nop 1")
                for st in ("row_ror:4", "row_ror:8"):
                    g.A(f"v_add_f32_dpp v{V_L}, v{V_L}, v{V_L} {st} row_mask:0xf bank_mask:0xf")
                    g.A("s_nop 1")
                for st, rm in (("row_bcast:15", "0xa"), ("row_bcast:31", "0xc")):
                    g.A(f"v_add_f32_dpp v{V_L}, v{V_L}, v{V_L} {st} row_mask:{rm} bank_mask:0xf")
                    g.A("s_nop 1")
                g.A(f"v_readlane_b32 s{S_X0+8}, v{V_L}, 63")
                g.C("addresses for the final combine")
                g.A(f"v_and_b32 v{T}, 8, v{V_LANE}")
                g.A(f"v_cmp_ne_u32 s[{S_DH}:{S_DH+1}], 0, v{T}")
                g.A(f"v_mov_b32 v{V_L}, s{S_X0+8}")
                g.A(f"v_lshlrev_b32 v{T+1}, 4, v{T}")
                g.A(f"v_lshrrev_b32 v{T+2}, 4, v{V_LANE}")
                g.A(f"v_lshl_add_u32 v{T+1}, v{T+2}, 5, v{T+1}")
                g.A(f"v_and_b32 v{T+2}, 7, v{V_LANE}")
                g.A(f"v_add_u32 v{T+1}, v{T+1}, v{T+2}")
                g.A(f"s_lshl_b32 s{S_T0}, s{S_WAVE}, 8")
                g.A(f"v_add_u32 v{T+1}, s{S_T0}, v{T+1}")
                g.A(f"v_lshlrev_b32 v{V_LW}, 2, v{T+1}")
                g.A(f"s_lshl_b32 s{S_T0}, s{S_WAVE}, 3")
                g.A(f"v_mov_b32 v{V_MLW}, s{S_T0}")
                g.A(f"v_mov_b32 v{V_ZERO}, 0")
                g.A(f"s_lshl_b32 s{S_T0}, s{S_WAVE}, 6")
                g.A(f"v_add_u32 v{T}, s{S_T0}, v{V_LANE}")
                g.A(f"v_lshlrev_b32 v{V_LR}, 2, v{T}")
                g.A(f"v_lshlrev_b32 v{V_GO}, 4, v{T}")
                g.A(f"s_lshl_b32 s{S_PREC}, s{S_WG}, 12")
                g.A(f"s_add_u32 s{S_PREC}, s{S_PREC}, {WS_PART}")
                g.A(f"v_mov_b32 v{V_QL+13}, s{S_TAG}")
                g.A(f"v_mov_b32 v{V_QL+15}, s{S_TAG}")
                stamp(g, cfg, 4)
        else:
            i = gi - NG
            Pi = V_S + i
            def build(a):
                bb = V_B + 4 * (a & 1)
                for t in range(4):
                    g.A(f"v_and_b32_dpp v{bb+t}, v{Pi}, v{V_M+t} row_newbcast:{4*a} row_mask:0xf bank_mask:0xf")
            build(0)
            na = nl(gi) // 2
            for a in range(na):
                if a < na - 1:
                    build(a + 1)
                else:
                    g.A("s_nop 1")
                bb = V_B + 4 * (a & 1)
                for dh in range(2):
                    n = gi * 8 + a * 2 + dh
                    acc = V_O + 4 * dh
                    c = "0" if (i == 0 and a == 0) else vr(acc, 4)
                    g.A(f"v_mfma_f32_16x16x32_bf16 {vr(acc,4)}, {slot(n)}, {vr(bb,4)}, {c}")
            nissue = I(gi + 1) - I(gi) if gi + 1 < NTOT else 0
            for x in range(nissue):
                if I(gi) + x - gi - 1 > cfg.CAPG:
                    g.A(f"s_waitcnt vmcnt({8*cfg.CAPG - 8})")
                issue_group(I(gi) + x)
        if gi == cfg.HEADS_STEP:
            heads_store(0)
        if cfg.LATEF and gi == cfg.HEADS2:
            heads_store(8)
        if cfg.LATEWO and gi == cfg.HEADS3:
            heads_store(16)
    if cfg.LATEF and cfg.HEADS2 >= NTOT:
        heads_store(8)
    stamp(g, cfg, 5)
    dbgt(g, cfg, 4, 116, 0, 0)
    dbgt(g, cfg, 5, 116, 100, 0)
    dbgt(g, cfg, 6, 116, 191, 0)
    g.C("workgroup combine")
    g.A("s_nop 7")
    for r in range(4):
        g.A(f"v_cndmask_b32 v{T+2+r}, v{V_O+r}, v{V_O+4+r}, s[{S_DH}:{S_DH+1}]")
    for r in range(4):
        g.A(f"ds_write_b32 v{V_LW}, v{T+2+r} offset:{L_OW + r*32}")
    g.A("s_mov_b64 exec, 1")
    g.A(f"ds_write_b64 v{V_MLW}, {vr(V_MAX,2)} offset:{L_ML}")
    g.A("s_mov_b64 exec, -1")
    g.A("s_waitcnt lgkmcnt(0)")
    g.A("s_barrier")
    Q = V_QL
    g.A(f"ds_read_b128 {vr(Q,4)}, v{V_ZERO} offset:{L_ML}")
    g.A(f"ds_read_b128 {vr(Q+4,4)}, v{V_ZERO} offset:{L_ML+16}")
    for w in range(4):
        g.A(f"ds_read_b32 v{Q+8+w}, v{V_LR} offset:{L_OW + w*1024}")
    g.A("s_waitcnt lgkmcnt(4)")
    g.A(f"v_max_f32 v{T+3}, v{Q}, v{Q+2}")
    g.A(f"v_max3_f32 v{T+3}, v{Q+4}, v{Q+6}, v{T+3}")
    for w in range(4):
        g.A(f"v_sub_f32 v{Q+2*w}, v{Q+2*w}, v{T+3}")
    for w in range(4):
        g.A(f"v_exp_f32 v{Q+2*w}, v{Q+2*w}")
    g.A("s_nop 0")
    g.A(f"v_mul_f32 v{T+4}, v{Q}, v{Q+1}")
    for w in range(1, 4):
        g.A(f"v_fmac_f32 v{T+4}, v{Q+2*w}, v{Q+2*w+1}")
    g.A(f"v_rcp_f32 v{T+5}, v{T+4}")
    g.A(f"v_log_f32 v{T+4}, v{T+4}")
    g.A("s_waitcnt lgkmcnt(0)")
    g.A(f"v_mul_f32 v{Q+12}, v{Q}, v{Q+8}")
    for w in range(1, 4):
        g.A(f"v_fmac_f32 v{Q+12}, v{Q+2*w}, v{Q+8+w}")
    g.A(f"v_add_f32 v{Q+14}, v{T+3}, v{T+4}")
    g.A(f"v_mul_f32 v{Q+12}, v{Q+12}, v{T+5}")
    g.A(f"buffer_store_dwordx4 {vr(Q+12,4)}, v{V_GO}, s[{SRD_WS}:{SRD_WS+3}], s{S_PREC} offen sc1")
    stamp(g, cfg, 6)
    g.A("s_endpgm")

H_LANE = 0
H_T = 2
H_LN = 16
H_SC = 24
H_ACC = 32
H_FR = 64
H_FT = 128
H_ST = 192

def transpose_unit(g, src, dst, dst_acc=False, tmp=None):
    for c in range(4):
        for o in range(2):
            m = 2 * c + o
            for t in range(4):
                sel = S_SEL0 if o == 0 else S_SEL1
                s_lo = src + (2 * t) * 4 + c
                s_hi = src + (2 * t + 1) * 4 + c
                if dst_acc:
                    g.A(f"v_perm_b32 v{tmp + (t & 1)}, v{s_hi}, v{s_lo}, s{sel}")
                    g.A(f"v_accvgpr_write_b32 a{dst + m*4 + t}, v{tmp + (t & 1)}")
                else:
                    g.A(f"v_perm_b32 v{dst + m*4 + t}, v{s_hi}, v{s_lo}, s{sel}")

def unit_loads(g, dst, srd, voff, soffs, flags):
    for e in range(8):
        g.A(f"s_mov_b32 s{S_T0}, {soffs[e]}")
        g.A(f"buffer_load_dwordx4 {vr(dst + 4*e, 4)}, v{voff}, s[{srd}:{srd+3}], s{S_T0} offen{flags}")

def mfma8(g, afrag, frag, first, frag_acc=False):
    for m in range(8):
        acc = H_ACC + 4 * m
        c = "0" if first else vr(acc, 4)
        b = ar(frag + 4 * m, 4) if frag_acc else vr(frag + 4 * m, 4)
        g.A(f"v_mfma_f32_16x16x32_bf16 {vr(acc,4)}, {vr(afrag,4)}, {b}, {c}")

def red_write(g, vaddr):
    for m in range(8):
        g.A(f"ds_write_b32 v{vaddr}, v{H_ACC + 4*m} offset:{m*256}")

def red_read(g, va, vb, dst):
    for w in range(4):
        g.A(f"ds_read2st64_b32 {vr(dst + 2*w, 2)}, v{va} offset0:{w*8} offset1:{w*8+1}")
        g.A(f"ds_read2st64_b32 {vr(dst + 8 + 2*w, 2)}, v{vb} offset0:{w*8} offset1:{w*8+1}")
    g.A("s_waitcnt lgkmcnt(0)")
    for base in (dst, dst + 8):
        for o in range(2):
            g.A(f"v_add_f32 v{base+o}, v{base+o}, v{base+2+o}")
            g.A(f"v_add_f32 v{base+4+o}, v{base+4+o}, v{base+6+o}")
        for o in range(2):
            g.A(f"v_add_f32 v{base+o}, v{base+o}, v{base+4+o}")

def pk(g, op, dst, a, b, bcast=False, neg=False, c=None):
    mods = ""
    if c is not None:
        if bcast: mods += " op_sel_hi:[1,0,1]"
        g.A(f"v_pk_{op}_f32 {vr(dst,2)}, {vr(a,2)}, {vr(b,2)}, {vr(c,2)}{mods}")
        return
    if bcast: mods += " op_sel_hi:[1,0]"
    if neg: mods += " neg_lo:[0,1] neg_hi:[0,1]"
    g.A(f"v_pk_{op}_f32 {vr(dst,2)}, {vr(a,2)}, {vr(b,2)}{mods}")

def ln_normalize(g, x, out, tmp):
    sA, sB, sC = S_X0 + 10, S_X0 + 11, S_T2
    t0, t2, t4, t6 = tmp, tmp + 2, tmp + 4, tmp + 6
    g.A(f"v_readfirstlane_b32 s{sC}, v{x}")
    g.A(f"v_cmp_gt_u32 vcc, 56, v{H_LANE}")
    g.A("s_nop 0")
    g.A(f"v_mov_b32 v{t6}, s{sC}")
    for k in range(4):
        pk(g, "add", out + 2 * k, x + 2 * k, t6, bcast=True, neg=True)
    pk(g, "add", t0, out, out + 2)
    pk(g, "mul", t2, out, out)
    pk(g, "add", t4, out + 4, out + 6)
    pk(g, "fma", t2, out + 2, out + 2, c=t2)
    pk(g, "add", t0, t0, t4)
    pk(g, "fma", t2, out + 4, out + 4, c=t2)
    g.A(f"v_add_f32 v{t0}, v{t0}, v{t0+1}")
    pk(g, "fma", t2, out + 6, out + 6, c=t2)
    g.A(f"v_cndmask_b32 v{t0}, 0, v{t0}, vcc")
    g.A(f"v_add_f32 v{t2}, v{t2}, v{t2+1}")
    g.A(f"v_cndmask_b32 v{t2}, 0, v{t2}, vcc")
    g.A("s_nop 0")
    wave_sum(g, [t0, t2], [sA, sB])
    g.A(f"v_mov_b32 v{t4}, {f2u(1.0/448.0):#x}")
    g.A("s_nop 0")
    g.A(f"v_mul_f32 v{t0}, s{sA}, v{t4}")
    g.A(f"v_mul_f32 v{t2}, s{sB}, v{t4}")
    g.A(f"v_fma_f32 v{t2}, -v{t0}, v{t0}, v{t2}")
    g.A(f"v_add_f32 v{t0}, v{t0}, v{t6}")
    g.A(f"v_max_f32 v{t2}, 0, v{t2}")
    g.A(f"v_cvt_pk_bf16_f32 v{t4}, v{t0}, v{t2}")
    g.A(f"v_and_b32 v{t2}, 0xffff0000, v{t4}")
    g.A(f"v_lshlrev_b32 v{t0}, 16, v{t4}")
    g.A(f"v_add_f32 v{t2}, {f2u(1e-5):#x}, v{t2}")
    for k in range(2):
        pk(g, "add", out + 2 * k, x + 2 * k, t0, bcast=True, neg=True)
    g.A(f"v_cvt_pk_bf16_f32 v{t2}, v{t2}, v{t2}")
    for k in range(2, 4):
        pk(g, "add", out + 2 * k, x + 2 * k, t0, bcast=True, neg=True)
    g.A(f"v_lshlrev_b32 v{t2}, 16, v{t2}")
    g.A(f"v_sqrt_f32 v{t2}, v{t2}")
    bf16_round_pairs(g, [out + e for e in range(4)], t4)
    g.A(f"v_cvt_pk_bf16_f32 v{t2}, v{t2}, v{t2}")
    g.A(f"v_lshlrev_b32 v{t2}, 16, v{t2}")
    g.A(f"v_rcp_f32 v{t2}, v{t2}")
    bf16_round_pairs(g, [out + e for e in range(4, 8)], t4)
    for k in range(4):
        pk(g, "mul", out + 2 * k, out + 2 * k, t2, bcast=True)
    bf16_round_pairs(g, [out + e for e in range(8)], t4)

def exec56(g):
    g.A("s_mov_b32 exec_lo, -1")
    g.A("s_mov_b32 exec_hi, 0x00ffffff")
def exec_all(g):
    g.A("s_mov_b64 exec, -1")

def gather_shift_scale(g, cfg, sbase, voff, ld, shift, scale1, tmp):
    def loads():
        for k, imm in enumerate((0, 16, 1792, 1808)):
            g.A(f"buffer_load_dwordx4 {vr(ld + 4*k, 4)}, v{voff}, s[{SRD_WS}:{SRD_WS+3}], s{sbase} offen offset:{imm} sc1")
    tags = [ld + 4 * k + o for k in range(4) for o in (1, 3)]
    poll_loop(g, cfg, loads, tags, tmp, sleep=1)
    unpack_pairs(g, [ld, ld + 2, ld + 4, ld + 6], [shift + e for e in range(8)])
    unpack_pairs(g, [ld + 8, ld + 10, ld + 12, ld + 14], [scale1 + e for e in range(8)])
    for e in range(8):
        g.A(f"v_add_f32 v{scale1+e}, 1.0, v{scale1+e}")
    bf16_round_pairs(g, [scale1 + e for e in range(8)], tmp)

def modulate_write(g, ln, shift, scale1, vaddr, ldsoff, tmp):
    for k in range(4):
        pk(g, "mul", ln + 2 * k, ln + 2 * k, scale1 + 2 * k)
    bf16_round_pairs(g, [ln + e for e in range(8)], tmp)
    for k in range(4):
        pk(g, "add", ln + 2 * k, ln + 2 * k, shift + 2 * k)
    for k in range(4):
        g.A(f"v_cvt_pk_bf16_f32 v{tmp+k}, v{ln+2*k}, v{ln+2*k+1}")
    g.A(f"ds_write_b128 v{vaddr}, {vr(tmp,4)} offset:{ldsoff}")

def emit_helper(g, cfg):
    NT = cfg.NTW
    T = H_T
    WSR = f"s[{SRD_WS}:{SRD_WS+3}]"
    g.L("L_helper")
    if cfg.X_NOHELP:
        g.A("s_endpgm")
    lazy(g, cfg, 0)
    g.A(f"s_sub_u32 s{S_ROLE}, s{S_WG}, {cfg.NSTREAM}")
    g.A(f"s_mov_b32 s{S_SEL0}, 0x05040100")
    g.A(f"s_mov_b32 s{S_SEL1}, 0x07060302")
    V_L16 = 16
    V_WOFF64 = 17
    V_WOFFQ = 18
    V_AF64 = 19
    V_RW = 20
    V_RA, V_RB = 21, 22
    V_ACTW = 23
    V_G32 = 24
    V_X = 112
    HLN, HSH, HSC, HLD = 160, 168, 176, 144
    g.A(f"v_lshlrev_b32 v{V_L16}, 4, v{H_LANE}")
    g.A(f"v_lshlrev_b32 v{V_G32}, 5, v{H_LANE}")
    g.A(f"s_and_b32 s{S_X0}, s{S_WAVE}, 1")
    S_B = S_X0
    g.A(f"s_mul_i32 s{S_T1}, s{S_B}, 896")
    set_srd(g, SRD_C, P_C, nbytes=1792)
    set_srd(g, SRD_A, P_X, nbytes=1792)
    exec56(g)
    g.A(f"buffer_load_dwordx4 {vr(HLD,4)}, v{V_L16}, s[{SRD_C}:{SRD_C+3}], s{S_T1} offen")
    g.A(f"buffer_load_dwordx4 {vr(HLD+4,4)}, v{V_L16}, s[{SRD_A}:{SRD_A+3}], s{S_T1} offen")
    exec_all(g)
    lazy(g, cfg, 1)
    g.A(f"v_lshrrev_b32 v{T}, 3, v{H_LANE}")
    g.A(f"v_and_b32 v{T}, 1, v{T}")
    g.A(f"v_lshrrev_b32 v{T+1}, 4, v{H_LANE}")
    g.A(f"v_lshlrev_b32 v{T+2}, 5, v{T}")
    g.A(f"v_lshl_add_u32 v{T+2}, v{T+1}, 3, v{T+2}")
    g.A(f"s_lshl_b32 s{S_T0}, s{S_WAVE}, 6")
    g.A(f"v_add_u32 v{T+2}, s{S_T0}, v{T+2}")
    g.A(f"v_and_b32 v{T+3}, 7, v{H_LANE}")
    g.A(f"v_lshlrev_b32 v{T+3}, 4, v{T+3}")
    g.A(f"s_mov_b32 s{S_T0}, 5376")
    g.A(f"v_mul_lo_u32 v{V_WOFF64}, v{T+2}, s{S_T0}")
    g.A(f"v_add_u32 v{V_WOFF64}, v{V_WOFF64}, v{T+3}")
    g.A(f"v_lshl_add_u32 v{V_WOFFQ}, v{T+2}, 13, v{T+3}")
    S_MB = S_X0 + 12
    def m_loads():
        g.A(f"s_lshl_b32 s{S_T2}, s{S_MB}, 7")
        g.A(f"s_sub_u32 s{S_X0+1}, {448*5376}, s{S_T2}")
        set_srd(g, SRD_A, P_WMOD, off_sreg=S_T2, nbytes_sreg=S_X0 + 1)
        for it in range(2):
            unit_loads(g, H_FR + 32 * it, SRD_A, V_WOFF64, [e * 5376 + it * 256 * 5376 for e in range(8)], NT)
    def q_wloads():
        g.A(f"s_lshl_b32 s{S_T2}, s{S_ROLE}, 7")
        g.A(f"s_sub_u32 s{S_X0+1}, {448*8192}, s{S_T2}")
        set_srd(g, SRD_B, P_WQ, off_sreg=S_T2, nbytes_sreg=S_X0 + 1)
        for it in range(2):
            unit_loads(g, H_ST + 32 * it, SRD_B, V_WOFFQ, [e * 8192 + it * 256 * 8192 for e in range(8)], NT)
    nom = g.lab("nomload"); nom_b = g.lab("nomload_b")
    g.A(f"s_sub_u32 s{S_MB}, s{S_ROLE}, 50")
    g.A(f"s_cmp_lt_u32 s{S_ROLE}, 50")
    g.A(f"s_cbranch_scc1 {nom}")
    m_loads()
    g.A(f"s_branch {nom_b}")
    g.L(nom)
    q_wloads()
    g.L(nom_b)
    lazy(g, cfg, 3)
    if cfg.LAZY != 1: stamp(g, cfg, 1)
    entry_prefetch(g, cfg, T + 6)
    g.A(f"v_lshrrev_b32 v{T+3}, 2, v{H_LANE}")
    g.A(f"v_and_b32 v{T+3}, 1, v{T+3}")
    g.A(f"v_mul_u32_u24 v{V_AF64}, {ROWB}, v{T+3}")
    g.A(f"v_lshl_add_u32 v{V_AF64}, v{T}, 6, v{V_AF64}")
    g.A(f"v_lshl_add_u32 v{V_AF64}, v{T+1}, 4, v{V_AF64}")
    g.A(f"s_lshl_b32 s{S_T0}, s{S_WAVE}, 7")
    g.A(f"v_add_u32 v{V_AF64}, s{S_T0}, v{V_AF64}")
    g.A(f"s_lshl_b32 s{S_T0}, s{S_WAVE}, 11")
    g.A(f"s_add_u32 s{S_T0}, s{S_T0}, {L_RED}")
    g.A(f"v_lshlrev_b32 v{V_RW}, 2, v{H_LANE}")
    g.A(f"v_add_u32 v{V_RW}, s{S_T0}, v{V_RW}")
    g.A(f"v_and_b32 v{T+4}, 3, v{H_LANE}")
    g.A(f"v_lshlrev_b32 v{V_RA}, 9, v{T+4}")
    g.A(f"v_lshrrev_b32 v{T+4}, 5, v{H_LANE}")
    g.A(f"v_lshl_add_u32 v{V_RA}, v{T+4}, 6, v{V_RA}")
    g.A(f"v_lshrrev_b32 v{T+4}, 2, v{H_LANE}")
    g.A(f"v_and_b32 v{T+4}, 7, v{T+4}")
    g.A(f"v_lshl_add_u32 v{V_RA}, v{T+4}, 2, v{V_RA}")
    g.A(f"v_add_u32 v{V_RA}, {L_RED}, v{V_RA}")
    g.A(f"v_add_u32 v{V_RB}, 160, v{V_RA}")
    g.A(f"s_mul_i32 s{S_T0}, s{S_B}, {ROWB}")
    g.A(f"v_add_u32 v{V_ACTW}, s{S_T0}, v{V_L16}")
    n1 = S_X0 + 2
    skip = g.lab("noln1")
    g.A("s_waitcnt vmcnt(16)")
    make_tag(g, 1)
    g.A(f"s_cmp_ge_u32 s{S_WAVE}, 2")
    g.A(f"s_cbranch_scc1 {skip}")
    g.A(f"v_cmp_gt_u32 vcc, 56, v{H_LANE}")
    g.A("s_nop 1")
    for k in range(8):
        g.A(f"v_cndmask_b32 v{HLD+k}, 0, v{HLD+k}, vcc")
    unpack_pairs(g, [HLD, HLD + 1, HLD + 2, HLD + 3], [HSH + e for e in range(8)])
    g.A(f"s_mov_b32 s{S_T0}, {f2u(-LOG2E):#x}")
    for e in range(8):
        g.A(f"v_mul_f32 v{HSC+e}, s{S_T0}, v{HSH+e}")
    for e in range(8):
        g.A(f"v_exp_f32 v{HSC+e}, v{HSC+e}")
    g.A("s_nop 0")
    for e in range(8):
        g.A(f"v_add_f32 v{HSC+e}, 1.0, v{HSC+e}")
    for e in range(8):
        g.A(f"v_rcp_f32 v{HSC+e}, v{HSC+e}")
    g.A("s_nop 0")
    for e in range(8):
        g.A(f"v_mul_f32 v{HSC+e}, v{HSC+e}, v{HSH+e}")
    for k in range(4):
        g.A(f"v_cvt_pk_bf16_f32 v{T+k}, v{HSC+2*k}, v{HSC+2*k+1}")
    exec56(g)
    g.A(f"ds_write_b128 v{V_ACTW}, {vr(T,4)} offset:{L_ACTS}")
    exec_all(g)
    unpack_pairs(g, [HLD + 4, HLD + 5, HLD + 6, HLD + 7], [HSH + e for e in range(8)])
    ln_normalize(g, HSH, HLN, T)
    g.L(skip)
    g.A("s_waitcnt lgkmcnt(0)")
    g.A("s_barrier")
    lazy(g, cfg, 2)
    AF = T + 4
    RD = H_FT
    def m_stage():
        g.A(f"ds_read_b128 {vr(AF,4)}, v{V_AF64} offset:{L_ACTS}")
        g.A(f"ds_read_b128 {vr(AF+4,4)}, v{V_AF64} offset:{L_ACTS+512}")
        g.A("s_waitcnt vmcnt(8)")
        transpose_unit(g, H_FR, H_FT)
        g.A("s_waitcnt lgkmcnt(0)")
        g.A("s_nop 0")
        mfma8(g, AF, H_FT, True)
        sk = g.lab("m2")
        g.A(f"s_cmp_eq_u32 s{S_WAVE}, 3")
        g.A(f"s_cbranch_scc1 {sk}")
        g.A("s_waitcnt vmcnt(0)")
        transpose_unit(g, H_FR + 32, H_FT)
        g.A("s_nop 1")
        mfma8(g, AF + 4, H_FT, False)
        g.L(sk)
        g.A("s_nop 7")
        red_write(g, V_RW)
        g.A("s_waitcnt lgkmcnt(0)")
        g.A("s_barrier")
        sk = g.lab("m3")
        g.A(f"s_cmp_lg_u32 s{S_WAVE}, 0")
        g.A(f"s_cbranch_scc1 {sk}")
        red_read(g, V_RA, V_RB, RD)
        for o in range(2):
            g.A(f"v_add_f32 v{RD+o}, v{RD+o}, v{RD+8+o}")
        g.A(f"v_cvt_pk_bf16_f32 v{RD+2}, v{RD}, v{RD+1}")
        g.A(f"v_mov_b32 v{RD+3}, s{S_TAG}")
        g.A(f"v_lshrrev_b32 v{T}, 5, v{H_LANE}")
        g.A(f"v_mul_u32_u24 v{T}, {1344*8}, v{T}")
        g.A(f"v_and_b32 v{T+1}, 31, v{H_LANE}")
        g.A(f"v_lshl_add_u32 v{T}, v{T+1}, 3, v{T}")
        g.A(f"s_lshl_b32 s{S_T0}, s{S_MB}, 8")
        g.A(f"s_add_u32 s{S_T0}, s{S_T0}, {WS_MOD}")
        g.A(f"buffer_store_dwordx2 {vr(RD+2,2)}, v{T}, {WSR}, s{S_T0} offen sc1")
        g.L(sk)
    nom2 = g.lab("nom")
    g.A(f"s_cmp_lt_u32 s{S_ROLE}, 50")
    g.A(f"s_cbranch_scc1 {nom2}")
    m_stage()
    lazy(g, cfg, 4)
    q_wloads()
    g.L(nom2)
    stamp(g, cfg, 2)
    lazy_flush(g, cfg, 5, 16)
    g.A("s_waitcnt vmcnt(8)")
    transpose_unit(g, H_ST, H_FR)
    g.A("s_waitcnt vmcnt(0)")
    transpose_unit(g, H_ST + 32, H_FR + 32)
    skip = g.lab("noh")
    g.A(f"s_cmp_ge_u32 s{S_WAVE}, 2")
    g.A(f"s_cbranch_scc1 {skip}")
    g.A(f"s_mul_i32 s{S_X0+3}, s{S_B}, {1344*8}")
    g.A(f"s_add_u32 s{S_X0+3}, s{S_X0+3}, {WS_MOD}")
    exec56(g)
    gather_shift_scale(g, cfg, S_X0 + 3, V_G32, HLD, HSH, HSC, T)
    modulate_write(g, HLN, HSH, HSC, V_ACTW, L_ACTH, T)
    exec_all(g)
    g.L(skip)
    stamp(g, cfg, 3)
    g.A("s_waitcnt lgkmcnt(0)")
    g.A("s_barrier")
    g.A(f"ds_read_b128 {vr(AF,4)}, v{V_AF64} offset:{L_ACTH}")
    g.A(f"ds_read_b128 {vr(AF+4,4)}, v{V_AF64} offset:{L_ACTH+512}")
    g.A("s_waitcnt lgkmcnt(1)")
    mfma8(g, AF, H_FR, True)
    sk = g.lab("q2")
    g.A(f"s_cmp_eq_u32 s{S_WAVE}, 3")
    g.A(f"s_cbranch_scc1 {sk}")
    g.A("s_waitcnt lgkmcnt(0)")
    mfma8(g, AF + 4, H_FR + 32, False)
    g.L(sk)
    g.A("s_waitcnt lgkmcnt(0)")
    g.A("s_nop 7")
    red_write(g, V_RW)
    g.A("s_waitcnt lgkmcnt(0)")
    g.A("s_barrier")
    sk = g.lab("q3")
    g.A(f"s_cmp_lg_u32 s{S_WAVE}, 0")
    g.A(f"s_cbranch_scc1 {sk}")
    red_read(g, V_RA, V_RB, RD)
    for o in range(2):
        g.A(f"v_add_f32 v{RD+o}, v{RD+o}, v{RD+8+o}")
    g.A(f"v_cvt_pk_bf16_f32 v{RD+2}, v{RD}, v{RD+1}")
    g.A(f"v_mov_b32 v{RD+3}, s{S_TAG}")
    g.A(f"v_lshrrev_b32 v{T}, 5, v{H_LANE}")
    g.A(f"v_lshlrev_b32 v{T}, 14, v{T}")
    g.A(f"v_and_b32 v{T+1}, 31, v{H_LANE}")
    g.A(f"v_lshl_add_u32 v{T}, v{T+1}, 3, v{T}")
    g.A(f"s_lshl_b32 s{S_T0}, s{S_ROLE}, 8")
    g.A(f"s_add_u32 s{S_T0}, s{S_T0}, {WS_QB}")
    g.A(f"buffer_store_dwordx2 {vr(RD+2,2)}, v{T}, {WSR}, s{S_T0} offen sc1")
    g.L(sk)
    stamp(g, cfg, 4)
    dbgt(g, cfg, 9, 28, 192, 0)
    dbgt(g, cfg, 10, 28, 250, 0)
    if cfg.X_NOEPIW:
        g.A("s_endpgm")
    g.A(f"s_cmp_ge_u32 s{S_ROLE}, 32")
    g.A("s_cbranch_scc1 L_rf")

    nomr = g.lab("nomrest")
    g.A(f"s_cmp_lt_u32 s{S_ROLE}, 4")
    g.A(f"s_cbranch_scc1 {nomr}")
    g.A(f"s_add_u32 s{S_MB}, s{S_ROLE}, 10")
    m_loads()
    g.A("s_barrier")
    m_stage()
    g.L(nomr)
    def first_of_8(sidx, off):
        g.A(f"s_mul_i32 s{S_T0}, s{sidx}, 6")
        g.A(f"v_and_b32 v{T+2}, 7, v{H_LANE}")
        g.A(f"v_mul_u32_u24 v{T+2}, 23, v{T+2}")
        g.A(f"v_add_u32 v{T+2}, s{S_T0}, v{T+2}")
        g.A(f"v_subrev_u32 v{T+3}, 192, v{T+2}")
        g.A(f"v_cmp_gt_u32 vcc, 192, v{T+2}")
        g.A("s_nop 1")
        g.A(f"v_cndmask_b32 v{T+2}, v{T+3}, v{T+2}, vcc")
        g.A(f"v_lshlrev_b32 v{T+2}, 6, v{T+2}")
        top = g.lab("lw"); ok = g.lab("lwok")
        g.A(f"s_mov_b32 s{S_CNT}, 0")
        g.A(f"s_mov_b32 s{S_T0}, {WS_HEADS + off}")
        g.L(top)
        g.A(f"buffer_load_dwordx2 {vr(T+4,2)}, v{T+2}, {WSR}, s{S_T0} offen sc1")
        g.A("s_waitcnt vmcnt(0)")
        g.A(f"v_cmp_eq_u32 vcc, s{S_TAG}, v{T+4}")
        g.A("s_nop 1")
        g.A(f"s_cbranch_vccnz {ok}")
        g.A(f"s_sleep {cfg.HSLEEP}")
        g.A(f"s_add_u32 s{S_CNT}, s{S_CNT}, 1")
        g.A(f"s_cmp_lt_u32 s{S_CNT}, {cfg.POLLMAX}")
        g.A(f"s_cbranch_scc1 {top}")
        g.L(ok)
    V_WO = 17
    g.A(f"s_mul_i32 s{S_T2}, s{S_ROLE}, {128*896}")
    g.A(f"s_sub_u32 s{S_X0+1}, {4096*896}, s{S_T2}")
    set_srd(g, SRD_A, P_WO, off_sreg=S_T2, nbytes_sreg=S_X0 + 1)
    def woff128(dst):
        g.A(f"v_lshrrev_b32 v{T}, 4, v{H_LANE}")
        g.A(f"v_mul_u32_u24 v{dst}, {8*896}, v{T}")
        g.A(f"v_and_b32 v{T}, 15, v{H_LANE}")
        g.A(f"v_lshl_add_u32 v{dst}, v{T}, 4, v{dst}")
        g.A(f"s_lshl_b32 s{S_T0}, s{S_WAVE}, 8")
        g.A(f"v_add_u32 v{dst}, s{S_T0}, v{dst}")
    def tile3_mask():
        g.A(f"s_cmp_eq_u32 s{S_WAVE}, 3")
        g.A(f"s_cselect_b32 exec_lo, 0x00ff00ff, -1")
        g.A(f"s_cselect_b32 exec_hi, 0x00ff00ff, -1")
    woff128(V_WO)
    def wo_unit(kb, st):
        tile3_mask()
        unit_loads(g, H_ST + 32 * st, SRD_A, V_WO, [(kb * 32 + e) * 896 for e in range(8)], NT)
        exec_all(g)
    def wo_load():
        wo_unit(0, 0); wo_unit(1, 1)
        g.A("s_waitcnt vmcnt(8)"); transpose_unit(g, H_ST, H_FR)
        wo_unit(2, 0)
        g.A("s_waitcnt vmcnt(8)"); transpose_unit(g, H_ST + 32, H_FR + 32)
        wo_unit(3, 1)
        g.A("s_waitcnt vmcnt(8)"); transpose_unit(g, H_ST, H_FR + 64)
        g.A("s_waitcnt vmcnt(0)"); transpose_unit(g, H_ST + 32, H_FR + 96)
    if not cfg.X_SKIPWO and not cfg.LATEWO:
        wo_load()
    V_RO, V_CX, V_XR, V_GA, V_GB, V_X2 = 25, 26, 232, 234, 236, 238
    S_CB, S_CC = S_X0 + 6, S_X0 + 7
    S_K = S_ROLE
    skipr = g.lab("nor0")
    g.A(f"s_and_b32 s{S_CB}, s{S_K}, 1")
    g.A(f"s_lshr_b32 s{S_T0}, s{S_K}, 3")
    g.A(f"s_lshl_b32 s{S_T0}, s{S_T0}, 7")
    g.A(f"s_lshr_b32 s{S_T1}, s{S_K}, 1")
    g.A(f"s_and_b32 s{S_T1}, s{S_T1}, 3")
    g.A(f"s_lshl_b32 s{S_T1}, s{S_T1}, 1")
    g.A(f"s_add_u32 s{S_CC}, s{S_T0}, s{S_T1}")
    g.A(f"v_and_b32 v{T}, 15, v{H_LANE}")
    g.A(f"v_lshlrev_b32 v{V_CX}, 3, v{T}")
    g.A(f"v_add_u32 v{V_CX}, s{S_CC}, v{V_CX}")
    g.A(f"v_lshrrev_b32 v{T+1}, 4, v{H_LANE}")
    g.A(f"v_lshlrev_b32 v{V_RO}, 13, v{T+1}")
    g.A(f"v_lshl_add_u32 v{V_RO}, v{T}, 4, v{V_RO}")
    g.A(f"v_cmp_gt_u32 vcc, 448, v{V_CX}")
    g.A(f"s_mov_b64 s[{S_MSK}:{S_MSK+1}], vcc")
    g.A(f"s_cmp_lg_u32 s{S_WAVE}, 0")
    g.A(f"s_cbranch_scc1 {skipr}")
    g.A(f"s_mov_b64 exec, s[{S_MSK}:{S_MSK+1}]")
    set_srd(g, SRD_B, P_X, nbytes=1792)
    g.A(f"s_mul_i32 s{S_T0}, s{S_CB}, 896")
    g.A(f"v_lshlrev_b32 v{T+2}, 1, v{V_CX}")
    g.A(f"buffer_load_dword v{T+6}, v{T+2}, s[{SRD_B}:{SRD_B+3}], s{S_T0} offen")
    g.A(f"s_mul_i32 s{S_X0+8}, s{S_CB}, {1344*8}")
    g.A(f"s_add_u32 s{S_X0+8}, s{S_X0+8}, {WS_MOD + 896*4}")
    g.A(f"s_add_u32 s{S_X0+9}, s{S_X0+8}, {(2240-896)*4}")
    g.A(f"v_lshlrev_b32 v{T+3}, 2, v{V_CX}")
    def gl():
        g.A(f"buffer_load_dwordx2 {vr(T+8,2)}, v{T+3}, {WSR}, s{S_X0+8} offen sc1")
        g.A(f"buffer_load_dwordx2 {vr(T+10,2)}, v{T+3}, {WSR}, s{S_X0+9} offen sc1")
    poll_loop(g, cfg, gl, [T + 9, T + 11], T, sleep=4)
    g.A(f"v_mov_b32 v19, v{T+6}")
    g.A(f"v_mov_b32 v22, v{T+8}")
    g.A(f"v_mov_b32 v23, v{T+10}")
    exec_all(g)
    g.L(skipr)
    def r_unpack():
        unpack_pairs(g, [19], [V_XR, V_XR + 1])
        unpack_pairs(g, [22], [V_GA, V_GA + 1])
        unpack_pairs(g, [23], [V_GB, V_GB + 1])
    set_srd(g, SRD_C, P_OUT, nbytes=1792)
    S_REC = S_X0 + 4
    g.A(f"s_lshr_b32 s{S_T0}, s{S_WAVE}, 1")
    g.A(f"s_lshl_b32 s{S_T0}, s{S_T0}, 4")
    g.A(f"s_lshr_b32 s{S_T1}, s{S_ROLE}, 1")
    g.A(f"s_add_u32 s{S_T0}, s{S_T0}, s{S_T1}")
    g.A(f"s_mul_i32 s{S_REC}, s{S_T0}, {6*4096}")
    g.A(f"s_add_u32 s{S_REC}, s{S_REC}, {WS_PART}")
    g.A(f"s_and_b32 s{S_T1}, s{S_ROLE}, 1")
    g.A(f"s_lshl_b32 s{S_T1}, s{S_T1}, 11")
    for s in range(6):
        g.A(f"s_add_u32 s{S_OFF+s}, s{S_REC}, s{S_T1}")
        g.A(f"s_add_u32 s{S_OFF+s}, s{S_OFF+s}, {s*4096}")
    V_PO, V_AOW, V_AFO, V_L16b = 18, 20, 21, 16
    g.A(f"s_and_b32 s{S_T1}, s{S_WAVE}, 1")
    g.A(f"s_lshl_b32 s{S_T1}, s{S_T1}, 6")
    g.A(f"v_add_u32 v{T}, s{S_T1}, v{H_LANE}")
    g.A(f"v_lshlrev_b32 v{V_PO}, 4, v{T}")
    g.A(f"s_lshr_b32 s{S_T1}, s{S_WAVE}, 1")
    g.A(f"s_mul_i32 s{S_T1}, s{S_T1}, {ROWO}")
    g.A(f"v_lshlrev_b32 v{V_AOW}, 1, v{T}")
    g.A(f"v_add_u32 v{V_AOW}, s{S_T1}, v{V_AOW}")
    def afrag_addr(dst, row_stride):
        g.A(f"v_lshrrev_b32 v{T}, 2, v{H_LANE}")
        g.A(f"v_and_b32 v{T}, 1, v{T}")
        g.A(f"v_mul_u32_u24 v{dst}, {row_stride}, v{T}")
        g.A(f"v_lshrrev_b32 v{T}, 4, v{H_LANE}")
        g.A(f"v_lshl_add_u32 v{dst}, v{T}, 4, v{dst}")
    afrag_addr(V_AFO, ROWO)
    S_PUB = S_X0 + 3
    def pub_base(base_const, sidx):
        g.A(f"s_lshl_b32 s{S_PUB}, s{sidx}, 13")
        g.A(f"s_lshl_b32 s{S_T1}, s{S_WAVE}, 11")
        g.A(f"s_add_u32 s{S_PUB}, s{S_PUB}, s{S_T1}")
        g.A(f"s_add_u32 s{S_PUB}, s{S_PUB}, {base_const}")
    pub_base(WS_Y, S_ROLE)
    stamp(g, cfg, 5)
    def heads_wait(sreg_w, off=0):
        g.A(f"s_lshl_b32 s{S_X0+5}, s{sreg_w}, 6")
        g.A(f"s_add_u32 s{S_X0+5}, s{S_X0+5}, {WS_HEADS + off}")
        g.A(f"v_mov_b32 v{T+2}, 0")
        def loads():
            g.A(f"buffer_load_dwordx2 {vr(T+4,2)}, v{T+2}, {WSR}, s{S_X0+5} offen sc1")
        poll_loop(g, cfg, loads, [T + 4, T + 5], T, sleep=cfg.HSLEEP)
    if cfg.X_LOADONLY:
        g.A("s_endpgm")
    if cfg.LATEWO:
        first_of_8(S_ROLE, 16)
        wo_load()
    else:
        g.A(f"s_lshr_b32 s{S_T1}, s{S_ROLE}, 1")
        g.A(f"s_mul_i32 s{S_T1}, s{S_T1}, 6")
        heads_wait(S_T1)
    r_unpack()
    stamp(g, cfg, 6)
    PL = H_ST
    items = []
    for sidx in range(6):
        items.append(((lambda sidx=sidx: g.A(f"buffer_load_dwordx4 {vr(PL + 4*sidx, 4)}, v{V_PO}, {WSR}, s{S_OFF+sidx} offen sc1")), [PL + 4*sidx + 1, PL + 4*sidx + 3]))
    masked_poll(g, cfg, items, None, idle_sleep=cfg.IDLE, trace=16)
    lazy(g, cfg, 0, 2)
    if cfg.LAZY != 2: stamp(g, cfg, 7)
    LM = lambda sidx: PL + 4 * sidx + 2
    g.A(f"v_max3_f32 v{T}, v{LM(0)}, v{LM(1)}, v{LM(2)}")
    g.A(f"v_max3_f32 v{T}, v{LM(3)}, v{LM(4)}, v{T}")
    g.A(f"v_max_f32 v{T}, v{LM(5)}, v{T}")
    for sidx in range(6):
        g.A(f"v_sub_f32 v{LM(sidx)}, v{LM(sidx)}, v{T}")
    for sidx in range(6):
        g.A(f"v_exp_f32 v{LM(sidx)}, v{LM(sidx)}")
    g.A(f"v_add_f32 v{T+1}, v{LM(0)}, v{LM(1)}")
    g.A(f"v_mul_f32 v{T}, v{LM(0)}, v{PL}")
    g.A(f"v_add_f32 v{T+2}, v{LM(2)}, v{LM(3)}")
    g.A(f"v_fmac_f32 v{T}, v{LM(1)}, v{PL+4}")
    g.A(f"v_add_f32 v{T+3}, v{LM(4)}, v{LM(5)}")
    g.A(f"v_fmac_f32 v{T}, v{LM(2)}, v{PL+8}")
    g.A(f"v_add_f32 v{T+1}, v{T+1}, v{T+2}")
    g.A(f"v_fmac_f32 v{T}, v{LM(3)}, v{PL+12}")
    g.A(f"v_add_f32 v{T+1}, v{T+1}, v{T+3}")
    g.A(f"v_fmac_f32 v{T}, v{LM(4)}, v{PL+16}")
    g.A(f"v_rcp_f32 v{T+1}, v{T+1}")
    g.A(f"v_fmac_f32 v{T}, v{LM(5)}, v{PL+20}")
    g.A(f"v_mul_f32 v{T}, v{T}, v{T+1}")
    g.A(f"v_cvt_pk_bf16_f32 v{T}, v{T}, v{T}")
    g.A(f"ds_write_b16 v{V_AOW}, v{T} offset:{L_ACTO}")
    g.A("s_waitcnt lgkmcnt(0)")
    g.A("s_barrier")
    lazy(g, cfg, 1, 2)
    AFO = [4, 8, 12, 216]
    for kb in range(4):
        g.A(f"ds_read_b128 {vr(AFO[kb], 4)}, v{V_AFO} offset:{L_ACTO + kb*64}")
    for kb in range(4):
        g.A(f"s_waitcnt lgkmcnt({3-kb})")
        mfma8(g, AFO[kb], H_FR + 32 * kb, kb == 0)
    lazy(g, cfg, 2, 2)
    def publish_rec():
        g.A("s_mov_b32 exec_lo, -1")
        g.A("s_mov_b32 exec_hi, 0")
        g.A("s_nop 5")
        for p in range(4):
            a0 = H_ACC + 8 * p
            g.A(f"v_mov_b32 v{a0+2}, v{a0+4}")
            g.A(f"v_mov_b32 v{a0+1}, s{S_TAG}")
            g.A(f"v_mov_b32 v{a0+3}, s{S_TAG}")
            g.A(f"buffer_store_dwordx4 {vr(a0, 4)}, v16, {WSR}, s{S_PUB} offen offset:{p*512} sc1")
        exec_all(g)
    publish_rec()
    lazy(g, cfg, 3, 2)
    dbgt(g, cfg, 7, 28, 192, 0)
    dbgt(g, cfg, 8, 28, 210, 0)
    stamp(g, cfg, 8)
    lazy_flush(g, cfg, 4, 21, 2)
    RL = 64
    L_RP = L_RED
    g.A(f"v_lshrrev_b32 v{T}, 4, v{H_LANE}")
    g.A(f"v_lshlrev_b32 v{V_RO}, 15, v{T}")
    g.A(f"v_and_b32 v{T}, 15, v{H_LANE}")
    g.A(f"v_lshl_add_u32 v{V_RO}, v{T}, 4, v{V_RO}")
    g.A(f"v_lshlrev_b32 v22, 3, v{T}")
    g.A(f"s_lshl_b32 s{S_T0}, s{S_WAVE}, 7")
    g.A(f"v_add_u32 v19, s{S_T0}, v22")
    g.A(f"v_lshlrev_b32 v27, 3, v{H_LANE}")
    g.A(f"v_lshlrev_b32 v24, 1, v{V_CX}")
    def rec_gather(base_const, nrec, idle):
        g.A(f"s_lshl_b32 s{S_X0+5}, s{S_K}, 8")
        g.A(f"s_lshl_b32 s{S_T0}, s{S_WAVE}, 13")
        g.A(f"s_add_u32 s{S_X0+5}, s{S_X0+5}, s{S_T0}")
        g.A(f"s_add_u32 s{S_OFF}, s{S_X0+5}, {base_const}")
        g.A(f"s_add_u32 s{S_OFF+1}, s{S_OFF}, {16*8192}")
        init = None
        if nrec == 28:
            g.A("s_mov_b32 exec_lo, 0"); g.A("s_mov_b32 exec_hi, 0xffff0000")
            g.A(f"v_mov_b32 v{RL+4}, 0"); g.A(f"v_mov_b32 v{RL+5}, s{S_TAG}")
            g.A(f"v_mov_b32 v{RL+6}, 0"); g.A(f"v_mov_b32 v{RL+7}, s{S_TAG}")
            exec_all(g)
            init = [None, (0xffffffff, 0x0000ffff)]
        items = [((lambda it=it: g.A(f"buffer_load_dwordx4 {vr(RL + 4*it, 4)}, v{V_RO}, {WSR}, s{S_OFF+it} offen sc1")), [RL + 4*it + 1, RL + 4*it + 3]) for it in range(2)]
        masked_poll(g, cfg, items, None, idle_sleep=idle, trace=(16 if nrec == 32 else 21), init=init)
        g.A(f"v_add_f32 v{RL}, v{RL}, v{RL+4}")
        g.A(f"v_add_f32 v{RL+2}, v{RL+2}, v{RL+6}")
        for swap in ("v_permlane16_swap_b32", "v_permlane32_swap_b32"):
            g.A(f"v_mov_b32 v{RL+1}, v{RL}")
            g.A(f"v_mov_b32 v{RL+3}, v{RL+2}")
            g.A("s_nop 1")
            g.A(f"{swap} v{RL}, v{RL+1}")
            g.A(f"{swap} v{RL+2}, v{RL+3}")
            g.A("s_nop 0")
            g.A(f"v_add_f32 v{RL}, v{RL}, v{RL+1}")
            g.A(f"v_add_f32 v{RL+2}, v{RL+2}, v{RL+3}")
        g.A(f"v_mov_b32 v{RL+1}, v{RL+2}")
        g.A("s_mov_b64 exec, 0xffff")
        g.A(f"ds_write_b64 v19, {vr(RL,2)} offset:{L_RP}")
        exec_all(g)
        g.A("s_waitcnt lgkmcnt(0)")
        g.A("s_barrier")
    def rec_finish():
        for w in range(4):
            g.A(f"ds_read_b64 {vr(RL + 8 + 2*w, 2)}, v22 offset:{L_RP + w*128}")
        g.A("s_waitcnt lgkmcnt(0)")
        pk(g, "add", RL + 8, RL + 8, RL + 10)
        pk(g, "add", RL + 12, RL + 12, RL + 14)
        pk(g, "add", RL + 8, RL + 8, RL + 12)
        g.A(f"v_mov_b32 v{RL}, v{RL+8}")
        g.A(f"v_mov_b32 v{RL+2}, v{RL+9}")
    def resid(base_x, gate):
        bf16_round_pairs(g, [RL, RL + 2], T)
        g.A(f"v_mul_f32 v{RL}, v{RL}, v{gate}")
        g.A(f"v_mul_f32 v{RL+2}, v{RL+2}, v{gate+1}")
        bf16_round_pairs(g, [RL, RL + 2], T)
        g.A(f"v_add_f32 v{RL}, v{RL}, v{base_x}")
        g.A(f"v_add_f32 v{RL+2}, v{RL+2}, v{base_x+1}")
        g.A(f"v_cvt_pk_bf16_f32 v{T}, v{RL}, v{RL+2}")
    g.A(f"s_lshl_b32 s{S_PUB}, s{S_K}, 7")
    g.A(f"s_add_u32 s{S_PUB}, s{S_PUB}, {WS_X2}")
    rec_gather(WS_Y, 32, cfg.IDLE)
    stamp(g, cfg, 9)
    sk = g.lab("nox2")
    g.A(f"s_cmp_lg_u32 s{S_WAVE}, 0")
    g.A(f"s_cbranch_scc1 {sk}")
    rec_finish()
    g.A(f"v_mov_b32 v{T+1}, s{S_TAG}")
    resid(V_XR, V_GA)
    g.A(f"s_and_b32 exec_lo, s{S_MSK}, 0xffff")
    g.A("s_mov_b32 exec_hi, 0")
    for rep in range(NREP_X):
        g.A(f"buffer_store_dwordx2 {vr(T,2)}, v27, {WSR}, s{S_PUB} offen offset:0 sc1")
        if rep + 1 < NREP_X:
            g.A(f"s_add_u32 s{S_PUB}, s{S_PUB}, 4096")
    exec_all(g)
    unpack_pairs(g, [T], [V_X2, V_X2 + 1])
    g.L(sk)
    stamp(g, cfg, 10)
    g.A("s_barrier")
    g.A(f"s_mul_i32 s{S_PUB}, s{S_CB}, 896")
    rec_gather(WS_DN, 28, cfg.IDLE)
    stamp(g, cfg, 11)
    g.A(f"s_cmp_lg_u32 s{S_WAVE}, 0")
    g.A("s_cbranch_scc1 L_exit")
    rec_finish()
    resid(V_X2, V_GB)
    g.A(f"s_and_b32 exec_lo, s{S_MSK}, 0xffff")
    g.A("s_mov_b32 exec_hi, 0")
    g.A(f"buffer_store_dword v{T}, v24, s[{SRD_C}:{SRD_C+3}], s{S_PUB} offen{cfg.OUTF}")
    dbgt(g, cfg, 0, 28, 192, 0)
    g.A(f"s_cmp_lg_u32 s{S_K}, 0")
    g.A("s_cbranch_scc1 L_exit")
    g.A("s_mov_b64 exec, 1")
    g.A(f"v_mov_b32 v{T+3}, s{S_TAG}")
    g.A(f"v_mov_b32 v{T+4}, 0")
    g.A(f"buffer_store_dword v{T+3}, v{T+4}, {WSR}, 0 offen sc1")
    stamp(g, cfg, 12)
    g.A("s_endpgm")

    g.L("L_rf")
    S_I = S_X0 + 4
    g.A(f"s_sub_u32 s{S_I}, s{S_ROLE}, 32")
    g.A(f"s_cmp_ge_u32 s{S_I}, 28")
    g.A("s_cbranch_scc1 L_exit")
    V_WGU, V_WD = 17, 18
    g.A(f"v_lshrrev_b32 v{T}, 4, v{H_LANE}")
    g.A(f"v_lshlrev_b32 v{T}, 3, v{T}")
    g.A(f"s_lshl_b32 s{S_T0}, s{S_WAVE}, 5")
    g.A(f"v_add_u32 v{T}, s{S_T0}, v{T}")
    g.A(f"v_mul_u32_u24 v{V_WGU}, 3584, v{T}")
    g.A(f"v_and_b32 v{T}, 7, v{H_LANE}")
    g.A(f"v_lshl_add_u32 v{V_WGU}, v{T}, 4, v{V_WGU}")
    g.A(f"s_lshl_b32 s{S_T2}, s{S_I}, 7")
    g.A(f"s_sub_u32 s{S_X0+1}, {448*3584}, s{S_T2}")
    set_srd(g, SRD_A, P_WG, off_sreg=S_T2, nbytes_sreg=S_X0 + 1)
    set_srd(g, SRD_B, P_WU, off_sreg=S_T2, nbytes_sreg=S_X0 + 1)
    g.A(f"s_mul_i32 s{S_T2}, s{S_I}, {64*896}")
    g.A(f"s_sub_u32 s{S_X0+1}, {1792*896}, s{S_T2}")
    set_srd(g, SRD_C, P_WD, off_sreg=S_T2, nbytes_sreg=S_X0 + 1)
    woff128(V_WD)
    FSH, FSC, FLD, FLN = 176, 184, 208, 224
    skip = g.lab("nosb")
    g.A(f"s_cmp_ge_u32 s{S_WAVE}, 2")
    g.A(f"s_cbranch_scc1 {skip}")
    g.A(f"s_mul_i32 s{S_X0+3}, s{S_B}, {1344*8}")
    g.A(f"s_add_u32 s{S_X0+3}, s{S_X0+3}, {WS_MOD + 672*8}")
    exec56(g)
    gather_shift_scale(g, cfg, S_X0 + 3, V_G32, FLD, FSH, FSC, T)
    exec_all(g)
    g.L(skip)
    stamp(g, cfg, 5)
    def wd_unit(kb, dst):
        tile3_mask()
        unit_loads(g, dst, SRD_C, V_WD, [(kb * 32 + e) * 896 for e in range(8)], NT)
        exec_all(g)
    if cfg.WDEARLY:
        wd_unit(0, 32); wd_unit(1, 96)
        g.A("s_waitcnt vmcnt(8)"); transpose_unit(g, 32, 0, dst_acc=True, tmp=T)
        g.A("s_waitcnt vmcnt(0)"); transpose_unit(g, 96, 32, dst_acc=True, tmp=T)
    if cfg.LATEF:
        first_of_8(S_I, cfg.LATEOFF)
    stamp(g, cfg, 6)
    V_FXW, V_FXR = 19, 22
    g.A(f"s_lshl_b32 s{S_T0}, s{S_WAVE}, 13")
    g.A(f"s_add_u32 s{S_T0}, s{S_T0}, {L_FX}")
    g.A(f"v_add_u32 v{V_FXW}, s{S_T0}, v16")
    g.A(f"s_lshl_b32 s{S_T0}, s{S_WAVE}, 11")
    g.A(f"s_add_u32 s{S_T0}, s{S_T0}, {L_FX}")
    g.A(f"v_add_u32 v{V_FXR}, s{S_T0}, v16")
    FT = 160 - 32 if False else 32
    GU = [H_ST, H_ST + 32]
    def gu_unit_at(it, dst):
        g.A("s_mov_b32 exec_lo, 0x00ff00ff"); g.A("s_mov_b32 exec_hi, 0x00ff00ff")
        unit_loads(g, dst, SRD_A, V_WGU, [e * 3584 + it * 128 * 3584 for e in range(8)], NT)
        g.A("s_mov_b32 exec_lo, 0xff00ff00"); g.A("s_mov_b32 exec_hi, 0xff00ff00")
        unit_loads(g, dst, SRD_B, V_WGU, [e * 3584 + it * 128 * 3584 for e in range(8)], NT)
        exec_all(g)
    def exchange(it, src):
        transpose_unit(g, src, FT)
        for m in range(8):
            g.A(f"ds_write_b128 v{V_FXW}, {vr(FT + 4*m, 4)} offset:{m*1024}")
        g.A("s_waitcnt lgkmcnt(0)")
        g.A("s_barrier")
        for w in range(4 if it < 3 else 2):
            kb = 4 * it + w
            for mm in range(2):
                g.A(f"ds_read_b128 {vr(H_FR + (kb*2+mm)*4, 4)}, v{V_FXR} offset:{w*8192 + mm*1024}")
        g.A("s_waitcnt lgkmcnt(0)")
        g.A("s_barrier")
    g.A("s_barrier")
    if not cfg.X_SKIPFW:
        gu_unit_at(0, 192); gu_unit_at(1, 224); gu_unit_at(2, 128)
        g.A("s_waitcnt vmcnt(32)"); exchange(0, 192)
        gu_unit_at(3, 192)
        g.A("s_waitcnt vmcnt(32)"); exchange(1, 224)
        if not cfg.WDEARLY:
            wd_unit(0, 224)
            g.A("s_waitcnt vmcnt(24)"); exchange(2, 128)
            g.A("s_waitcnt vmcnt(8)"); exchange(3, 192)
            wd_unit(1, 192)
            g.A("s_waitcnt vmcnt(8)"); transpose_unit(g, 224, 0, dst_acc=True, tmp=T)
            g.A("s_waitcnt vmcnt(0)"); transpose_unit(g, 192, 32, dst_acc=True, tmp=T)
        else:
            g.A("s_waitcnt vmcnt(16)"); exchange(2, 128)
            g.A("s_waitcnt vmcnt(0)"); exchange(3, 192)
    V_AFH, V_AFD, V_A2W, V_X2O = 17, 18, 19, 27
    afrag_addr(V_AFH, ROWB)
    afrag_addr(V_AFD, ROWO)
    g.A(f"v_lshrrev_b32 v{T}, 4, v{H_LANE}")
    g.A(f"v_mul_u32_u24 v{V_A2W}, {ROWO}, v{T}")
    g.A(f"v_and_b32 v{T}, 7, v{H_LANE}")
    g.A(f"v_lshl_add_u32 v{V_A2W}, v{T}, 4, v{V_A2W}")
    g.A(f"s_lshl_b32 s{S_T0}, s{S_WAVE}, 2")
    g.A(f"v_add_u32 v{V_A2W}, s{S_T0}, v{V_A2W}")
    pub_base(WS_DN, S_I)
    g.A(f"s_and_b32 s{S_X0+5}, s{S_I}, {NREP_X-1}")
    g.A(f"s_lshl_b32 s{S_X0+5}, s{S_X0+5}, 12")
    g.A(f"s_lshl_b32 s{S_T0}, s{S_B}, 7")
    g.A(f"s_add_u32 s{S_X0+5}, s{S_X0+5}, s{S_T0}")
    g.A(f"s_add_u32 s{S_X0+5}, s{S_X0+5}, {WS_X2}")
    g.A(f"v_lshrrev_b32 v{T+2}, 4, v{H_LANE}")
    g.A(f"v_lshlrev_b32 v{T+2}, 10, v{T+2}")
    g.A(f"v_and_b32 v{T+3}, 15, v{H_LANE}")
    g.A(f"v_lshl_add_u32 v{V_X2O}, v{T+3}, 3, v{T+2}")
    g.A(f"s_mov_b32 s{S_X0+8}, -1")
    g.A(f"s_mov_b32 s{S_X0+9}, 0x00ffffff")
    stamp(g, cfg, 7)
    skip = g.lab("noln2")
    g.A(f"s_cmp_ge_u32 s{S_WAVE}, 2")
    g.A(f"s_cbranch_scc1 {skip}")
    exec56(g)
    items = [((lambda p=p: g.A(f"buffer_load_dwordx2 {vr(FLD + 2*p, 2)}, v{V_X2O}, {WSR}, s{S_X0+5} offen offset:{256*p} sc1")), [FLD + 2*p + 1]) for p in range(4)]
    masked_poll(g, cfg, items, S_X0 + 8, idle_sleep=cfg.IDLE, trace=16)
    exec_all(g)
    lazy(g, cfg, 0, 2)
    if cfg.LAZY != 2: stamp(g, cfg, 9)
    XF = FLD + 8
    unpack_pairs(g, [FLD, FLD + 2, FLD + 4, FLD + 6], [XF + e for e in range(8)])
    ln_normalize(g, XF, FLN, T)
    exec56(g)
    modulate_write(g, FLN, FSH, FSC, V_ACTW, L_ACTH, T)
    exec_all(g)
    g.L(skip)
    g.A("s_waitcnt lgkmcnt(0)")
    g.A("s_barrier")
    lazy(g, cfg, 1, 2)
    AFF = 192
    for kb in range(14):
        g.A(f"ds_read_b128 {vr(AFF + 4*kb, 4)}, v{V_AFH} offset:{L_ACTH + kb*64}")
    for kb in range(14):
        g.A(f"s_waitcnt lgkmcnt({min(15, 13-kb)})")
        for mm in range(2):
            acc = H_ACC + 4 * mm
            c = "0" if kb == 0 else vr(acc, 4)
            g.A(f"v_mfma_f32_16x16x32_bf16 {vr(acc,4)}, {vr(AFF + 4*kb, 4)}, {vr(H_FR + (kb*2+mm)*4, 4)}, {c}")
    g.A(f"s_mov_b32 s{S_T0}, {f2u(-LOG2E):#x}")
    g.A("s_nop 6")
    G0, G1, U0, U1 = T, T + 1, T + 2, T + 3
    g.A(f"v_mov_b32_dpp v{U0}, v{H_ACC} row_ror:8 row_mask:0xf bank_mask:0xf")
    g.A(f"v_mov_b32_dpp v{U1}, v{H_ACC+4} row_ror:8 row_mask:0xf bank_mask:0xf")
    g.A(f"v_cvt_pk_bf16_f32 v{T+4}, v{H_ACC}, v{H_ACC+4}")
    g.A(f"v_cvt_pk_bf16_f32 v{T+5}, v{U0}, v{U1}")
    g.A(f"v_lshlrev_b32 v{G0}, 16, v{T+4}")
    g.A(f"v_and_b32 v{G1}, 0xffff0000, v{T+4}")
    g.A(f"v_mul_f32 v{G0}, s{S_T0}, v{G0}")
    g.A(f"v_mul_f32 v{G1}, s{S_T0}, v{G1}")
    g.A(f"v_exp_f32 v{G0}, v{G0}")
    g.A(f"v_exp_f32 v{G1}, v{G1}")
    g.A(f"v_lshlrev_b32 v{U0}, 16, v{T+5}")
    g.A(f"v_and_b32 v{U1}, 0xffff0000, v{T+5}")
    g.A(f"v_add_f32 v{G0}, 1.0, v{G0}")
    g.A(f"v_add_f32 v{G1}, 1.0, v{G1}")
    g.A(f"v_rcp_f32 v{G0}, v{G0}")
    g.A(f"v_rcp_f32 v{G1}, v{G1}")
    g.A("s_nop 0")
    g.A(f"v_cvt_pk_bf16_f32 v{T+4}, v{G0}, v{G1}")
    g.A(f"v_lshlrev_b32 v{G0}, 16, v{T+4}")
    g.A(f"v_and_b32 v{G1}, 0xffff0000, v{T+4}")
    g.A(f"v_mul_f32 v{G0}, v{G0}, v{U0}")
    g.A(f"v_mul_f32 v{G1}, v{G1}, v{U1}")
    g.A(f"v_cvt_pk_bf16_f32 v{T+4}, v{G0}, v{G1}")
    g.A("s_mov_b32 exec_lo, 0x00ff00ff")
    g.A("s_mov_b32 exec_hi, 0")
    g.A(f"ds_write_b32 v{V_A2W}, v{T+4} offset:{L_ACTO}")
    exec_all(g)
    g.A("s_waitcnt lgkmcnt(0)")
    g.A("s_barrier")
    lazy(g, cfg, 3, 2)
    for kb in range(2):
        g.A(f"ds_read_b128 {vr(AFF + 4*kb, 4)}, v{V_AFD} offset:{L_ACTO + kb*64}")
    for kb in range(2):
        g.A(f"s_waitcnt lgkmcnt({1-kb})")
        mfma8(g, AFF + 4 * kb, 32 * kb, kb == 0, frag_acc=True)
    publish_rec()
    lazy(g, cfg, 4, 2)
    stamp(g, cfg, 10)
    lazy_flush(g, cfg, 5, 21, 2)
    g.A("s_endpgm")

def generate(cfg, header_src=None):
    g = G()
    g.A(f"s_cmp_ge_u32 s{S_WG}, {cfg.NSTREAM + cfg.NHELP}")
    g.A("s_cbranch_scc1 L_exit")
    if cfg.STAMPS:
        g.A("s_memrealtime s[84:85]")
    if cfg.DBGT:
        g.A("s_memrealtime s[92:93]")
    g.A(f"s_cmp_lt_u32 s{S_WG}, {cfg.NSTREAM}")
    g.A("s_cbranch_scc0 L_helper0")
    g.A(f"s_load_dwordx2 s[{P_K}:{P_K+1}], s[0:1], 8")
    if not cfg.FASTK:
        g.A(f"s_load_dwordx2 s[{P_V}:{P_V+1}], s[0:1], 16")
        g.A("s_load_dwordx4 s[40:43], s[0:1], 96")
    if cfg.CODEPF and cfg.EARLYPF:
        g.A("v_lshlrev_b32 v3, 7, v0")
        code_prefetch(g, cfg, KNAME, 'L_codeend', True, 3, 31, ninstr=2 if cfg.CODEPF2 else 1, per_instr=32768)
    g.A("v_lshrrev_b32 v1, 6, v0")
    g.A("v_and_b32 v0, 63, v0")
    g.A("s_nop 0")
    g.A(f"v_readfirstlane_b32 s{S_WAVE}, v1")
    g.A("s_nop 2")
    cfg.STAMP_V = 116
    emit_streamer(g, cfg)
    cfg.STAMP_V = 28
    g.L("L_helper0")
    g.A("s_load_dwordx16 s[16:31], s[0:1], 0")
    g.A("s_load_dwordx8 s[32:39], s[0:1], 64")
    g.A("s_load_dwordx4 s[40:43], s[0:1], 96")
    if cfg.CODEPF and cfg.EARLYPF:
        g.A("v_lshlrev_b32 v3, 7, v0")
        code_prefetch(g, cfg, KNAME, 'L_codeend', True, 3, 31, ninstr=2 if cfg.CODEPF2 else 1, per_instr=32768)
    g.A("v_lshrrev_b32 v1, 6, v0")
    g.A("v_and_b32 v0, 63, v0")
    g.A("s_nop 0")
    g.A(f"v_readfirstlane_b32 s{S_WAVE}, v1")
    g.A("v_mov_b32 v2, 0")
    g.A("s_waitcnt lgkmcnt(0)")
    set_srd(g, SRD_WS, P_WS, nbytes=WS_SIZE)
    g.A(f"buffer_load_dword v1, v2, s[{SRD_WS}:{SRD_WS+3}], 0 offen sc1")
    entry_stamp(g, cfg)
    emit_helper(g, cfg)
    g.L("L_exit")
    g.A("s_endpgm")
    g.L("L_codeend")
    hdr = open("adaLN_cond__mha_block_cached__glu_gated_glu__decode.s.ref").read().split("\n")
    head = []
    for line in hdr:
        if line.startswith("; @launch"):
            head.append(f"; @launch grid=({cfg.NSTREAM + cfg.NHELP},1,1) block=(256,1,1) lds={LDS_BYTES}")
            break
        head.append(line)
    txt = "\n".join(head) + "\n"
    txt += DOC
    txt += '.amdgcn_target "amdgcn-amd-amdhsa--gfx950"\n.text\n'
    txt += f".globl {KNAME}\n.p2align 8\n.type {KNAME},@function\n{KNAME}:\n"
    txt += "\n".join(g.o) + "\n"
    txt += f""".section .rodata,"a"
.p2align 6
.amdhsa_kernel {KNAME}
  .amdhsa_next_free_vgpr 512
  .amdhsa_next_free_sgpr 102
  .amdhsa_accum_offset 256
  .amdhsa_group_segment_fixed_size 0
  .amdhsa_kernarg_size 112
  .amdhsa_user_sgpr_count 2
  .amdhsa_user_sgpr_kernarg_segment_ptr 1
  .amdhsa_system_sgpr_workgroup_id_x 1
  .amdhsa_float_denorm_mode_32 3
.end_amdhsa_kernel
"""
    return txt

if __name__ == "__main__":
    import argparse
    ap = argparse.ArgumentParser()
    ap.add_argument("-o", default="k.s")
    ap.add_argument("--stamps", action="store_true")
    ap.add_argument("--set", nargs="*", default=[])
    a = ap.parse_args()
    cfg = Cfg()
    cfg.STAMPS = a.stamps
    for kv in a.set:
        k, v = kv.split("=")
        if isinstance(getattr(cfg, k), str): v = (" " + v.replace("_", " ")) if v else ""
        setattr(cfg, k, type(getattr(cfg, k))(v) if not isinstance(getattr(cfg, k), bool) else v in ("1", "True"))
    open(a.o, "w").write(generate(cfg))
    print("wrote", a.o)
```
